```python
import torch

def _softmax(x, axis=-1):
    return torch.softmax(x, dim=axis)

def _gelu(x):
    return torch.nn.functional.gelu(x, approximate='tanh')

def _silu(x):
    return torch.nn.functional.silu(x)

def _sigmoid(x):
    return torch.sigmoid(x)

def _layernorm(x, axis=-1, eps=1e-05):
    m = x.mean(dim=axis, keepdim=True)
    v = x.var(dim=axis, keepdim=True, unbiased=False)
    return (x - m) / torch.sqrt(v + eps)

def _scatter_add(tgt, idx, src, axis=0):
    return tgt.clone().index_add_(axis, idx, src)

def _segment_sum(src, seg, n):
    out = torch.zeros((n,) + src.shape[1:], dtype=src.dtype)
    return out.index_add_(0, seg, src)

def _pad(x, pw):
    flat = tuple((v for pair in reversed(pw) for v in pair))
    return torch.nn.functional.pad(x, flat)
kernel_name = 'adaLN_cond__linear_kernel_hedgehog__mixer_gmlp__prompt'

def setup_inputs():

    _w = lambda a: (lambda t: t.to(torch.bfloat16) if t.is_floating_point() else t)(torch.as_tensor(a))

    def _A_setup():
        B, S, D, H = (1, 2048, 1024, 32)
        Dh = D // H
        return {'x': _w((lambda *s: torch.randn(*s, dtype=torch.bfloat16) * 0.05)(B, S, D)), 'wqkv': _w((lambda *s: torch.randn(*s, dtype=torch.bfloat16) * 0.4)(D, 3 * D)), 'w_phi': _w((lambda *s: torch.randn(*s, dtype=torch.bfloat16) * 0.4)(H, Dh, Dh) * Dh ** (-0.5)), 'wo': _w((lambda *s: torch.randn(*s, dtype=torch.bfloat16) * 0.05)(D, D))}
    _A_in = _A_setup()

    def _B_setup():
        B, S, D, F = (1, 2048, 1024, 3584)
        Fh = F // 2
        return {'x': _w((lambda *s: torch.randn(*s, dtype=torch.bfloat16) * 0.05)(B, S, D)), 'w_in': _w((lambda *s: torch.randn(*s, dtype=torch.bfloat16) * 0.2)(D, 2 * Fh)), 'w_sp': _w(0.01 * (lambda *s: torch.randn(*s, dtype=torch.bfloat16) * 0.2)(S, S)), 'b_sp': _w(1.0 + 0.01 * (lambda *s: torch.randn(*s, dtype=torch.bfloat16) * 0.05)(S)), 'w_out': _w((lambda *s: torch.randn(*s, dtype=torch.bfloat16) * 0.05)(Fh, D))}
    _B_in = _B_setup()
    return {'A_x': _A_in['x'], 'A_wqkv': _A_in['wqkv'], 'A_w_phi': _A_in['w_phi'], 'A_wo': _A_in['wo'], 'B_x': _B_in['x'], 'B_w_in': _B_in['w_in'], 'B_w_sp': _B_in['w_sp'], 'B_b_sp': _B_in['b_sp'], 'B_w_out': _B_in['w_out'], 'c': _w((lambda *s: torch.randn(*s, dtype=torch.bfloat16) * 0.1)(1, 1024) * 8.0), 'w_mod': _w((lambda *s: torch.randn(*s, dtype=torch.bfloat16) * 0.1)(1024, 6 * 1024) * 1024 ** (-0.5) * 8.0)}

def reference(A_x, A_wqkv, A_w_phi, A_wo, B_x, B_w_in, B_w_sp, B_b_sp, B_w_out, c, w_mod):

    def _A_ref(x, wqkv, w_phi, wo):
        B, S, D = x.shape
        H = 32
        Dh = D // H
        qkv = (lambda x, *d: x.permute(*d))((x @ wqkv).reshape(B, S, 3, H, Dh), 2, 0, 3, 1, 4)
        q, k, v = (qkv[0], qkv[1], qkv[2])
        pq = torch.einsum('bhsd,hdf->bhsf', q, w_phi)
        pk = torch.einsum('bhsd,hdf->bhsf', k, w_phi)
        phi_q = torch.concatenate([_softmax(pq, axis=-1), _softmax(-pq, axis=-1)], axis=-1)
        phi_k = torch.concatenate([_softmax(pk, axis=-1), _softmax(-pk, axis=-1)], axis=-1)
        kv = torch.einsum('bhsf,bhsd->bhfd', phi_k, v)
        z = torch.einsum('bhsf->bhf', phi_k)
        num = torch.einsum('bhqf,bhfd->bhqd', phi_q, kv)
        den = torch.einsum('bhqf,bhf->bhq', phi_q, z)[..., None] + 1e-06
        o = num / den
        return (lambda x, *d: x.permute(*d))(o, 0, 2, 1, 3).reshape(B, S, D) @ wo

    def _B_ref(x, w_in, w_sp, b_sp, w_out):
        B, S, D = x.shape
        F = w_in.shape[-1]
        Fh = F // 2
        z = _gelu(torch.einsum('bsd,df->bsf', x, w_in))
        z1 = z[..., :Fh].clone()
        z2 = _layernorm(z[..., Fh:], axis=-1)
        g = torch.einsum('ts,bsf->btf', w_sp, z2) + b_sp[None, :, None]
        return torch.einsum('bsf,fd->bsd', z1 * g, w_out)
    x = A_x
    mod = (_silu(c) @ w_mod).reshape(c.shape[0], 6, 1, -1)
    sa, ca, ga, sb, cb, gb = (mod[:, 0].clone(), mod[:, 1].clone(), mod[:, 2].clone(), mod[:, 3].clone(), mod[:, 4].clone(), mod[:, 5].clone())
    h = _layernorm(x, axis=-1) * (1 + ca) + sa
    x = x + ga * _A_ref(h, A_wqkv, A_w_phi, A_wo)
    h = _layernorm(x, axis=-1) * (1 + cb) + sb
    x = x + gb * _B_ref(h, B_w_in, B_w_sp, B_b_sp, B_w_out)
    return x
```

```python
import sys, math

NAME = "adaLN_cond__linear_kernel_hedgehog__mixer_gmlp__prompt"

WS_MOD = 0x0
WS_ST1 = 0x8000
WS_SUM2 = 0xC000
WS_SUM3 = 0x10000
WS_KVP = 0x100000
KVP_STRIDE = 8448
WS_PHIQ = 0x800000
WS_O = 0x1000000
WS_X1 = 0x4800000
WS_Z1 = 0x1800000
WS_Z2 = 0x2000000
WS_U = 0x2800000

P_X, P_WQKV, P_WPHI, P_WO, P_BX, P_WIN, P_WSP, P_BSP, P_WOUT, P_C, P_WMOD, P_OUT, P_DBG, P_WS = range(14)
LOG2E = 1.4426950408889634


def f32bits(x):
    import struct
    return struct.unpack("<I", struct.pack("<f", x))[0]


class Asm:
    def __init__(self):
        self.lines = []
        self.nlab = 0

    def __call__(self, s):
        self.lines.append("    " + s)

    def label(self, l):
        self.lines.append(l + ":")

    def newlabel(self, p):
        self.nlab += 1
        return "L_%s_%d" % (p, self.nlab)

    def c(self, s):
        self.lines.append("    ; " + s)


def vr(b, n):
    return "v[%d:%d]" % (b, b + n - 1) if n > 1 else "v%d" % b


def sr(b, n):
    return "s[%d:%d]" % (b, b + n - 1) if n > 1 else "s%d" % b


def ptr(i):
    return 36 + 2 * i


def load_kernargs(a):
    a("s_load_dwordx16 s[36:51], s[0:1], 0")
    a("s_load_dwordx8 s[52:59], s[0:1], 64")
    a("s_load_dwordx4 s[60:63], s[0:1], 96")


def srd(a, d, p, off, size):
    lo, hi = ptr(p), ptr(p) + 1
    if off == 0:
        a("s_mov_b32 s%d, s%d" % (d, lo))
        a("s_mov_b32 s%d, s%d" % (d + 1, hi))
    else:
        a("s_add_u32 s%d, s%d, %s" % (d, lo, off if isinstance(off, str) else hex(off)))
        a("s_addc_u32 s%d, s%d, 0" % (d + 1, hi))
    a("s_mov_b32 s%d, %s" % (d + 2, size if isinstance(size, str) else hex(size)))
    a("s_mov_b32 s%d, 0x00020000" % (d + 3))


def kernel_head(a, name):
    a.lines.append(".globl %s" % name)
    a.lines.append(".p2align 8")
    a.lines.append(".type %s,@function" % name)
    a.label(name)


def kernel_desc(name, vgpr, sgpr=100):
    acc = (vgpr + 3) // 4 * 4
    return """.p2align 6
.amdhsa_kernel %s
  .amdhsa_next_free_vgpr %d
  .amdhsa_next_free_sgpr %d
  .amdhsa_accum_offset %d
  .amdhsa_group_segment_fixed_size 0
  .amdhsa_kernarg_size 112
  .amdhsa_user_sgpr_count 2
  .amdhsa_user_sgpr_kernarg_segment_ptr 1
  .amdhsa_system_sgpr_workgroup_id_x 1
.end_amdhsa_kernel""" % (name, vgpr, sgpr, acc)


DBG = dict(noload=False, nowrite=False, nomfma=False, noread=False, noform=False, stamp=False, stampiss=False, cb=0)

class Gemm:
    def __init__(self, name, BM, BN, K, mf, wgm, wgn, ldx, ldw, ntiles, D=4):
        self.name, self.BM, self.BN, self.K, self.mf = name, BM, BN, K, mf
        self.wgm, self.wgn, self.ldx, self.ldw, self.ntiles, self.D = wgm, wgn, ldx, ldw, ntiles, D
        assert wgm * wgn == 4
        self.WM, self.WN = BM // wgm, BN // wgn
        self.nk = K // 64
        assert self.nk % 2 == 0
        self.PX = 144 if mf == 32 else 160
        pw = BN * 2
        if mf == 32:
            while pw % 256 not in (64, 192):
                pw += 64
            self.PW, self.dl = pw, 0
        else:
            while (pw // 64) % 2 == 0 or pw % 64:
                pw += 16
            self.PW, self.dl = pw, 32
        self.XS = BM * self.PX
        self.WS = 64 * self.PW + 8 * self.dl
        self.XB = 0
        self.WB = 2 * self.XS
        self.LDS_MAIN = self.WB + 2 * self.WS
        assert 2 * self.XS <= 65536 and 2 * self.WS <= 65536
        self.NT = self.WM // mf
        self.MT = self.WN // mf
        self.S = 4 if mf == 32 else 2
        self.accn = 16 if mf == 32 else 4
        self.segs = []
        u = BN // 8
        o = 0
        while u >= 8:
            self.segs.append((o, o, 8)); o += 128; u -= 8
        if u:
            assert u == 4
            self.segs.append((o, o, 4))
        self.xform = None
        self.wform = None
        self.lds_extra = 0
        self.FR = 16
        self.nfr = (self.NT + self.MT) * 4
        self.ACC = self.FR + 2 * self.nfr
        self.ACC = (self.ACC + 3) // 4 * 4
        self.nacc = self.NT * self.MT * self.accn
        self.CFREE = self.ACC + self.nacc

    def acc(self, i, j):
        return self.ACC + (i * self.NT + j) * self.accn

    def xfrag(self, s, j):
        return self.FR + s * self.nfr + j * 4

    def wfrag(self, s, i):
        return self.FR + s * self.nfr + (self.NT + i) * 4

    def reads(self, slot, sub, fs):
        out = []
        mf = self.mf
        xs, ws = [], []
        for j in range(self.NT):
            imm = slot * self.XS + j * mf * self.PX + sub * (32 if mf == 32 else 64)
            xs.append("ds_read_b128 %s, v2 offset:%d" % (vr(self.xfrag(fs, j), 4), imm))
        for i in range(self.MT):
            for q in range(2):
                if mf == 32:
                    imm = slot * self.WS + (16 * sub + 4 * q) * self.PW + i * 64
                else:
                    imm = slot * self.WS + (32 * sub + 4 * q) * self.PW + 4 * sub * 32 + i * 32
                ws.append("ds_read_b64_tr_b16 %s, v3 offset:%d" % (vr(self.wfrag(fs, i) + 2 * q, 2), imm))
        out = ws[0:2] + xs + ws[2:]
        return out

    def mfmas(self, fs):
        op = "v_mfma_f32_32x32x16_bf16" if self.mf == 32 else "v_mfma_f32_16x16x32_bf16"
        out = []
        for i in range(self.MT):
            for j in range(self.NT):
                A = self.acc(i, j)
                out.append("%s %s, %s, %s, %s" % (op, vr(A, self.accn), vr(self.wfrag(fs, i), 4),
                                                  vr(self.xfrag(fs, j), 4), vr(A, self.accn)))
        return out

    def compute_addr(self, a):
        mf = self.mf
        a("v_and_b32 v1, 63, v0")
        if self.wgn == 1:
            a("s_mul_i32 s34, s3, %d" % self.WM); a("s_mov_b32 s35, 0")
        elif self.wgm == 1:
            a("s_mov_b32 s34, 0"); a("s_mul_i32 s35, s3, %d" % self.WN)
        else:
            a("s_lshr_b32 s34, s3, 1"); a("s_mul_i32 s34, s34, %d" % self.WM)
            a("s_and_b32 s35, s3, 1"); a("s_mul_i32 s35, s35, %d" % self.WN)
        sh = 5 if mf == 32 else 4
        a("v_and_b32 v4, %d, v1" % (mf - 1))
        a("v_add_u32 v4, s34, v4")
        a("v_mul_u32_u24 v2, %d, v4" % self.PX)
        a("v_lshrrev_b32 v4, %d, v1" % sh)
        a("v_lshl_add_u32 v2, v4, 4, v2")
        if self.XB:
            a("v_add_u32 v2, %d, v2" % self.XB)
        a("v_bfe_u32 v4, v1, 2, 2")
        a("v_lshrrev_b32 v5, %d, v1" % sh)
        a("v_lshl_add_u32 v4, v5, 3, v4")
        a("v_mul_u32_u24 v3, %d, v4" % self.PW)
        if mf == 32:
            a("v_bfe_u32 v4, v1, 4, 1")
            a("v_lshl_add_u32 v3, v4, 5, v3")
            a("v_and_b32 v4, 1, v1")
            a("v_lshl_add_u32 v3, v4, 4, v3")
            a("v_bfe_u32 v4, v1, 1, 1")
            a("v_lshl_add_u32 v3, v4, 3, v3")
        else:
            a("v_lshl_add_u32 v3, v5, 5, v3")
            a("v_and_b32 v4, 3, v1")
            a("v_lshl_add_u32 v3, v4, 3, v3")
        a("s_lshl_b32 s6, s35, 1")
        a("s_add_u32 s6, s6, %d" % self.WB)
        a("v_add_u32 v3, s6, v3")

    def interleave(self, a, mf, rd, first_after=None):
        if DBG["nomfma"]:
            mf = ["s_nop 0"] * len(mf)
        if DBG["noread"]:
            rd = []
        n = len(mf)
        per = 2 if self.mf == 32 else 1
        per = max(per, -(-len(rd) // max(1, n - 1)))
        ri = 0
        for t, m in enumerate(mf):
            a(m)
            if t == 0 and first_after:
                for x in first_after:
                    a(x)
            for _ in range(per):
                if ri < len(rd):
                    a(rd[ri]); ri += 1
        while ri < len(rd):
            a(rd[ri]); ri += 1

    def compute_main(self, a):
        for r in range(self.nacc):
            a("v_mov_b32 v%d, 0" % (self.ACC + r))
        a("s_barrier")
        self.stamp(1)
        for x in self.reads(0, 0, 0):
            a(x)
        a("s_mov_b32 s6, %d" % (self.nk // 2))
        L = a.newlabel(self.name + "_cl")
        a.lines.append(".p2align 4")
        a.label(L)
        for slot in range(2):
            for sub in range(self.S):
                fs = sub & 1
                a("s_waitcnt lgkmcnt(0)")
                if sub < self.S - 1:
                    self.interleave(a, self.mfmas(fs), self.reads(slot, sub + 1, fs ^ 1))
                else:
                    extra = ["s_barrier"]
                    if slot == 1:
                        extra = ["s_sub_u32 s6, s6, 1", "s_barrier"]
                    self.interleave(a, self.mfmas(fs), self.reads(slot ^ 1, 0, fs ^ 1), first_after=extra)
        a("s_cmp_lg_u32 s6, 0")
        a("s_cbranch_scc1 %s" % L)
        a("s_waitcnt lgkmcnt(0)")

    def loader_setup(self, a):
        self.loads = []
        nx = self.BM // 32
        r = 4
        a("v_and_b32 v1, 255, v0")
        a("v_and_b32 v2, 7, v0")
        a("v_lshrrev_b32 v3, 3, v1")
        self.vXw = r; r += 1
        a("v_mul_u32_u24 v%d, %d, v3" % (self.vXw, self.PX))
        a("v_lshl_add_u32 v%d, v2, 4, v%d" % (self.vXw, self.vXw))
        if self.XB:
            a("v_add_u32 v%d, %d, v%d" % (self.vXw, self.XB, self.vXw))
        a("s_mov_b32 s6, %d" % self.ldx)
        for i in range(nx):
            if i == 0:
                a("v_mul_lo_u32 v%d, s6, v3" % r)
                a("v_lshl_add_u32 v%d, v2, 4, v%d" % (r, r))
            else:
                a("v_add_u32 v%d, %d, v%d" % (r, 32 * self.ldx, r - 1))
            self.loads.append(dict(kind="x", i=i, voff=r, srd=8, soff=7, lbase=self.vXw, limm=i * 32 * self.PX,
                                   lslot=self.XS))
            r += 1
        a("v_bfe_u32 v3, v0, 3, 3")
        a("s_sub_u32 s6, s3, 4")
        a("s_lshl_b32 s6, s6, 4")
        a("v_add_u32 v3, s6, v3")
        self.vWrow = r; r += 1
        a("v_mov_b32 v%d, v3" % self.vWrow)
        self.vWw = r; r += 1
        a("v_mul_u32_u24 v%d, %d, v3" % (self.vWw, self.PW))
        a("v_lshl_add_u32 v%d, v2, 4, v%d" % (self.vWw, self.vWw))
        a("s_lshr_b32 s6, s6, 3")
        a("s_mul_i32 s6, s6, %d" % self.dl)
        a("s_add_u32 s6, s6, %d" % self.WB)
        a("v_add_u32 v%d, s6, v%d" % (self.vWw, self.vWw))
        a("s_mov_b32 s6, %d" % self.ldw)
        base = r
        a("v_mul_lo_u32 v%d, s6, v3" % base)
        a("v_lshl_add_u32 v%d, v2, 4, v%d" % (base, base))
        first = True
        for hh in range(2):
            for (go, lo, un) in self.segs:
                if un != 8:
                    continue
                if not first:
                    a("v_add_u32 v%d, %d, v%d" % (r, hh * 8 * self.ldw + go, base))
                else:
                    assert go == 0
                first = False
                self.loads.append(dict(kind="w", hh=hh, voff=r, srd=12, soff=33, lbase=self.vWw,
                                       limm=hh * (8 * self.PW + self.dl) + lo, lslot=self.WS))
                r += 1
        for (go, lo, un) in self.segs:
            if un == 4:
                a("v_bfe_u32 v3, v0, 2, 4")
                a("s_sub_u32 s6, s3, 4")
                a("s_lshl_b32 s6, s6, 4")
                a("v_add_u32 v3, s6, v3")
                a("v_and_b32 v2, 3, v0")
                w2 = r; r += 1
                a("v_mul_u32_u24 v%d, %d, v3" % (w2, self.PW))
                a("v_lshl_add_u32 v%d, v2, 4, v%d" % (w2, w2))
                a("v_lshrrev_b32 v1, 3, v3")
                a("v_mul_u32_u24 v1, %d, v1" % self.dl)
                a("v_add3_u32 v%d, v%d, v1, %s" % (w2, w2, "s34"))
                a.lines.insert(len(a.lines) - 1, "    s_mov_b32 s34, %d" % (self.WB + lo))
                a("s_mov_b32 s6, %d" % self.ldw)
                a("v_mul_lo_u32 v%d, s6, v3" % r)
                a("v_lshl_add_u32 v%d, v2, 4, v%d" % (r, r))
                a("v_add_u32 v%d, %d, v%d" % (r, go, r))
                self.loads.append(dict(kind="w", hh=None, voff=r, srd=12, soff=33, lbase=w2, limm=0, lslot=self.WS))
                r += 1
        self.LT = (r + 1) // 2 * 2
        self.L = len(self.loads)
        self.RING = 256 - self.D * self.L * 4
        assert self.D * self.L <= 63
        a("s_mov_b32 s7, 0")
        a("s_mov_b32 s33, 0")

    def ring(self, stage, i):
        return self.RING + ((stage % self.D) * self.L + i) * 4

    def issue(self, a, stage, i, first=False):
        ld = self.loads[i]
        if DBG["noload"] and not first:
            return
        a("buffer_load_dwordx4 %s, v%d, %s, s%d offen" % (vr(self.ring(stage, i), 4), ld["voff"], sr(ld["srd"], 4),
                                                       ld["soff"]))

    def advance(self, a):
        a("s_add_u32 s7, s7, 128")
        a("s_add_u32 s33, s33, %d" % (64 * self.ldw))

    def loader_step(self, a, j, reissue, remaining):
        slot = j & 1
        for i, ld in enumerate(self.loads):
            if reissue:
                a("s_waitcnt vmcnt(%d)" % (self.D * self.L - 1))
            else:
                a("s_waitcnt vmcnt(%d)" % (remaining * self.L - i - 1))
            src = self.ring(j, i)
            hook = self.xform if ld["kind"] == "x" else self.wform
            if DBG["noform"]:
                hook = None
            if DBG["nowrite"]:
                if reissue:
                    self.issue(a, j, i)
                continue
            if hook:
                src = hook(a, ld, src, j)
                if reissue:
                    self.issue(a, j, i)
                a("ds_write_b128 v%d, %s offset:%d" % (ld["lbase"], vr(src, 4), ld["limm"] + slot * ld["lslot"]))
            else:
                a("ds_write_b128 v%d, %s offset:%d" % (ld["lbase"], vr(src, 4), ld["limm"] + slot * ld["lslot"]))
                if reissue:
                    self.issue(a, j, i)
            if getattr(self, "after_load", None):
                self.after_load(a, ld, i)
        if reissue:
            self.advance(a)
        a("s_waitcnt lgkmcnt(0)")
        a("s_barrier")

    def loader_issue_first(self, a):
        for st in range(self.D):
            for i in range(self.L):
                self.issue(a, st, i, True)
            self.advance(a)

    def loader_main(self, a):
        U = self.D * 2 // math.gcd(self.D, 2)
        nmain = self.nk - self.D
        assert nmain % U == 0
        if nmain:
            a("s_mov_b32 s6, %d" % (nmain // U))
            L = a.newlabel(self.name + "_ll")
            a.lines.append(".p2align 4")
            a.label(L)
            for j in range(U):
                self.loader_step(a, j, True, None)
            a("s_sub_u32 s6, s6, 1")
            a("s_cmp_lg_u32 s6, 0")
            a("s_cbranch_scc1 %s" % L)
        for j in range(self.D):
            self.loader_step(a, nmain + j, False, self.D - j)
        a("s_barrier")

    def emit(self, a, tilemap, setup, cpro, lpro, epi, lepi=None):
        kn = self.name + "_kernel"
        kernel_head(a, kn)
        end = a.newlabel(self.name + "_end")
        ldr = a.newlabel(self.name + "_ldr")
        a("s_cmp_ge_u32 s2, %d" % self.ntiles)
        a("s_cbranch_scc1 %s" % end)
        load_kernargs(a)
        a("v_lshrrev_b32 v1, 6, v0")
        tilemap(a)
        a("v_readfirstlane_b32 s3, v1")
        a("s_waitcnt lgkmcnt(0)")
        setup(a)
        a("s_cmp_ge_u32 s3, 4")
        a("s_cbranch_scc1 %s" % ldr)
        a("s_setprio 2")
        def stamp(i):
            if DBG["stamp"]:
                a("s_memtime s[%d:%d]" % (80 + 4 * i, 81 + 4 * i))
                a("s_memrealtime s[%d:%d]" % (82 + 4 * i, 83 + 4 * i))
        stamp(0)
        self.compute_addr(a)
        cpro(a)
        self.stamp = stamp
        self.compute_main(a)
        stamp(2)
        epi(a)
        if DBG["stamp"]:
            a("s_waitcnt vmcnt(0)")
            stamp(3)
            a("s_waitcnt lgkmcnt(0)")
            a("s_mov_b64 exec, 1")
            a("s_lshl_b32 s6, s2, 2"); a("s_add_u32 s6, s6, s3"); a("s_lshl_b32 s6, s6, 6")
            a("s_add_u32 s6, s6, 0x4000000")
            srd(a, 8, P_WS, "s6", 64)
            a("v_mov_b32 v1, 0")
            for i in range(16):
                a("v_mov_b32 v2, s%d" % (80 + i))
                a("buffer_store_dword v2, v1, s[8:11], 0 offen offset:%d" % (4 * i))
        a("s_endpgm")
        a.label(ldr)
        self.loader_setup(a)
        lpro(a)
        self.loader_main(a)
        if lepi:
            lepi(a)
        a.label(end)
        a("s_endpgm")
        return kn


def tilemap_16x16_r8c4(a):
    a("s_lshr_b32 s6, s2, 3")
    a("s_and_b32 s4, s6, 7")
    a("s_and_b32 s7, s2, 1")
    a("s_lshl_b32 s7, s7, 3")
    a("s_add_u32 s4, s4, s7")
    a("s_lshr_b32 s5, s6, 3")
    a("s_bfe_u32 s7, s2, 0x20001")
    a("s_lshl_b32 s7, s7, 2")
    a("s_add_u32 s5, s5, s7")


def tilemap_16x16_r4c8(a):
    a("s_lshr_b32 s6, s2, 3")
    a("s_and_b32 s4, s6, 3")
    a("s_and_b32 s7, s2, 3")
    a("s_lshl_b32 s7, s7, 2")
    a("s_add_u32 s4, s4, s7")
    a("s_lshr_b32 s5, s6, 2")
    a("s_bfe_u32 s7, s2, 0x10002")
    a("s_lshl_b32 s7, s7, 3")
    a("s_add_u32 s5, s5, s7")


def tilemap_16x14(a):
    a("s_lshr_b32 s6, s2, 3")
    a("s_and_b32 s4, s6, 3")
    a("s_and_b32 s7, s2, 3")
    a("s_lshl_b32 s7, s7, 2")
    a("s_add_u32 s4, s4, s7")
    a("s_lshr_b32 s5, s6, 2")
    a("s_bfe_u32 s7, s2, 0x10002")
    a("s_mul_i32 s7, s7, 7")
    a("s_add_u32 s5, s5, s7")


def nothing(a):
    pass


def unpack2(a, dst, src):
    a("v_lshlrev_b32 v%d, 16, v%d" % (dst, src))
    a("v_and_b32 v%d, 0xffff0000, v%d" % (dst + 1, src))


def xw_srds(a, g, xp, xoff, wp, woff, wtotal):
    a("s_mul_i32 s6, s4, %d" % (g.BM * g.ldx))
    if xoff:
        a("s_add_u32 s6, s6, %s" % hex(xoff))
    srd(a, 8, xp, "s6", g.BM * g.ldx)
    a("s_mul_i32 s6, s5, %d" % g.colbytes)
    a("s_sub_u32 s7, %s, s6" % hex(wtotal))
    if woff:
        a("s_add_u32 s6, s6, %s" % hex(woff))
    srd(a, 12, wp, "s6", "s7")
```

```python
from gen import *

STAMP_OFF = 0x4000000

class Gemm2:
    def __init__(self, name, BM, K, mf, wgm, wgn, ldx, ldw, ntiles, S, groups):
        self.name, self.BM, self.K, self.mf = name, BM, K, mf
        self.wgm, self.wgn, self.ldx, self.ldw, self.ntiles, self.S = wgm, wgn, ldx, ldw, ntiles, S
        self.groups = groups
        self.nk = K // 64
        self.XI = BM * 128
        self.goff = []
        o = self.XI
        for nch, _ in groups:
            self.goff.append(o); o += 64 * nch * 16
        self.STG = o
        assert self.STG % 4096 == 0
        self.P = self.STG // 4096
        self.LDS_MAIN = S * self.STG
        self.WM = BM // wgm
        self.NT = self.WM // mf
        self.NS = 4 if mf == 32 else 2
        self.accn = 16 if mf == 32 else 4
        full = [g for g, (n, _) in enumerate(groups) if n == 8]
        half = [g for g, (n, _) in enumerate(groups) if n == 4]
        self.wt = []
        if mf == 32:
            if wgn == 2:
                self.nwa = 1
                for g in full: self.wt.append((0, self.goff[g], 128))
            else:
                self.nwa = 2
                for g in full:
                    for h in range(2): self.wt.append((h, self.goff[g], 128))
            assert not half
        else:
            assert wgn == 2
            self.nwa = 2 + len(half)
            for g in full:
                for o in range(2): self.wt.append((o, self.goff[g], 128))
            for g in half: self.wt.append((2, self.goff[g], 64))
        self.MT = len(self.wt)
        self.VX = 2
        self.VW = self.VX + self.NS
        assert self.VW + self.nwa <= 9
        self.FR = 16
        self.nfr = (self.NT + self.MT) * 4
        self.ACC = self.FR + 2 * self.nfr
        self.nacc = self.NT * self.MT * self.accn
        self.CFREE = self.ACC + self.nacc
        self.prio = 2

    def acc(self, i, j): return self.ACC + (i * self.NT + j) * self.accn
    def xfrag(self, s, j): return self.FR + s * self.nfr + j * 4
    def wfrag(self, s, i): return self.FR + s * self.nfr + (self.NT + i) * 4

    def reads(self, sub, fs):
        xs, ws = [], []
        for j in range(self.NT):
            xs.append("ds_read_b128 %s, v%d offset:%d" % (vr(self.xfrag(fs, j), 4), self.VX + sub, j * self.mf * 128))
        kr = 16 if self.mf == 32 else 32
        for i, (ar, imm, pitch) in enumerate(self.wt):
            for q in range(2):
                ws.append("ds_read_b64_tr_b16 %s, v%d offset:%d" % (vr(self.wfrag(fs, i) + 2 * q, 2), self.VW + ar,
                                                                    imm + (kr * sub + 4 * q) * pitch))
        return ws[0:2] + xs + ws[2:]

    def mfmas(self, fs):
        op = "v_mfma_f32_32x32x16_bf16" if self.mf == 32 else "v_mfma_f32_16x16x32_bf16"
        out = []
        for i in range(self.MT):
            for j in range(self.NT):
                A = self.acc(i, j)
                out.append("%s %s, %s, %s, %s" % (op, vr(A, self.accn), vr(self.wfrag(fs, i), 4),
                                                  vr(self.xfrag(fs, j), 4), vr(A, self.accn)))
        return out

    def compute_addr(self, a):
        mf = self.mf
        a("v_and_b32 v1, 63, v0")
        if self.wgn == 1:
            a("s_mul_i32 s34, s3, %d" % self.WM); a("s_mov_b32 s35, 0")
        else:
            a("s_lshr_b32 s34, s3, 1"); a("s_mul_i32 s34, s34, %d" % self.WM)
            a("s_and_b32 s35, s3, 1")
        sh = 5 if mf == 32 else 4
        X = self.VX
        a("v_and_b32 v10, %d, v1" % (mf - 1))
        a("v_bfe_u32 v11, v1, 1, 3")
        a("v_lshrrev_b32 v12, %d, v1" % sh)
        a("v_xor_b32 v11, v11, v12")
        a("v_add_u32 v10, s34, v10")
        a("v_lshlrev_b32 v10, 7, v10")
        a("v_lshl_add_u32 v%d, v11, 4, v10" % X)
        for s in range(1, self.NS):
            a("v_xor_b32 v%d, %d, v%d" % (X + s, s * (32 if mf == 32 else 64), X))
        W = self.VW
        a("v_bfe_u32 v10, v1, 2, 2")
        a("v_lshl_add_u32 v10, v12, 3, v10")
        if mf == 32:
            a("v_bfe_u32 v11, v1, 4, 1"); a("v_lshlrev_b32 v11, 5, v11")
            a("v_and_b32 v13, 1, v1"); a("v_lshl_add_u32 v11, v13, 4, v11")
            a("v_bfe_u32 v13, v1, 1, 1"); a("v_lshl_add_u32 v11, v13, 3, v11")
            a("v_bfe_u32 v13, v1, 3, 1"); a("v_lshl_add_u32 v11, v13, 6, v11")
            a("v_lshl_add_u32 v%d, v10, 7, v11" % W)
            if self.wgn == 2:
                a("s_lshl_b32 s6, s35, 6")
                a("v_xor_b32 v%d, s6, v%d" % (W, W))
            else:
                a("v_xor_b32 v%d, 64, v%d" % (W + 1, W))
        else:
            a("v_and_b32 v11, 3, v1"); a("v_lshlrev_b32 v11, 3, v11")
            a("v_bfe_u32 v13, v1, 4, 1")
            if self.nwa == 3:
                a("v_xor_b32 v14, s35, v13"); a("v_lshl_add_u32 v14, v14, 5, v11")
                a("v_lshl_add_u32 v%d, v10, 6, v14" % (W + 2))
            a("v_xor_b32 v13, s35, v13"); a("v_lshl_add_u32 v11, v13, 6, v11")
            a("v_bfe_u32 v13, v1, 3, 1"); a("v_lshl_add_u32 v11, v13, 5, v11")
            a("v_lshl_add_u32 v%d, v10, 7, v11" % W)
            a("v_xor_b32 v%d, 32, v%d" % (W + 1, W))

    def interleave(self, a, mf, rd, first_after=None, tail=()):
        if DBG["nomfma"]: mf = ["s_nop 0"] * len(mf)
        if DBG["noread"]: rd = []
        rd = list(rd) + list(tail)
        n = len(mf)
        per = 2 if self.mf == 32 else 1
        per = max(per, -(-len(rd) // max(1, n - 1)))
        ri = 0
        for t, m in enumerate(mf):
            a(m)
            if t == 0 and first_after:
                for x in first_after: a(x)
            for _ in range(per):
                if ri < len(rd):
                    a(rd[ri]); ri += 1
        while ri < len(rd):
            a(rd[ri]); ri += 1

    def slot_next(self, a):
        a("s_add_u32 s64, s64, %d" % self.STG)
        a("s_cmp_eq_u32 s64, %d" % (self.S * self.STG))
        a("s_cselect_b32 s65, %s, s67" % (hex((-(self.S - 1) * self.STG) & 0xffffffff)))
        a("s_cselect_b32 s64, 0, s64")

    def compute_main(self, a):
        for r in range(self.nacc):
            a("v_mov_b32 v%d, 0" % (self.ACC + r))
        a("s_mov_b32 s64, 0")
        a("s_mov_b32 s67, %d" % self.STG)
        a("s_mov_b32 s6, %d" % self.nk)
        a("s_barrier")
        self.stamp(a, 1)
        for x in self.reads(0, 0): a(x)
        L = a.newlabel(self.name + "_cl")
        a.lines.append(".p2align 4")
        a.label(L)
        self.slot_next(a)
        for sub in range(self.NS):
            fs = sub & 1
            a("s_waitcnt lgkmcnt(0)")
            if sub < self.NS - 1:
                tail = ["v_add_u32 v%d, s65, v%d" % (self.VX + sub + 1, self.VX + sub + 1)]
                if sub == 0: tail.append("v_add_u32 v%d, s65, v%d" % (self.VX, self.VX))
                if sub == self.NS - 2:
                    tail += ["v_add_u32 v%d, s65, v%d" % (self.VW + w, self.VW + w) for w in range(self.nwa)]
                self.interleave(a, self.mfmas(fs), self.reads(sub + 1, fs ^ 1), tail=tail)
            else:
                self.interleave(a, self.mfmas(fs), self.reads(0, fs ^ 1), first_after=["s_sub_u32 s6, s6, 1", "s_barrier"])
        a("s_cmp_lg_u32 s6, 0")
        a("s_cbranch_scc1 %s" % L)
        a("s_waitcnt lgkmcnt(0)")

    def loader_setup(self, a):
        self.pieces = []
        a("s_sub_u32 s34, s3, 4")
        a("v_and_b32 v1, 63, v0")
        a("v_lshrrev_b32 v2, 3, v1")
        a("v_and_b32 v3, 7, v1")
        a("s_lshl_b32 s6, s34, 3")
        a("v_add_u32 v2, s6, v2")
        r = 16
        a("v_bfe_u32 v4, v2, 1, 3")
        a("v_xor_b32 v4, v4, v3")
        a("s_mov_b32 s6, %d" % self.ldx)
        a("v_mul_lo_u32 v5, s6, v2")
        for i in range(self.BM // 32):
            if i == 0: a("v_lshl_add_u32 v%d, v4, 4, v5" % r)
            else: a("v_add_u32 v%d, %d, v%d" % (r, 32 * self.ldx, r - 1))
            self.pieces.append((r, 8, 7)); r += 1
        if self.mf == 32:
            a("v_bfe_u32 v4, v2, 1, 1"); a("v_lshlrev_b32 v4, 2, v4")
        else:
            a("v_bfe_u32 v4, v2, 1, 1"); a("v_lshlrev_b32 v4, 1, v4")
            a("v_bfe_u32 v6, v2, 3, 1"); a("v_lshl_add_u32 v4, v6, 2, v4")
        a("v_xor_b32 v4, v4, v3")
        a("s_mov_b32 s6, %d" % self.ldw)
        a("v_mul_lo_u32 v5, s6, v2")
        a("v_lshl_add_u32 v5, v4, 4, v5")
        def chunkmap(dst, base, ch, cm):
            a("v_add_u32 v%d, %d, v%d" % (dst, cm[0][1], base))
            prev = cm[0][1]
            for fc, bo in cm[1:]:
                adj = bo - 16 * fc
                a("v_add_u32 v7, %d, v%d" % (adj & 0xffffffff, base))
                a("v_cmp_le_u32 vcc, %d, v%d" % (fc, ch))
                a("s_nop 1")
                a("v_cndmask_b32 v%d, v%d, v7, vcc" % (dst, dst))
        for nch, cm in self.groups:
            if nch == 8:
                chunkmap(r, 5, 4, cm)
                a("v_add_u32 v%d, %d, v%d" % (r + 1, 32 * self.ldw, r))
                self.pieces.append((r, 12, 33)); self.pieces.append((r + 1, 12, 33)); r += 2
            else:
                a("v_lshrrev_b32 v2, 2, v1"); a("s_lshl_b32 s35, s34, 4"); a("v_add_u32 v2, s35, v2")
                a("v_and_b32 v3, 3, v1")
                a("v_bfe_u32 v6, v2, 3, 1"); a("v_lshlrev_b32 v6, 1, v6"); a("v_xor_b32 v6, v6, v3")
                a("v_mul_lo_u32 v8, s6, v2"); a("v_lshl_add_u32 v8, v6, 4, v8")
                chunkmap(r, 8, 6, cm)
                self.pieces.append((r, 12, 33)); r += 1
        assert len(self.pieces) == self.P
        self.LFREE = r
        a("s_lshl_b32 s64, s34, 10")
        a("s_add_u32 s65, s64, %d" % (self.S * self.STG))
        a("s_mov_b32 s7, 0")
        a("s_mov_b32 s33, 0")

    def issue_stage(self, a, first=False):
        if not (DBG["noload"] and not first):
            for i, (vo, srd_, so) in enumerate(self.pieces):
                a("s_add_u32 m0, s64, %d" % (i * 4096))
                a("s_nop 0")
                a("buffer_load_dwordx4 v%d, %s, s%d offen lds" % (vo, sr(srd_, 4), so))
        a("s_add_u32 s7, s7, 128")
        a("s_add_u32 s33, s33, %d" % (64 * self.ldw))
        a("s_add_u32 s64, s64, %d" % self.STG)
        a("s_cmp_eq_u32 s64, s65")
        a("s_cselect_b32 s6, %d, 0" % (self.S * self.STG))
        a("s_sub_u32 s64, s64, s6")

    def loader_first(self, a):
        for st in range(self.S):
            self.issue_stage(a, True)

    def loader_main(self, a):
        S, P, nk = self.S, self.P, self.nk
        assert (S - 1) * P <= 63
        self.stamp(a, 1)
        a("s_waitcnt vmcnt(%d)" % ((S - 1) * P))
        self.stamp(a, 2)
        a("s_barrier")
        a("s_mov_b32 s66, %d" % (nk - S))
        L = a.newlabel(self.name + "_ll")
        a.lines.append(".p2align 4")
        a.label(L)
        a("s_waitcnt vmcnt(%d)" % ((S - 2) * P))
        a("s_barrier")
        self.issue_stage(a)
        a("s_sub_u32 s66, s66, 1")
        a("s_cmp_lg_u32 s66, 0")
        a("s_cbranch_scc1 %s" % L)
        for j in range(nk - S, nk - 1):
            a("s_waitcnt vmcnt(%d)" % ((nk - 2 - j) * P))
            a("s_barrier")
        a("s_barrier")

    def stamp(self, a, i):
        if DBG["stamp"]:
            a("s_memtime s[%d:%d]" % (80 + 4 * i, 81 + 4 * i))
            a("s_memrealtime s[%d:%d]" % (82 + 4 * i, 83 + 4 * i))

    def stamp_out(self, a):
        if DBG["stamp"]:
            a("s_waitcnt vmcnt(0)")
            self.stamp(a, 3)
            a("s_waitcnt lgkmcnt(0)")
            a("s_mov_b64 exec, 1")
            a("s_lshl_b32 s6, s2, 3"); a("s_add_u32 s6, s6, s3"); a("s_lshl_b32 s6, s6, 6")
            a("s_add_u32 s6, s6, %s" % hex(STAMP_OFF))
            srd(a, 8, P_WS, "s6", 64)
            a("v_mov_b32 v1, 0")
            for i in range(16):
                a("v_mov_b32 v2, s%d" % (80 + i))
                a("buffer_store_dword v2, v1, s[8:11], 0 offen offset:%d" % (4 * i))

    def emit(self, a, tilemap, setup, cpro, lpro, epi, lepi=None):
        kn = self.name + "_kernel"
        kernel_head(a, kn)
        end = a.newlabel(self.name + "_end")
        ldr = a.newlabel(self.name + "_ldr")
        a("s_cmp_ge_u32 s2, %d" % self.ntiles)
        a("s_cbranch_scc1 %s" % end)
        load_kernargs(a)
        a("v_lshrrev_b32 v1, 6, v0")
        tilemap(a)
        a("v_readfirstlane_b32 s3, v1")
        a("s_waitcnt lgkmcnt(0)")
        self.stamp(a, 0)
        setup(a)
        a("s_cmp_ge_u32 s3, 4")
        a("s_cbranch_scc1 %s" % ldr)
        if self.prio: a("s_setprio %d" % self.prio)
        self.compute_addr(a)
        cpro(a)
        self.compute_main(a)
        self.stamp(a, 2)
        epi(a)
        self.stamp_out(a)
        a("s_endpgm")
        a.label(ldr)
        self.loader_setup(a)
        lpro(a)
        self.loader_main(a)
        if lepi: lepi(a)
        self.stamp_out(a)
        a.label(end)
        a("s_endpgm")
        return kn


def xw_srds2(a, g, xp, xoff, wp, woff, wtotal, colbytes):
    a("s_mul_i32 s6, s4, %d" % (g.BM * g.ldx))
    if xoff: a("s_add_u32 s6, s6, %s" % hex(xoff))
    srd(a, 8, xp, "s6", g.BM * g.ldx)
    a("s_mul_i32 s6, s5, %d" % colbytes)
    a("s_sub_u32 s7, %s, s6" % hex(wtotal))
    if woff: a("s_add_u32 s6, s6, %s" % hex(woff))
    srd(a, 12, wp, "s6", "s7")
```

```python
from gen import *

def bf16_round(a, dst, src):
    a("v_cvt_pk_bf16_f32 v%d, v%d, v%d" % (dst, src, src))
    a("v_lshlrev_b32 v%d, 16, v%d" % (dst, dst))

def swap_red(a, op, which, x, t):
    a("v_mov_b32 v%d, v%d" % (t, x))
    a("s_nop 1")
    a("v_permlane%d_swap_b32 v%d, v%d" % (which, x, t))
    a("%s v%d, v%d, v%d" % (op, x, x, t))

def multi_swap_red(a, op, which, xs, ts):
    for x, t in zip(xs, ts):
        a("v_mov_b32 v%d, v%d" % (t, x))
    if len(xs) < 3:
        a("s_nop 1")
    for x, t in zip(xs, ts):
        a("v_permlane%d_swap_b32 v%d, v%d" % (which, x, t))
    for x, t in zip(xs, ts):
        a("%s v%d, v%d, v%d" % (op, x, x, t))

def multi_dpp_red(a, xs, rors):
    for ro in rors:
        if len(xs) < 3:
            a("s_nop 1")
        for x in xs:
            a("v_add_f32_dpp v%d, v%d, v%d row_ror:%d row_mask:0xf bank_mask:0xf" % (x, x, x, ro))

def k0(a):
    kn = "k0_kernel"
    kernel_head(a, kn)
    end = a.newlabel("k0_end"); st = a.newlabel("k0_st")
    a("s_cmp_ge_u32 s2, 256")
    a("s_cbranch_scc1 %s" % end)
    load_kernargs(a)
    a("v_lshrrev_b32 v1, 6, v0")
    a("v_and_b32 v2, 63, v0")
    a("v_readfirstlane_b32 s3, v1")
    a("s_waitcnt lgkmcnt(0)")
    a("s_cmp_ge_u32 s2, 192")
    a("s_cbranch_scc1 %s" % st)
    a("s_lshr_b32 s4, s2, 4"); a("s_lshl_b32 s4, s4, 4")
    a("s_and_b32 s5, s2, 7"); a("s_lshl_b32 s5, s5, 1"); a("s_add_u32 s4, s4, s5")
    a("s_bfe_u32 s5, s2, 0x10003"); a("s_add_u32 s4, s4, s5")
    srd(a, 8, P_WMOD, 0, 1024 * 6144 * 2)
    srd(a, 12, P_C, 0, 2048)
    srd(a, 16, P_WS, WS_MOD, 6144 * 4)
    a("v_lshrrev_b32 v3, 2, v2")
    a("s_lshl_b32 s5, s3, 7")
    a("v_add_u32 v3, s5, v3")
    a("v_lshlrev_b32 v4, 1, v3")
    a("s_mov_b32 s6, 12288")
    a("v_mul_lo_u32 v5, s6, v3")
    a("v_and_b32 v6, 3, v2")
    a("v_lshl_add_u32 v5, v6, 4, v5")
    a("s_lshl_b32 s5, s4, 6")
    a("v_add_u32 v5, s5, v5")
    for i in range(8):
        a("buffer_load_ushort v%d, v4, s[12:15], 0 offen offset:%d" % (8 + i, 32 * i))
    for i in range(8):
        a("s_mov_b32 s%d, %d" % (20 + i, i * 16 * 12288))
        a("buffer_load_dwordx4 %s, v5, s[8:11], s%d offen" % (vr(32 + 4 * i, 4), 20 + i))
    a("s_mov_b32 s6, %s" % hex(f32bits(-LOG2E)))
    a("s_waitcnt vmcnt(8)")
    for i in range(8): a("v_lshlrev_b32 v%d, 16, v%d" % (8 + i, 8 + i))
    for i in range(8): a("v_mul_f32 v%d, s6, v%d" % (16 + i, 8 + i))
    for i in range(8): a("v_exp_f32 v%d, v%d" % (16 + i, 16 + i))
    for i in range(8): a("v_add_f32 v%d, 1.0, v%d" % (16 + i, 16 + i))
    for i in range(8): a("v_rcp_f32 v%d, v%d" % (16 + i, 16 + i))
    for i in range(8): a("v_mul_f32 v%d, v%d, v%d" % (8 + i, 8 + i, 16 + i))
    for i in range(8): a("v_cvt_pk_bf16_f32 v%d, v%d, v%d" % (8 + i, 8 + i, 8 + i))
    for i in range(8): a("v_lshlrev_b32 v%d, 16, v%d" % (8 + i, 8 + i))
    for e in range(8): a("v_mov_b32 v%d, 0" % (24 + e))
    for i in range(8):
        a("s_waitcnt vmcnt(%d)" % (7 - i))
        for d in range(4):
            unpack2(a, 16 + 2 * d, 32 + 4 * i + d)
        for e in range(8):
            a("v_fmac_f32 v%d, v%d, v%d" % (24 + e, 8 + i, 16 + e))
    xs = list(range(24, 32)); ts = list(range(16, 24))
    multi_dpp_red(a, xs, [4, 8])
    multi_swap_red(a, "v_add_f32", 16, xs, ts)
    multi_swap_red(a, "v_add_f32", 32, xs, ts)
    a("s_lshl_b32 s5, s3, 7")
    a("v_lshl_add_u32 v7, v6, 5, s5")
    a("s_mov_b64 exec, 0xf")
    a("ds_write_b128 v7, v[24:27]")
    a("ds_write_b128 v7, v[28:31] offset:16")
    a("s_mov_b64 exec, -1")
    a("s_waitcnt lgkmcnt(0)")
    a("s_barrier")
    a("s_cmp_lg_u32 s3, 0")
    a("s_cbranch_scc1 %s" % end)
    a("v_and_b32 v7, 31, v2")
    a("v_lshlrev_b32 v7, 2, v7")
    for w in range(8):
        a("ds_read_b32 v%d, v7 offset:%d" % (8 + w, 128 * w))
    a("s_waitcnt lgkmcnt(0)")
    a("v_add_f32 v8, v8, v9"); a("v_add_f32 v10, v10, v11"); a("v_add_f32 v12, v12, v13"); a("v_add_f32 v14, v14, v15")
    a("v_add_f32 v8, v8, v10"); a("v_add_f32 v12, v12, v14"); a("v_add_f32 v8, v8, v12")
    bf16_round(a, 8, 8)
    a("s_lshl_b32 s5, s4, 7")
    a("v_add_u32 v7, s5, v7")
    a("s_mov_b32 exec_hi, 0")
    a("buffer_store_dword v8, v7, s[16:19], 0 offen")
    a("s_endpgm")
    a.label(st)
    a("s_sub_u32 s4, s2, 192")
    srd(a, 8, P_X, 0, 2048 * 2048)
    srd(a, 12, P_WS, WS_ST1, 2048 * 8)
    a("s_lshl_b32 s5, s4, 9")
    a("s_add_u32 s5, s5, %s" % hex(WS_SUM2))
    srd(a, 16, P_WS, "s5", 512)
    a("s_lshl_b32 s5, s4, 3"); a("s_add_u32 s5, s5, s3"); a("s_lshl_b32 s5, s5, 2")
    a("s_lshl_b32 s6, s5, 11")
    a("v_lshl_add_u32 v3, v2, 4, s6")
    for r in range(4):
        a("s_mov_b32 s%d, %d" % (20 + r, r * 2048))
        a("buffer_load_dwordx4 %s, v3, s[8:11], s%d offen" % (vr(8 + 8 * r, 4), 20 + r))
        a("buffer_load_dwordx4 %s, v3, s[8:11], s%d offen offset:1024" % (vr(12 + 8 * r, 4), 20 + r))
    a("v_mov_b32 v4, 0")
    a("v_lshlrev_b32 v5, 2, v0")
    a("buffer_store_dword v4, v5, s[16:19], 0 offen")
    U = 48
    for r in range(4):
        a("s_waitcnt vmcnt(%d)" % (7 - 2 * r))
        for d in range(8):
            unpack2(a, U + 16 * r + 2 * d, 8 + 8 * r + d)
    S = 112
    for r in range(4):
        b = U + 16 * r
        a("v_pk_add_f32 %s, %s, %s" % (vr(S + 2 * r, 2), vr(b, 2), vr(b + 2, 2)))
    for k in range(2, 8):
        for r in range(4):
            b = U + 16 * r
            a("v_pk_add_f32 %s, %s, %s" % (vr(S + 2 * r, 2), vr(S + 2 * r, 2), vr(b + 2 * k, 2)))
    xs = [S + 2 * r for r in range(4)]; ts = [S + 2 * r + 1 for r in range(4)]
    for x in xs: a("v_add_f32 v%d, v%d, v%d" % (x, x, x + 1))
    multi_dpp_red(a, xs, [1, 2, 4, 8])
    multi_swap_red(a, "v_add_f32", 16, xs, ts)
    multi_swap_red(a, "v_add_f32", 32, xs, ts)
    a("s_mov_b32 s6, %s" % hex(f32bits(1.0 / 1024)))
    for x in xs: a("v_mul_f32 v%d, s6, v%d" % (x, x))
    for k in range(8):
        for r in range(4):
            b = U + 16 * r + 2 * k
            a("v_pk_add_f32 %s, %s, %s op_sel_hi:[1,0] neg_lo:[0,1] neg_hi:[0,1]" % (vr(b, 2), vr(b, 2), vr(S + 2 * r, 2)))
    Q = 120
    for r in range(4):
        b = U + 16 * r
        a("v_pk_mul_f32 %s, %s, %s" % (vr(Q + 2 * r, 2), vr(b, 2), vr(b, 2)))
    for k in range(1, 8):
        for r in range(4):
            b = U + 16 * r + 2 * k
            a("v_pk_fma_f32 %s, %s, %s, %s" % (vr(Q + 2 * r, 2), vr(b, 2), vr(b, 2), vr(Q + 2 * r, 2)))
    qs = [Q + 2 * r for r in range(4)]; qt = [Q + 2 * r + 1 for r in range(4)]
    for x in qs: a("v_add_f32 v%d, v%d, v%d" % (x, x, x + 1))
    multi_dpp_red(a, qs, [1, 2, 4, 8])
    multi_swap_red(a, "v_add_f32", 16, qs, qt)
    multi_swap_red(a, "v_add_f32", 32, qs, qt)
    a("v_mov_b32 v4, %s" % hex(f32bits(1e-5)))
    for x in qs: a("v_fma_f32 v%d, v%d, s6, v4" % (x, x))
    for x in qs: a("v_rsq_f32 v%d, v%d" % (x, x))
    a("s_nop 0")
    for r in range(4): a("v_mul_f32 v%d, -v%d, v%d" % (Q + 2 * r + 1, S + 2 * r, Q + 2 * r))
    a("s_lshl_b32 s6, s5, 3")
    a("v_mov_b32 v3, s6")
    a("s_mov_b64 exec, 1")
    a("buffer_store_dwordx4 %s, v3, s[12:15], 0 offen" % vr(Q, 4))
    a("buffer_store_dwordx4 %s, v3, s[12:15], 0 offen offset:16" % vr(Q + 4, 4))
    a.label(end)
    a("s_endpgm")
    return kn, 128, 256, 512, 1024

def add_ln_xform(g, tab):
    def regs():
        b = g.LT
        return dict(ST=b, C=b + 8, SH=b + 16, T=b + 24, O=b + 32, TA=b + 40)
    def coef_reads(a):
        R = regs()
        for q in range(4):
            a("ds_read_b128 %s, v%d offset:%d" % (vr(R["C"] + 4 * q, 4), R["TA"], 16 * q))
        a("v_add_u32 v%d, 512, v%d" % (R["TA"], R["TA"]))
    def xform(a, ld, src, j):
        R = regs()
        st = R["ST"] + 2 * ld["i"]
        o = R["O"] + 4 * (ld["i"] & 1)
        for d in range(4):
            unpack2(a, R["T"] + 2 * d, src + d)
        for d in range(4):
            t = vr(R["T"] + 2 * d, 2)
            a("v_pk_fma_f32 %s, %s, %s, %s op_sel:[0,0,1] op_sel_hi:[1,0,1]" % (t, t, vr(st, 2), vr(st, 2)))
        for d in range(4):
            t = vr(R["T"] + 2 * d, 2)
            a("v_pk_fma_f32 %s, %s, %s, %s" % (t, t, vr(R["C"] + 2 * d, 2), vr(R["SH"] + 2 * d, 2)))
        for d in range(4):
            a("v_cvt_pk_bf16_f32 v%d, v%d, v%d" % (o + d, R["T"] + 2 * d, R["T"] + 2 * d + 1))
        return o
    def after(a, ld, i):
        if ld["kind"] == "x" and ld["i"] == g.BM // 32 - 1:
            coef_reads(a)
    g.xform = xform
    g.after_load = after
    g.ln_regs = regs
    g.coef_reads = coef_reads
    g.ln_tab = tab

def build_coef_table(a, g, c_idx, s_idx):
    a("v_lshlrev_b32 v4, 4, v0")
    a("buffer_load_dwordx4 v[8:11], v4, s[16:19], 0 offen offset:0" if c_idx == 0 else
      "s_mov_b32 s6, %d" % (c_idx * 4096))
    if c_idx: a("buffer_load_dwordx4 v[8:11], v4, s[16:19], s6 offen")
    a("s_mov_b32 s7, %d" % (s_idx * 4096))
    a("buffer_load_dwordx4 v[12:15], v4, s[16:19], s7 offen")
    a("v_lshrrev_b32 v5, 1, v0")
    a("v_lshlrev_b32 v5, 6, v5")
    a("v_and_b32 v6, 1, v0")
    a("v_lshl_add_u32 v5, v6, 4, v5")
    a("v_add_u32 v5, %d, v5" % g.ln_tab)
    a("s_waitcnt vmcnt(0)")
    for e in range(4): a("v_add_f32 v%d, 1.0, v%d" % (8 + e, 8 + e))
    for e in range(4): a("v_cvt_pk_bf16_f32 v%d, v%d, v%d" % (8 + e, 8 + e, 8 + e))
    for e in range(4): a("v_lshlrev_b32 v%d, 16, v%d" % (8 + e, 8 + e))
    a("ds_write_b128 v5, v[8:11]")
    a("ds_write_b128 v5, v[12:15] offset:32")

def stats_from_sums(a, s, q, dst, n, tmp):
    a("v_mul_f32 v%d, %s, v%d" % (tmp, hex(f32bits(1.0 / n)), s))
    a("v_mul_f32 v%d, %s, v%d" % (dst, hex(f32bits(1.0 / n)), q))
    a("v_fma_f32 v%d, -v%d, v%d, v%d" % (dst, tmp, tmp, dst))
    a("v_max_f32 v%d, 0, v%d" % (dst, dst))
    a("v_add_f32 v%d, %s, v%d" % (dst, hex(f32bits(1e-5)), dst))
    a("v_rsq_f32 v%d, v%d" % (dst, dst))
    a("s_nop 0")
    a("v_mul_f32 v%d, -v%d, v%d" % (dst + 1, tmp, dst))

def k2(a):
    g = Gemm("k2", 128, 192, 1024, 32, 2, 2, 2048, 6144, 256)
    g.colbytes = 128
    g.segs = [(0, 0, 8), (2048, 128, 8), (4096, 256, 8)]
    TAB = g.LDS_MAIN
    WPH = TAB + 8192
    lds = WPH + 4096
    add_ln_xform(g, TAB)
    base_reads = g.reads
    def reads(slot, sub, fs):
        out = []
        for x in base_reads(slot, sub, fs):
            out.append(x)
        res = []
        xs, ws = [], []
        for j in range(g.NT):
            xs.append("ds_read_b128 %s, v2 offset:%d" % (vr(g.xfrag(fs, j), 4), slot * g.XS + j * 32 * g.PX + sub * 32))
        for i in range(g.MT):
            for q in range(2):
                ws.append("ds_read_b64_tr_b16 %s, v3 offset:%d" % (vr(g.wfrag(fs, i) + 2 * q, 2),
                          slot * g.WS + (16 * sub + 4 * q) * g.PW + i * 128))
        return ws[0:2] + xs + ws[2:]
    g.reads = reads
    WF = g.CFREE
    TR = WF + 8
    def setup(a):
        xw_srds(a, g, P_X, 0, P_WQKV, 0, 1024 * 6144)
        srd(a, 16, P_WS, WS_MOD, 6144 * 4)
        srd(a, 20, P_WS, WS_ST1, 2048 * 8)
        a("s_lshl_b32 s6, s5, 12")
        srd(a, 24, P_WPHI, "s6", 4096)
    def cpro(a):
        a("s_and_b32 s6, s3, 1")
        a("s_mul_i32 s6, s6, %d" % ((96 - 32) * 2))
        a("v_subrev_u32 v3, s6, v3")
        a("v_lshlrev_b32 v7, 4, v0")
        a("buffer_load_dwordx4 v[16:19], v7, s[24:27], 0 offen")
        build_coef_table(a, g, 1, 0)
        a("v_add_u32 v7, %d, v7" % WPH)
        a("ds_write_b128 v7, v[16:19]")
        a("v_bfe_u32 v4, v1, 2, 2")
        a("v_lshrrev_b32 v5, 5, v1")
        a("v_lshl_add_u32 v4, v5, 3, v4")
        a("v_bfe_u32 v5, v1, 4, 1"); a("v_lshlrev_b32 v5, 5, v5")
        a("v_and_b32 v6, 1, v1"); a("v_lshl_add_u32 v5, v6, 4, v5")
        a("v_bfe_u32 v6, v1, 1, 1"); a("v_lshl_add_u32 v5, v6, 3, v5")
        a("v_lshl_add_u32 v%d, v4, 6, v5" % TR)
        a("v_mul_u32_u24 v4, 192, v4")
        a("v_add_u32 v%d, v4, v5" % (TR + 1))
        a("s_waitcnt lgkmcnt(0)")
        a("s_barrier")
        a("s_and_b32 s6, s3, 1"); a("s_lshl_b32 s6, s6, 11"); a("s_add_u32 s6, s6, %d" % WPH)
        a("v_add_u32 v4, s6, v%d" % TR)
        for t in range(2):
            for q in range(2):
                a("ds_read_b64_tr_b16 %s, v4 offset:%d" % (vr(WF + 4 * t + 2 * q, 2), (16 * t + 4 * q) * 64))
    def lpro(a):
        R = g.ln_regs()
        a("v_bfe_u32 v3, v0, 3, 5")
        a("s_lshl_b32 s6, s4, 7")
        a("v_add_u32 v3, s6, v3")
        a("v_lshlrev_b32 v3, 3, v3")
        for i in range(4):
            a("buffer_load_dwordx2 %s, v3, s[20:23], 0 offen offset:%d" % (vr(R["ST"] + 2 * i, 2), i * 256))
        g.loader_issue_first(a)
        a("v_and_b32 v2, 7, v0")
        a("v_lshlrev_b32 v%d, 6, v2" % R["TA"])
        a("v_add_u32 v%d, %d, v%d" % (R["TA"], TAB, R["TA"]))
        a("s_barrier")
        g.coef_reads(a)
        a("s_waitcnt lgkmcnt(0)")
    def epi(a):
        PHK = 0; VIM = 2 * 24576
        P = g.FR
        a("s_nop 15")
        a("s_lshl_b32 s6, s5, 1"); a("s_and_b32 s7, s3, 1"); a("s_add_u32 s6, s6, s7")
        a("s_lshl_b32 s7, s6, 18")
        a("s_lshl_b32 s33, s4, 2"); a("s_lshr_b32 s32, s3, 1"); a("s_lshl_b32 s32, s32, 1"); a("s_add_u32 s33, s33, s32")
        a("s_lshl_b32 s33, s33, 12"); a("s_add_u32 s7, s7, s33"); a("s_add_u32 s7, s7, %s" % hex(WS_PHIQ))
        srd(a, 16, P_WS, "s7", 8192)
        a("s_lshl_b32 s7, s6, 4"); a("s_add_u32 s7, s7, s4"); a("s_mul_i32 s7, s7, %d" % KVP_STRIDE)
        a("s_add_u32 s7, s7, %s" % hex(WS_KVP))
        srd(a, 20, P_WS, "s7", KVP_STRIDE)
        a("s_mov_b32 s70, %s" % hex(f32bits(LOG2E))); a("s_mov_b32 s71, s70")
        a("v_and_b32 v4, 31, v1"); a("v_add_u32 v4, s34, v4")
        a("v_lshrrev_b32 v5, 5, v1"); a("v_lshlrev_b32 v5, 4, v5")
        a("s_and_b32 s7, s3, 1")
        a("s_mul_i32 s32, s7, 24576"); a("s_lshl_b32 s33, s7, 13"); a("s_add_u32 s33, s33, %d" % VIM)
        a("v_mul_u32_u24 v6, 192, v4"); a("v_add3_u32 v6, v6, v5, s32")
        a("v_lshl_add_u32 v7, v4, 6, v5"); a("v_add_u32 v7, s33, v7")
        a("v_lshlrev_b32 v8, 4, v1")
        for i in range(2):
            for j in range(2):
                for e in range(8):
                    A = g.acc(i, j)
                    a("v_cvt_pk_bf16_f32 v%d, v%d, v%d" % (P + (i * 2 + j) * 8 + e, A + 2 * e, A + 2 * e + 1))
        for i in range(2):
            for j in range(2):
                A = g.acc(i, j); pk = P + (i * 2 + j) * 8
                a("v_mfma_f32_32x32x16_bf16 %s, %s, %s, 0" % (vr(A, 16), vr(WF, 4), vr(pk, 4)))
                a("v_mfma_f32_32x32x16_bf16 %s, %s, %s, %s" % (vr(A, 16), vr(WF + 4, 4), vr(pk + 4, 4), vr(A, 16)))
        for j in range(2):
            A = g.acc(2, j)
            for e in range(8):
                a("v_cvt_pk_bf16_f32 v%d, v%d, v%d" % (P + 32 + e, A + 2 * e, A + 2 * e + 1))
            for t in range(2):
                a("ds_write_b128 v7, %s offset:%d" % (vr(P + 32 + 4 * t, 4), j * 32 * 64 + t * 32))
            if j == 0: a("s_nop 1")
        EN = g.acc(2, 0)
        for i in (1, 0):
            for j in range(2):
                A = g.acc(i, j); pk = P + (i * 2 + j) * 8
                OUT = EN + 16
                a("v_max3_f32 v10, v%d, v%d, v%d" % (A, A + 1, A + 2))
                a("v_min3_f32 v12, v%d, v%d, v%d" % (A, A + 1, A + 2))
                for e in range(3, 15, 2):
                    a("v_max3_f32 v10, v10, v%d, v%d" % (A + e, A + e + 1))
                    a("v_min3_f32 v12, v12, v%d, v%d" % (A + e, A + e + 1))
                a("v_max_f32 v10, v10, v%d" % (A + 15))
                a("v_min_f32 v12, v12, v%d" % (A + 15))
                a("v_mov_b32 v11, v10"); a("v_mov_b32 v13, v12")
                a("s_nop 1")
                a("v_permlane32_swap_b32 v10, v11"); a("v_permlane32_swap_b32 v12, v13")
                a("v_max_f32 v10, v10, v11"); a("v_min_f32 v12, v12, v13")
                a("v_mul_f32 v10, s70, v10"); a("v_mul_f32 v12, s70, v12")
                for e in range(8):
                    a("v_pk_fma_f32 %s, %s, s[70:71], v[12:13] op_sel_hi:[1,1,0] neg_lo:[0,1,0] neg_hi:[0,1,0]" % (vr(EN + 2 * e, 2), vr(A + 2 * e, 2)))
                    a("v_pk_fma_f32 %s, %s, s[70:71], v[10:11] op_sel_hi:[1,1,0] neg_lo:[0,0,1] neg_hi:[0,0,1]" % (vr(A + 2 * e, 2), vr(A + 2 * e, 2)))
                for e in range(16):
                    a("v_exp_f32 v%d, v%d" % (A + e, A + e))
                    a("v_exp_f32 v%d, v%d" % (EN + e, EN + e))
                a("v_pk_add_f32 v[10:11], %s, %s" % (vr(A, 2), vr(A + 2, 2)))
                a("v_pk_add_f32 v[12:13], %s, %s" % (vr(EN, 2), vr(EN + 2, 2)))
                for e in range(2, 8):
                    a("v_pk_add_f32 v[10:11], v[10:11], %s" % vr(A + 2 * e, 2))
                    a("v_pk_add_f32 v[12:13], v[12:13], %s" % vr(EN + 2 * e, 2))
                a("v_add_f32 v10, v10, v11"); a("v_add_f32 v12, v12, v13")
                a("v_mov_b32 v11, v10"); a("v_mov_b32 v13, v12")
                a("s_nop 1")
                a("v_permlane32_swap_b32 v10, v11"); a("v_permlane32_swap_b32 v12, v13")
                a("v_add_f32 v10, v10, v11"); a("v_add_f32 v12, v12, v13")
                a("v_rcp_f32 v10, v10"); a("v_rcp_f32 v12, v12")
                a("s_nop 0")
                for e in range(8):
                    a("v_pk_mul_f32 %s, %s, v[10:11] op_sel_hi:[1,0]" % (vr(A + 2 * e, 2), vr(A + 2 * e, 2)))
                    a("v_pk_mul_f32 %s, %s, v[12:13] op_sel_hi:[1,0]" % (vr(EN + 2 * e, 2), vr(EN + 2 * e, 2)))
                for e in range(8):
                    a("v_cvt_pk_bf16_f32 v%d, v%d, v%d" % (pk + e, A + 2 * e, A + 2 * e + 1))
                for e in range(8):
                    a("v_cvt_pk_bf16_f32 v%d, v%d, v%d" % (A + e, EN + 2 * e, EN + 2 * e + 1))
                for q in range(4):
                    src = vr(pk + 4 * q, 4) if q < 2 else vr(A + 4 * (q - 2), 4)
                    if i == 1:
                        a("ds_write_b128 v6, %s offset:%d" % (src, j * 32 * 192 + q * 32))
                    else:
                        a("buffer_store_dwordx4 %s, v8, s[16:19], 0 offen offset:%d" % (src, q * 1024) if j == 0 else
                          "buffer_store_dwordx4 %s, v9, s[16:19], 0 offen offset:%d" % (src, q * 1024))
                if i == 1 and j == 1:
                    a("v_add_u32 v9, 4096, v8")
                    a("s_waitcnt lgkmcnt(0)")
                    a("s_barrier")
        a("s_lshr_b32 s7, s3, 1"); a("s_lshl_b32 s7, s7, 6"); a("s_add_u32 s32, s32, s7")
        a("v_add_u32 v4, s32, v%d" % (TR + 1))
        a("v_add_u32 v5, s33, v%d" % TR)
        KV = g.acc(1, 0); Z = g.acc(1, 1); FA = g.acc(2, 0)
        ON = 12
        for e in range(4): a("v_mov_b32 v%d, 0x3f803f80" % (ON + e))
        for half in range(2):
            for t in range(4):
                T = half * 4 + t
                for q in range(2):
                    a("ds_read_b64_tr_b16 %s, v4 offset:%d" % (vr(FA + 8 * t + 2 * q, 2), (16 * T + 4 * q) * 192))
                    a("ds_read_b64_tr_b16 %s, v5 offset:%d" % (vr(FA + 8 * t + 4 + 2 * q, 2), (16 * T + 4 * q) * 64))
            for t in range(4):
                a("s_waitcnt lgkmcnt(%d)" % (12 - 4 * t))
                first = half == 0 and t == 0
                a("v_mfma_f32_32x32x16_bf16 %s, %s, %s, %s" % (vr(KV, 16), vr(FA + 8 * t, 4), vr(FA + 8 * t + 4, 4), "0" if first else vr(KV, 16)))
                a("v_mfma_f32_32x32x16_bf16 %s, %s, %s, %s" % (vr(Z, 16), vr(FA + 8 * t, 4), vr(ON, 4), "0" if first else vr(Z, 16)))
        a("s_lshr_b32 s7, s3, 1")
        a("s_lshl_b32 s6, s7, 12")
        a("s_lshl_b32 s7, s7, 7"); a("s_add_u32 s7, s7, 8192")
        a("v_lshrrev_b32 v5, 5, v1"); a("v_lshlrev_b32 v5, 6, v5")
        a("s_nop 10")
        for q in range(4):
            a("buffer_store_dwordx4 %s, v8, s[20:23], s6 offen offset:%d" % (vr(KV + 4 * q, 4), q * 1024))
        a("s_mov_b32 exec_lo, 1"); a("s_mov_b32 exec_hi, 1")
        for q in range(4):
            a("buffer_store_dwordx4 %s, v5, s[20:23], s7 offen offset:%d" % (vr(Z + 4 * q, 4), q * 16))
    kn = g.emit(a, tilemap_16x16_r8c4, setup, cpro, lpro, epi)
    return kn, 256, 256, 512, lds

def k2b(a):
    kn = "k2b_kernel"
    kernel_head(a, kn)
    end = a.newlabel("k2b_end")
    a("s_cmp_ge_u32 s2, 256")
    a("s_cbranch_scc1 %s" % end)
    load_kernargs(a)
    a("v_lshrrev_b32 v1, 6, v0")
    a("s_lshr_b32 s6, s2, 3")
    a("s_and_b32 s4, s6, 7"); a("s_bfe_u32 s7, s2, 0x20001"); a("s_lshl_b32 s7, s7, 3"); a("s_add_u32 s4, s4, s7")
    a("s_lshr_b32 s5, s6, 3"); a("s_and_b32 s7, s2, 1"); a("s_lshl_b32 s7, s7, 2"); a("s_add_u32 s5, s5, s7")
    a("v_readfirstlane_b32 s3, v1")
    a("v_and_b32 v1, 63, v0")
    a("v_lshlrev_b32 v2, 4, v1")
    a("s_waitcnt lgkmcnt(0)")
    a("s_mul_i32 s6, s4, %d" % (16 * KVP_STRIDE)); a("s_add_u32 s6, s6, %s" % hex(WS_KVP))
    srd(a, 8, P_WS, "s6", 16 * KVP_STRIDE)
    a("s_lshl_b32 s5, s5, 3"); a("s_add_u32 s5, s5, s3")
    a("s_lshl_b32 s6, s4, 6"); a("s_add_u32 s6, s6, s5"); a("s_lshl_b32 s6, s6, 12"); a("s_add_u32 s6, s6, %s" % hex(WS_PHIQ))
    srd(a, 12, P_WS, "s6", 4096)
    a("s_lshl_b32 s6, s5, 16"); a("s_add_u32 s6, s6, %s" % hex(WS_O))
    srd(a, 16, P_WS, "s6", 65536)
    a("s_lshl_b32 s6, s3, 10")
    a("v_add_u32 v3, s6, v2")
    PL = 64
    for p in range(16):
        a("s_mov_b32 s%d, %d" % (64 + p, p * KVP_STRIDE))
        a("buffer_load_dwordx4 %s, v3, s[8:11], s%d offen" % (vr(PL + 4 * p, 4), 64 + p))
    a("v_lshlrev_b32 v4, 2, v1")
    a("s_mul_i32 s6, s3, %d" % (2 * KVP_STRIDE)); a("s_add_u32 s6, s6, 8192"); a("s_add_u32 s7, s6, %d" % KVP_STRIDE)
    a("buffer_load_dword v8, v4, s[8:11], s6 offen")
    a("buffer_load_dword v9, v4, s[8:11], s7 offen")
    for q in range(4):
        a("buffer_load_dwordx4 %s, v2, s[12:15], 0 offen offset:%d" % (vr(16 + 4 * q, 4), q * 1024))
    for p in range(1, 16):
        a("s_waitcnt vmcnt(%d)" % (6 + 15 - p))
        a("v_pk_add_f32 %s, %s, %s" % (vr(PL, 2), vr(PL, 2), vr(PL + 4 * p, 2)))
        a("v_pk_add_f32 %s, %s, %s" % (vr(PL + 2, 2), vr(PL + 2, 2), vr(PL + 4 * p + 2, 2)))
    a("v_cvt_pk_bf16_f32 v10, v%d, v%d" % (PL, PL + 1))
    a("v_cvt_pk_bf16_f32 v11, v%d, v%d" % (PL + 2, PL + 3))
    a("s_lshr_b32 s6, s3, 1"); a("s_lshl_b32 s6, s6, 10"); a("s_and_b32 s7, s3, 1"); a("s_lshl_b32 s7, s7, 3"); a("s_add_u32 s6, s6, s7")
    a("v_add_u32 v5, s6, v2")
    a("ds_write_b64 v5, v[10:11]")
    a("s_waitcnt vmcnt(4)")
    a("v_add_f32 v8, v8, v9")
    a("s_lshl_b32 s6, s3, 8")
    a("v_add_u32 v5, s6, v4")
    a("ds_write_b32 v5, v8 offset:4096")
    a("s_waitcnt lgkmcnt(0)")
    a("s_barrier")
    for T in range(4):
        a("ds_read_b128 %s, v2 offset:%d" % (vr(32 + 4 * T, 4), T * 1024))
    for w in range(8):
        a("ds_read_b32 v%d, v4 offset:%d" % (64 + w, 4096 + 256 * w))
    a("s_waitcnt lgkmcnt(0)")
    a("v_add_f32 v64, v64, v65"); a("v_add_f32 v66, v66, v67"); a("v_add_f32 v68, v68, v69"); a("v_add_f32 v70, v70, v71")
    a("v_add_f32 v64, v64, v66"); a("v_add_f32 v68, v68, v70"); a("v_add_f32 v64, v64, v68")
    a("v_cvt_pk_bf16_f32 v64, v64, v64")
    a("s_lshl_b32 s6, s3, 7"); a("s_add_u32 s6, s6, 6144")
    a("v_lshl_add_u32 v5, v1, 1, s6")
    a("ds_write_b16 v5, v64")
    a("v_lshrrev_b32 v6, 5, v1")
    a("v_lshl_add_u32 v5, v6, 5, s6")
    a("s_waitcnt lgkmcnt(0)")
    for T in range(4):
        a("ds_read_b128 %s, v5 offset:%d" % (vr(48 + 4 * T, 4), (T >> 1) * 64 + (T & 1) * 16))
    a("s_waitcnt vmcnt(0)")
    NUM = 64; DEN = 80
    for T in range(4):
        a("v_mfma_f32_32x32x16_bf16 %s, %s, %s, %s" % (vr(NUM, 16), vr(32 + 4 * T, 4), vr(16 + 4 * T, 4), "0" if T == 0 else vr(NUM, 16)))
    a("s_waitcnt lgkmcnt(0)")
    for T in range(4):
        a("v_mfma_f32_32x32x16_bf16 %s, %s, %s, %s" % (vr(DEN, 16), vr(48 + 4 * T, 4), vr(16 + 4 * T, 4), "0" if T == 0 else vr(DEN, 16)))
    a("v_and_b32 v5, 31, v1"); a("v_lshlrev_b32 v5, 11, v5"); a("v_lshl_add_u32 v5, v6, 4, v5")
    a("s_lshl_b32 s6, s4, 6")
    a("s_nop 10")
    a("v_add_f32 v8, %s, v%d" % (hex(f32bits(1e-6)), DEN))
    a("v_rcp_f32 v8, v8")
    a("s_nop 0")
    for e in range(8):
        a("v_pk_mul_f32 %s, %s, v[8:9] op_sel_hi:[1,0]" % (vr(NUM + 2 * e, 2), vr(NUM + 2 * e, 2)))
    for e in range(8):
        a("v_cvt_pk_bf16_f32 v%d, v%d, v%d" % (16 + e, NUM + 2 * e, NUM + 2 * e + 1))
    a("buffer_store_dwordx4 v[16:19], v5, s[16:19], s6 offen")
    a("buffer_store_dwordx4 v[20:23], v5, s[16:19], s6 offen offset:32")
    a.label(end)
    a("s_endpgm")
    return kn, 128, 256, 512, 8192

def k_res(a, name, K, xoff, ldx, wp, resp, resoff, gate_idx, outp, outoff, stats):
    g = Gemm(name, 128, 64, K, 32, 4, 1, ldx, 2048, 256)
    g.colbytes = 128
    RX = g.CFREE; GA = RX + 16
    def setup(a):
        xw_srds(a, g, P_WS, xoff, wp, 0, K * 2048)
        a("s_lshl_b32 s6, s4, 18"); a("s_lshl_b32 s7, s5, 7"); a("s_add_u32 s6, s6, s7")
        a("s_sub_u32 s7, %d, s6" % (2048 * 2048))
        if resoff:
            a("s_add_u32 s32, s6, %s" % hex(resoff)); srd(a, 16, resp, "s32", "s7")
        else:
            srd(a, 16, resp, "s6", "s7")
        if outoff:
            a("s_add_u32 s32, s6, %s" % hex(outoff)); srd(a, 20, outp, "s32", "s7")
        else:
            srd(a, 20, outp, "s6", "s7")
        a("s_lshl_b32 s6, s5, 8"); a("s_add_u32 s6, s6, %d" % (WS_MOD + gate_idx * 4096))
        srd(a, 24, P_WS, "s6", 256)
        srd(a, 28, P_WS, WS_SUM2, 16384)
    def cpro(a):
        a("v_and_b32 v4, 31, v1"); a("v_add_u32 v4, s34, v4")
        a("v_lshrrev_b32 v5, 5, v1")
        a("v_lshlrev_b32 v6, 11, v4"); a("v_lshl_add_u32 v6, v5, 4, v6")
        a("v_lshlrev_b32 v7, 5, v5")
        for i in range(2):
            for p in range(2):
                a("buffer_load_dwordx4 %s, v6, s[16:19], 0 offen offset:%d" % (vr(RX + (i * 2 + p) * 4, 4), i * 64 + p * 32))
        for i in range(2):
            for p in range(2):
                for h in range(2):
                    a("buffer_load_dwordx4 %s, v7, s[24:27], 0 offen offset:%d" % (vr(GA + ((i * 2 + p) * 2 + h) * 4, 4), i * 128 + p * 64 + h * 16))
        a("s_lshl_b32 s6, s4, 7")
        a("v_add_u32 v8, s6, v4"); a("v_lshl_add_u32 v8, v5, 11, v8"); a("v_lshlrev_b32 v8, 2, v8")
    def lpro(a):
        g.loader_issue_first(a)
    def epi(a):
        a("s_waitcnt vmcnt(0)")
        a("s_nop 8")
        T = g.FR
        for i in range(2):
            A = g.acc(i, 0)
            for e in range(8):
                unpack2(a, T + 2 * e, RX + i * 8 + e)
            for e in range(8):
                a("v_pk_fma_f32 %s, %s, %s, %s" % (vr(A + 2 * e, 2), vr(A + 2 * e, 2), vr(GA + i * 16 + 2 * e, 2), vr(T + 2 * e, 2)))
            for e in range(8):
                a("v_cvt_pk_bf16_f32 v%d, v%d, v%d" % (RX + i * 8 + e, A + 2 * e, A + 2 * e + 1))
            for p in range(2):
                a("buffer_store_dwordx4 %s, v6, s[20:23], 0 offen offset:%d" % (vr(RX + (i * 2 + p) * 4, 4), i * 64 + p * 32))
        if stats:
            A = g.ACC
            for e in range(16):
                unpack2(a, A + 2 * e, RX + e)
            a("v_pk_add_f32 v[10:11], %s, %s" % (vr(A, 2), vr(A + 2, 2)))
            a("v_pk_mul_f32 v[12:13], %s, %s" % (vr(A, 2), vr(A, 2)))
            a("v_pk_fma_f32 v[12:13], %s, %s, v[12:13]" % (vr(A + 2, 2), vr(A + 2, 2)))
            for e in range(2, 16):
                a("v_pk_add_f32 v[10:11], v[10:11], %s" % vr(A + 2 * e, 2))
                a("v_pk_fma_f32 v[12:13], %s, %s, v[12:13]" % (vr(A + 2 * e, 2), vr(A + 2 * e, 2)))
            a("v_add_f32 v10, v10, v11"); a("v_add_f32 v12, v12, v13")
            a("s_nop 1")
            a("v_permlane32_swap_b32 v10, v12")
            a("v_add_f32 v10, v10, v12")
            a("buffer_atomic_add_f32 v10, v8, s[28:31], 0 offen")
    kn = g.emit(a, tilemap_16x16_r4c8, setup, cpro, lpro, epi)
    return kn, 256, 256, 512, g.LDS_MAIN

def k4(a):
    g = Gemm("k4", 128, 224, 1024, 16, 2, 2, 2048, 7168, 256)
    g.colbytes = 448
    TAB = g.LDS_MAIN
    lds = TAB + 8192
    add_ln_xform(g, TAB)
    def setup(a):
        xw_srds(a, g, P_WS, WS_X1, P_WIN, 0, 1024 * 7168)
        srd(a, 16, P_WS, WS_MOD, 6144 * 4)
        srd(a, 20, P_WS, WS_SUM2, 16384)
        a("s_and_b32 s6, s5, 7"); a("s_mul_i32 s6, s6, 448")
        a("s_mul_i32 s7, s4, %d" % (128 * 3584)); a("s_add_u32 s6, s6, s7")
        a("s_sub_u32 s7, %d, s6" % (2048 * 3584))
        a("s_lshr_b32 s32, s5, 3"); a("s_mul_i32 s32, s32, %s" % hex(WS_Z2 - WS_Z1)); a("s_add_u32 s6, s6, s32")
        a("s_add_u32 s6, s6, %s" % hex(WS_Z1))
        srd(a, 24, P_WS, "s6", "s7")
        srd(a, 28, P_WS, WS_SUM3, 16384)
    def cpro(a):
        build_coef_table(a, g, 4, 3)
        a("s_waitcnt lgkmcnt(0)")
        a("s_barrier")
    def lpro(a):
        R = g.ln_regs()
        a("v_bfe_u32 v3, v0, 3, 5")
        a("s_lshl_b32 s6, s4, 7")
        a("v_add_u32 v3, s6, v3")
        a("v_lshlrev_b32 v3, 2, v3")
        a("s_mov_b32 s6, 8192")
        for i in range(4):
            a("buffer_load_dword v%d, v3, s[20:23], 0 offen offset:%d" % (R["T"] + 2 * i, i * 128))
            a("buffer_load_dword v%d, v3, s[20:23], s6 offen offset:%d" % (R["T"] + 2 * i + 1, i * 128))
        g.loader_issue_first(a)
        a("v_and_b32 v2, 7, v0")
        a("v_lshlrev_b32 v%d, 6, v2" % R["TA"])
        a("v_add_u32 v%d, %d, v%d" % (R["TA"], TAB, R["TA"]))
        a("s_waitcnt vmcnt(%d)" % (g.D * g.L))
        for i in range(4):
            stats_from_sums(a, R["T"] + 2 * i, R["T"] + 2 * i + 1, R["ST"] + 2 * i, 1024, R["O"])
        a("s_barrier")
        g.coef_reads(a)
        a("s_waitcnt lgkmcnt(0)")
    def epi(a):
        K1 = 2.0 * math.sqrt(2.0 / math.pi) * LOG2E
        a("s_mov_b32 s70, %s" % hex(f32bits(-K1 * 0.044715))); a("s_mov_b32 s71, s70")
        a("v_mov_b32 v10, %s" % hex(f32bits(-K1))); a("v_mov_b32 v11, v10")
        a("v_mov_b32 v12, 1.0"); a("v_mov_b32 v13, 1.0")
        a("v_and_b32 v4, 15, v1"); a("v_add_u32 v4, s34, v4")
        a("s_mov_b32 s6, 3584"); a("v_mul_lo_u32 v4, s6, v4")
        a("s_lshl_b32 s6, s35, 1"); a("v_add_u32 v4, s6, v4")
        a("v_lshrrev_b32 v5, 4, v1")
        a("v_lshl_add_u32 v7, v5, 3, v4")
        a("v_and_b32 v6, 1, v5"); a("v_lshl_add_u32 v6, v6, 5, v4")
        a("v_lshrrev_b32 v5, 1, v5"); a("v_lshl_add_u32 v6, v5, 4, v6")
        T = g.FR
        PK = T + 28
        SM = PK + 16
        zlab = a.newlabel("k4_nostat")
        for j in range(4):
            As = [g.acc(i, j) for i in range(7)]
            for i in range(7):
                for h in range(2):
                    a("v_pk_mul_f32 %s, %s, %s" % (vr(T + 4 * i + 2 * h, 2), vr(As[i] + 2 * h, 2), vr(As[i] + 2 * h, 2)))
            for i in range(7):
                for h in range(2):
                    t = vr(T + 4 * i + 2 * h, 2)
                    a("v_pk_fma_f32 %s, %s, s[70:71], v[10:11]" % (t, t))
            for i in range(7):
                for h in range(2):
                    t = vr(T + 4 * i + 2 * h, 2)
                    a("v_pk_mul_f32 %s, %s, %s" % (t, t, vr(As[i] + 2 * h, 2)))
            for e in range(28): a("v_exp_f32 v%d, v%d" % (T + e, T + e))
            for e in range(14): a("v_pk_add_f32 %s, %s, v[12:13]" % (vr(T + 2 * e, 2), vr(T + 2 * e, 2)))
            for e in range(28): a("v_rcp_f32 v%d, v%d" % (T + e, T + e))
            for i in range(7):
                for h in range(2):
                    t = vr(T + 4 * i + 2 * h, 2)
                    a("v_pk_mul_f32 %s, %s, %s" % (t, t, vr(As[i] + 2 * h, 2)))
            for i in range(7):
                dst = As[i - (i & 1)] + 2 * (i & 1)
                for h in range(2):
                    a("v_cvt_pk_bf16_f32 v%d, v%d, v%d" % (dst + h, T + 4 * i + 2 * h, T + 4 * i + 2 * h + 1))
            for i in range(7):
                dst = As[i - (i & 1)] + 2 * (i & 1)
                for h in range(2):
                    unpack2(a, T + 4 * i + 2 * h, dst + h)
            s, q = SM + 4 * j, SM + 4 * j + 2
            a("v_pk_add_f32 %s, %s, %s" % (vr(s, 2), vr(T, 2), vr(T + 2, 2)))
            a("v_pk_mul_f32 %s, %s, %s" % (vr(q, 2), vr(T, 2), vr(T, 2)))
            a("v_pk_fma_f32 %s, %s, %s, %s" % (vr(q, 2), vr(T + 2, 2), vr(T + 2, 2), vr(q, 2)))
            for e in range(2, 14):
                a("v_pk_add_f32 %s, %s, %s" % (vr(s, 2), vr(s, 2), vr(T + 2 * e, 2)))
                a("v_pk_fma_f32 %s, %s, %s, %s" % (vr(q, 2), vr(T + 2 * e, 2), vr(T + 2 * e, 2), vr(q, 2)))
            a("s_mov_b32 s6, %d" % (j * 16 * 3584))
            for p in range(3):
                b = As[2 * p]
                a("v_permlane16_swap_b32 v%d, v%d" % (b, b + 2))
                a("v_permlane16_swap_b32 v%d, v%d" % (b + 1, b + 3))
            for p in range(3):
                a("buffer_store_dwordx4 %s, v6, s[24:27], s6 offen offset:%d" % (vr(As[2 * p], 4), p * 64))
            a("buffer_store_dwordx2 %s, v7, s[24:27], s6 offen offset:192" % vr(As[6], 2))
        a("s_cmp_lt_u32 s5, 8")
        a("s_cbranch_scc1 %s" % zlab)
        for j in range(4):
            s, q = SM + 4 * j, SM + 4 * j + 2
            a("v_add_f32 v%d, v%d, v%d" % (s, s, s + 1)); a("v_add_f32 v%d, v%d, v%d" % (q, q, q + 1))
        a("s_nop 1")
        for j in range(4):
            a("v_permlane32_swap_b32 v%d, v%d" % (SM + 4 * j, SM + 4 * j + 2))
        for j in range(4):
            a("v_add_f32 v%d, v%d, v%d" % (SM + 4 * j, SM + 4 * j, SM + 4 * j + 2))
        a("s_nop 1")
        for jp in range(2):
            a("v_permlane16_swap_b32 v%d, v%d" % (SM + 8 * jp, SM + 8 * jp + 4))
        for jp in range(2):
            a("v_add_f32 v%d, v%d, v%d" % (SM + 8 * jp, SM + 8 * jp, SM + 8 * jp + 4))
        a("s_lshl_b32 s6, s4, 7"); a("s_add_u32 s6, s6, s34")
        a("v_and_b32 v4, 31, v1"); a("v_add_u32 v4, s6, v4")
        a("v_lshrrev_b32 v5, 5, v1"); a("v_lshl_add_u32 v4, v5, 11, v4"); a("v_lshlrev_b32 v4, 2, v4")
        for jp in range(2):
            a("buffer_atomic_add_f32 v%d, v4, s[28:31], 0 offen offset:%d" % (SM + 8 * jp, jp * 128))
        a.label(zlab)
    old_main = g.compute_main
    def cm(a):
        old_main(a)
        a("s_nop 8")
    g.compute_main = cm
    kn = g.emit(a, tilemap_16x16_r8c4, setup, cpro, lpro, epi)
    return kn, 256, 256, 512, lds

def k5(a):
    g = Gemm("k5", 128, 128, 2048, 32, 2, 2, 4096, 3584, 224)
    g.colbytes = 256
    TAB = g.LDS_MAIN
    lds = TAB + 16384
    Z1 = g.CFREE; BS = Z1 + 32
    def regs():
        b = g.LT
        return dict(ST=b, T=b + 4, O=b + 12, TA=b + 20)
    def st_reads(a):
        R = regs()
        for hh in range(2):
            a("ds_read_b64 %s, v%d offset:%d" % (vr(R["ST"] + 2 * hh, 2), R["TA"], hh * 64))
        a("v_add_u32 v%d, 512, v%d" % (R["TA"], R["TA"]))
    cnt = [0]
    def wform(a, ld, src, j):
        R = regs()
        st = R["ST"] + 2 * ld["hh"]
        o = R["O"] + 4 * (cnt[0] & 1); cnt[0] += 1
        for d in range(4):
            unpack2(a, R["T"] + 2 * d, src + d)
        for d in range(4):
            t = vr(R["T"] + 2 * d, 2)
            a("v_pk_fma_f32 %s, %s, %s, %s op_sel:[0,0,1] op_sel_hi:[1,0,1]" % (t, t, vr(st, 2), vr(st, 2)))
        for d in range(4):
            a("v_cvt_pk_bf16_f32 v%d, v%d, v%d" % (o + d, R["T"] + 2 * d, R["T"] + 2 * d + 1))
        return o
    def after(a, ld, i):
        if i == g.L - 1:
            st_reads(a)
    g.wform = wform
    g.after_load = after
    def setup(a):
        xw_srds(a, g, P_WSP, 0, P_WS, WS_Z2, 2048 * 3584)
        srd(a, 16, P_WS, WS_SUM3, 16384)
        a("s_mul_i32 s6, s4, %d" % (128 * 3584)); a("s_lshl_b32 s7, s5, 8"); a("s_add_u32 s6, s6, s7")
        a("s_sub_u32 s7, %d, s6" % (2048 * 3584))
        a("s_add_u32 s32, s6, %s" % hex(WS_Z1)); srd(a, 20, P_WS, "s32", "s7")
        a("s_add_u32 s32, s6, %s" % hex(WS_U)); srd(a, 24, P_WS, "s32", "s7")
        a("s_lshl_b32 s6, s4, 8")
        srd(a, 28, P_BSP, "s6", 256)
    def cpro(a):
        a("v_lshlrev_b32 v4, 5, v0")
        a("s_mov_b32 s6, 8192")
        a("buffer_load_dwordx4 v[16:19], v4, s[16:19], 0 offen")
        a("buffer_load_dwordx4 v[20:23], v4, s[16:19], 0 offen offset:16")
        a("buffer_load_dwordx4 v[24:27], v4, s[16:19], s6 offen")
        a("buffer_load_dwordx4 v[28:31], v4, s[16:19], s6 offen offset:16")
        a("v_and_b32 v4, 31, v1"); a("v_add_u32 v4, s34, v4")
        a("v_lshlrev_b32 v7, 1, v4")
        a("s_mov_b32 s6, 3584"); a("v_mul_lo_u32 v6, s6, v4")
        a("v_lshrrev_b32 v5, 5, v1"); a("v_lshl_add_u32 v6, v5, 4, v6")
        a("s_lshl_b32 s6, s35, 1"); a("v_add_u32 v6, s6, v6")
        a("s_mov_b32 s32, %d" % (32 * 3584))
        for j in range(2):
            a("buffer_load_ushort v%d, v7, s[28:31], 0 offen offset:%d" % (BS + 2 * j, j * 64))
        for j in range(2):
            for i in range(2):
                for p in range(2):
                    a("buffer_load_dwordx4 %s, v6, s[20:23], %s offen offset:%d" % (vr(Z1 + ((j * 2 + i) * 2 + p) * 4, 4), "s32" if j else "0", i * 64 + p * 32))
        a("s_waitcnt vmcnt(10)")
        for e in range(8):
            stats_from_sums(a, 16 + e, 24 + e, 32 + 2 * e, 1792, 8)
        a("v_lshlrev_b32 v4, 6, v0")
        a("v_add_u32 v4, %d, v4" % TAB)
        for q in range(4):
            a("ds_write_b128 v4, %s offset:%d" % (vr(32 + 4 * q, 4), 16 * q))
        a("s_waitcnt lgkmcnt(0)")
        a("s_barrier")
    def lpro(a):
        R = regs()
        g.loader_issue_first(a)
        a("v_lshlrev_b32 v%d, 3, v%d" % (R["TA"], g.vWrow))
        a("v_add_u32 v%d, %d, v%d" % (R["TA"], TAB, R["TA"]))
        a("s_barrier")
        st_reads(a)
        a("s_waitcnt lgkmcnt(0)")
    def epi(a):
        a("s_waitcnt vmcnt(0)")
        for j in range(2): a("v_lshlrev_b32 v%d, 16, v%d" % (BS + 2 * j, BS + 2 * j))
        a("s_nop 8")
        T = g.FR
        for j in range(2):
            for i in range(2):
                A = g.acc(i, j); z = Z1 + (j * 2 + i) * 8
                for e in range(8):
                    unpack2(a, T + 2 * e, z + e)
                for e in range(8):
                    a("v_pk_add_f32 %s, %s, %s op_sel_hi:[1,0]" % (vr(A + 2 * e, 2), vr(A + 2 * e, 2), vr(BS + 2 * j, 2)))
                for e in range(8):
                    a("v_pk_mul_f32 %s, %s, %s" % (vr(A + 2 * e, 2), vr(A + 2 * e, 2), vr(T + 2 * e, 2)))
                for e in range(8):
                    a("v_cvt_pk_bf16_f32 v%d, v%d, v%d" % (z + e, A + 2 * e, A + 2 * e + 1))
                for p in range(2):
                    a("buffer_store_dwordx4 %s, v6, s[24:27], %s offen offset:%d" % (vr(z + 4 * p, 4), "s32" if j else "0", i * 64 + p * 32))
    kn = g.emit(a, tilemap_16x14, setup, cpro, lpro, epi)
    return kn, 256, 224, 512, lds

def build(path, order=None):
    a = Asm()
    ks = {}
    ks["k0"] = k0(a)
    ks["k2"] = k2(a)
    ks["k2b"] = k2b(a)
    ks["k3"] = k_res(a, "k3", 1024, WS_O, 2048, P_WO, P_X, 0, 2, P_WS, WS_X1, True)
    ks["k4"] = k4(a)
    ks["k5"] = k5(a)
    ks["k6"] = k_res(a, "k6", 1792, WS_U, 3584, P_WOUT, P_WS, WS_X1, 5, P_OUT, 0, False)
    order = order or ["k0", "k2", "k2b", "k3", "k4", "k5", "k6"]
    ref = open("cdna_kernels/%s.s.ref" % NAME).read().split("\n")
    head = [l for l in ref if l.startswith(";") and "@launch" not in l and "Override" not in l and "grid=ceil" not in l]
    head = head[:15]
    out = list(head)
    for k in order:
        kn, vg, grid, blk, lds = ks[k]
        out.append("; @launch kernel=%s grid=(%d,1,1) block=(%d,1,1) lds=%d" % (kn, grid, blk, lds))
    out.append('.amdgcn_target "amdgcn-amd-amdhsa--gfx950"')
    out.append(".text")
    out += a.lines
    out.append('.section .rodata,"a"')
    for k, (kn, vg, grid, blk, lds) in ks.items():
        out.append(kernel_desc(kn, vg))
    open(path, "w").write("\n".join(out) + "\n")

if __name__ == "__main__":
    build(sys.argv[1] if len(sys.argv) > 1 else "cdna_kernels/%s.s" % NAME)
```

```python
from gen2 import *
from kernels import bf16_round, multi_swap_red, multi_dpp_red, stats_from_sums
import kernels as K1

WS_UV = 0x14000
WS_XCH = 0x80000
WS_H1 = 0x3000000
WS_Y = 0x3400000
CFG = dict(S2=4, S3=5, S4=3, S5=4, S6=5)

def gemv32(a, nvec, load_vec, prep_vec, wsrd, ldw, out_fn):
    a("v_lshrrev_b32 v3, 2, v2")
    a("s_lshl_b32 s5, s3, 7")
    a("v_add_u32 v3, s5, v3")
    a("s_mov_b32 s6, %d" % ldw)
    a("v_mul_lo_u32 v5, s6, v3")
    a("v_and_b32 v6, 3, v2")
    a("v_lshl_add_u32 v5, v6, 4, v5")
    a("s_lshl_b32 s5, s4, 6")
    a("v_add_u32 v5, s5, v5")
    WD = 64; T = 32; AC = 40
    load_vec(a)
    for i in range(8):
        a("s_mov_b32 s%d, %d" % (20 + i, i * 16 * ldw))
        a("buffer_load_dwordx4 %s, v5, %s, s%d offen" % (vr(WD + 4 * i, 4), sr(wsrd, 4), 20 + i))
    a("s_waitcnt vmcnt(8)")
    prep_vec(a)
    for e in range(8 * nvec): a("v_mov_b32 v%d, 0" % (AC + e))
    for i in range(8):
        a("s_waitcnt vmcnt(%d)" % (7 - i))
        for d in range(4): unpack2(a, T + 2 * d, WD + 4 * i + d)
        for v in range(nvec):
            for e in range(8):
                a("v_fmac_f32 v%d, v%d, v%d" % (AC + 8 * v + e, 8 + 8 * v + i, T + e))
    xs = list(range(AC, AC + 8 * nvec)); ts = list(range(WD, WD + 8 * nvec))
    multi_dpp_red(a, xs, [4, 8])
    multi_swap_red(a, "v_add_f32", 16, xs, ts)
    multi_swap_red(a, "v_add_f32", 32, xs, ts)
    a("s_lshl_b32 s5, s3, 7")
    a("v_lshl_add_u32 v7, v6, 5, s5")
    a("s_mov_b64 exec, 0xf")
    for v in range(nvec):
        a("ds_write_b128 v7, %s offset:%d" % (vr(AC + 8 * v, 4), 1024 * v))
        a("ds_write_b128 v7, %s offset:%d" % (vr(AC + 8 * v + 4, 4), 1024 * v + 16))
    a("s_mov_b64 exec, -1")
    a("s_waitcnt lgkmcnt(0)")
    a("s_barrier")
    out_fn(a)

def sum8(a, b):
    a("v_add_f32 v%d, v%d, v%d" % (b, b, b + 1)); a("v_add_f32 v%d, v%d, v%d" % (b + 2, b + 2, b + 3))
    a("v_add_f32 v%d, v%d, v%d" % (b + 4, b + 4, b + 5)); a("v_add_f32 v%d, v%d, v%d" % (b + 6, b + 6, b + 7))
    a("v_add_f32 v%d, v%d, v%d" % (b, b, b + 2)); a("v_add_f32 v%d, v%d, v%d" % (b + 4, b + 4, b + 6))
    a("v_add_f32 v%d, v%d, v%d" % (b, b, b + 4))

def k0(a):
    kn = "k0_kernel"
    kernel_head(a, kn)
    end = a.newlabel("k0_end"); st = a.newlabel("k0_st")
    a("s_cmp_ge_u32 s2, 256")
    a("s_cbranch_scc1 %s" % end)
    load_kernargs(a)
    a("v_lshrrev_b32 v1, 6, v0")
    a("v_and_b32 v2, 63, v0")
    a("v_readfirstlane_b32 s3, v1")
    a("s_waitcnt lgkmcnt(0)")
    a("s_cmp_ge_u32 s2, 192")
    a("s_cbranch_scc1 %s" % st)
    a("s_lshr_b32 s4, s2, 4"); a("s_lshl_b32 s4, s4, 4")
    a("s_and_b32 s5, s2, 7"); a("s_lshl_b32 s5, s5, 1"); a("s_add_u32 s4, s4, s5")
    a("s_bfe_u32 s5, s2, 0x10003"); a("s_add_u32 s4, s4, s5")
    srd(a, 8, P_WMOD, 0, 1024 * 6144 * 2)
    srd(a, 12, P_C, 0, 2048)
    srd(a, 16, P_WS, WS_MOD, 6144 * 4)
    def load_vec(a):
        a("v_lshlrev_b32 v4, 1, v3")
        for i in range(8):
            a("buffer_load_ushort v%d, v4, s[12:15], 0 offen offset:%d" % (8 + i, 32 * i))
    def prep_vec(a):
        a("s_mov_b32 s6, %s" % hex(f32bits(-LOG2E)))
        for i in range(8): a("v_lshlrev_b32 v%d, 16, v%d" % (8 + i, 8 + i))
        for i in range(8): a("v_mul_f32 v%d, s6, v%d" % (16 + i, 8 + i))
        for i in range(8): a("v_exp_f32 v%d, v%d" % (16 + i, 16 + i))
        for i in range(8): a("v_add_f32 v%d, 1.0, v%d" % (16 + i, 16 + i))
        for i in range(8): a("v_rcp_f32 v%d, v%d" % (16 + i, 16 + i))
        for i in range(8): a("v_mul_f32 v%d, v%d, v%d" % (8 + i, 8 + i, 16 + i))
        for i in range(8): a("v_cvt_pk_bf16_f32 v%d, v%d, v%d" % (8 + i, 8 + i, 8 + i))
        for i in range(8): a("v_lshlrev_b32 v%d, 16, v%d" % (8 + i, 8 + i))
    def out_fn(a):
        a("s_cmp_lg_u32 s3, 0")
        a("s_cbranch_scc1 %s" % end)
        a("v_and_b32 v7, 31, v2")
        a("v_lshlrev_b32 v7, 2, v7")
        for w in range(8): a("ds_read_b32 v%d, v7 offset:%d" % (8 + w, 128 * w))
        a("s_waitcnt lgkmcnt(0)")
        sum8(a, 8)
        bf16_round(a, 8, 8)
        a("s_lshr_b32 s5, s4, 5")
        a("s_cmp_eq_u32 s5, 1"); a("s_cselect_b32 s6, 1.0, 0")
        a("s_cmp_eq_u32 s5, 4"); a("s_cselect_b32 s6, 1.0, s6")
        a("v_add_f32 v8, s6, v8")
        bf16_round(a, 8, 8)
        a("s_lshl_b32 s5, s4, 7")
        a("v_add_u32 v7, s5, v7")
        a("s_mov_b32 exec_hi, 0")
        a("buffer_store_dword v8, v7, s[16:19], 0 offen")
        a("s_endpgm")
    gemv32(a, 1, load_vec, prep_vec, 8, 12288, out_fn)
    a.label(st)
    a("s_sub_u32 s4, s2, 192")
    a("s_lshl_b32 s5, s4, 13"); a("s_add_u32 s5, s5, %s" % hex(WS_XCH))
    srd(a, 8, P_WS, "s5", 8192)
    a("s_lshl_b32 s5, s4, 8"); a("s_add_u32 s5, s5, %s" % hex(WS_SUM2))
    srd(a, 12, P_WS, "s5", 256)
    for e in range(4): a("v_mov_b32 v%d, -1" % (4 + e))
    a("v_mov_b32 v8, 0")
    a("v_lshlrev_b32 v3, 4, v0")
    a("v_lshlrev_b32 v9, 2, v0")
    a("buffer_store_dwordx4 v[4:7], v3, s[8:11], 0 offen")
    a("buffer_store_dword v8, v9, s[12:15], 0 offen")
    a.label(end)
    a("s_endpgm")
    return kn, 96, 256, 512, 1024

def k1(a):
    kn = "k1_kernel"
    kernel_head(a, kn)
    end = a.newlabel("k1_end")
    a("s_cmp_ge_u32 s2, 256")
    a("s_cbranch_scc1 %s" % end)
    load_kernargs(a)
    a("v_lshrrev_b32 v1, 6, v0")
    a("v_and_b32 v2, 63, v0")
    a("v_readfirstlane_b32 s3, v1")
    a("v_lshlrev_b32 v3, 4, v2")
    a("v_lshlrev_b32 v4, 5, v2")
    a("s_lshl_b32 s4, s2, 3")
    a("s_add_u32 s4, s4, s3")
    a("s_lshl_b32 s4, s4, 11")
    a("s_waitcnt lgkmcnt(0)")
    srd(a, 8, P_X, "s4", 2048)
    srd(a, 12, P_WS, WS_MOD, 8192)
    a("s_add_u32 s4, s4, %s" % hex(WS_H1))
    srd(a, 16, P_WS, "s4", 2048)
    a("buffer_load_dwordx4 v[8:11], v3, s[8:11], 0 offen")
    a("buffer_load_dwordx4 v[12:15], v3, s[8:11], 0 offen offset:1024")
    a("s_movk_i32 s5, 0x1000")
    SA = 32; CA = 48; U = 16
    for h in range(2):
        for q in range(2):
            a("buffer_load_dwordx4 %s, v4, s[12:15], s5 offen offset:%d" % (vr(CA + 8 * h + 4 * q, 4), h * 2048 + q * 16))
    for h in range(2):
        for q in range(2):
            a("buffer_load_dwordx4 %s, v4, s[12:15], 0 offen offset:%d" % (vr(SA + 8 * h + 4 * q, 4), h * 2048 + q * 16))
    a("s_waitcnt vmcnt(8)")
    for d in range(8): unpack2(a, U + 2 * d, 8 + d)
    a("v_pk_add_f32 v[64:65], %s, %s" % (vr(U, 2), vr(U + 2, 2)))
    a("v_pk_add_f32 v[66:67], %s, %s" % (vr(U + 4, 2), vr(U + 6, 2)))
    a("v_pk_add_f32 v[68:69], %s, %s" % (vr(U + 8, 2), vr(U + 10, 2)))
    a("v_pk_add_f32 v[70:71], %s, %s" % (vr(U + 12, 2), vr(U + 14, 2)))
    a("v_pk_add_f32 v[64:65], v[64:65], v[66:67]")
    a("v_pk_add_f32 v[68:69], v[68:69], v[70:71]")
    a("v_pk_add_f32 v[64:65], v[64:65], v[68:69]")
    a("v_add_f32 v64, v64, v65")
    multi_dpp_red(a, [64], [1, 2, 4, 8])
    multi_swap_red(a, "v_add_f32", 16, [64], [65])
    multi_swap_red(a, "v_add_f32", 32, [64], [65])
    a("s_mov_b32 s6, %s" % hex(f32bits(1.0 / 1024)))
    a("v_mul_f32 v64, s6, v64")
    for k in range(8):
        b = U + 2 * k
        a("v_pk_add_f32 %s, %s, v[64:65] op_sel_hi:[1,0] neg_lo:[0,1] neg_hi:[0,1]" % (vr(b, 2), vr(b, 2)))
    a("v_pk_mul_f32 v[66:67], %s, %s" % (vr(U, 2), vr(U, 2)))
    a("v_pk_mul_f32 v[68:69], %s, %s" % (vr(U + 2, 2), vr(U + 2, 2)))
    for k in range(2, 8):
        t = 66 + 2 * (k & 1)
        a("v_pk_fma_f32 %s, %s, %s, %s" % (vr(t, 2), vr(U + 2 * k, 2), vr(U + 2 * k, 2), vr(t, 2)))
    a("v_pk_add_f32 v[66:67], v[66:67], v[68:69]")
    a("v_add_f32 v66, v66, v67")
    multi_dpp_red(a, [66], [1, 2, 4, 8])
    multi_swap_red(a, "v_add_f32", 16, [66], [67])
    multi_swap_red(a, "v_add_f32", 32, [66], [67])
    a("v_mov_b32 v5, %s" % hex(f32bits(1e-5)))
    a("v_fma_f32 v66, v66, s6, v5")
    a("v_rsq_f32 v66, v66")
    a("s_nop 0")
    for k in range(8):
        b = U + 2 * k
        a("v_pk_mul_f32 %s, %s, v[66:67] op_sel_hi:[1,0]" % (vr(b, 2), vr(b, 2)))
    a("s_waitcnt vmcnt(0)")
    for k in range(8):
        b = U + 2 * k
        a("v_pk_fma_f32 %s, %s, %s, %s" % (vr(b, 2), vr(b, 2), vr(CA + 2 * k, 2), vr(SA + 2 * k, 2)))
    for k in range(8): a("v_cvt_pk_bf16_f32 v%d, v%d, v%d" % (8 + k, U + 2 * k, U + 2 * k + 1))
    a("buffer_store_dwordx4 v[8:11], v3, s[16:19], 0 offen")
    a("buffer_store_dwordx4 v[12:15], v3, s[16:19], 0 offen offset:1024")
    a.label(end)
    a("s_endpgm")
    return kn, 72, 256, 512, 0

def k2(a):
    g = Gemm2("k2", 128, 1024, 32, 2, 2, 2048, 6144, 256, CFG["S2"],
              [(8, [(0, 0)]), (8, [(0, 2048)]), (8, [(0, 4096)])])
    lds = max(g.LDS_MAIN, 65536)
    WF = g.CFREE
    TR = WF + 8
    def setup(a):
        xw_srds2(a, g, P_WS, WS_H1, P_WQKV, 0, 1024 * 6144, 128)
        a("s_lshl_b32 s6, s5, 12")
        srd(a, 24, P_WPHI, "s6", 4096)
    def cpro(a):
        a("v_and_b32 v10, 0x13, v1")
        a("v_bfe_u32 v11, v1, 2, 1"); a("v_lshl_add_u32 v10, v11, 3, v10")
        a("v_bfe_u32 v11, v1, 3, 1"); a("v_lshl_add_u32 v10, v11, 2, v10")
        a("v_lshlrev_b32 v10, 1, v10")
        a("v_lshrrev_b32 v11, 5, v1"); a("v_lshl_add_u32 v10, v11, 9, v10")
        a("s_lshl_b32 s6, s35, 11")
        for t in range(2):
            for e in range(8):
                a("buffer_load_ushort v%d, v10, s[24:27], s6 offen offset:%d" % (16 + 8 * t + e, (16 * t + e) * 64))
        a("v_bfe_u32 v10, v1, 2, 2")
        a("v_lshrrev_b32 v11, 5, v1")
        a("v_lshl_add_u32 v10, v11, 3, v10")
        a("v_bfe_u32 v11, v1, 4, 1"); a("v_lshlrev_b32 v11, 5, v11")
        a("v_and_b32 v12, 1, v1"); a("v_lshl_add_u32 v11, v12, 4, v11")
        a("v_bfe_u32 v12, v1, 1, 1"); a("v_lshl_add_u32 v11, v12, 3, v11")
        a("v_lshl_add_u32 v%d, v10, 6, v11" % TR)
        a("v_mul_u32_u24 v10, 192, v10")
        a("v_add_u32 v%d, v10, v11" % (TR + 1))
        a("s_waitcnt vmcnt(0)")
        for e in range(8):
            a("v_lshl_or_b32 v%d, v%d, 16, v%d" % (WF + e, 17 + 2 * e, 16 + 2 * e))
    def lpro(a):
        g.loader_first(a)
    def epi(a):
        PHK = 0; VIM = 2 * 24576
        P = g.FR
        a("s_nop 15")
        a("s_lshl_b32 s6, s5, 1"); a("s_add_u32 s6, s6, s35")
        a("s_lshl_b32 s7, s6, 18")
        a("s_lshl_b32 s33, s4, 2"); a("s_lshr_b32 s32, s3, 1"); a("s_lshl_b32 s32, s32, 1"); a("s_add_u32 s33, s33, s32")
        a("s_lshl_b32 s33, s33, 12"); a("s_add_u32 s7, s7, s33"); a("s_add_u32 s7, s7, %s" % hex(WS_PHIQ))
        srd(a, 16, P_WS, "s7", 8192)
        a("s_lshl_b32 s7, s6, 4"); a("s_add_u32 s7, s7, s4"); a("s_mul_i32 s7, s7, %d" % KVP_STRIDE)
        a("s_add_u32 s7, s7, %s" % hex(WS_KVP))
        srd(a, 20, P_WS, "s7", KVP_STRIDE)
        a("s_mov_b32 s70, %s" % hex(f32bits(LOG2E))); a("s_mov_b32 s71, s70")
        a("v_and_b32 v4, 31, v1"); a("v_add_u32 v4, s34, v4")
        a("v_lshrrev_b32 v5, 5, v1"); a("v_lshlrev_b32 v5, 4, v5")
        a("s_mul_i32 s32, s35, 24576"); a("s_lshl_b32 s33, s35, 13"); a("s_add_u32 s33, s33, %d" % VIM)
        a("v_mul_u32_u24 v6, 192, v4"); a("v_add3_u32 v6, v6, v5, s32")
        a("v_lshl_add_u32 v7, v4, 6, v5"); a("v_add_u32 v7, s33, v7")
        a("v_lshlrev_b32 v8, 4, v1")
        for i in range(2):
            for j in range(2):
                for e in range(8):
                    A = g.acc(i, j)
                    a("v_cvt_pk_bf16_f32 v%d, v%d, v%d" % (P + (i * 2 + j) * 8 + e, A + 2 * e, A + 2 * e + 1))
        for i in (1, 0):
            for j in range(2):
                A = g.acc(i, j); pk = P + (i * 2 + j) * 8
                a("v_mfma_f32_32x32x16_bf16 %s, %s, %s, 0" % (vr(A, 16), vr(WF, 4), vr(pk, 4)))
                a("v_mfma_f32_32x32x16_bf16 %s, %s, %s, %s" % (vr(A, 16), vr(WF + 4, 4), vr(pk + 4, 4), vr(A, 16)))
        for j in range(2):
            A = g.acc(2, j)
            for e in range(8):
                a("v_cvt_pk_bf16_f32 v%d, v%d, v%d" % (P + 32 + e, A + 2 * e, A + 2 * e + 1))
            for t in range(2):
                a("ds_write_b128 v7, %s offset:%d" % (vr(P + 32 + 4 * t, 4), j * 32 * 64 + t * 32))
            if j == 0: a("s_nop 1")
        EN = g.acc(2, 0)
        for i in (1, 0):
            for j in range(2):
                A = g.acc(i, j); pk = P + (i * 2 + j) * 8
                a("v_max3_f32 v10, v%d, v%d, v%d" % (A, A + 1, A + 2))
                a("v_min3_f32 v12, v%d, v%d, v%d" % (A, A + 1, A + 2))
                for e in range(3, 15, 2):
                    a("v_max3_f32 v10, v10, v%d, v%d" % (A + e, A + e + 1))
                    a("v_min3_f32 v12, v12, v%d, v%d" % (A + e, A + e + 1))
                a("v_max_f32 v10, v10, v%d" % (A + 15))
                a("v_min_f32 v12, v12, v%d" % (A + 15))
                a("v_mov_b32 v11, v10"); a("v_mov_b32 v13, v12")
                a("s_nop 1")
                a("v_permlane32_swap_b32 v10, v11"); a("v_permlane32_swap_b32 v12, v13")
                a("v_max_f32 v10, v10, v11"); a("v_min_f32 v12, v12, v13")
                a("v_mul_f32 v10, s70, v10"); a("v_mul_f32 v12, s70, v12")
                for e in range(8):
                    a("v_pk_fma_f32 %s, %s, s[70:71], v[12:13] op_sel_hi:[1,1,0] neg_lo:[0,1,0] neg_hi:[0,1,0]" % (vr(EN + 2 * e, 2), vr(A + 2 * e, 2)))
                    a("v_pk_fma_f32 %s, %s, s[70:71], v[10:11] op_sel_hi:[1,1,0] neg_lo:[0,0,1] neg_hi:[0,0,1]" % (vr(A + 2 * e, 2), vr(A + 2 * e, 2)))
                for e in range(16):
                    a("v_exp_f32 v%d, v%d" % (A + e, A + e))
                    a("v_exp_f32 v%d, v%d" % (EN + e, EN + e))
                a("v_pk_add_f32 v[10:11], %s, %s" % (vr(A, 2), vr(A + 2, 2)))
                a("v_pk_add_f32 v[12:13], %s, %s" % (vr(EN, 2), vr(EN + 2, 2)))
                for e in range(2, 8):
                    a("v_pk_add_f32 v[10:11], v[10:11], %s" % vr(A + 2 * e, 2))
                    a("v_pk_add_f32 v[12:13], v[12:13], %s" % vr(EN + 2 * e, 2))
                a("v_add_f32 v10, v10, v11"); a("v_add_f32 v12, v12, v13")
                a("v_mov_b32 v11, v10"); a("v_mov_b32 v13, v12")
                a("s_nop 1")
                a("v_permlane32_swap_b32 v10, v11"); a("v_permlane32_swap_b32 v12, v13")
                a("v_add_f32 v10, v10, v11"); a("v_add_f32 v12, v12, v13")
                a("v_rcp_f32 v10, v10"); a("v_rcp_f32 v12, v12")
                a("s_nop 0")
                for e in range(8):
                    a("v_pk_mul_f32 %s, %s, v[10:11] op_sel_hi:[1,0]" % (vr(A + 2 * e, 2), vr(A + 2 * e, 2)))
                    a("v_pk_mul_f32 %s, %s, v[12:13] op_sel_hi:[1,0]" % (vr(EN + 2 * e, 2), vr(EN + 2 * e, 2)))
                for e in range(8):
                    a("v_cvt_pk_bf16_f32 v%d, v%d, v%d" % (pk + e, A + 2 * e, A + 2 * e + 1))
                for e in range(8):
                    a("v_cvt_pk_bf16_f32 v%d, v%d, v%d" % (A + e, EN + 2 * e, EN + 2 * e + 1))
                for q in range(4):
                    src = vr(pk + 4 * q, 4) if q < 2 else vr(A + 4 * (q - 2), 4)
                    if i == 1:
                        a("ds_write_b128 v6, %s offset:%d" % (src, j * 32 * 192 + q * 32))
                    else:
                        a("buffer_store_dwordx4 %s, v%d, s[16:19], 0 offen offset:%d" % (src, 8 + j, q * 1024))
                if i == 1 and j == 1:
                    a("v_add_u32 v9, 4096, v8")
                    a("s_waitcnt lgkmcnt(0)")
                    a("s_barrier")
        a("s_lshr_b32 s7, s3, 1"); a("s_lshl_b32 s7, s7, 6"); a("s_add_u32 s32, s32, s7")
        a("v_add_u32 v4, s32, v%d" % (TR + 1))
        a("v_add_u32 v5, s33, v%d" % TR)
        KV = g.acc(1, 0); Z = g.acc(1, 1); FA = g.acc(2, 0)
        ON = 12
        for e in range(4): a("v_mov_b32 v%d, 0x3f803f80" % (ON + e))
        for half in range(2):
            for t in range(4):
                T = half * 4 + t
                for q in range(2):
                    a("ds_read_b64_tr_b16 %s, v4 offset:%d" % (vr(FA + 8 * t + 2 * q, 2), (16 * T + 4 * q) * 192))
                    a("ds_read_b64_tr_b16 %s, v5 offset:%d" % (vr(FA + 8 * t + 4 + 2 * q, 2), (16 * T + 4 * q) * 64))
            for t in range(4):
                a("s_waitcnt lgkmcnt(%d)" % (12 - 4 * t))
                first = half == 0 and t == 0
                a("v_mfma_f32_32x32x16_bf16 %s, %s, %s, %s" % (vr(KV, 16), vr(FA + 8 * t, 4), vr(FA + 8 * t + 4, 4), "0" if first else vr(KV, 16)))
                a("v_mfma_f32_32x32x16_bf16 %s, %s, %s, %s" % (vr(Z, 16), vr(FA + 8 * t, 4), vr(ON, 4), "0" if first else vr(Z, 16)))
        a("s_lshr_b32 s7, s3, 1")
        a("s_lshl_b32 s6, s7, 12")
        a("s_lshl_b32 s7, s7, 7"); a("s_add_u32 s7, s7, 8192")
        a("v_lshrrev_b32 v5, 5, v1"); a("v_lshlrev_b32 v5, 6, v5")
        a("s_nop 10")
        for q in range(4):
            a("buffer_store_dwordx4 %s, v8, s[20:23], s6 offen offset:%d" % (vr(KV + 4 * q, 4), q * 1024))
        a("s_mov_b32 exec_lo, 1"); a("s_mov_b32 exec_hi, 1")
        for q in range(4):
            a("buffer_store_dwordx4 %s, v5, s[20:23], s7 offen offset:%d" % (vr(Z + 4 * q, 4), q * 16))
    kn = g.emit(a, tilemap_16x16_r8c4, setup, cpro, lpro, epi)
    return kn, 256, 256, 512, lds

def k2b(a):
    mark = len(a.lines)
    kn, vg, grid, blk, lds = K1.k2b(a)
    uv = a.newlabel("k2b_uv")
    i = next(i for i in range(mark, len(a.lines)) if "s_cbranch_scc1" in a.lines[i])
    endl = a.lines[i].split()[-1]
    a.lines[i] = "    s_cbranch_scc1 %s" % uv
    a.label(uv)
    a("s_cmp_ge_u32 s2, %d" % (256 + 112))
    a("s_cbranch_scc1 %s" % endl)
    load_kernargs(a)
    a("v_lshrrev_b32 v1, 6, v0")
    a("v_and_b32 v2, 63, v0")
    a("v_readfirstlane_b32 s3, v1")
    a("s_sub_u32 s2, s2, 256")
    a("s_lshr_b32 s4, s2, 4"); a("s_lshl_b32 s4, s4, 4")
    a("s_and_b32 s5, s2, 7"); a("s_lshl_b32 s5, s5, 1"); a("s_add_u32 s4, s4, s5")
    a("s_bfe_u32 s5, s2, 0x10003"); a("s_add_u32 s4, s4, s5")
    a("s_waitcnt lgkmcnt(0)")
    srd(a, 8, P_WIN, 0, 1024 * 7168)
    srd(a, 12, P_WS, WS_MOD + 3 * 4096, 8192)
    srd(a, 16, P_WS, WS_UV, 32768)
    def load_vec(a):
        a("v_lshlrev_b32 v4, 2, v3")
        a("s_movk_i32 s6, 0x1000")
        for i in range(8):
            a("buffer_load_dword v%d, v4, s[12:15], s6 offen offset:%d" % (8 + i, 64 * i))
        for i in range(8):
            a("buffer_load_dword v%d, v4, s[12:15], 0 offen offset:%d" % (16 + i, 64 * i))
    def prep_vec(a):
        pass
    def out_fn(a):
        a("s_cmp_lg_u32 s3, 0")
        a("s_cbranch_scc1 %s" % endl)
        a("v_and_b32 v7, 31, v2")
        a("v_lshrrev_b32 v6, 5, v2")
        a("v_lshlrev_b32 v7, 2, v7")
        a("v_lshl_add_u32 v5, v6, 10, v7")
        for w in range(8): a("ds_read_b32 v%d, v5 offset:%d" % (8 + w, 128 * w))
        a("s_waitcnt lgkmcnt(0)")
        sum8(a, 8)
        a("s_lshl_b32 s5, s4, 7")
        a("v_lshl_add_u32 v7, v6, 14, v7")
        a("buffer_store_dword v8, v7, s[16:19], s5 offen")
        a("s_endpgm")
    gemv32(a, 2, load_vec, prep_vec, 8, 7168, out_fn)
    return kn, vg, 256 + 112, blk, lds

def k_res(a, name, K, xoff, ldx, wp, resp, resoff, gate_idx, outp, outoff, stats, S):
    g = Gemm2(name, 128, K, 32, 4, 1, ldx, 2048, 256, S, [(8, [(0, 0)])])
    RX = g.CFREE; GA = RX + 16; CB = GA + 32
    def setup(a):
        xw_srds2(a, g, P_WS, xoff, wp, 0, K * 2048, 128)
        a("s_lshl_b32 s6, s4, 18"); a("s_lshl_b32 s7, s5, 7"); a("s_add_u32 s6, s6, s7")
        a("s_sub_u32 s7, %d, s6" % (2048 * 2048))
        if resoff:
            a("s_add_u32 s32, s6, %s" % hex(resoff)); srd(a, 16, resp, "s32", "s7")
        else:
            srd(a, 16, resp, "s6", "s7")
        if outoff:
            a("s_add_u32 s32, s6, %s" % hex(outoff)); srd(a, 20, outp, "s32", "s7")
        else:
            srd(a, 20, outp, "s6", "s7")
        if stats:
            a("s_add_u32 s32, s6, %s" % hex(WS_Y)); srd(a, 72, P_WS, "s32", "s7")
        a("s_lshl_b32 s6, s5, 8"); a("s_add_u32 s6, s6, %d" % (WS_MOD + gate_idx * 4096))
        srd(a, 24, P_WS, "s6", 8192 + 256)
        srd(a, 28, P_WS, WS_SUM2, 16384)
    def cpro(a):
        a("v_and_b32 v12, 31, v1"); a("v_add_u32 v12, s34, v12")
        a("v_lshrrev_b32 v13, 5, v1")
        a("v_lshlrev_b32 v9, 11, v12"); a("v_lshl_add_u32 v9, v13, 4, v9")
        a("v_lshlrev_b32 v10, 5, v13")
        for i in range(2):
            for p in range(2):
                a("buffer_load_dwordx4 %s, v9, s[16:19], 0 offen offset:%d" % (vr(RX + (i * 2 + p) * 4, 4), i * 64 + p * 32))
        for i in range(2):
            for p in range(2):
                for h in range(2):
                    a("buffer_load_dwordx4 %s, v10, s[24:27], 0 offen offset:%d" % (vr(GA + ((i * 2 + p) * 2 + h) * 4, 4), i * 128 + p * 64 + h * 16))
        if stats:
            a("s_movk_i32 s6, 0x2000")
            for i in range(2):
                for p in range(2):
                    for h in range(2):
                        a("buffer_load_dwordx4 %s, v10, s[24:27], s6 offen offset:%d" % (vr(CB + ((i * 2 + p) * 2 + h) * 4, 4), i * 128 + p * 64 + h * 16))
            a("s_lshl_b32 s6, s4, 7")
            a("v_add_u32 v11, s6, v12"); a("v_lshl_add_u32 v11, v13, 11, v11"); a("v_lshlrev_b32 v11, 2, v11")
    def lpro(a):
        g.loader_first(a)
    def epi(a):
        a("s_waitcnt vmcnt(0)")
        a("s_nop 8")
        T = g.FR
        for i in range(2):
            A = g.acc(i, 0)
            for e in range(8):
                unpack2(a, T + 2 * e, RX + i * 8 + e)
            for e in range(8):
                a("v_pk_fma_f32 %s, %s, %s, %s" % (vr(A + 2 * e, 2), vr(A + 2 * e, 2), vr(GA + i * 16 + 2 * e, 2), vr(T + 2 * e, 2)))
            for e in range(8):
                a("v_cvt_pk_bf16_f32 v%d, v%d, v%d" % (RX + i * 8 + e, A + 2 * e, A + 2 * e + 1))
            for p in range(2):
                a("buffer_store_dwordx4 %s, v9, s[20:23], 0 offen offset:%d" % (vr(RX + (i * 2 + p) * 4, 4), i * 64 + p * 32))
        if stats:
            A = g.ACC
            for e in range(16): unpack2(a, A + 2 * e, RX + e)
            for e in range(16):
                a("v_pk_mul_f32 %s, %s, %s" % (vr(CB + 2 * e, 2), vr(CB + 2 * e, 2), vr(A + 2 * e, 2)))
            for e in range(16):
                a("v_cvt_pk_bf16_f32 v%d, v%d, v%d" % (T + e, CB + 2 * e, CB + 2 * e + 1))
            for i in range(2):
                for p in range(2):
                    a("buffer_store_dwordx4 %s, v9, s[72:75], 0 offen offset:%d" % (vr(T + (i * 2 + p) * 4, 4), i * 64 + p * 32))
            a("v_pk_add_f32 v[12:13], %s, %s" % (vr(A, 2), vr(A + 2, 2)))
            a("v_pk_mul_f32 v[14:15], %s, %s" % (vr(A, 2), vr(A, 2)))
            a("v_pk_fma_f32 v[14:15], %s, %s, v[14:15]" % (vr(A + 2, 2), vr(A + 2, 2)))
            for e in range(2, 16):
                a("v_pk_add_f32 v[12:13], v[12:13], %s" % vr(A + 2 * e, 2))
                a("v_pk_fma_f32 v[14:15], %s, %s, v[14:15]" % (vr(A + 2 * e, 2), vr(A + 2 * e, 2)))
            a("v_add_f32 v12, v12, v13"); a("v_add_f32 v14, v14, v15")
            a("s_nop 1")
            a("v_permlane32_swap_b32 v12, v14")
            a("v_add_f32 v12, v12, v14")
            a("buffer_atomic_add_f32 v12, v11, s[28:31], 0 offen")
    kn = g.emit(a, tilemap_16x16_r4c8, setup, cpro, lpro, epi)
    return kn, 160, 256, 512, g.LDS_MAIN

def k4(a):
    Z2 = 3584
    g = Gemm2("k4", 128, 1024, 16, 2, 2, 2048, 7168, 256, CFG["S4"],
              [(8, [(0, Z2)]), (8, [(0, Z2 + 128), (6, 0)]), (8, [(0, 32)]), (4, [(0, 160)])])
    UVT = g.LDS_MAIN
    RST = UVT + 2048
    ZP = RST + 1024
    ZST = ZP + 4096
    lds = ZST + 1024
    def setup(a):
        xw_srds2(a, g, P_WS, WS_Y, P_WIN, 0, 1024 * 7168, 224)
        srd(a, 16, P_WS, WS_UV, 32768)
        srd(a, 20, P_WS, WS_SUM2, 16384)
        a("s_mul_i32 s6, s5, 224")
        a("s_mul_i32 s7, s4, %d" % (128 * 3584)); a("s_add_u32 s6, s6, s7")
        a("s_add_u32 s6, s6, %s" % hex(WS_Z1))
        srd(a, 24, P_WS, "s6", WS_Z2 - WS_Z1 + 128 * 3584)
        a("s_lshl_b32 s6, s4, 15"); a("s_add_u32 s6, s6, %s" % hex(WS_XCH))
        srd(a, 28, P_WS, "s6", 32768)
    def cpro(a):
        a("v_lshrrev_b32 v10, 1, v0")
        a("v_lshlrev_b32 v10, 4, v10")
        a("v_add_u32 v11, %d, v10" % (1792 * 4))
        a("v_subrev_u32 v12, %d, v10" % (112 * 4))
        a("v_cmp_gt_u32 vcc, 56, v0")
        a("v_and_b32 v13, 1, v0")
        a("s_nop 0")
        a("v_cndmask_b32 v10, v12, v11, vcc")
        a("v_lshl_add_u32 v10, v13, 14, v10")
        a("s_mul_i32 s6, s5, 448")
        a("v_cmp_gt_u32 vcc, 112, v0")
        a("s_and_saveexec_b64 s[66:67], vcc")
        a("buffer_load_dwordx4 v[16:19], v10, s[16:19], s6 offen")
        a("s_mov_b64 exec, s[66:67]")
        a("s_lshl_b32 s6, s4, 9"); a("s_add_u32 s7, s6, 8192")
        a("v_and_b32 v11, 127, v0"); a("v_lshlrev_b32 v11, 2, v11")
        a("buffer_load_dword v20, v11, s[20:23], s6 offen")
        a("buffer_load_dword v21, v11, s[20:23], s7 offen")
        a("v_lshlrev_b32 v12, 4, v0"); a("v_add_u32 v12, %d, v12" % UVT)
        a("v_lshlrev_b32 v11, 1, v11"); a("v_add_u32 v11, %d, v11" % RST)
        a("s_waitcnt vmcnt(0)")
        stats_from_sums(a, 20, 21, 22, 1024, 24)
        a("ds_write_b64 v11, v[22:23]")
        a("s_and_saveexec_b64 s[66:67], vcc")
        a("ds_write_b128 v12, v[16:19]")
        a("s_mov_b64 exec, s[66:67]")
        a("s_waitcnt lgkmcnt(0)")
    def lpro(a):
        g.loader_first(a)
    def epi(a):
        K1_ = 2.0 * math.sqrt(2.0 / math.pi) * LOG2E
        T = g.FR
        UV = T + 16
        RS = UV + 56
        SM = RS + 8
        FREE = g.CFREE
        SM = FREE
        NS_ = FREE + 16
        a("s_mov_b32 s70, %s" % hex(f32bits(-K1_ * 0.044715))); a("s_mov_b32 s71, s70")
        a("v_mov_b32 v10, %s" % hex(f32bits(-K1_))); a("v_mov_b32 v11, v10")
        a("v_mov_b32 v12, 1.0"); a("v_mov_b32 v13, 1.0")
        a("v_lshrrev_b32 v5, 4, v1")
        a("v_and_b32 v4, 15, v1"); a("v_add_u32 v4, s34, v4")
        a("s_lshl_b32 s6, s35, 8"); a("s_add_u32 s6, s6, %d" % UVT)
        a("v_lshl_add_u32 v6, v5, 5, s6")
        a("s_lshl_b32 s6, s35, 7"); a("s_add_u32 s6, s6, %d" % (UVT + 12 * 128))
        a("v_lshl_add_u32 v7, v5, 5, s6")
        a("v_lshlrev_b32 v8, 3, v4"); a("v_add_u32 v8, %d, v8" % RST)
        for j in range(4): a("ds_read_b64 %s, v8 offset:%d" % (vr(RS + 2 * j, 2), j * 128))
        for i in range(7):
            for h in range(2):
                if i < 6: a("ds_read_b128 %s, v6 offset:%d" % (vr(UV + 8 * i + 4 * h, 4), (i >> 1) * 512 + (i & 1) * 128 + h * 16))
                else: a("ds_read_b128 %s, v7 offset:%d" % (vr(UV + 8 * i + 4 * h, 4), h * 16))
        ZO = WS_Z2 - WS_Z1
        a("s_mov_b32 s6, 3584"); a("v_mul_lo_u32 v4, s6, v4")
        a("v_and_b32 v2, 1, v5"); a("v_lshrrev_b32 v3, 1, v5")
        a("v_lshl_add_u32 v9, v3, 4, v4")
        a("s_lshl_b32 s6, s35, 6")
        a("v_lshl_add_u32 v14, v2, 5, v9"); a("v_add_u32 v14, s6, v14")
        a("s_add_u32 s6, s6, %s" % hex(ZO + 128))
        a("s_cmp_eq_u32 s35, 0"); a("s_cselect_b32 s7, %s, 0" % hex(ZO + 160))
        a("s_cselect_b32 s72, -1, 0")
        a("v_mov_b32 v15, s6"); a("v_mov_b32 v3, s7")
        a("v_cmp_eq_u32 vcc, 1, v2")
        a("s_lshl_b32 s6, s35, 5")
        a("s_nop 0")
        a("v_cndmask_b32 v15, v15, v3, vcc")
        a("v_add_u32 v15, v15, v9")
        a("v_lshl_add_u32 v9, v5, 3, v4"); a("v_add_u32 v9, s6, v9")
        a("s_waitcnt lgkmcnt(0)")
        def gelu(j, slots):
            n = len(slots)
            for x, i in enumerate(slots):
                for h in range(2):
                    a("v_pk_fma_f32 %s, %s, %s, %s op_sel:[0,1,0] op_sel_hi:[1,1,1]" % (vr(T + 4 * x + 2 * h, 2), vr(UV + 8 * i + 2 * h, 2), vr(RS + 2 * j, 2), vr(UV + 8 * i + 4 + 2 * h, 2)))
            for x, i in enumerate(slots):
                for h in range(2):
                    A = vr(g.acc(i, j) + 2 * h, 2)
                    a("v_pk_fma_f32 %s, %s, %s, %s op_sel_hi:[1,0,1]" % (A, A, vr(RS + 2 * j, 2), vr(T + 4 * x + 2 * h, 2)))
            for x, i in enumerate(slots):
                for h in range(2):
                    A = vr(g.acc(i, j) + 2 * h, 2)
                    a("v_pk_mul_f32 %s, %s, %s" % (vr(T + 4 * x + 2 * h, 2), A, A))
            for e in range(2 * n):
                t = vr(T + 2 * e, 2); a("v_pk_fma_f32 %s, %s, s[70:71], v[10:11]" % (t, t))
            for x, i in enumerate(slots):
                for h in range(2):
                    t = vr(T + 4 * x + 2 * h, 2); a("v_pk_mul_f32 %s, %s, %s" % (t, t, vr(g.acc(i, j) + 2 * h, 2)))
            for e in range(4 * n): a("v_exp_f32 v%d, v%d" % (T + e, T + e))
            for e in range(2 * n): a("v_pk_add_f32 %s, %s, v[12:13]" % (vr(T + 2 * e, 2), vr(T + 2 * e, 2)))
            for e in range(4 * n): a("v_rcp_f32 v%d, v%d" % (T + e, T + e))
            for x, i in enumerate(slots):
                for h in range(2):
                    t = vr(T + 4 * x + 2 * h, 2); a("v_pk_mul_f32 %s, %s, %s" % (t, t, vr(g.acc(i, j) + 2 * h, 2)))
            for x, i in enumerate(slots):
                dst = g.acc(i - (i & 1), j) + 2 * (i & 1)
                for h in range(2):
                    a("v_cvt_pk_bf16_f32 v%d, v%d, v%d" % (dst + h, T + 4 * x + 2 * h, T + 4 * x + 2 * h + 1))
        for j in range(4):
            gelu(j, [0, 1, 2, 3])
            for i in range(4):
                dst = g.acc(i - (i & 1), j) + 2 * (i & 1)
                for h in range(2): unpack2(a, T + 4 * i + 2 * h, dst + h)
            for e in range(12, 16): a("v_and_b32 v%d, s72, v%d" % (T + e, T + e))
            s, q = SM + 4 * j, SM + 4 * j + 2
            a("v_pk_add_f32 %s, %s, %s" % (vr(s, 2), vr(T, 2), vr(T + 2, 2)))
            a("v_pk_mul_f32 %s, %s, %s" % (vr(q, 2), vr(T, 2), vr(T, 2)))
            a("v_pk_fma_f32 %s, %s, %s, %s" % (vr(q, 2), vr(T + 2, 2), vr(T + 2, 2), vr(q, 2)))
            for e in range(2, 8):
                a("v_pk_add_f32 %s, %s, %s" % (vr(s, 2), vr(s, 2), vr(T + 2 * e, 2)))
                a("v_pk_fma_f32 %s, %s, %s, %s" % (vr(q, 2), vr(T + 2 * e, 2), vr(T + 2 * e, 2), vr(q, 2)))
        for j in range(4):
            s, q = SM + 4 * j, SM + 4 * j + 2
            a("v_add_f32 v%d, v%d, v%d" % (s, s, s + 1)); a("v_add_f32 v%d, v%d, v%d" % (s + 1, q, q + 1))
        a("s_nop 0")
        for jp in range(2):
            for c in range(2):
                a("v_permlane16_swap_b32 v%d, v%d" % (SM + 8 * jp + c, SM + 8 * jp + 4 + c))
        for jp in range(2):
            for c in range(2):
                a("v_add_f32 v%d, v%d, v%d" % (SM + 8 * jp + c, SM + 8 * jp + c, SM + 8 * jp + 4 + c))
        a("s_nop 1")
        for c in range(2): a("v_permlane32_swap_b32 v%d, v%d" % (SM + c, SM + 8 + c))
        for c in range(2): a("v_add_f32 v%d, v%d, v%d" % (SM + c, SM + c, SM + 8 + c))
        a("v_and_b32 v%d, -2, v%d" % (SM + 1, SM + 1))
        a("s_lshl_b32 s6, s5, 1"); a("s_add_u32 s6, s6, s35"); a("s_lshl_b32 s6, s6, 10")
        a("s_lshl_b32 s7, s34, 3"); a("s_add_u32 s6, s6, s7")
        a("v_lshlrev_b32 v2, 3, v1")
        a("buffer_store_dwordx2 %s, v2, s[28:31], s6 offen sc1" % vr(SM, 2))
        a("s_barrier")
        for j in range(4):
            gelu(j, [4, 5, 6])
            b = g.acc(4, j)
            a("s_mov_b32 s6, %d" % (j * 16 * 3584))
            a("s_nop 0")
            a("v_permlane16_swap_b32 v%d, v%d" % (b, b + 2))
            a("v_permlane16_swap_b32 v%d, v%d" % (b + 1, b + 3))
            a("buffer_store_dwordx2 %s, v9, s[24:27], s6 offen offset:160" % vr(g.acc(6, j), 2))
            a("buffer_store_dwordx4 %s, v14, s[24:27], s6 offen offset:32" % vr(b, 4))
        a("s_barrier")
        for j in range(4): a("ds_read_b64 %s, v8 offset:%d" % (vr(RS + 2 * j, 2), ZST - RST + j * 128))
        a("v_add_u32 v14, %s, v14" % hex(ZO))
        a("s_cmp_eq_u32 s35, 0"); a("s_cselect_b64 vcc, -1, 0")
        a("s_waitcnt lgkmcnt(0)")
        for j in range(4):
            a("v_cndmask_b32 v%d, 1.0, v%d, vcc" % (NS_ + 2 * j, RS + 2 * j))
            a("v_cndmask_b32 v%d, 0, v%d, vcc" % (NS_ + 2 * j + 1, RS + 2 * j + 1))
        for j in range(4):
            for i in range(4):
                dst = g.acc(i - (i & 1), j) + 2 * (i & 1)
                for h in range(2): unpack2(a, T + 4 * i + 2 * h, dst + h)
            for i in range(4):
                st = vr((NS_ if i == 3 else RS) + 2 * j, 2)
                for h in range(2):
                    t = vr(T + 4 * i + 2 * h, 2)
                    a("v_pk_fma_f32 %s, %s, %s, %s op_sel:[0,0,1] op_sel_hi:[1,0,1]" % (t, t, st, st))
            for i in range(4):
                dst = g.acc(i - (i & 1), j) + 2 * (i & 1)
                for h in range(2):
                    a("v_cvt_pk_bf16_f32 v%d, v%d, v%d" % (dst + h, T + 4 * i + 2 * h, T + 4 * i + 2 * h + 1))
            a("s_mov_b32 s6, %d" % (j * 16 * 3584))
            a("s_nop 0")
            for p in range(2):
                b = g.acc(2 * p, j)
                a("v_permlane16_swap_b32 v%d, v%d" % (b, b + 2))
                a("v_permlane16_swap_b32 v%d, v%d" % (b + 1, b + 3))
            a("buffer_store_dwordx4 %s, v14, s[24:27], s6 offen" % vr(g.acc(0, j), 4))
            a("buffer_store_dwordx4 %s, v15, s[24:27], s6 offen" % vr(g.acc(2, j), 4))
    def lepi(a):
        a("v_lshlrev_b32 v2, 4, v1")
        a("s_lshl_b32 s6, s34, 13"); a("v_add_u32 v2, s6, v2")
        a("v_add_u32 v3, 4096, v2")
        a("s_mov_b32 s66, 0x40000")
        a("s_barrier")
        L = a.newlabel("k4_poll"); D = a.newlabel("k4_pdone")
        a.label(L)
        for p in range(8):
            a("buffer_load_dwordx4 %s, v%d, s[28:31], 0 offen offset:%d sc1" % (vr(16 + 4 * p, 4), 2 + (p >> 2), (p & 3) * 1024))
        a("s_waitcnt vmcnt(0)")
        a("v_max_u32 v4, v17, v19")
        for p in range(1, 8): a("v_max3_u32 v4, v4, v%d, v%d" % (17 + 4 * p, 19 + 4 * p))
        a("v_cmp_eq_u32 vcc, -1, v4")
        a("s_sub_u32 s66, s66, 1")
        a("s_cbranch_scc1 %s" % D)
        a("s_cbranch_vccz %s" % D)
        a("s_sleep 2")
        a("s_branch %s" % L)
        a.label(D)
        for p in range(1, 8):
            a("v_pk_add_f32 v[16:17], v[16:17], %s" % vr(16 + 4 * p, 2))
            a("v_pk_add_f32 v[18:19], v[18:19], %s" % vr(18 + 4 * p, 2))
        a("s_lshl_b32 s6, s34, 10"); a("s_add_u32 s6, s6, %d" % ZP)
        a("v_lshl_add_u32 v2, v1, 4, s6")
        a("ds_write_b128 v2, v[16:19]")
        a("s_waitcnt lgkmcnt(0)")
        a("s_barrier")
    kn = None
    old_epi = epi
    def epi2(a):
        mark = len(a.lines)
        old_epi(a)
        i0 = max(i for i in range(mark, len(a.lines)) if a.lines[i].strip() == "s_barrier")
        T = g.FR; UV = T + 16; RS = UV + 56
        b = Asm();
        for j in range(4):
            for w in range(4):
                b("ds_read_b64 %s, v8 offset:%d" % (vr(UV + 8 * j + 2 * w, 2), ZP - RST + w * 1024 + j * 128))
        b("s_waitcnt lgkmcnt(0)")
        for j in range(4):
            b("v_pk_add_f32 %s, %s, %s" % (vr(UV + 8 * j, 2), vr(UV + 8 * j, 2), vr(UV + 8 * j + 2, 2)))
            b("v_pk_add_f32 %s, %s, %s" % (vr(UV + 8 * j + 4, 2), vr(UV + 8 * j + 4, 2), vr(UV + 8 * j + 6, 2)))
        for j in range(4):
            b("v_pk_add_f32 %s, %s, %s" % (vr(UV + 8 * j, 2), vr(UV + 8 * j, 2), vr(UV + 8 * j + 4, 2)))
        for j in range(4):
            stats_from_sums(b, UV + 8 * j, UV + 8 * j + 1, RS + 2 * j, 1792, UV + 8 * j + 2)
        a.lines[i0 + 1:i0 + 5] = b.lines
    old_main = g.compute_main
    def cm(a):
        old_main(a)
        a("s_nop 8")
    g.compute_main = cm
    kn = g.emit(a, tilemap_16x16_r8c4, setup, cpro, lpro, epi2, lepi)
    return kn, 256, 256, 512, lds

def k5(a):
    g = Gemm2("k5", 128, 2048, 32, 2, 2, 4096, 3584, 224, CFG["S5"], [(8, [(0, 0)]), (8, [(0, 128)])])
    Z1 = g.CFREE; BS = Z1 + 32
    def setup(a):
        xw_srds2(a, g, P_WSP, 0, P_WS, WS_Z2, 2048 * 3584, 256)
        a("s_mul_i32 s6, s4, %d" % (128 * 3584)); a("s_lshl_b32 s7, s5, 8"); a("s_add_u32 s6, s6, s7")
        a("s_sub_u32 s7, %d, s6" % (2048 * 3584))
        a("s_add_u32 s32, s6, %s" % hex(WS_Z1)); srd(a, 20, P_WS, "s32", "s7")
        a("s_add_u32 s32, s6, %s" % hex(WS_U)); srd(a, 24, P_WS, "s32", "s7")
        a("s_lshl_b32 s6, s4, 8")
        srd(a, 28, P_BSP, "s6", 256)
    def cpro(a):
        a("v_and_b32 v12, 31, v1"); a("v_add_u32 v12, s34, v12")
        a("v_lshlrev_b32 v10, 1, v12")
        a("s_mov_b32 s6, 3584"); a("v_mul_lo_u32 v9, s6, v12")
        a("v_lshrrev_b32 v13, 5, v1"); a("v_lshl_add_u32 v9, v13, 4, v9")
        a("s_lshl_b32 s6, s35, 6"); a("v_add_u32 v9, s6, v9")
        a("s_mov_b32 s32, %d" % (32 * 3584))
        for j in range(2):
            a("buffer_load_ushort v%d, v10, s[28:31], 0 offen offset:%d" % (BS + 2 * j, j * 64))
        for j in range(2):
            for i in range(2):
                for p in range(2):
                    a("buffer_load_dwordx4 %s, v9, s[20:23], %s offen offset:%d" % (vr(Z1 + ((j * 2 + i) * 2 + p) * 4, 4), "s32" if j else "0", i * 128 + p * 32))
    def lpro(a):
        g.loader_first(a)
    def epi(a):
        a("s_waitcnt vmcnt(0)")
        for j in range(2): a("v_lshlrev_b32 v%d, 16, v%d" % (BS + 2 * j, BS + 2 * j))
        a("s_nop 8")
        T = g.FR
        for j in range(2):
            for i in range(2):
                A = g.acc(i, j); z = Z1 + (j * 2 + i) * 8
                for e in range(8): unpack2(a, T + 2 * e, z + e)
                for e in range(8):
                    a("v_pk_add_f32 %s, %s, %s op_sel_hi:[1,0]" % (vr(A + 2 * e, 2), vr(A + 2 * e, 2), vr(BS + 2 * j, 2)))
                for e in range(8):
                    a("v_pk_mul_f32 %s, %s, %s" % (vr(A + 2 * e, 2), vr(A + 2 * e, 2), vr(T + 2 * e, 2)))
                for e in range(8):
                    a("v_cvt_pk_bf16_f32 v%d, v%d, v%d" % (z + e, A + 2 * e, A + 2 * e + 1))
                for p in range(2):
                    a("buffer_store_dwordx4 %s, v9, s[24:27], %s offen offset:%d" % (vr(z + 4 * p, 4), "s32" if j else "0", i * 128 + p * 32))
    kn = g.emit(a, tilemap_16x14, setup, cpro, lpro, epi)
    return kn, 160, 224, 512, g.LDS_MAIN

ORDER = ["k0", "k1", "k2", "k2b", "k3", "k4", "k5", "k6"]
def build(path, order=None):
    a = Asm()
    ks = {}
    ks["k0"] = k0(a)
    ks["k1"] = k1(a)
    ks["k2"] = k2(a)
    ks["k2b"] = k2b(a)
    ks["k3"] = k_res(a, "k3", 1024, WS_O, 2048, P_WO, P_X, 0, 2, P_WS, WS_X1, True, CFG["S3"])
    ks["k4"] = k4(a)
    ks["k5"] = k5(a)
    ks["k6"] = k_res(a, "k6", 1792, WS_U, 3584, P_WOUT, P_WS, WS_X1, 5, P_OUT, 0, False, CFG["S6"])
    order = order or ORDER
    ref = open("cdna_kernels/%s.s.ref" % NAME).read().split("\n")
    head = [l for l in ref if l.startswith(";") and "@launch" not in l and "Override" not in l and "grid=ceil" not in l]
    head = head[:15]
    out = list(head)
    for k in order:
        kn, vg, grid, blk, lds = ks[k]
        out.append("; @launch kernel=%s grid=(%d,1,1) block=(%d,1,1) lds=%d" % (kn, grid, blk, lds))
    out.append('.amdgcn_target "amdgcn-amd-amdhsa--gfx950"')
    out.append(".text")
    out += a.lines
    out.append('.section .rodata,"a"')
    for k, (kn, vg, grid, blk, lds) in ks.items():
        out.append(kernel_desc(kn, vg))
    open(path, "w").write("\n".join(out) + "\n")

if __name__ == "__main__":
    build(sys.argv[1] if len(sys.argv) > 1 else "cdna_kernels/%s.s" % NAME)
```

```python
import sys, math

NAME = "adaLN_cond__linear_kernel_hedgehog__mixer_gmlp__prompt"

WS_MOD = 0x0
WS_ST1 = 0x8000
WS_SUM2 = 0xC000
WS_SUM3 = 0x10000
WS_KVP = 0x100000
KVP_STRIDE = 8448
WS_PHIQ = 0x800000
WS_O = 0x1000000
WS_X1 = 0x1400000
WS_Z1 = 0x1800000
WS_Z2 = 0x2000000
WS_U = 0x2800000

P_X, P_WQKV, P_WPHI, P_WO, P_BX, P_WIN, P_WSP, P_BSP, P_WOUT, P_C, P_WMOD, P_OUT, P_DBG, P_WS = range(14)
LOG2E = 1.4426950408889634


def f32bits(x):
    import struct
    return struct.unpack("<I", struct.pack("<f", x))[0]


class Asm:
    def __init__(self):
        self.lines = []
        self.nlab = 0

    def __call__(self, s):
        self.lines.append("    " + s)

    def label(self, l):
        self.lines.append(l + ":")

    def newlabel(self, p):
        self.nlab += 1
        return "L_%s_%d" % (p, self.nlab)

    def c(self, s):
        self.lines.append("    ; " + s)


def vr(b, n):
    return "v[%d:%d]" % (b, b + n - 1) if n > 1 else "v%d" % b


def sr(b, n):
    return "s[%d:%d]" % (b, b + n - 1) if n > 1 else "s%d" % b


def ptr(i):
    return 36 + 2 * i


def load_kernargs(a):
    a("s_load_dwordx16 s[36:51], s[0:1], 0")
    a("s_load_dwordx8 s[52:59], s[0:1], 64")
    a("s_load_dwordx4 s[60:63], s[0:1], 96")


def srd(a, d, p, off, size):
    lo, hi = ptr(p), ptr(p) + 1
    if off == 0:
        a("s_mov_b32 s%d, s%d" % (d, lo))
        a("s_mov_b32 s%d, s%d" % (d + 1, hi))
    else:
        a("s_add_u32 s%d, s%d, %s" % (d, lo, off if isinstance(off, str) else hex(off)))
        a("s_addc_u32 s%d, s%d, 0" % (d + 1, hi))
    a("s_mov_b32 s%d, %s" % (d + 2, size if isinstance(size, str) else hex(size)))
    a("s_mov_b32 s%d, 0x00020000" % (d + 3))


def kernel_head(a, name):
    a.lines.append(".globl %s" % name)
    a.lines.append(".p2align 8")
    a.lines.append(".type %s,@function" % name)
    a.label(name)


def kernel_desc(name, vgpr, sgpr=100):
    acc = (vgpr + 3) // 4 * 4
    return """.p2align 6
.amdhsa_kernel %s
  .amdhsa_next_free_vgpr %d
  .amdhsa_next_free_sgpr %d
  .amdhsa_accum_offset %d
  .amdhsa_group_segment_fixed_size 0
  .amdhsa_kernarg_size 112
  .amdhsa_user_sgpr_count 2
  .amdhsa_user_sgpr_kernarg_segment_ptr 1
  .amdhsa_system_sgpr_workgroup_id_x 1
.end_amdhsa_kernel""" % (name, vgpr, sgpr, acc)


DBG = dict(noload=False, nowrite=False, nomfma=False, noread=False, noform=False, stamp=False, stampiss=False, cb=0, xblk=0, wblk=0)

class Gemm:
    def __init__(self, name, BM, BN, K, mf, wgm, wgn, ldx, ldw, ntiles, D=4):
        self.name, self.BM, self.BN, self.K, self.mf = name, BM, BN, K, mf
        self.wgm, self.wgn, self.ldx, self.ldw, self.ntiles, self.D = wgm, wgn, ldx, ldw, ntiles, D
        assert wgm * wgn == 4
        self.WM, self.WN = BM // wgm, BN // wgn
        self.nk = K // 64
        assert self.nk % 2 == 0
        self.PX = 144 if mf == 32 else 160
        pw = BN * 2
        if mf == 32:
            while pw % 256 not in (64, 192):
                pw += 64
            self.PW, self.dl = pw, 0
        else:
            while (pw // 64) % 2 == 0 or pw % 64:
                pw += 16
            self.PW, self.dl = pw, 32
        self.XS = BM * self.PX
        self.WS = 64 * self.PW + 8 * self.dl
        self.XB = 0
        self.WB = 2 * self.XS
        self.LDS_MAIN = self.WB + 2 * self.WS
        assert 2 * self.XS <= 65536 and 2 * self.WS <= 65536
        self.NT = self.WM // mf
        self.MT = self.WN // mf
        self.S = 4 if mf == 32 else 2
        self.accn = 16 if mf == 32 else 4
        self.segs = []
        u = BN // 8
        o = 0
        while u >= 8:
            self.segs.append((o, o, 8)); o += 128; u -= 8
        if u:
            assert u == 4
            self.segs.append((o, o, 4))
        self.xform = None
        self.wform = None
        self.lds_extra = 0
        self.FR = 16
        self.nfr = (self.NT + self.MT) * 4
        self.ACC = self.FR + 2 * self.nfr
        self.ACC = (self.ACC + 3) // 4 * 4
        self.nacc = self.NT * self.MT * self.accn
        self.CFREE = self.ACC + self.nacc

    def acc(self, i, j):
        return self.ACC + (i * self.NT + j) * self.accn

    def xfrag(self, s, j):
        return self.FR + s * self.nfr + j * 4

    def wfrag(self, s, i):
        return self.FR + s * self.nfr + (self.NT + i) * 4

    def reads(self, slot, sub, fs):
        out = []
        mf = self.mf
        xs, ws = [], []
        for j in range(self.NT):
            imm = slot * self.XS + j * mf * self.PX + sub * (32 if mf == 32 else 64)
            xs.append("ds_read_b128 %s, v2 offset:%d" % (vr(self.xfrag(fs, j), 4), imm))
        for i in range(self.MT):
            for q in range(2):
                if mf == 32:
                    imm = slot * self.WS + (16 * sub + 4 * q) * self.PW + i * 64
                else:
                    imm = slot * self.WS + (32 * sub + 4 * q) * self.PW + 4 * sub * 32 + i * 32
                ws.append("ds_read_b64_tr_b16 %s, v3 offset:%d" % (vr(self.wfrag(fs, i) + 2 * q, 2), imm))
        out = ws[0:2] + xs + ws[2:]
        return out

    def mfmas(self, fs):
        op = "v_mfma_f32_32x32x16_bf16" if self.mf == 32 else "v_mfma_f32_16x16x32_bf16"
        out = []
        for i in range(self.MT):
            for j in range(self.NT):
                A = self.acc(i, j)
                out.append("%s %s, %s, %s, %s" % (op, vr(A, self.accn), vr(self.wfrag(fs, i), 4),
                                                  vr(self.xfrag(fs, j), 4), vr(A, self.accn)))
        return out

    def compute_addr(self, a):
        mf = self.mf
        a("v_and_b32 v1, 63, v0")
        if self.wgn == 1:
            a("s_mul_i32 s34, s3, %d" % self.WM); a("s_mov_b32 s35, 0")
        elif self.wgm == 1:
            a("s_mov_b32 s34, 0"); a("s_mul_i32 s35, s3, %d" % self.WN)
        else:
            a("s_lshr_b32 s34, s3, 1"); a("s_mul_i32 s34, s34, %d" % self.WM)
            a("s_and_b32 s35, s3, 1"); a("s_mul_i32 s35, s35, %d" % self.WN)
        sh = 5 if mf == 32 else 4
        a("v_and_b32 v4, %d, v1" % (mf - 1))
        a("v_add_u32 v4, s34, v4")
        a("v_mul_u32_u24 v2, %d, v4" % self.PX)
        a("v_lshrrev_b32 v4, %d, v1" % sh)
        a("v_lshl_add_u32 v2, v4, 4, v2")
        if self.XB:
            a("v_add_u32 v2, %d, v2" % self.XB)
        a("v_bfe_u32 v4, v1, 2, 2")
        a("v_lshrrev_b32 v5, %d, v1" % sh)
        a("v_lshl_add_u32 v4, v5, 3, v4")
        a("v_mul_u32_u24 v3, %d, v4" % self.PW)
        if mf == 32:
            a("v_bfe_u32 v4, v1, 4, 1")
            a("v_lshl_add_u32 v3, v4, 5, v3")
            a("v_and_b32 v4, 1, v1")
            a("v_lshl_add_u32 v3, v4, 4, v3")
            a("v_bfe_u32 v4, v1, 1, 1")
            a("v_lshl_add_u32 v3, v4, 3, v3")
        else:
            a("v_lshl_add_u32 v3, v5, 5, v3")
            a("v_and_b32 v4, 3, v1")
            a("v_lshl_add_u32 v3, v4, 3, v3")
        a("s_lshl_b32 s6, s35, 1")
        a("s_add_u32 s6, s6, %d" % self.WB)
        a("v_add_u32 v3, s6, v3")

    def interleave(self, a, mf, rd, first_after=None):
        if DBG["nomfma"]:
            mf = ["s_nop 0"] * len(mf)
        if DBG["noread"]:
            rd = []
        n = len(mf)
        per = 2 if self.mf == 32 else 1
        per = max(per, -(-len(rd) // max(1, n - 1)))
        ri = 0
        for t, m in enumerate(mf):
            a(m)
            if t == 0 and first_after:
                for x in first_after:
                    a(x)
            for _ in range(per):
                if ri < len(rd):
                    a(rd[ri]); ri += 1
        while ri < len(rd):
            a(rd[ri]); ri += 1

    def compute_main(self, a):
        for r in range(self.nacc):
            a("v_mov_b32 v%d, 0" % (self.ACC + r))
        a("s_barrier")
        self.stamp(1)
        for x in self.reads(0, 0, 0):
            a(x)
        a("s_mov_b32 s6, %d" % (self.nk // 2))
        L = a.newlabel(self.name + "_cl")
        a.lines.append(".p2align 4")
        a.label(L)
        for slot in range(2):
            for sub in range(self.S):
                fs = sub & 1
                a("s_waitcnt lgkmcnt(0)")
                if sub < self.S - 1:
                    self.interleave(a, self.mfmas(fs), self.reads(slot, sub + 1, fs ^ 1))
                else:
                    extra = ["s_barrier"]
                    if slot == 1:
                        extra = ["s_sub_u32 s6, s6, 1", "s_barrier"]
                    self.interleave(a, self.mfmas(fs), self.reads(slot ^ 1, 0, fs ^ 1), first_after=extra)
        a("s_cmp_lg_u32 s6, 0")
        a("s_cbranch_scc1 %s" % L)
        a("s_waitcnt lgkmcnt(0)")

    def loader_setup(self, a):
        self.loads = []
        nx = self.BM // 32
        r = 4
        a("v_and_b32 v1, 255, v0")
        a("v_and_b32 v2, 7, v0")
        a("v_lshrrev_b32 v3, 3, v1")
        self.vXw = r; r += 1
        a("v_mul_u32_u24 v%d, %d, v3" % (self.vXw, self.PX))
        a("v_lshl_add_u32 v%d, v2, 4, v%d" % (self.vXw, self.vXw))
        if self.XB:
            a("v_add_u32 v%d, %d, v%d" % (self.vXw, self.XB, self.vXw))
        a("s_mov_b32 s6, %d" % self.ldx)
        for i in range(nx):
            if i == 0:
                a("v_mul_lo_u32 v%d, s6, v3" % r)
                a("v_lshl_add_u32 v%d, v2, 4, v%d" % (r, r))
            else:
                a("v_add_u32 v%d, %d, v%d" % (r, 32 * self.ldx, r - 1))
            self.loads.append(dict(kind="x", i=i, voff=r, srd=8, soff=7, lbase=self.vXw, limm=i * 32 * self.PX,
                                   lslot=self.XS))
            r += 1
        a("v_bfe_u32 v3, v0, 3, 3")
        a("s_sub_u32 s6, s3, 4")
        a("s_lshl_b32 s6, s6, 4")
        a("v_add_u32 v3, s6, v3")
        self.vWrow = r; r += 1
        a("v_mov_b32 v%d, v3" % self.vWrow)
        self.vWw = r; r += 1
        a("v_mul_u32_u24 v%d, %d, v3" % (self.vWw, self.PW))
        a("v_lshl_add_u32 v%d, v2, 4, v%d" % (self.vWw, self.vWw))
        a("s_lshr_b32 s6, s6, 3")
        a("s_mul_i32 s6, s6, %d" % self.dl)
        a("s_add_u32 s6, s6, %d" % self.WB)
        a("v_add_u32 v%d, s6, v%d" % (self.vWw, self.vWw))
        a("s_mov_b32 s6, %d" % self.ldw)
        base = r
        a("v_mul_lo_u32 v%d, s6, v3" % base)
        a("v_lshl_add_u32 v%d, v2, 4, v%d" % (base, base))
        first = True
        for hh in range(2):
            for (go, lo, un) in self.segs:
                if un != 8:
                    continue
                if not first:
                    a("v_add_u32 v%d, %d, v%d" % (r, hh * 8 * self.ldw + go, base))
                else:
                    assert go == 0
                first = False
                self.loads.append(dict(kind="w", hh=hh, voff=r, srd=12, soff=33, lbase=self.vWw,
                                       limm=hh * (8 * self.PW + self.dl) + lo, lslot=self.WS))
                r += 1
        for (go, lo, un) in self.segs:
            if un == 4:
                a("v_bfe_u32 v3, v0, 2, 4")
                a("s_sub_u32 s6, s3, 4")
                a("s_lshl_b32 s6, s6, 4")
                a("v_add_u32 v3, s6, v3")
                a("v_and_b32 v2, 3, v0")
                w2 = r; r += 1
                a("v_mul_u32_u24 v%d, %d, v3" % (w2, self.PW))
                a("v_lshl_add_u32 v%d, v2, 4, v%d" % (w2, w2))
                a("v_lshrrev_b32 v1, 3, v3")
                a("v_mul_u32_u24 v1, %d, v1" % self.dl)
                a("v_add3_u32 v%d, v%d, v1, %s" % (w2, w2, "s34"))
                a.lines.insert(len(a.lines) - 1, "    s_mov_b32 s34, %d" % (self.WB + lo))
                a("s_mov_b32 s6, %d" % self.ldw)
                a("v_mul_lo_u32 v%d, s6, v3" % r)
                a("v_lshl_add_u32 v%d, v2, 4, v%d" % (r, r))
                a("v_add_u32 v%d, %d, v%d" % (r, go, r))
                self.loads.append(dict(kind="w", hh=None, voff=r, srd=12, soff=33, lbase=w2, limm=0, lslot=self.WS))
                r += 1
        self.LT = (r + 1) // 2 * 2
        self.L = len(self.loads)
        self.RING = 256 - self.D * self.L * 4
        assert self.D * self.L <= 63
        a("s_mov_b32 s7, 0")
        a("s_mov_b32 s33, 0")

    def ring(self, stage, i):
        return self.RING + ((stage % self.D) * self.L + i) * 4

    def issue(self, a, stage, i, first=False):
        ld = self.loads[i]
        if DBG["noload"] and not first:
            return
        a("buffer_load_dwordx4 %s, v%d, %s, s%d offen" % (vr(self.ring(stage, i), 4), ld["voff"], sr(ld["srd"], 4),
                                                       ld["soff"]))

    def advance(self, a):
        a("s_add_u32 s7, s7, 128")
        a("s_add_u32 s33, s33, %d" % (64 * self.ldw))

    def loader_step(self, a, j, reissue, remaining):
        slot = j & 1
        for i, ld in enumerate(self.loads):
            if reissue:
                a("s_waitcnt vmcnt(%d)" % (self.D * self.L - 1))
            else:
                a("s_waitcnt vmcnt(%d)" % (remaining * self.L - i - 1))
            src = self.ring(j, i)
            hook = self.xform if ld["kind"] == "x" else self.wform
            if DBG["noform"]:
                hook = None
            if DBG["nowrite"]:
                if reissue:
                    self.issue(a, j, i)
                continue
            if hook:
                src = hook(a, ld, src, j)
                if reissue:
                    self.issue(a, j, i)
                a("ds_write_b128 v%d, %s offset:%d" % (ld["lbase"], vr(src, 4), ld["limm"] + slot * ld["lslot"]))
            else:
                a("ds_write_b128 v%d, %s offset:%d" % (ld["lbase"], vr(src, 4), ld["limm"] + slot * ld["lslot"]))
                if reissue:
                    self.issue(a, j, i)
            if getattr(self, "after_load", None):
                self.after_load(a, ld, i)
        if reissue:
            self.advance(a)
        a("s_waitcnt lgkmcnt(0)")
        a("s_barrier")

    def loader_issue_first(self, a):
        for st in range(self.D):
            for i in range(self.L):
                self.issue(a, st, i, True)
            self.advance(a)

    def loader_main(self, a):
        U = self.D * 2 // math.gcd(self.D, 2)
        nmain = self.nk - self.D
        assert nmain % U == 0
        if nmain:
            a("s_mov_b32 s6, %d" % (nmain // U))
            L = a.newlabel(self.name + "_ll")
            a.lines.append(".p2align 4")
            a.label(L)
            for j in range(U):
                self.loader_step(a, j, True, None)
            a("s_sub_u32 s6, s6, 1")
            a("s_cmp_lg_u32 s6, 0")
            a("s_cbranch_scc1 %s" % L)
        for j in range(self.D):
            self.loader_step(a, nmain + j, False, self.D - j)
        a("s_barrier")

    def emit(self, a, tilemap, setup, cpro, lpro, epi, lepi=None):
        kn = self.name + "_kernel"
        kernel_head(a, kn)
        end = a.newlabel(self.name + "_end")
        ldr = a.newlabel(self.name + "_ldr")
        a("s_cmp_ge_u32 s2, %d" % self.ntiles)
        a("s_cbranch_scc1 %s" % end)
        load_kernargs(a)
        a("v_lshrrev_b32 v1, 6, v0")
        tilemap(a)
        a("v_readfirstlane_b32 s3, v1")
        a("s_waitcnt lgkmcnt(0)")
        setup(a)
        a("s_cmp_ge_u32 s3, 4")
        a("s_cbranch_scc1 %s" % ldr)
        a("s_setprio 2")
        def stamp(i):
            if DBG["stamp"]:
                a("s_memtime s[%d:%d]" % (80 + 4 * i, 81 + 4 * i))
                a("s_memrealtime s[%d:%d]" % (82 + 4 * i, 83 + 4 * i))
        stamp(0)
        self.compute_addr(a)
        cpro(a)
        self.stamp = stamp
        self.compute_main(a)
        stamp(2)
        epi(a)
        if DBG["stamp"]:
            a("s_waitcnt vmcnt(0)")
            stamp(3)
            a("s_waitcnt lgkmcnt(0)")
            a("s_mov_b64 exec, 1")
            a("s_lshl_b32 s6, s2, 2"); a("s_add_u32 s6, s6, s3"); a("s_lshl_b32 s6, s6, 6")
            a("s_add_u32 s6, s6, 0x4000000")
            srd(a, 8, P_WS, "s6", 64)
            a("v_mov_b32 v1, 0")
            for i in range(16):
                a("v_mov_b32 v2, s%d" % (80 + i))
                a("buffer_store_dword v2, v1, s[8:11], 0 offen offset:%d" % (4 * i))
        a("s_endpgm")
        a.label(ldr)
        self.loader_setup(a)
        lpro(a)
        self.loader_main(a)
        if lepi:
            lepi(a)
        a.label(end)
        a("s_endpgm")
        return kn


def tilemap_16x16_r8c4(a):
    a("s_lshr_b32 s6, s2, 3")
    a("s_and_b32 s4, s6, 7")
    a("s_and_b32 s7, s2, 1")
    a("s_lshl_b32 s7, s7, 3")
    a("s_add_u32 s4, s4, s7")
    a("s_lshr_b32 s5, s6, 3")
    a("s_bfe_u32 s7, s2, 0x20001")
    a("s_lshl_b32 s7, s7, 2")
    a("s_add_u32 s5, s5, s7")


def tilemap_16x16_r4c8(a):
    a("s_lshr_b32 s6, s2, 3")
    a("s_and_b32 s4, s6, 3")
    a("s_and_b32 s7, s2, 3")
    a("s_lshl_b32 s7, s7, 2")
    a("s_add_u32 s4, s4, s7")
    a("s_lshr_b32 s5, s6, 2")
    a("s_bfe_u32 s7, s2, 0x10002")
    a("s_lshl_b32 s7, s7, 3")
    a("s_add_u32 s5, s5, s7")


def tilemap_16x14(a):
    a("s_lshr_b32 s6, s2, 3")
    a("s_and_b32 s4, s6, 3")
    a("s_and_b32 s7, s2, 3")
    a("s_lshl_b32 s7, s7, 2")
    a("s_add_u32 s4, s4, s7")
    a("s_lshr_b32 s5, s6, 2")
    a("s_bfe_u32 s7, s2, 0x10002")
    a("s_mul_i32 s7, s7, 7")
    a("s_add_u32 s5, s5, s7")


def nothing(a):
    pass


def unpack2(a, dst, src):
    a("v_lshlrev_b32 v%d, 16, v%d" % (dst, src))
    a("v_and_b32 v%d, 0xffff0000, v%d" % (dst + 1, src))


def xw_srds(a, g, xp, xoff, wp, woff, wtotal):
    a("s_mul_i32 s6, s4, %d" % (g.BM * g.ldx))
    if xoff:
        a("s_add_u32 s6, s6, %s" % hex(xoff))
    srd(a, 8, xp, "s6", g.BM * g.ldx)
    a("s_mul_i32 s6, s5, %d" % g.colbytes)
    a("s_sub_u32 s7, %s, s6" % hex(wtotal))
    if woff:
        a("s_add_u32 s6, s6, %s" % hex(woff))
    srd(a, 12, wp, "s6", "s7")
```

```python
from gen import *

def bf16_round(a, dst, src):
    a("v_cvt_pk_bf16_f32 v%d, v%d, v%d" % (dst, src, src))
    a("v_lshlrev_b32 v%d, 16, v%d" % (dst, dst))

def swap_red(a, op, which, x, t):
    a("v_mov_b32 v%d, v%d" % (t, x))
    a("s_nop 1")
    a("v_permlane%d_swap_b32 v%d, v%d" % (which, x, t))
    a("%s v%d, v%d, v%d" % (op, x, x, t))

def multi_swap_red(a, op, which, xs, ts):
    for x, t in zip(xs, ts):
        a("v_mov_b32 v%d, v%d" % (t, x))
    if len(xs) < 3:
        a("s_nop 1")
    for x, t in zip(xs, ts):
        a("v_permlane%d_swap_b32 v%d, v%d" % (which, x, t))
    for x, t in zip(xs, ts):
        a("%s v%d, v%d, v%d" % (op, x, x, t))

def multi_dpp_red(a, xs, rors):
    for ro in rors:
        if len(xs) < 3:
            a("s_nop 1")
        for x in xs:
            a("v_add_f32_dpp v%d, v%d, v%d row_ror:%d row_mask:0xf bank_mask:0xf" % (x, x, x, ro))

def k0(a):
    kn = "k0_kernel"
    kernel_head(a, kn)
    end = a.newlabel("k0_end"); st = a.newlabel("k0_st")
    a("s_cmp_ge_u32 s2, 256")
    a("s_cbranch_scc1 %s" % end)
    load_kernargs(a)
    a("v_lshrrev_b32 v1, 6, v0")
    a("v_and_b32 v2, 63, v0")
    a("v_readfirstlane_b32 s3, v1")
    a("s_waitcnt lgkmcnt(0)")
    a("s_cmp_ge_u32 s2, 192")
    a("s_cbranch_scc1 %s" % st)
    a("s_lshr_b32 s4, s2, 4"); a("s_lshl_b32 s4, s4, 4")
    a("s_and_b32 s5, s2, 7"); a("s_lshl_b32 s5, s5, 1"); a("s_add_u32 s4, s4, s5")
    a("s_bfe_u32 s5, s2, 0x10003"); a("s_add_u32 s4, s4, s5")
    srd(a, 8, P_WMOD, 0, 1024 * 6144 * 2)
    srd(a, 12, P_C, 0, 2048)
    srd(a, 16, P_WS, WS_MOD, 6144 * 4)
    a("v_lshrrev_b32 v3, 2, v2")
    a("s_lshl_b32 s5, s3, 7")
    a("v_add_u32 v3, s5, v3")
    a("v_lshlrev_b32 v4, 1, v3")
    a("s_mov_b32 s6, 12288")
    a("v_mul_lo_u32 v5, s6, v3")
    a("v_and_b32 v6, 3, v2")
    a("v_lshl_add_u32 v5, v6, 4, v5")
    a("s_lshl_b32 s5, s4, 6")
    a("v_add_u32 v5, s5, v5")
    for i in range(8):
        a("buffer_load_ushort v%d, v4, s[12:15], 0 offen offset:%d" % (8 + i, 32 * i))
    for i in range(8):
        a("s_mov_b32 s%d, %d" % (20 + i, i * 16 * 12288))
        a("buffer_load_dwordx4 %s, v5, s[8:11], s%d offen" % (vr(32 + 4 * i, 4), 20 + i))
    a("s_mov_b32 s6, %s" % hex(f32bits(-LOG2E)))
    a("s_waitcnt vmcnt(8)")
    for i in range(8): a("v_lshlrev_b32 v%d, 16, v%d" % (8 + i, 8 + i))
    for i in range(8): a("v_mul_f32 v%d, s6, v%d" % (16 + i, 8 + i))
    for i in range(8): a("v_exp_f32 v%d, v%d" % (16 + i, 16 + i))
    for i in range(8): a("v_add_f32 v%d, 1.0, v%d" % (16 + i, 16 + i))
    for i in range(8): a("v_rcp_f32 v%d, v%d" % (16 + i, 16 + i))
    for i in range(8): a("v_mul_f32 v%d, v%d, v%d" % (8 + i, 8 + i, 16 + i))
    for i in range(8): a("v_cvt_pk_bf16_f32 v%d, v%d, v%d" % (8 + i, 8 + i, 8 + i))
    for i in range(8): a("v_lshlrev_b32 v%d, 16, v%d" % (8 + i, 8 + i))
    for e in range(8): a("v_mov_b32 v%d, 0" % (24 + e))
    for i in range(8):
        a("s_waitcnt vmcnt(%d)" % (7 - i))
        for d in range(4):
            unpack2(a, 16 + 2 * d, 32 + 4 * i + d)
        for e in range(8):
            a("v_fmac_f32 v%d, v%d, v%d" % (24 + e, 8 + i, 16 + e))
    xs = list(range(24, 32)); ts = list(range(16, 24))
    multi_dpp_red(a, xs, [4, 8])
    multi_swap_red(a, "v_add_f32", 16, xs, ts)
    multi_swap_red(a, "v_add_f32", 32, xs, ts)
    a("s_lshl_b32 s5, s3, 7")
    a("v_lshl_add_u32 v7, v6, 5, s5")
    a("s_mov_b64 exec, 0xf")
    a("ds_write_b128 v7, v[24:27]")
    a("ds_write_b128 v7, v[28:31] offset:16")
    a("s_mov_b64 exec, -1")
    a("s_waitcnt lgkmcnt(0)")
    a("s_barrier")
    a("s_cmp_lg_u32 s3, 0")
    a("s_cbranch_scc1 %s" % end)
    a("v_and_b32 v7, 31, v2")
    a("v_lshlrev_b32 v7, 2, v7")
    for w in range(8):
        a("ds_read_b32 v%d, v7 offset:%d" % (8 + w, 128 * w))
    a("s_waitcnt lgkmcnt(0)")
    a("v_add_f32 v8, v8, v9"); a("v_add_f32 v10, v10, v11"); a("v_add_f32 v12, v12, v13"); a("v_add_f32 v14, v14, v15")
    a("v_add_f32 v8, v8, v10"); a("v_add_f32 v12, v12, v14"); a("v_add_f32 v8, v8, v12")
    bf16_round(a, 8, 8)
    a("s_lshl_b32 s5, s4, 7")
    a("v_add_u32 v7, s5, v7")
    a("s_mov_b32 exec_hi, 0")
    a("buffer_store_dword v8, v7, s[16:19], 0 offen")
    a("s_endpgm")
    a.label(st)
    a("s_sub_u32 s4, s2, 192")
    srd(a, 8, P_X, 0, 2048 * 2048)
    srd(a, 12, P_WS, WS_ST1, 2048 * 8)
    a("s_lshl_b32 s5, s4, 9")
    a("s_add_u32 s5, s5, %s" % hex(WS_SUM2))
    srd(a, 16, P_WS, "s5", 512)
    a("s_lshl_b32 s5, s4, 3"); a("s_add_u32 s5, s5, s3"); a("s_lshl_b32 s5, s5, 2")
    a("s_lshl_b32 s6, s5, 11")
    a("v_lshl_add_u32 v3, v2, 4, s6")
    for r in range(4):
        a("s_mov_b32 s%d, %d" % (20 + r, r * 2048))
        a("buffer_load_dwordx4 %s, v3, s[8:11], s%d offen" % (vr(8 + 8 * r, 4), 20 + r))
        a("buffer_load_dwordx4 %s, v3, s[8:11], s%d offen offset:1024" % (vr(12 + 8 * r, 4), 20 + r))
    a("v_mov_b32 v4, 0")
    a("v_lshlrev_b32 v5, 2, v0")
    a("buffer_store_dword v4, v5, s[16:19], 0 offen")
    U = 48
    for r in range(4):
        a("s_waitcnt vmcnt(%d)" % (7 - 2 * r))
        for d in range(8):
            unpack2(a, U + 16 * r + 2 * d, 8 + 8 * r + d)
    S = 112
    for r in range(4):
        b = U + 16 * r
        a("v_pk_add_f32 %s, %s, %s" % (vr(S + 2 * r, 2), vr(b, 2), vr(b + 2, 2)))
    for k in range(2, 8):
        for r in range(4):
            b = U + 16 * r
            a("v_pk_add_f32 %s, %s, %s" % (vr(S + 2 * r, 2), vr(S + 2 * r, 2), vr(b + 2 * k, 2)))
    xs = [S + 2 * r for r in range(4)]; ts = [S + 2 * r + 1 for r in range(4)]
    for x in xs: a("v_add_f32 v%d, v%d, v%d" % (x, x, x + 1))
    multi_dpp_red(a, xs, [1, 2, 4, 8])
    multi_swap_red(a, "v_add_f32", 16, xs, ts)
    multi_swap_red(a, "v_add_f32", 32, xs, ts)
    a("s_mov_b32 s6, %s" % hex(f32bits(1.0 / 1024)))
    for x in xs: a("v_mul_f32 v%d, s6, v%d" % (x, x))
    for k in range(8):
        for r in range(4):
            b = U + 16 * r + 2 * k
            a("v_pk_add_f32 %s, %s, %s op_sel_hi:[1,0] neg_lo:[0,1] neg_hi:[0,1]" % (vr(b, 2), vr(b, 2), vr(S + 2 * r, 2)))
    Q = 120
    for r in range(4):
        b = U + 16 * r
        a("v_pk_mul_f32 %s, %s, %s" % (vr(Q + 2 * r, 2), vr(b, 2), vr(b, 2)))
    for k in range(1, 8):
        for r in range(4):
            b = U + 16 * r + 2 * k
            a("v_pk_fma_f32 %s, %s, %s, %s" % (vr(Q + 2 * r, 2), vr(b, 2), vr(b, 2), vr(Q + 2 * r, 2)))
    qs = [Q + 2 * r for r in range(4)]; qt = [Q + 2 * r + 1 for r in range(4)]
    for x in qs: a("v_add_f32 v%d, v%d, v%d" % (x, x, x + 1))
    multi_dpp_red(a, qs, [1, 2, 4, 8])
    multi_swap_red(a, "v_add_f32", 16, qs, qt)
    multi_swap_red(a, "v_add_f32", 32, qs, qt)
    a("v_mov_b32 v4, %s" % hex(f32bits(1e-5)))
    for x in qs: a("v_fma_f32 v%d, v%d, s6, v4" % (x, x))
    for x in qs: a("v_rsq_f32 v%d, v%d" % (x, x))
    a("s_nop 0")
    for r in range(4): a("v_mul_f32 v%d, -v%d, v%d" % (Q + 2 * r + 1, S + 2 * r, Q + 2 * r))
    a("s_lshl_b32 s6, s5, 3")
    a("v_mov_b32 v3, s6")
    a("s_mov_b64 exec, 1")
    a("buffer_store_dwordx4 %s, v3, s[12:15], 0 offen" % vr(Q, 4))
    a("buffer_store_dwordx4 %s, v3, s[12:15], 0 offen offset:16" % vr(Q + 4, 4))
    a.label(end)
    a("s_endpgm")
    return kn, 128, 256, 512, 1024

def add_ln_xform(g, tab):
    def regs():
        b = g.LT
        return dict(ST=b, C=b + 8, SH=b + 16, T=b + 24, O=b + 32, TA=b + 40)
    def coef_reads(a):
        R = regs()
        for q in range(4):
            a("ds_read_b128 %s, v%d offset:%d" % (vr(R["C"] + 4 * q, 4), R["TA"], 16 * q))
        a("v_add_u32 v%d, 512, v%d" % (R["TA"], R["TA"]))
    def xform(a, ld, src, j):
        R = regs()
        st = R["ST"] + 2 * ld["i"]
        o = R["O"] + 4 * (ld["i"] & 1)
        for d in range(4):
            unpack2(a, R["T"] + 2 * d, src + d)
        for d in range(4):
            t = vr(R["T"] + 2 * d, 2)
            a("v_pk_fma_f32 %s, %s, %s, %s op_sel:[0,0,1] op_sel_hi:[1,0,1]" % (t, t, vr(st, 2), vr(st, 2)))
        for d in range(4):
            t = vr(R["T"] + 2 * d, 2)
            a("v_pk_fma_f32 %s, %s, %s, %s" % (t, t, vr(R["C"] + 2 * d, 2), vr(R["SH"] + 2 * d, 2)))
        for d in range(4):
            a("v_cvt_pk_bf16_f32 v%d, v%d, v%d" % (o + d, R["T"] + 2 * d, R["T"] + 2 * d + 1))
        return o
    def after(a, ld, i):
        if ld["kind"] == "x" and ld["i"] == g.BM // 32 - 1:
            coef_reads(a)
    g.xform = xform
    g.after_load = after
    g.ln_regs = regs
    g.coef_reads = coef_reads
    g.ln_tab = tab

def build_coef_table(a, g, c_idx, s_idx):
    a("v_lshlrev_b32 v4, 4, v0")
    a("buffer_load_dwordx4 v[8:11], v4, s[16:19], 0 offen offset:0" if c_idx == 0 else
      "s_mov_b32 s6, %d" % (c_idx * 4096))
    if c_idx: a("buffer_load_dwordx4 v[8:11], v4, s[16:19], s6 offen")
    a("s_mov_b32 s7, %d" % (s_idx * 4096))
    a("buffer_load_dwordx4 v[12:15], v4, s[16:19], s7 offen")
    a("v_lshrrev_b32 v5, 1, v0")
    a("v_lshlrev_b32 v5, 6, v5")
    a("v_and_b32 v6, 1, v0")
    a("v_lshl_add_u32 v5, v6, 4, v5")
    a("v_add_u32 v5, %d, v5" % g.ln_tab)
    a("s_waitcnt vmcnt(0)")
    for e in range(4): a("v_add_f32 v%d, 1.0, v%d" % (8 + e, 8 + e))
    for e in range(4): a("v_cvt_pk_bf16_f32 v%d, v%d, v%d" % (8 + e, 8 + e, 8 + e))
    for e in range(4): a("v_lshlrev_b32 v%d, 16, v%d" % (8 + e, 8 + e))
    a("ds_write_b128 v5, v[8:11]")
    a("ds_write_b128 v5, v[12:15] offset:32")

def stats_from_sums(a, s, q, dst, n, tmp):
    a("v_mul_f32 v%d, %s, v%d" % (tmp, hex(f32bits(1.0 / n)), s))
    a("v_mul_f32 v%d, %s, v%d" % (dst, hex(f32bits(1.0 / n)), q))
    a("v_fma_f32 v%d, -v%d, v%d, v%d" % (dst, tmp, tmp, dst))
    a("v_max_f32 v%d, 0, v%d" % (dst, dst))
    a("v_add_f32 v%d, %s, v%d" % (dst, hex(f32bits(1e-5)), dst))
    a("v_rsq_f32 v%d, v%d" % (dst, dst))
    a("s_nop 0")
    a("v_mul_f32 v%d, -v%d, v%d" % (dst + 1, tmp, dst))

def k2(a):
    g = Gemm("k2", 128, 192, 1024, 32, 2, 2, 2048, 6144, 256)
    g.colbytes = 128
    g.segs = [(0, 0, 8), (2048, 128, 8), (4096, 256, 8)]
    TAB = g.LDS_MAIN
    WPH = TAB + 8192
    lds = WPH + 4096
    add_ln_xform(g, TAB)
    base_reads = g.reads
    def reads(slot, sub, fs):
        out = []
        for x in base_reads(slot, sub, fs):
            out.append(x)
        res = []
        xs, ws = [], []
        for j in range(g.NT):
            xs.append("ds_read_b128 %s, v2 offset:%d" % (vr(g.xfrag(fs, j), 4), slot * g.XS + j * 32 * g.PX + sub * 32))
        for i in range(g.MT):
            for q in range(2):
                ws.append("ds_read_b64_tr_b16 %s, v3 offset:%d" % (vr(g.wfrag(fs, i) + 2 * q, 2),
                          slot * g.WS + (16 * sub + 4 * q) * g.PW + i * 128))
        return ws[0:2] + xs + ws[2:]
    g.reads = reads
    WF = g.CFREE
    TR = WF + 8
    def setup(a):
        xw_srds(a, g, P_X, 0, P_WQKV, 0, 1024 * 6144)
        srd(a, 16, P_WS, WS_MOD, 6144 * 4)
        srd(a, 20, P_WS, WS_ST1, 2048 * 8)
        a("s_lshl_b32 s6, s5, 12")
        srd(a, 24, P_WPHI, "s6", 4096)
    def cpro(a):
        a("s_and_b32 s6, s3, 1")
        a("s_mul_i32 s6, s6, %d" % ((96 - 32) * 2))
        a("v_subrev_u32 v3, s6, v3")
        a("v_lshlrev_b32 v7, 4, v0")
        a("buffer_load_dwordx4 v[16:19], v7, s[24:27], 0 offen")
        build_coef_table(a, g, 1, 0)
        a("v_add_u32 v7, %d, v7" % WPH)
        a("ds_write_b128 v7, v[16:19]")
        a("v_bfe_u32 v4, v1, 2, 2")
        a("v_lshrrev_b32 v5, 5, v1")
        a("v_lshl_add_u32 v4, v5, 3, v4")
        a("v_bfe_u32 v5, v1, 4, 1"); a("v_lshlrev_b32 v5, 5, v5")
        a("v_and_b32 v6, 1, v1"); a("v_lshl_add_u32 v5, v6, 4, v5")
        a("v_bfe_u32 v6, v1, 1, 1"); a("v_lshl_add_u32 v5, v6, 3, v5")
        a("v_lshl_add_u32 v%d, v4, 6, v5" % TR)
        a("v_mul_u32_u24 v4, 192, v4")
        a("v_add_u32 v%d, v4, v5" % (TR + 1))
        a("s_waitcnt lgkmcnt(0)")
        a("s_barrier")
        a("s_and_b32 s6, s3, 1"); a("s_lshl_b32 s6, s6, 11"); a("s_add_u32 s6, s6, %d" % WPH)
        a("v_add_u32 v4, s6, v%d" % TR)
        for t in range(2):
            for q in range(2):
                a("ds_read_b64_tr_b16 %s, v4 offset:%d" % (vr(WF + 4 * t + 2 * q, 2), (16 * t + 4 * q) * 64))
    def lpro(a):
        R = g.ln_regs()
        a("v_bfe_u32 v3, v0, 3, 5")
        a("s_lshl_b32 s6, s4, 7")
        a("v_add_u32 v3, s6, v3")
        a("v_lshlrev_b32 v3, 3, v3")
        for i in range(4):
            a("buffer_load_dwordx2 %s, v3, s[20:23], 0 offen offset:%d" % (vr(R["ST"] + 2 * i, 2), i * 256))
        g.loader_issue_first(a)
        a("v_and_b32 v2, 7, v0")
        a("v_lshlrev_b32 v%d, 6, v2" % R["TA"])
        a("v_add_u32 v%d, %d, v%d" % (R["TA"], TAB, R["TA"]))
        a("s_barrier")
        g.coef_reads(a)
        a("s_waitcnt lgkmcnt(0)")
    def epi(a):
        PHK = 0; VIM = 2 * 24576
        P = g.FR
        a("s_nop 15")
        a("s_lshl_b32 s6, s5, 1"); a("s_and_b32 s7, s3, 1"); a("s_add_u32 s6, s6, s7")
        a("s_lshl_b32 s7, s6, 18")
        a("s_lshl_b32 s33, s4, 2"); a("s_lshr_b32 s32, s3, 1"); a("s_lshl_b32 s32, s32, 1"); a("s_add_u32 s33, s33, s32")
        a("s_lshl_b32 s33, s33, 12"); a("s_add_u32 s7, s7, s33"); a("s_add_u32 s7, s7, %s" % hex(WS_PHIQ))
        srd(a, 16, P_WS, "s7", 8192)
        a("s_lshl_b32 s7, s6, 4"); a("s_add_u32 s7, s7, s4"); a("s_mul_i32 s7, s7, %d" % KVP_STRIDE)
        a("s_add_u32 s7, s7, %s" % hex(WS_KVP))
        srd(a, 20, P_WS, "s7", KVP_STRIDE)
        a("s_mov_b32 s70, %s" % hex(f32bits(LOG2E))); a("s_mov_b32 s71, s70")
        a("v_and_b32 v4, 31, v1"); a("v_add_u32 v4, s34, v4")
        a("v_lshrrev_b32 v5, 5, v1"); a("v_lshlrev_b32 v5, 4, v5")
        a("s_and_b32 s7, s3, 1")
        a("s_mul_i32 s32, s7, 24576"); a("s_lshl_b32 s33, s7, 13"); a("s_add_u32 s33, s33, %d" % VIM)
        a("v_mul_u32_u24 v6, 192, v4"); a("v_add3_u32 v6, v6, v5, s32")
        a("v_lshl_add_u32 v7, v4, 6, v5"); a("v_add_u32 v7, s33, v7")
        a("v_lshlrev_b32 v8, 4, v1")
        for i in range(2):
            for j in range(2):
                for e in range(8):
                    A = g.acc(i, j)
                    a("v_cvt_pk_bf16_f32 v%d, v%d, v%d" % (P + (i * 2 + j) * 8 + e, A + 2 * e, A + 2 * e + 1))
        for i in range(2):
            for j in range(2):
                A = g.acc(i, j); pk = P + (i * 2 + j) * 8
                a("v_mfma_f32_32x32x16_bf16 %s, %s, %s, 0" % (vr(A, 16), vr(WF, 4), vr(pk, 4)))
                a("v_mfma_f32_32x32x16_bf16 %s, %s, %s, %s" % (vr(A, 16), vr(WF + 4, 4), vr(pk + 4, 4), vr(A, 16)))
        for j in range(2):
            A = g.acc(2, j)
            for e in range(8):
                a("v_cvt_pk_bf16_f32 v%d, v%d, v%d" % (P + 32 + e, A + 2 * e, A + 2 * e + 1))
            for t in range(2):
                a("ds_write_b128 v7, %s offset:%d" % (vr(P + 32 + 4 * t, 4), j * 32 * 64 + t * 32))
            if j == 0: a("s_nop 1")
        EN = g.acc(2, 0)
        for i in (1, 0):
            for j in range(2):
                A = g.acc(i, j); pk = P + (i * 2 + j) * 8
                OUT = EN + 16
                a("v_max3_f32 v10, v%d, v%d, v%d" % (A, A + 1, A + 2))
                a("v_min3_f32 v12, v%d, v%d, v%d" % (A, A + 1, A + 2))
                for e in range(3, 15, 2):
                    a("v_max3_f32 v10, v10, v%d, v%d" % (A + e, A + e + 1))
                    a("v_min3_f32 v12, v12, v%d, v%d" % (A + e, A + e + 1))
                a("v_max_f32 v10, v10, v%d" % (A + 15))
                a("v_min_f32 v12, v12, v%d" % (A + 15))
                a("v_mov_b32 v11, v10"); a("v_mov_b32 v13, v12")
                a("s_nop 1")
                a("v_permlane32_swap_b32 v10, v11"); a("v_permlane32_swap_b32 v12, v13")
                a("v_max_f32 v10, v10, v11"); a("v_min_f32 v12, v12, v13")
                a("v_mul_f32 v10, s70, v10"); a("v_mul_f32 v12, s70, v12")
                for e in range(8):
                    a("v_pk_fma_f32 %s, %s, s[70:71], v[12:13] op_sel_hi:[1,1,0] neg_lo:[0,1,0] neg_hi:[0,1,0]" % (vr(EN + 2 * e, 2), vr(A + 2 * e, 2)))
                    a("v_pk_fma_f32 %s, %s, s[70:71], v[10:11] op_sel_hi:[1,1,0] neg_lo:[0,0,1] neg_hi:[0,0,1]" % (vr(A + 2 * e, 2), vr(A + 2 * e, 2)))
                for e in range(16):
                    a("v_exp_f32 v%d, v%d" % (A + e, A + e))
                    a("v_exp_f32 v%d, v%d" % (EN + e, EN + e))
                a("v_pk_add_f32 v[10:11], %s, %s" % (vr(A, 2), vr(A + 2, 2)))
                a("v_pk_add_f32 v[12:13], %s, %s" % (vr(EN, 2), vr(EN + 2, 2)))
                for e in range(2, 8):
                    a("v_pk_add_f32 v[10:11], v[10:11], %s" % vr(A + 2 * e, 2))
                    a("v_pk_add_f32 v[12:13], v[12:13], %s" % vr(EN + 2 * e, 2))
                a("v_add_f32 v10, v10, v11"); a("v_add_f32 v12, v12, v13")
                a("v_mov_b32 v11, v10"); a("v_mov_b32 v13, v12")
                a("s_nop 1")
                a("v_permlane32_swap_b32 v10, v11"); a("v_permlane32_swap_b32 v12, v13")
                a("v_add_f32 v10, v10, v11"); a("v_add_f32 v12, v12, v13")
                a("v_rcp_f32 v10, v10"); a("v_rcp_f32 v12, v12")
                a("s_nop 0")
                for e in range(8):
                    a("v_pk_mul_f32 %s, %s, v[10:11] op_sel_hi:[1,0]" % (vr(A + 2 * e, 2), vr(A + 2 * e, 2)))
                    a("v_pk_mul_f32 %s, %s, v[12:13] op_sel_hi:[1,0]" % (vr(EN + 2 * e, 2), vr(EN + 2 * e, 2)))
                for e in range(8):
                    a("v_cvt_pk_bf16_f32 v%d, v%d, v%d" % (pk + e, A + 2 * e, A + 2 * e + 1))
                for e in range(8):
                    a("v_cvt_pk_bf16_f32 v%d, v%d, v%d" % (A + e, EN + 2 * e, EN + 2 * e + 1))
                for q in range(4):
                    src = vr(pk + 4 * q, 4) if q < 2 else vr(A + 4 * (q - 2), 4)
                    if i == 1:
                        a("ds_write_b128 v6, %s offset:%d" % (src, j * 32 * 192 + q * 32))
                    else:
                        a("buffer_store_dwordx4 %s, v8, s[16:19], 0 offen offset:%d" % (src, q * 1024) if j == 0 else
                          "buffer_store_dwordx4 %s, v9, s[16:19], 0 offen offset:%d" % (src, q * 1024))
                if i == 1 and j == 1:
                    a("v_add_u32 v9, 4096, v8")
                    a("s_waitcnt lgkmcnt(0)")
                    a("s_barrier")
        a("s_lshr_b32 s7, s3, 1"); a("s_lshl_b32 s7, s7, 6"); a("s_add_u32 s32, s32, s7")
        a("v_add_u32 v4, s32, v%d" % (TR + 1))
        a("v_add_u32 v5, s33, v%d" % TR)
        KV = g.acc(1, 0); Z = g.acc(1, 1); FA = g.acc(2, 0)
        ON = 12
        for e in range(4): a("v_mov_b32 v%d, 0x3f803f80" % (ON + e))
        for half in range(2):
            for t in range(4):
                T = half * 4 + t
                for q in range(2):
                    a("ds_read_b64_tr_b16 %s, v4 offset:%d" % (vr(FA + 8 * t + 2 * q, 2), (16 * T + 4 * q) * 192))
                    a("ds_read_b64_tr_b16 %s, v5 offset:%d" % (vr(FA + 8 * t + 4 + 2 * q, 2), (16 * T + 4 * q) * 64))
            for t in range(4):
                a("s_waitcnt lgkmcnt(%d)" % (12 - 4 * t))
                first = half == 0 and t == 0
                a("v_mfma_f32_32x32x16_bf16 %s, %s, %s, %s" % (vr(KV, 16), vr(FA + 8 * t, 4), vr(FA + 8 * t + 4, 4), "0" if first else vr(KV, 16)))
                a("v_mfma_f32_32x32x16_bf16 %s, %s, %s, %s" % (vr(Z, 16), vr(FA + 8 * t, 4), vr(ON, 4), "0" if first else vr(Z, 16)))
        a("s_lshr_b32 s7, s3, 1")
        a("s_lshl_b32 s6, s7, 12")
        a("s_lshl_b32 s7, s7, 7"); a("s_add_u32 s7, s7, 8192")
        a("v_lshrrev_b32 v5, 5, v1"); a("v_lshlrev_b32 v5, 6, v5")
        a("s_nop 10")
        for q in range(4):
            a("buffer_store_dwordx4 %s, v8, s[20:23], s6 offen offset:%d" % (vr(KV + 4 * q, 4), q * 1024))
        a("s_mov_b32 exec_lo, 1"); a("s_mov_b32 exec_hi, 1")
        for q in range(4):
            a("buffer_store_dwordx4 %s, v5, s[20:23], s7 offen offset:%d" % (vr(Z + 4 * q, 4), q * 16))
    kn = g.emit(a, tilemap_16x16_r8c4, setup, cpro, lpro, epi)
    return kn, 256, 256, 512, lds

def k2b(a):
    kn = "k2b_kernel"
    kernel_head(a, kn)
    end = a.newlabel("k2b_end")
    a("s_cmp_ge_u32 s2, 256")
    a("s_cbranch_scc1 %s" % end)
    load_kernargs(a)
    a("v_lshrrev_b32 v1, 6, v0")
    a("s_lshr_b32 s6, s2, 3")
    a("s_and_b32 s4, s6, 7"); a("s_bfe_u32 s7, s2, 0x20001"); a("s_lshl_b32 s7, s7, 3"); a("s_add_u32 s4, s4, s7")
    a("s_lshr_b32 s5, s6, 3"); a("s_and_b32 s7, s2, 1"); a("s_lshl_b32 s7, s7, 2"); a("s_add_u32 s5, s5, s7")
    a("v_readfirstlane_b32 s3, v1")
    a("v_and_b32 v1, 63, v0")
    a("v_lshlrev_b32 v2, 4, v1")
    a("s_waitcnt lgkmcnt(0)")
    a("s_mul_i32 s6, s4, %d" % (16 * KVP_STRIDE)); a("s_add_u32 s6, s6, %s" % hex(WS_KVP))
    srd(a, 8, P_WS, "s6", 16 * KVP_STRIDE)
    a("s_lshl_b32 s5, s5, 3"); a("s_add_u32 s5, s5, s3")
    a("s_lshl_b32 s6, s4, 6"); a("s_add_u32 s6, s6, s5"); a("s_lshl_b32 s6, s6, 12"); a("s_add_u32 s6, s6, %s" % hex(WS_PHIQ))
    srd(a, 12, P_WS, "s6", 4096)
    a("s_lshl_b32 s6, s5, 16"); a("s_add_u32 s6, s6, %s" % hex(WS_O))
    srd(a, 16, P_WS, "s6", 65536)
    a("s_lshl_b32 s6, s3, 10")
    a("v_add_u32 v3, s6, v2")
    PL = 64
    for p in range(16):
        a("s_mov_b32 s%d, %d" % (20 + p, p * KVP_STRIDE))
        a("buffer_load_dwordx4 %s, v3, s[8:11], s%d offen" % (vr(PL + 4 * p, 4), 20 + p))
    a("v_lshlrev_b32 v4, 2, v1")
    a("s_mul_i32 s6, s3, %d" % (2 * KVP_STRIDE)); a("s_add_u32 s6, s6, 8192"); a("s_add_u32 s7, s6, %d" % KVP_STRIDE)
    a("buffer_load_dword v8, v4, s[8:11], s6 offen")
    a("buffer_load_dword v9, v4, s[8:11], s7 offen")
    for q in range(4):
        a("buffer_load_dwordx4 %s, v2, s[12:15], 0 offen offset:%d" % (vr(16 + 4 * q, 4), q * 1024))
    for p in range(1, 16):
        a("s_waitcnt vmcnt(%d)" % (6 + 15 - p))
        a("v_pk_add_f32 %s, %s, %s" % (vr(PL, 2), vr(PL, 2), vr(PL + 4 * p, 2)))
        a("v_pk_add_f32 %s, %s, %s" % (vr(PL + 2, 2), vr(PL + 2, 2), vr(PL + 4 * p + 2, 2)))
    a("v_cvt_pk_bf16_f32 v10, v%d, v%d" % (PL, PL + 1))
    a("v_cvt_pk_bf16_f32 v11, v%d, v%d" % (PL + 2, PL + 3))
    a("s_lshr_b32 s6, s3, 1"); a("s_lshl_b32 s6, s6, 10"); a("s_and_b32 s7, s3, 1"); a("s_lshl_b32 s7, s7, 3"); a("s_add_u32 s6, s6, s7")
    a("v_add_u32 v5, s6, v2")
    a("ds_write_b64 v5, v[10:11]")
    a("s_waitcnt vmcnt(4)")
    a("v_add_f32 v8, v8, v9")
    a("s_lshl_b32 s6, s3, 8")
    a("v_add_u32 v5, s6, v4")
    a("ds_write_b32 v5, v8 offset:4096")
    a("s_waitcnt lgkmcnt(0)")
    a("s_barrier")
    for T in range(4):
        a("ds_read_b128 %s, v2 offset:%d" % (vr(32 + 4 * T, 4), T * 1024))
    for w in range(8):
        a("ds_read_b32 v%d, v4 offset:%d" % (64 + w, 4096 + 256 * w))
    a("s_waitcnt lgkmcnt(0)")
    a("v_add_f32 v64, v64, v65"); a("v_add_f32 v66, v66, v67"); a("v_add_f32 v68, v68, v69"); a("v_add_f32 v70, v70, v71")
    a("v_add_f32 v64, v64, v66"); a("v_add_f32 v68, v68, v70"); a("v_add_f32 v64, v64, v68")
    a("v_cvt_pk_bf16_f32 v64, v64, v64")
    a("s_lshl_b32 s6, s3, 7"); a("s_add_u32 s6, s6, 6144")
    a("v_lshl_add_u32 v5, v1, 1, s6")
    a("ds_write_b16 v5, v64")
    a("v_lshrrev_b32 v6, 5, v1")
    a("v_lshl_add_u32 v5, v6, 5, s6")
    a("s_waitcnt lgkmcnt(0)")
    for T in range(4):
        a("ds_read_b128 %s, v5 offset:%d" % (vr(48 + 4 * T, 4), (T >> 1) * 64 + (T & 1) * 16))
    a("s_waitcnt vmcnt(0)")
    NUM = 64; DEN = 80
    for T in range(4):
        a("v_mfma_f32_32x32x16_bf16 %s, %s, %s, %s" % (vr(NUM, 16), vr(32 + 4 * T, 4), vr(16 + 4 * T, 4), "0" if T == 0 else vr(NUM, 16)))
    a("s_waitcnt lgkmcnt(0)")
    for T in range(4):
        a("v_mfma_f32_32x32x16_bf16 %s, %s, %s, %s" % (vr(DEN, 16), vr(48 + 4 * T, 4), vr(16 + 4 * T, 4), "0" if T == 0 else vr(DEN, 16)))
    a("v_and_b32 v5, 31, v1"); a("v_lshlrev_b32 v5, 11, v5"); a("v_lshl_add_u32 v5, v6, 4, v5")
    a("s_lshl_b32 s6, s4, 6")
    a("s_nop 10")
    a("v_add_f32 v8, %s, v%d" % (hex(f32bits(1e-6)), DEN))
    a("v_rcp_f32 v8, v8")
    a("s_nop 0")
    for e in range(8):
        a("v_pk_mul_f32 %s, %s, v[8:9] op_sel_hi:[1,0]" % (vr(NUM + 2 * e, 2), vr(NUM + 2 * e, 2)))
    for e in range(8):
        a("v_cvt_pk_bf16_f32 v%d, v%d, v%d" % (16 + e, NUM + 2 * e, NUM + 2 * e + 1))
    a("buffer_store_dwordx4 v[16:19], v5, s[16:19], s6 offen")
    a("buffer_store_dwordx4 v[20:23], v5, s[16:19], s6 offen offset:32")
    a.label(end)
    a("s_endpgm")
    return kn, 128, 256, 512, 8192

def k_res(a, name, K, xoff, ldx, wp, resp, resoff, gate_idx, outp, outoff, stats):
    g = Gemm(name, 128, 64, K, 32, 4, 1, ldx, 2048, 256)
    g.colbytes = 128
    RX = g.CFREE; GA = RX + 16
    def setup(a):
        xw_srds(a, g, P_WS, xoff, wp, 0, K * 2048)
        a("s_lshl_b32 s6, s4, 18"); a("s_lshl_b32 s7, s5, 7"); a("s_add_u32 s6, s6, s7")
        a("s_sub_u32 s7, %d, s6" % (2048 * 2048))
        if resoff:
            a("s_add_u32 s32, s6, %s" % hex(resoff)); srd(a, 16, resp, "s32", "s7")
        else:
            srd(a, 16, resp, "s6", "s7")
        if outoff:
            a("s_add_u32 s32, s6, %s" % hex(outoff)); srd(a, 20, outp, "s32", "s7")
        else:
            srd(a, 20, outp, "s6", "s7")
        a("s_lshl_b32 s6, s5, 8"); a("s_add_u32 s6, s6, %d" % (WS_MOD + gate_idx * 4096))
        srd(a, 24, P_WS, "s6", 256)
        srd(a, 28, P_WS, WS_SUM2, 16384)
    def cpro(a):
        a("v_and_b32 v4, 31, v1"); a("v_add_u32 v4, s34, v4")
        a("v_lshrrev_b32 v5, 5, v1")
        a("v_lshlrev_b32 v6, 11, v4"); a("v_lshl_add_u32 v6, v5, 4, v6")
        a("v_lshlrev_b32 v7, 5, v5")
        for i in range(2):
            for p in range(2):
                a("buffer_load_dwordx4 %s, v6, s[16:19], 0 offen offset:%d" % (vr(RX + (i * 2 + p) * 4, 4), i * 64 + p * 32))
        for i in range(2):
            for p in range(2):
                for h in range(2):
                    a("buffer_load_dwordx4 %s, v7, s[24:27], 0 offen offset:%d" % (vr(GA + ((i * 2 + p) * 2 + h) * 4, 4), i * 128 + p * 64 + h * 16))
        a("s_lshl_b32 s6, s4, 7")
        a("v_add_u32 v8, s6, v4"); a("v_lshl_add_u32 v8, v5, 11, v8"); a("v_lshlrev_b32 v8, 2, v8")
    def lpro(a):
        g.loader_issue_first(a)
    def epi(a):
        a("s_waitcnt vmcnt(0)")
        a("s_nop 8")
        T = g.FR
        for i in range(2):
            A = g.acc(i, 0)
            for e in range(8):
                unpack2(a, T + 2 * e, RX + i * 8 + e)
            for e in range(8):
                a("v_pk_fma_f32 %s, %s, %s, %s" % (vr(A + 2 * e, 2), vr(A + 2 * e, 2), vr(GA + i * 16 + 2 * e, 2), vr(T + 2 * e, 2)))
            for e in range(8):
                a("v_cvt_pk_bf16_f32 v%d, v%d, v%d" % (RX + i * 8 + e, A + 2 * e, A + 2 * e + 1))
            for p in range(2):
                a("buffer_store_dwordx4 %s, v6, s[20:23], 0 offen offset:%d" % (vr(RX + (i * 2 + p) * 4, 4), i * 64 + p * 32))
        if stats:
            A = g.ACC
            for e in range(16):
                unpack2(a, A + 2 * e, RX + e)
            a("v_pk_add_f32 v[10:11], %s, %s" % (vr(A, 2), vr(A + 2, 2)))
            a("v_pk_mul_f32 v[12:13], %s, %s" % (vr(A, 2), vr(A, 2)))
            a("v_pk_fma_f32 v[12:13], %s, %s, v[12:13]" % (vr(A + 2, 2), vr(A + 2, 2)))
            for e in range(2, 16):
                a("v_pk_add_f32 v[10:11], v[10:11], %s" % vr(A + 2 * e, 2))
                a("v_pk_fma_f32 v[12:13], %s, %s, v[12:13]" % (vr(A + 2 * e, 2), vr(A + 2 * e, 2)))
            a("v_add_f32 v10, v10, v11"); a("v_add_f32 v12, v12, v13")
            a("s_nop 1")
            a("v_permlane32_swap_b32 v10, v12")
            a("v_add_f32 v10, v10, v12")
            a("buffer_atomic_add_f32 v10, v8, s[28:31], 0 offen")
    kn = g.emit(a, tilemap_16x16_r4c8, setup, cpro, lpro, epi)
    return kn, 256, 256, 512, g.LDS_MAIN

def k4(a):
    g = Gemm("k4", 128, 224, 1024, 16, 2, 2, 2048, 7168, 256)
    g.colbytes = 448
    TAB = g.LDS_MAIN
    lds = TAB + 8192
    add_ln_xform(g, TAB)
    def setup(a):
        xw_srds(a, g, P_WS, WS_X1, P_WIN, 0, 1024 * 7168)
        srd(a, 16, P_WS, WS_MOD, 6144 * 4)
        srd(a, 20, P_WS, WS_SUM2, 16384)
        a("s_and_b32 s6, s5, 7"); a("s_mul_i32 s6, s6, 448")
        a("s_mul_i32 s7, s4, %d" % (128 * 3584)); a("s_add_u32 s6, s6, s7")
        a("s_sub_u32 s7, %d, s6" % (2048 * 3584))
        a("s_lshr_b32 s32, s5, 3"); a("s_mul_i32 s32, s32, %s" % hex(WS_Z2 - WS_Z1)); a("s_add_u32 s6, s6, s32")
        a("s_add_u32 s6, s6, %s" % hex(WS_Z1))
        srd(a, 24, P_WS, "s6", "s7")
        srd(a, 28, P_WS, WS_SUM3, 16384)
    def cpro(a):
        build_coef_table(a, g, 4, 3)
        a("s_waitcnt lgkmcnt(0)")
        a("s_barrier")
    def lpro(a):
        R = g.ln_regs()
        a("v_bfe_u32 v3, v0, 3, 5")
        a("s_lshl_b32 s6, s4, 7")
        a("v_add_u32 v3, s6, v3")
        a("v_lshlrev_b32 v3, 2, v3")
        a("s_mov_b32 s6, 8192")
        for i in range(4):
            a("buffer_load_dword v%d, v3, s[20:23], 0 offen offset:%d" % (R["T"] + 2 * i, i * 128))
            a("buffer_load_dword v%d, v3, s[20:23], s6 offen offset:%d" % (R["T"] + 2 * i + 1, i * 128))
        g.loader_issue_first(a)
        a("v_and_b32 v2, 7, v0")
        a("v_lshlrev_b32 v%d, 6, v2" % R["TA"])
        a("v_add_u32 v%d, %d, v%d" % (R["TA"], TAB, R["TA"]))
        a("s_waitcnt vmcnt(%d)" % (g.D * g.L))
        for i in range(4):
            stats_from_sums(a, R["T"] + 2 * i, R["T"] + 2 * i + 1, R["ST"] + 2 * i, 1024, R["O"])
        a("s_barrier")
        g.coef_reads(a)
        a("s_waitcnt lgkmcnt(0)")
    def epi(a):
        K1 = 2.0 * math.sqrt(2.0 / math.pi) * LOG2E
        a("s_mov_b32 s70, %s" % hex(f32bits(-K1 * 0.044715))); a("s_mov_b32 s71, s70")
        a("v_mov_b32 v10, %s" % hex(f32bits(-K1))); a("v_mov_b32 v11, v10")
        a("v_mov_b32 v12, 1.0"); a("v_mov_b32 v13, 1.0")
        a("v_and_b32 v4, 15, v1"); a("v_add_u32 v4, s34, v4")
        a("s_mov_b32 s6, 3584"); a("v_mul_lo_u32 v4, s6, v4")
        a("s_lshl_b32 s6, s35, 1"); a("v_add_u32 v4, s6, v4")
        a("v_lshrrev_b32 v5, 4, v1")
        a("v_lshl_add_u32 v7, v5, 3, v4")
        a("v_and_b32 v6, 1, v5"); a("v_lshl_add_u32 v6, v6, 5, v4")
        a("v_lshrrev_b32 v5, 1, v5"); a("v_lshl_add_u32 v6, v5, 4, v6")
        T = g.FR
        PK = T + 28
        SM = PK + 16
        zlab = a.newlabel("k4_nostat")
        for j in range(4):
            As = [g.acc(i, j) for i in range(7)]
            for i in range(7):
                for h in range(2):
                    a("v_pk_mul_f32 %s, %s, %s" % (vr(T + 4 * i + 2 * h, 2), vr(As[i] + 2 * h, 2), vr(As[i] + 2 * h, 2)))
            for i in range(7):
                for h in range(2):
                    t = vr(T + 4 * i + 2 * h, 2)
                    a("v_pk_fma_f32 %s, %s, s[70:71], v[10:11]" % (t, t))
            for i in range(7):
                for h in range(2):
                    t = vr(T + 4 * i + 2 * h, 2)
                    a("v_pk_mul_f32 %s, %s, %s" % (t, t, vr(As[i] + 2 * h, 2)))
            for e in range(28): a("v_exp_f32 v%d, v%d" % (T + e, T + e))
            for e in range(14): a("v_pk_add_f32 %s, %s, v[12:13]" % (vr(T + 2 * e, 2), vr(T + 2 * e, 2)))
            for e in range(28): a("v_rcp_f32 v%d, v%d" % (T + e, T + e))
            for i in range(7):
                for h in range(2):
                    t = vr(T + 4 * i + 2 * h, 2)
                    a("v_pk_mul_f32 %s, %s, %s" % (t, t, vr(As[i] + 2 * h, 2)))
            for i in range(7):
                dst = As[i - (i & 1)] + 2 * (i & 1)
                for h in range(2):
                    a("v_cvt_pk_bf16_f32 v%d, v%d, v%d" % (dst + h, T + 4 * i + 2 * h, T + 4 * i + 2 * h + 1))
            for i in range(7):
                dst = As[i - (i & 1)] + 2 * (i & 1)
                for h in range(2):
                    unpack2(a, T + 4 * i + 2 * h, dst + h)
            s, q = SM + 4 * j, SM + 4 * j + 2
            a("v_pk_add_f32 %s, %s, %s" % (vr(s, 2), vr(T, 2), vr(T + 2, 2)))
            a("v_pk_mul_f32 %s, %s, %s" % (vr(q, 2), vr(T, 2), vr(T, 2)))
            a("v_pk_fma_f32 %s, %s, %s, %s" % (vr(q, 2), vr(T + 2, 2), vr(T + 2, 2), vr(q, 2)))
            for e in range(2, 14):
                a("v_pk_add_f32 %s, %s, %s" % (vr(s, 2), vr(s, 2), vr(T + 2 * e, 2)))
                a("v_pk_fma_f32 %s, %s, %s, %s" % (vr(q, 2), vr(T + 2 * e, 2), vr(T + 2 * e, 2), vr(q, 2)))
            a("s_mov_b32 s6, %d" % (j * 16 * 3584))
            for p in range(3):
                b = As[2 * p]
                a("v_permlane16_swap_b32 v%d, v%d" % (b, b + 2))
                a("v_permlane16_swap_b32 v%d, v%d" % (b + 1, b + 3))
            for p in range(3):
                a("buffer_store_dwordx4 %s, v6, s[24:27], s6 offen offset:%d" % (vr(As[2 * p], 4), p * 64))
            a("buffer_store_dwordx2 %s, v7, s[24:27], s6 offen offset:192" % vr(As[6], 2))
        a("s_cmp_lt_u32 s5, 8")
        a("s_cbranch_scc1 %s" % zlab)
        for j in range(4):
            s, q = SM + 4 * j, SM + 4 * j + 2
            a("v_add_f32 v%d, v%d, v%d" % (s, s, s + 1)); a("v_add_f32 v%d, v%d, v%d" % (q, q, q + 1))
        a("s_nop 1")
        for j in range(4):
            a("v_permlane32_swap_b32 v%d, v%d" % (SM + 4 * j, SM + 4 * j + 2))
        for j in range(4):
            a("v_add_f32 v%d, v%d, v%d" % (SM + 4 * j, SM + 4 * j, SM + 4 * j + 2))
        a("s_nop 1")
        for jp in range(2):
            a("v_permlane16_swap_b32 v%d, v%d" % (SM + 8 * jp, SM + 8 * jp + 4))
        for jp in range(2):
            a("v_add_f32 v%d, v%d, v%d" % (SM + 8 * jp, SM + 8 * jp, SM + 8 * jp + 4))
        a("s_lshl_b32 s6, s4, 7"); a("s_add_u32 s6, s6, s34")
        a("v_and_b32 v4, 31, v1"); a("v_add_u32 v4, s6, v4")
        a("v_lshrrev_b32 v5, 5, v1"); a("v_lshl_add_u32 v4, v5, 11, v4"); a("v_lshlrev_b32 v4, 2, v4")
        for jp in range(2):
            a("buffer_atomic_add_f32 v%d, v4, s[28:31], 0 offen offset:%d" % (SM + 8 * jp, jp * 128))
        a.label(zlab)
    old_main = g.compute_main
    def cm(a):
        old_main(a)
        a("s_nop 8")
    g.compute_main = cm
    kn = g.emit(a, tilemap_16x16_r8c4, setup, cpro, lpro, epi)
    return kn, 256, 256, 512, lds

def k5(a):
    g = Gemm("k5", 128, 128, 2048, 32, 2, 2, 4096, 3584, 224)
    g.colbytes = 256
    TAB = g.LDS_MAIN
    lds = TAB + 16384
    Z1 = g.CFREE; BS = Z1 + 32
    def regs():
        b = g.LT
        return dict(ST=b, T=b + 4, O=b + 12, TA=b + 20)
    def st_reads(a):
        R = regs()
        for hh in range(2):
            a("ds_read_b64 %s, v%d offset:%d" % (vr(R["ST"] + 2 * hh, 2), R["TA"], hh * 64))
        a("v_add_u32 v%d, 512, v%d" % (R["TA"], R["TA"]))
    cnt = [0]
    def wform(a, ld, src, j):
        R = regs()
        st = R["ST"] + 2 * ld["hh"]
        o = R["O"] + 4 * (cnt[0] & 1); cnt[0] += 1
        for d in range(4):
            unpack2(a, R["T"] + 2 * d, src + d)
        for d in range(4):
            t = vr(R["T"] + 2 * d, 2)
            a("v_pk_fma_f32 %s, %s, %s, %s op_sel:[0,0,1] op_sel_hi:[1,0,1]" % (t, t, vr(st, 2), vr(st, 2)))
        for d in range(4):
            a("v_cvt_pk_bf16_f32 v%d, v%d, v%d" % (o + d, R["T"] + 2 * d, R["T"] + 2 * d + 1))
        return o
    def after(a, ld, i):
        if i == g.L - 1:
            st_reads(a)
    g.wform = wform
    g.after_load = after
    def setup(a):
        xw_srds(a, g, P_WSP, 0, P_WS, WS_Z2, 2048 * 3584)
        srd(a, 16, P_WS, WS_SUM3, 16384)
        a("s_mul_i32 s6, s4, %d" % (128 * 3584)); a("s_lshl_b32 s7, s5, 8"); a("s_add_u32 s6, s6, s7")
        a("s_sub_u32 s7, %d, s6" % (2048 * 3584))
        a("s_add_u32 s32, s6, %s" % hex(WS_Z1)); srd(a, 20, P_WS, "s32", "s7")
        a("s_add_u32 s32, s6, %s" % hex(WS_U)); srd(a, 24, P_WS, "s32", "s7")
        a("s_lshl_b32 s6, s4, 8")
        srd(a, 28, P_BSP, "s6", 256)
    def cpro(a):
        a("v_lshlrev_b32 v4, 5, v0")
        a("s_mov_b32 s6, 8192")
        a("buffer_load_dwordx4 v[16:19], v4, s[16:19], 0 offen")
        a("buffer_load_dwordx4 v[20:23], v4, s[16:19], 0 offen offset:16")
        a("buffer_load_dwordx4 v[24:27], v4, s[16:19], s6 offen")
        a("buffer_load_dwordx4 v[28:31], v4, s[16:19], s6 offen offset:16")
        a("v_and_b32 v4, 31, v1"); a("v_add_u32 v4, s34, v4")
        a("v_lshlrev_b32 v7, 1, v4")
        a("s_mov_b32 s6, 3584"); a("v_mul_lo_u32 v6, s6, v4")
        a("v_lshrrev_b32 v5, 5, v1"); a("v_lshl_add_u32 v6, v5, 4, v6")
        a("s_lshl_b32 s6, s35, 1"); a("v_add_u32 v6, s6, v6")
        a("s_mov_b32 s32, %d" % (32 * 3584))
        for j in range(2):
            a("buffer_load_ushort v%d, v7, s[28:31], 0 offen offset:%d" % (BS + 2 * j, j * 64))
        for j in range(2):
            for i in range(2):
                for p in range(2):
                    a("buffer_load_dwordx4 %s, v6, s[20:23], %s offen offset:%d" % (vr(Z1 + ((j * 2 + i) * 2 + p) * 4, 4), "s32" if j else "0", i * 64 + p * 32))
        a("s_waitcnt vmcnt(10)")
        for e in range(8):
            stats_from_sums(a, 16 + e, 24 + e, 32 + 2 * e, 1792, 8)
        a("v_lshlrev_b32 v4, 6, v0")
        a("v_add_u32 v4, %d, v4" % TAB)
        for q in range(4):
            a("ds_write_b128 v4, %s offset:%d" % (vr(32 + 4 * q, 4), 16 * q))
        a("s_waitcnt lgkmcnt(0)")
        a("s_barrier")
    def lpro(a):
        R = regs()
        g.loader_issue_first(a)
        a("v_lshlrev_b32 v%d, 3, v%d" % (R["TA"], g.vWrow))
        a("v_add_u32 v%d, %d, v%d" % (R["TA"], TAB, R["TA"]))
        a("s_barrier")
        st_reads(a)
        a("s_waitcnt lgkmcnt(0)")
    def epi(a):
        a("s_waitcnt vmcnt(0)")
        for j in range(2): a("v_lshlrev_b32 v%d, 16, v%d" % (BS + 2 * j, BS + 2 * j))
        a("s_nop 8")
        T = g.FR
        for j in range(2):
            for i in range(2):
                A = g.acc(i, j); z = Z1 + (j * 2 + i) * 8
                for e in range(8):
                    unpack2(a, T + 2 * e, z + e)
                for e in range(8):
                    a("v_pk_add_f32 %s, %s, %s op_sel_hi:[1,0]" % (vr(A + 2 * e, 2), vr(A + 2 * e, 2), vr(BS + 2 * j, 2)))
                for e in range(8):
                    a("v_pk_mul_f32 %s, %s, %s" % (vr(A + 2 * e, 2), vr(A + 2 * e, 2), vr(T + 2 * e, 2)))
                for e in range(8):
                    a("v_cvt_pk_bf16_f32 v%d, v%d, v%d" % (z + e, A + 2 * e, A + 2 * e + 1))
                for p in range(2):
                    a("buffer_store_dwordx4 %s, v6, s[24:27], %s offen offset:%d" % (vr(z + 4 * p, 4), "s32" if j else "0", i * 64 + p * 32))
    kn = g.emit(a, tilemap_16x14, setup, cpro, lpro, epi)
    return kn, 256, 224, 512, lds

def build(path, order=None):
    a = Asm()
    ks = {}
    ks["k0"] = k0(a)
    ks["k2"] = k2(a)
    ks["k2b"] = k2b(a)
    ks["k3"] = k_res(a, "k3", 1024, WS_O, 2048, P_WO, P_X, 0, 2, P_WS, WS_X1, True)
    ks["k4"] = k4(a)
    ks["k5"] = k5(a)
    ks["k6"] = k_res(a, "k6", 1792, WS_U, 3584, P_WOUT, P_WS, WS_X1, 5, P_OUT, 0, False)
    order = order or ["k0", "k2", "k2b", "k3", "k4", "k5", "k6"]
    ref = open("cdna_kernels/%s.s.ref" % NAME).read().split("\n")
    head = [l for l in ref if l.startswith(";") and "@launch" not in l and "Override" not in l and "grid=ceil" not in l]
    head = head[:15]
    out = list(head)
    for k in order:
        kn, vg, grid, blk, lds = ks[k]
        out.append("; @launch kernel=%s grid=(%d,1,1) block=(%d,1,1) lds=%d" % (kn, grid, blk, lds))
    out.append('.amdgcn_target "amdgcn-amd-amdhsa--gfx950"')
    out.append(".text")
    out += a.lines
    out.append('.section .rodata,"a"')
    for k, (kn, vg, grid, blk, lds) in ks.items():
        out.append(kernel_desc(kn, vg))
    open(path, "w").write("\n".join(out) + "\n")

if __name__ == "__main__":
    build(sys.argv[1] if len(sys.argv) > 1 else "cdna_kernels/%s.s" % NAME)
```

```python
from gen import *

STAMP_OFF = 0x4000000
KIDX = dict(k0=0, k1=1, k2=2, k2b=3, k3=4, k4=5, k5=6, k6=7)

class Stamper:
    def __init__(self, name): self.name = name

class Gemm2:
    def __init__(self, name, BM, K, mf, wgm, wgn, ldx, ldw, ntiles, S, groups):
        self.name, self.BM, self.K, self.mf = name, BM, K, mf
        self.wgm, self.wgn, self.ldx, self.ldw, self.ntiles, self.S = wgm, wgn, ldx, ldw, ntiles, S
        self.groups = groups
        self.xskip = False
        self.etile_wait = True
        self.cpost0 = None
        self.ltouch = []
        self.nk = K // 64
        self.XI = BM * 128
        self.goff = []
        o = self.XI
        for nch, _ in groups:
            self.goff.append(o); o += 64 * nch * 16
        self.STG = o
        assert self.STG % 4096 == 0
        self.P = self.STG // 4096
        self.LDS_MAIN = S * self.STG
        self.WM = BM // wgm
        self.NT = self.WM // mf
        self.NS = 4 if mf == 32 else 2
        self.accn = 16 if mf == 32 else 4
        full = [g for g, (n, _) in enumerate(groups) if n == 8]
        half = [g for g, (n, _) in enumerate(groups) if n == 4]
        self.wt = []
        if mf == 32:
            if wgn == 2:
                self.nwa = 1
                for g in full: self.wt.append((0, self.goff[g], 128))
            else:
                self.nwa = 2
                for g in full:
                    for h in range(2): self.wt.append((h, self.goff[g], 128))
            assert not half
        else:
            assert wgn == 2
            self.nwa = 2 + len(half)
            for g in full:
                for o in range(2): self.wt.append((o, self.goff[g], 128))
            for g in half: self.wt.append((2, self.goff[g], 64))
        self.MT = len(self.wt)
        self.VX = 2
        self.VW = self.VX + self.NS
        assert self.VW + self.nwa <= 9
        self.FR = 16
        self.nfr = (self.NT + self.MT) * 4
        self.ACC = self.FR + 2 * self.nfr
        self.nacc = self.NT * self.MT * self.accn
        self.CFREE = self.ACC + self.nacc
        self.prio = 2
        self.pf = None
        self.etile = None
        self.cpro0 = None
        self.extra = None
        self.PFD = 255
        self.etile_n = 0

    def acc(self, i, j): return self.ACC + (i * self.NT + j) * self.accn
    def xfrag(self, s, j): return self.FR + s * self.nfr + j * 4
    def wfrag(self, s, i): return self.FR + s * self.nfr + (self.NT + i) * 4

    def reads(self, sub, fs):
        xs, ws = [], []
        for j in range(self.NT):
            xs.append("ds_read_b128 %s, v%d offset:%d" % (vr(self.xfrag(fs, j), 4), self.VX + sub, j * self.mf * 128))
        kr = 16 if self.mf == 32 else 32
        for i, (ar, imm, pitch) in enumerate(self.wt):
            for q in range(2):
                ws.append("ds_read_b64_tr_b16 %s, v%d offset:%d" % (vr(self.wfrag(fs, i) + 2 * q, 2), self.VW + ar,
                                                                    imm + (kr * sub + 4 * q) * pitch))
        return ws[0:2] + xs + ws[2:]

    def mfmas(self, fs):
        op = "v_mfma_f32_32x32x16_bf16" if self.mf == 32 else "v_mfma_f32_16x16x32_bf16"
        out = []
        for i in range(self.MT):
            for j in range(self.NT):
                A = self.acc(i, j)
                out.append("%s %s, %s, %s, %s" % (op, vr(A, self.accn), vr(self.wfrag(fs, i), 4),
                                                  vr(self.xfrag(fs, j), 4), vr(A, self.accn)))
        return out

    def compute_addr(self, a):
        mf = self.mf
        if self.wgn == 1:
            a("s_mul_i32 s34, s3, %d" % self.WM); a("s_mov_b32 s35, 0")
        else:
            a("s_lshr_b32 s34, s3, 1"); a("s_mul_i32 s34, s34, %d" % self.WM)
            a("s_and_b32 s35, s3, 1")
        sh = 5 if mf == 32 else 4
        X = self.VX
        a("v_and_b32 v10, %d, v1" % (mf - 1))
        a("v_bfe_u32 v11, v1, 1, 3")
        a("v_lshrrev_b32 v12, %d, v1" % sh)
        a("v_xor_b32 v11, v11, v12")
        a("v_add_u32 v10, s34, v10")
        a("v_lshlrev_b32 v10, 7, v10")
        a("v_lshl_add_u32 v%d, v11, 4, v10" % X)
        for s in range(1, self.NS):
            a("v_xor_b32 v%d, %d, v%d" % (X + s, s * (32 if mf == 32 else 64), X))
        W = self.VW
        a("v_bfe_u32 v10, v1, 2, 2")
        a("v_lshl_add_u32 v10, v12, 3, v10")
        if mf == 32:
            a("v_bfe_u32 v11, v1, 4, 1"); a("v_lshlrev_b32 v11, 5, v11")
            a("v_and_b32 v13, 1, v1"); a("v_lshl_add_u32 v11, v13, 4, v11")
            a("v_bfe_u32 v13, v1, 1, 1"); a("v_lshl_add_u32 v11, v13, 3, v11")
            a("v_bfe_u32 v13, v1, 3, 1"); a("v_lshl_add_u32 v11, v13, 6, v11")
            a("v_lshl_add_u32 v%d, v10, 7, v11" % W)
            if self.wgn == 2:
                a("s_lshl_b32 s6, s35, 6")
                a("v_xor_b32 v%d, s6, v%d" % (W, W))
            else:
                a("v_xor_b32 v%d, 64, v%d" % (W + 1, W))
        else:
            a("v_and_b32 v11, 3, v1"); a("v_lshlrev_b32 v11, 3, v11")
            a("v_bfe_u32 v13, v1, 4, 1")
            if self.nwa == 3:
                a("v_xor_b32 v14, s35, v13"); a("v_lshl_add_u32 v14, v14, 5, v11")
                a("v_lshl_add_u32 v%d, v10, 6, v14" % (W + 2))
            a("v_xor_b32 v13, s35, v13"); a("v_lshl_add_u32 v11, v13, 6, v11")
            a("v_bfe_u32 v13, v1, 3, 1"); a("v_lshl_add_u32 v11, v13, 5, v11")
            a("v_lshl_add_u32 v%d, v10, 7, v11" % W)
            a("v_xor_b32 v%d, 32, v%d" % (W + 1, W))

    def interleave(self, a, mf, rd, first_after=None, tail=()):
        if DBG["nomfma"]: mf = ["s_nop 0"] * len(mf)
        if DBG["noread"]: rd = []
        rd = list(rd) + list(tail)
        n = len(mf)
        per = 2 if self.mf == 32 else 1
        per = max(per, -(-len(rd) // max(1, n - 1)))
        ri = 0
        for t, m in enumerate(mf):
            a(m)
            if t == 0 and first_after:
                for x in first_after: a(x)
            for _ in range(per):
                if ri < len(rd):
                    a(rd[ri]); ri += 1
        while ri < len(rd):
            a(rd[ri]); ri += 1

    def slot_next(self, a):
        a("s_add_u32 s64, s64, %d" % self.STG)
        a("s_cmp_eq_u32 s64, %d" % (self.S * self.STG))
        a("s_cselect_b32 s65, %s, s67" % (hex((-(self.S - 1) * self.STG) & 0xffffffff)))
        a("s_cselect_b32 s64, 0, s64")

    def compute_main(self, a):
        for r in range(self.nacc):
            a("v_mov_b32 v%d, 0" % (self.ACC + r))
        a("s_mov_b32 s64, 0")
        a("s_mov_b32 s67, %d" % self.STG)
        a("s_mov_b32 s6, %d" % self.nk)
        a("s_barrier")
        self.stamp(a, 1)
        for x in self.reads(0, 0): a(x)
        if self.cpost0: self.cpost0(a)
        L = a.newlabel(self.name + "_cl")
        a.lines.append(".p2align 4")
        a.label(L)
        self.slot_next(a)
        for sub in range(self.NS):
            fs = sub & 1
            a("s_waitcnt lgkmcnt(0)")
            if sub < self.NS - 1:
                tail = ["v_add_u32 v%d, s65, v%d" % (self.VX + sub + 1, self.VX + sub + 1)]
                if sub == 0:
                    tail.append("v_add_u32 v%d, s65, v%d" % (self.VX, self.VX))
                    if self.pf and self.pf["D"]:
                        tail += ["buffer_load_dword v%d, v15, s[68:71], s96 offen" % self.PFD, "s_add_u32 s96, s96, s97"]
                if sub == self.NS - 2:
                    tail += ["v_add_u32 v%d, s65, v%d" % (self.VW + w, self.VW + w) for w in range(self.nwa)]
                self.interleave(a, self.mfmas(fs), self.reads(sub + 1, fs ^ 1), tail=tail)
            else:
                self.interleave(a, self.mfmas(fs), self.reads(0, fs ^ 1), first_after=["s_sub_u32 s6, s6, 1", "s_barrier"])
        a("s_cmp_lg_u32 s6, 0")
        a("s_cbranch_scc1 %s" % L)
        a("s_waitcnt lgkmcnt(0)")

    def loader_setup(self, a):
        self.pieces = []
        a("s_sub_u32 s34, s3, 4")
        a("v_and_b32 v1, 63, v0")
        a("v_lshrrev_b32 v2, 3, v1")
        a("v_and_b32 v3, 7, v1")
        a("s_lshl_b32 s6, s34, 3")
        a("v_add_u32 v2, s6, v2")
        r = 16
        a("v_bfe_u32 v4, v2, 1, 3")
        a("v_xor_b32 v4, v4, v3")
        a("s_mov_b32 s6, %d" % self.ldx)
        a("v_mul_lo_u32 v5, s6, v2")
        for i in range(self.BM // 32):
            if i == 0: a("v_lshl_add_u32 v%d, v4, 4, v5" % r)
            else: a("v_add_u32 v%d, %d, v%d" % (r, 32 * self.ldx, r - 1))
            self.pieces.append((r, 8, 7)); r += 1
        if self.mf == 32:
            a("v_bfe_u32 v4, v2, 1, 1"); a("v_lshlrev_b32 v4, 2, v4")
        else:
            a("v_bfe_u32 v4, v2, 1, 1"); a("v_lshlrev_b32 v4, 1, v4")
            a("v_bfe_u32 v6, v2, 3, 1"); a("v_lshl_add_u32 v4, v6, 2, v4")
        a("v_xor_b32 v4, v4, v3")
        a("s_mov_b32 s6, %d" % self.ldw)
        a("v_mul_lo_u32 v5, s6, v2")
        a("v_lshl_add_u32 v5, v4, 4, v5")
        def chunkmap(dst, base, ch, cm):
            a("v_add_u32 v%d, %s, v%d" % (dst, cm[0][1], base))
            for fc, bo in cm[1:]:
                adj = bo - 16 * fc
                a("v_add_u32 v7, %d, v%d" % (adj & 0xffffffff, base))
                a("v_cmp_le_u32 vcc, %d, v%d" % (fc, ch))
                a("s_nop 1")
                a("v_cndmask_b32 v%d, v%d, v7, vcc" % (dst, dst))
        for nch, cm in self.groups:
            if nch == 8:
                chunkmap(r, 5, 4, cm)
                a("v_add_u32 v%d, %d, v%d" % (r + 1, 32 * self.ldw, r))
                self.pieces.append((r, 12, 33)); self.pieces.append((r + 1, 12, 33)); r += 2
            else:
                a("v_lshrrev_b32 v2, 2, v1"); a("s_lshl_b32 s35, s34, 4"); a("v_add_u32 v2, s35, v2")
                a("v_and_b32 v3, 3, v1")
                a("v_bfe_u32 v6, v2, 3, 1"); a("v_lshlrev_b32 v6, 1, v6"); a("v_xor_b32 v6, v6, v3")
                a("v_mul_lo_u32 v8, s6, v2"); a("v_lshl_add_u32 v8, v6, 4, v8")
                chunkmap(r, 8, 6, cm)
                self.pieces.append((r, 12, 33)); r += 1
        assert len(self.pieces) == self.P
        self.LFREE = r
        a("s_lshl_b32 s64, s34, 10")
        a("s_add_u32 s65, s64, %d" % (self.S * self.STG))
        a("s_mov_b32 s7, 0")
        a("s_mov_b32 s33, 0")

    def xlike_voffs(self, a, r, pitch, n, extra=()):
        a("v_lshrrev_b32 v2, 3, v1"); a("v_and_b32 v3, 7, v1")
        a("s_lshl_b32 s6, s34, 3"); a("v_add_u32 v2, s6, v2")
        a("v_bfe_u32 v4, v2, 1, 3"); a("v_xor_b32 v4, v4, v3")
        a("s_mov_b32 s6, %d" % pitch); a("v_mul_lo_u32 v5, s6, v2")
        a("v_lshl_add_u32 v%d, v4, 4, v5" % r)
        for i in range(1, n): a("v_add_u32 v%d, %d, v%d" % (r + i, 32 * pitch * i, r))
        for x, off in enumerate(extra):
            for i in range(n): a("v_add_u32 v%d, %d, v%d" % (r + n * (x + 1) + i, off, r + i))

    def dma(self, a, i, vo, srd_, so="0"):
        a("s_add_u32 m0, s64, %d" % (i * 4096))
        a("s_nop 0")
        a("buffer_load_dwordx4 v%d, %s, %s offen lds" % (vo, sr(srd_, 4), so))

    def issue_stage(self, a, first=False):
        if not (DBG["noload"] and not first):
            for i, (vo, srd_, so) in enumerate(self.pieces):
                a("s_add_u32 m0, s64, %d" % (i * 4096))
                a("s_nop 0")
                a("buffer_load_dwordx4 v%d, %s, s%d offen %slds" % (vo, sr(srd_, 4), so, ["", "nt ", "sc1 ", "sc0 ", "sc0 sc1 ", "sc1 nt "][DBG.get("cb", 0)]))
        a("s_add_u32 s7, s7, 128")
        if self.xskip:
            a("s_and_b32 s6, s7, 0x380"); a("s_cmp_eq_u32 s6, 0x180"); a("s_cselect_b32 s6, 128, 0"); a("s_add_u32 s7, s7, s6")
        a("s_add_u32 s33, s33, %d" % (64 * self.ldw))
        a("s_add_u32 s64, s64, %d" % self.STG)
        a("s_cmp_eq_u32 s64, s65")
        a("s_cselect_b32 s6, %d, 0" % (self.S * self.STG))
        a("s_sub_u32 s64, s64, s6")

    def loader_first(self, a):
        for st in range(2):
            self.issue_stage(a, True)

    def loader_main(self, a):
        S, P, nk = self.S, self.P, self.nk
        assert (S - 1) * P + self.etile_n <= 63
        issued = 2
        j = 0
        self.stamp(a, 1)
        while True:
            a("s_waitcnt vmcnt(%d)" % ((issued - 1 - j) * P))
            if j == 0: self.stamp(a, 2)
            a("s_barrier")
            n = 0
            while n < 2 and issued <= j + S - 1:
                self.issue_stage(a); issued += 1; n += 1
            j += 1
            if issued == j + S - 1: break
        cnt = nk - issued
        assert cnt >= 1
        a("s_mov_b32 s66, %d" % cnt)
        L = a.newlabel(self.name + "_ll")
        a.lines.append(".p2align 4")
        a.label(L)
        a("s_waitcnt vmcnt(%d)" % ((S - 2) * P))
        a("s_barrier")
        self.issue_stage(a)
        self.ool = []
        for sg, fn in self.ltouch:
            lo = a.newlabel(self.name + "_t"); lb = a.newlabel(self.name + "_tb")
            a("s_cmp_eq_u32 s66, s%d" % sg)
            a("s_cbranch_scc1 %s" % lo)
            a.label(lb)
            self.ool.append((lo, lb, fn))
        a("s_sub_u32 s66, s66, 1")
        a("s_cmp_lg_u32 s66, 0")
        a("s_cbranch_scc1 %s" % L)
        j += cnt
        extra = 0
        while j < nk:
            a("s_waitcnt vmcnt(%d)" % ((nk - 1 - j) * P + extra))
            a("s_barrier")
            if self.etile and not extra:
                self.etile(a); extra = self.etile_n
            j += 1
        if extra and self.etile_wait: a("s_waitcnt vmcnt(0)")
        a("s_barrier")

    def pf_setup(self, a):
        pf = self.pf
        R, C, T, D = pf["R"], pf["C"], pf["T"], pf["D"]
        lr = R.bit_length() - 1
        nx = -(-self.BM // C)
        nr = 64 // R
        lnr = nr.bit_length() - 1
        a("s_lshr_b32 s6, s2, 3")
        a("s_lshr_b32 s7, s6, %d" % lr)
        a("s_and_b32 s6, s6, %d" % (R - 1))
        a("s_mul_i32 s7, s7, %d" % nx)
        a("v_add_u32 v10, s7, v1")
        a("s_mov_b32 s7, %d" % self.ldx)
        a("v_mul_lo_u32 v10, s7, v10")
        a("v_bfrev_b32 v12, 1")
        a("v_cmp_gt_u32 vcc, %d, v1" % nx)
        a("s_lshl_b32 s6, s6, %d" % lnr)
        a("v_and_b32 v11, %d, v1" % (nr - 1))
        a("v_cndmask_b32 v10, v12, v10, vcc")
        a("v_add_u32 v11, s6, v11")
        a("s_mov_b32 s7, %d" % self.ldw)
        a("v_mul_lo_u32 v11, s7, v11")
        a("v_add_u32 v13, %d, v11" % T[0])
        for t in range(1, len(T) + 1):
            if t * nr >= 64: break
            if t < len(T): a("v_add_u32 v14, %d, v11" % T[t])
            a("v_cmp_le_u32 vcc, %d, v1" % (t * nr))
            a("s_nop 1")
            a("v_cndmask_b32 v13, v13, v%d, vcc" % (14 if t < len(T) else 12))
        a("s_movk_i32 s97, 128")
        a("s_cmp_eq_u32 s3, 0")
        a("s_cselect_b64 s[68:69], s[8:9], s[12:13]")
        a("s_cselect_b64 s[70:71], s[10:11], s[14:15]")
        a("s_cselect_b32 s97, s97, %d" % (64 * self.ldw))
        a("s_cselect_b64 vcc, -1, 0")
        a("s_cmp_ge_u32 s3, 2")
        a("s_cselect_b32 s70, 0, s70")
        a("v_cndmask_b32 v15, v13, v10, vcc")
        a("s_mul_i32 s96, s97, %d" % pf["first"])
        for d in range(pf["first"], D):
            self.pf_issue(a)

    def pf_issue(self, a):
        a("buffer_load_dword v%d, v15, s[68:71], s96 offen" % self.PFD)
        a("s_add_u32 s96, s96, s97")

    def stamp(self, a, i):
        if DBG["stamp"]:
            a("s_memtime s[%d:%d]" % (80 + 2 * i, 81 + 2 * i))
            if i == 0:
                a("s_memrealtime s[76:77]")
                for j in range(1, 8): a("s_mov_b64 s[%d:%d], 0" % (80 + 2 * j, 81 + 2 * j))

    def stamp_out(self, a):
        if DBG["stamp"]:
            a("s_waitcnt vmcnt(0)")
            self.stamp(a, 7)
            a("s_memrealtime s[78:79]")
            a("s_waitcnt lgkmcnt(0)")
            a("s_mov_b64 exec, 1")
            a("s_lshl_b32 s6, s2, 3"); a("s_add_u32 s6, s6, s3"); a("s_lshl_b32 s6, s6, 7")
            a("s_add_u32 s6, s6, %s" % hex(STAMP_OFF + KIDX[self.name] * 0x80000))
            srd(a, 8, P_WS, "s6", 128)
            a("v_mov_b32 v1, 0")
            for i in range(20):
                a("v_mov_b32 v2, s%d" % (76 + i))
                a("buffer_store_dword v2, v1, s[8:11], 0 offen offset:%d" % (4 * i))

    def emit(self, a, tilemap, setup, cpro, lpro, epi, lepi=None, common=None):
        kn = self.name + "_kernel"
        kernel_head(a, kn)
        end = a.newlabel(self.name + "_end")
        ldr = a.newlabel(self.name + "_ldr")
        xl = a.newlabel(self.name + "_x")
        a("s_cmp_ge_u32 s2, %d" % self.ntiles)
        a("s_cbranch_scc1 %s" % (xl if self.extra else end))
        load_kernargs(a)
        a("v_lshrrev_b32 v1, 6, v0")
        tilemap(a)
        a("v_readfirstlane_b32 s3, v1")
        a("s_waitcnt lgkmcnt(0)")
        self.stamp(a, 0)
        setup(a)
        a("s_cmp_ge_u32 s3, 4")
        a("s_cbranch_scc1 %s" % ldr)
        if self.prio: a("s_setprio %d" % self.prio)
        a("v_and_b32 v1, 63, v0")
        if self.cpro0: self.cpro0(a)
        self.npf = 0
        if self.pf and self.pf["D"]:
            self.pf_setup(a); self.npf = self.pf["D"] - self.pf["first"]
        self.compute_addr(a)
        cpro(a)
        self.compute_main(a)
        self.stamp(a, 2)
        epi(a)
        if common:
            cl = a.newlabel(self.name + "_com")
            a("s_branch %s" % cl)
        else:
            self.stamp_out(a)
            a("s_endpgm")
        a.label(ldr)
        self.loader_setup(a)
        lpro(a)
        self.loader_main(a)
        if lepi: lepi(a)
        if common:
            a.label(cl)
            common(a)
        self.stamp_out(a)
        a.label(end)
        a("s_endpgm")
        for lo, lb, fn in self.ool:
            a.label(lo)
            fn(a)
            a("s_branch %s" % lb)
        if self.extra:
            a.label(xl)
            self.extra(a, end)
            a("s_endpgm")
        return kn


def xw_srds2(a, g, xp, xoff, wp, woff, wtotal, colbytes):
    ldx = g.ldx
    a("s_mul_i32 s6, s4, %d" % (g.BM * ldx))
    if xoff: a("s_add_u32 s6, s6, %s" % hex(xoff))
    srd(a, 8, xp, "s6", g.BM * ldx)
    a("s_mul_i32 s6, s5, %d" % colbytes)
    a("s_sub_u32 s7, %s, s6" % hex(wtotal))
    if woff: a("s_add_u32 s6, s6, %s" % hex(woff))
    srd(a, 12, wp, "s6", "s7")


def touch(a, p, slice_bytes, wg, vtid, sd, vd, off=0):
    a("s_mul_i32 s6, %s, %d" % (wg, slice_bytes))
    if off: a("s_add_u32 s6, s6, %d" % off)
    srd(a, sd, p, "s6", slice_bytes)
    a("buffer_load_dword v%d, v%d, %s, 0 offen" % (vd, vtid, sr(sd, 4)))

Stamper.stamp = Gemm2.stamp
Stamper.stamp_out = Gemm2.stamp_out


def lmap(j):
    return j + (j + 4) // 7

def s_lmap(a, dst, src, tmp, bytes_in=True):
    if bytes_in:
        a("s_lshr_b32 s%d, s%d, 7" % (tmp, src)); a("s_add_u32 s%d, s%d, 4" % (tmp, tmp))
    else:
        a("s_add_u32 s%d, s%d, 4" % (tmp, src))
    a("s_mul_i32 s%d, s%d, 37" % (tmp, tmp)); a("s_lshr_b32 s%d, s%d, 8" % (tmp, tmp))
    if bytes_in:
        a("s_lshl_b32 s%d, s%d, 7" % (tmp, tmp)); a("s_add_u32 s%d, s%d, s%d" % (dst, src, tmp))
    else:
        a("s_add_u32 s%d, s%d, s%d" % (dst, src, tmp)); a("s_lshl_b32 s%d, s%d, 7" % (dst, dst))

def red8(a, xs):
    for m in ("quad_perm:[1,0,3,2]", "quad_perm:[2,3,0,1]", "row_half_mirror"):
        if len(xs) < 3: a("s_nop 1")
        for x in xs:
            a("v_add_f32_dpp v%d, v%d, v%d %s row_mask:0xf bank_mask:0xf" % (x, x, x, m))
```

```python
from gen import *

def bf16_round(a, dst, src):
    a("v_cvt_pk_bf16_f32 v%d, v%d, v%d" % (dst, src, src))
    a("v_lshlrev_b32 v%d, 16, v%d" % (dst, dst))

def swap_red(a, op, which, x, t):
    a("v_mov_b32 v%d, v%d" % (t, x))
    a("s_nop 1")
    a("v_permlane%d_swap_b32 v%d, v%d" % (which, x, t))
    a("%s v%d, v%d, v%d" % (op, x, x, t))

def multi_swap_red(a, op, which, xs, ts):
    for x, t in zip(xs, ts):
        a("v_mov_b32 v%d, v%d" % (t, x))
    if len(xs) < 3:
        a("s_nop 1")
    for x, t in zip(xs, ts):
        a("v_permlane%d_swap_b32 v%d, v%d" % (which, x, t))
    for x, t in zip(xs, ts):
        a("%s v%d, v%d, v%d" % (op, x, x, t))

def multi_dpp_red(a, xs, rors):
    for ro in rors:
        if len(xs) < 3:
            a("s_nop 1")
        for x in xs:
            a("v_add_f32_dpp v%d, v%d, v%d row_ror:%d row_mask:0xf bank_mask:0xf" % (x, x, x, ro))

def k0(a):
    kn = "k0_kernel"
    kernel_head(a, kn)
    end = a.newlabel("k0_end"); st = a.newlabel("k0_st")
    a("s_cmp_ge_u32 s2, 256")
    a("s_cbranch_scc1 %s" % end)
    load_kernargs(a)
    a("v_lshrrev_b32 v1, 6, v0")
    a("v_and_b32 v2, 63, v0")
    a("v_readfirstlane_b32 s3, v1")
    a("s_waitcnt lgkmcnt(0)")
    a("s_cmp_ge_u32 s2, 192")
    a("s_cbranch_scc1 %s" % st)
    a("s_lshr_b32 s4, s2, 4"); a("s_lshl_b32 s4, s4, 4")
    a("s_and_b32 s5, s2, 7"); a("s_lshl_b32 s5, s5, 1"); a("s_add_u32 s4, s4, s5")
    a("s_bfe_u32 s5, s2, 0x10003"); a("s_add_u32 s4, s4, s5")
    srd(a, 8, P_WMOD, 0, 1024 * 6144 * 2)
    srd(a, 12, P_C, 0, 2048)
    srd(a, 16, P_WS, WS_MOD, 6144 * 4)
    a("v_lshrrev_b32 v3, 2, v2")
    a("s_lshl_b32 s5, s3, 7")
    a("v_add_u32 v3, s5, v3")
    a("v_lshlrev_b32 v4, 1, v3")
    a("s_mov_b32 s6, 12288")
    a("v_mul_lo_u32 v5, s6, v3")
    a("v_and_b32 v6, 3, v2")
    a("v_lshl_add_u32 v5, v6, 4, v5")
    a("s_lshl_b32 s5, s4, 6")
    a("v_add_u32 v5, s5, v5")
    for i in range(8):
        a("buffer_load_ushort v%d, v4, s[12:15], 0 offen offset:%d" % (8 + i, 32 * i))
    for i in range(8):
        a("s_mov_b32 s%d, %d" % (20 + i, i * 16 * 12288))
        a("buffer_load_dwordx4 %s, v5, s[8:11], s%d offen" % (vr(32 + 4 * i, 4), 20 + i))
    a("s_mov_b32 s6, %s" % hex(f32bits(-LOG2E)))
    a("s_waitcnt vmcnt(8)")
    for i in range(8): a("v_lshlrev_b32 v%d, 16, v%d" % (8 + i, 8 + i))
    for i in range(8): a("v_mul_f32 v%d, s6, v%d" % (16 + i, 8 + i))
    for i in range(8): a("v_exp_f32 v%d, v%d" % (16 + i, 16 + i))
    for i in range(8): a("v_add_f32 v%d, 1.0, v%d" % (16 + i, 16 + i))
    for i in range(8): a("v_rcp_f32 v%d, v%d" % (16 + i, 16 + i))
    for i in range(8): a("v_mul_f32 v%d, v%d, v%d" % (8 + i, 8 + i, 16 + i))
    for i in range(8): a("v_cvt_pk_bf16_f32 v%d, v%d, v%d" % (8 + i, 8 + i, 8 + i))
    for i in range(8): a("v_lshlrev_b32 v%d, 16, v%d" % (8 + i, 8 + i))
    for e in range(8): a("v_mov_b32 v%d, 0" % (24 + e))
    for i in range(8):
        a("s_waitcnt vmcnt(%d)" % (7 - i))
        for d in range(4):
            unpack2(a, 16 + 2 * d, 32 + 4 * i + d)
        for e in range(8):
            a("v_fmac_f32 v%d, v%d, v%d" % (24 + e, 8 + i, 16 + e))
    xs = list(range(24, 32)); ts = list(range(16, 24))
    multi_dpp_red(a, xs, [4, 8])
    multi_swap_red(a, "v_add_f32", 16, xs, ts)
    multi_swap_red(a, "v_add_f32", 32, xs, ts)
    a("s_lshl_b32 s5, s3, 7")
    a("v_lshl_add_u32 v7, v6, 5, s5")
    a("s_mov_b64 exec, 0xf")
    a("ds_write_b128 v7, v[24:27]")
    a("ds_write_b128 v7, v[28:31] offset:16")
    a("s_mov_b64 exec, -1")
    a("s_waitcnt lgkmcnt(0)")
    a("s_barrier")
    a("s_cmp_lg_u32 s3, 0")
    a("s_cbranch_scc1 %s" % end)
    a("v_and_b32 v7, 31, v2")
    a("v_lshlrev_b32 v7, 2, v7")
    for w in range(8):
        a("ds_read_b32 v%d, v7 offset:%d" % (8 + w, 128 * w))
    a("s_waitcnt lgkmcnt(0)")
    a("v_add_f32 v8, v8, v9"); a("v_add_f32 v10, v10, v11"); a("v_add_f32 v12, v12, v13"); a("v_add_f32 v14, v14, v15")
    a("v_add_f32 v8, v8, v10"); a("v_add_f32 v12, v12, v14"); a("v_add_f32 v8, v8, v12")
    bf16_round(a, 8, 8)
    a("s_lshl_b32 s5, s4, 7")
    a("v_add_u32 v7, s5, v7")
    a("s_mov_b32 exec_hi, 0")
    a("buffer_store_dword v8, v7, s[16:19], 0 offen")
    a("s_endpgm")
    a.label(st)
    a("s_sub_u32 s4, s2, 192")
    srd(a, 8, P_X, 0, 2048 * 2048)
    srd(a, 12, P_WS, WS_ST1, 2048 * 8)
    a("s_lshl_b32 s5, s4, 9")
    a("s_add_u32 s5, s5, %s" % hex(WS_SUM2))
    srd(a, 16, P_WS, "s5", 512)
    a("s_lshl_b32 s5, s4, 3"); a("s_add_u32 s5, s5, s3"); a("s_lshl_b32 s5, s5, 2")
    a("s_lshl_b32 s6, s5, 11")
    a("v_lshl_add_u32 v3, v2, 4, s6")
    for r in range(4):
        a("s_mov_b32 s%d, %d" % (20 + r, r * 2048))
        a("buffer_load_dwordx4 %s, v3, s[8:11], s%d offen" % (vr(8 + 8 * r, 4), 20 + r))
        a("buffer_load_dwordx4 %s, v3, s[8:11], s%d offen offset:1024" % (vr(12 + 8 * r, 4), 20 + r))
    a("v_mov_b32 v4, 0")
    a("v_lshlrev_b32 v5, 2, v0")
    a("buffer_store_dword v4, v5, s[16:19], 0 offen")
    U = 48
    for r in range(4):
        a("s_waitcnt vmcnt(%d)" % (7 - 2 * r))
        for d in range(8):
            unpack2(a, U + 16 * r + 2 * d, 8 + 8 * r + d)
    S = 112
    for r in range(4):
        b = U + 16 * r
        a("v_pk_add_f32 %s, %s, %s" % (vr(S + 2 * r, 2), vr(b, 2), vr(b + 2, 2)))
    for k in range(2, 8):
        for r in range(4):
            b = U + 16 * r
            a("v_pk_add_f32 %s, %s, %s" % (vr(S + 2 * r, 2), vr(S + 2 * r, 2), vr(b + 2 * k, 2)))
    xs = [S + 2 * r for r in range(4)]; ts = [S + 2 * r + 1 for r in range(4)]
    for x in xs: a("v_add_f32 v%d, v%d, v%d" % (x, x, x + 1))
    multi_dpp_red(a, xs, [1, 2, 4, 8])
    multi_swap_red(a, "v_add_f32", 16, xs, ts)
    multi_swap_red(a, "v_add_f32", 32, xs, ts)
    a("s_mov_b32 s6, %s" % hex(f32bits(1.0 / 1024)))
    for x in xs: a("v_mul_f32 v%d, s6, v%d" % (x, x))
    for k in range(8):
        for r in range(4):
            b = U + 16 * r + 2 * k
            a("v_pk_add_f32 %s, %s, %s op_sel_hi:[1,0] neg_lo:[0,1] neg_hi:[0,1]" % (vr(b, 2), vr(b, 2), vr(S + 2 * r, 2)))
    Q = 120
    for r in range(4):
        b = U + 16 * r
        a("v_pk_mul_f32 %s, %s, %s" % (vr(Q + 2 * r, 2), vr(b, 2), vr(b, 2)))
    for k in range(1, 8):
        for r in range(4):
            b = U + 16 * r + 2 * k
            a("v_pk_fma_f32 %s, %s, %s, %s" % (vr(Q + 2 * r, 2), vr(b, 2), vr(b, 2), vr(Q + 2 * r, 2)))
    qs = [Q + 2 * r for r in range(4)]; qt = [Q + 2 * r + 1 for r in range(4)]
    for x in qs: a("v_add_f32 v%d, v%d, v%d" % (x, x, x + 1))
    multi_dpp_red(a, qs, [1, 2, 4, 8])
    multi_swap_red(a, "v_add_f32", 16, qs, qt)
    multi_swap_red(a, "v_add_f32", 32, qs, qt)
    a("v_mov_b32 v4, %s" % hex(f32bits(1e-5)))
    for x in qs: a("v_fma_f32 v%d, v%d, s6, v4" % (x, x))
    for x in qs: a("v_rsq_f32 v%d, v%d" % (x, x))
    a("s_nop 0")
    for r in range(4): a("v_mul_f32 v%d, -v%d, v%d" % (Q + 2 * r + 1, S + 2 * r, Q + 2 * r))
    a("s_lshl_b32 s6, s5, 3")
    a("v_mov_b32 v3, s6")
    a("s_mov_b64 exec, 1")
    a("buffer_store_dwordx4 %s, v3, s[12:15], 0 offen" % vr(Q, 4))
    a("buffer_store_dwordx4 %s, v3, s[12:15], 0 offen offset:16" % vr(Q + 4, 4))
    a.label(end)
    a("s_endpgm")
    return kn, 128, 256, 512, 1024

def add_ln_xform(g, tab):
    def regs():
        b = g.LT
        return dict(ST=b, C=b + 8, SH=b + 16, T=b + 24, O=b + 32, TA=b + 40)
    def coef_reads(a):
        R = regs()
        for q in range(4):
            a("ds_read_b128 %s, v%d offset:%d" % (vr(R["C"] + 4 * q, 4), R["TA"], 16 * q))
        a("v_add_u32 v%d, 512, v%d" % (R["TA"], R["TA"]))
    def xform(a, ld, src, j):
        R = regs()
        st = R["ST"] + 2 * ld["i"]
        o = R["O"] + 4 * (ld["i"] & 1)
        for d in range(4):
            unpack2(a, R["T"] + 2 * d, src + d)
        for d in range(4):
            t = vr(R["T"] + 2 * d, 2)
            a("v_pk_fma_f32 %s, %s, %s, %s op_sel:[0,0,1] op_sel_hi:[1,0,1]" % (t, t, vr(st, 2), vr(st, 2)))
        for d in range(4):
            t = vr(R["T"] + 2 * d, 2)
            a("v_pk_fma_f32 %s, %s, %s, %s" % (t, t, vr(R["C"] + 2 * d, 2), vr(R["SH"] + 2 * d, 2)))
        for d in range(4):
            a("v_cvt_pk_bf16_f32 v%d, v%d, v%d" % (o + d, R["T"] + 2 * d, R["T"] + 2 * d + 1))
        return o
    def after(a, ld, i):
        if ld["kind"] == "x" and ld["i"] == g.BM // 32 - 1:
            coef_reads(a)
    g.xform = xform
    g.after_load = after
    g.ln_regs = regs
    g.coef_reads = coef_reads
    g.ln_tab = tab

def build_coef_table(a, g, c_idx, s_idx):
    a("v_lshlrev_b32 v4, 4, v0")
    a("buffer_load_dwordx4 v[8:11], v4, s[16:19], 0 offen offset:0" if c_idx == 0 else
      "s_mov_b32 s6, %d" % (c_idx * 4096))
    if c_idx: a("buffer_load_dwordx4 v[8:11], v4, s[16:19], s6 offen")
    a("s_mov_b32 s7, %d" % (s_idx * 4096))
    a("buffer_load_dwordx4 v[12:15], v4, s[16:19], s7 offen")
    a("v_lshrrev_b32 v5, 1, v0")
    a("v_lshlrev_b32 v5, 6, v5")
    a("v_and_b32 v6, 1, v0")
    a("v_lshl_add_u32 v5, v6, 4, v5")
    a("v_add_u32 v5, %d, v5" % g.ln_tab)
    a("s_waitcnt vmcnt(0)")
    for e in range(4): a("v_add_f32 v%d, 1.0, v%d" % (8 + e, 8 + e))
    for e in range(4): a("v_cvt_pk_bf16_f32 v%d, v%d, v%d" % (8 + e, 8 + e, 8 + e))
    for e in range(4): a("v_lshlrev_b32 v%d, 16, v%d" % (8 + e, 8 + e))
    a("ds_write_b128 v5, v[8:11]")
    a("ds_write_b128 v5, v[12:15] offset:32")

def stats_from_sums(a, s, q, dst, n, tmp):
    a("v_mul_f32 v%d, %s, v%d" % (tmp, hex(f32bits(1.0 / n)), s))
    a("v_mul_f32 v%d, %s, v%d" % (dst, hex(f32bits(1.0 / n)), q))
    a("v_fma_f32 v%d, -v%d, v%d, v%d" % (dst, tmp, tmp, dst))
    a("v_max_f32 v%d, 0, v%d" % (dst, dst))
    a("v_add_f32 v%d, %s, v%d" % (dst, hex(f32bits(1e-5)), dst))
    a("v_rsq_f32 v%d, v%d" % (dst, dst))
    a("s_nop 0")
    a("v_mul_f32 v%d, -v%d, v%d" % (dst + 1, tmp, dst))

def k2(a):
    g = Gemm("k2", 128, 192, 1024, 32, 2, 2, 2048, 6144, 256)
    g.colbytes = 128
    g.segs = [(0, 0, 8), (2048, 128, 8), (4096, 256, 8)]
    TAB = g.LDS_MAIN
    WPH = TAB + 8192
    lds = WPH + 4096
    add_ln_xform(g, TAB)
    base_reads = g.reads
    def reads(slot, sub, fs):
        out = []
        for x in base_reads(slot, sub, fs):
            out.append(x)
        res = []
        xs, ws = [], []
        for j in range(g.NT):
            xs.append("ds_read_b128 %s, v2 offset:%d" % (vr(g.xfrag(fs, j), 4), slot * g.XS + j * 32 * g.PX + sub * 32))
        for i in range(g.MT):
            for q in range(2):
                ws.append("ds_read_b64_tr_b16 %s, v3 offset:%d" % (vr(g.wfrag(fs, i) + 2 * q, 2),
                          slot * g.WS + (16 * sub + 4 * q) * g.PW + i * 128))
        return ws[0:2] + xs + ws[2:]
    g.reads = reads
    WF = g.CFREE
    TR = WF + 8
    def setup(a):
        xw_srds(a, g, P_X, 0, P_WQKV, 0, 1024 * 6144)
        srd(a, 16, P_WS, WS_MOD, 6144 * 4)
        srd(a, 20, P_WS, WS_ST1, 2048 * 8)
        a("s_lshl_b32 s6, s5, 12")
        srd(a, 24, P_WPHI, "s6", 4096)
    def cpro(a):
        a("s_and_b32 s6, s3, 1")
        a("s_mul_i32 s6, s6, %d" % ((96 - 32) * 2))
        a("v_subrev_u32 v3, s6, v3")
        a("v_lshlrev_b32 v7, 4, v0")
        a("buffer_load_dwordx4 v[16:19], v7, s[24:27], 0 offen")
        build_coef_table(a, g, 1, 0)
        a("v_add_u32 v7, %d, v7" % WPH)
        a("ds_write_b128 v7, v[16:19]")
        a("v_bfe_u32 v4, v1, 2, 2")
        a("v_lshrrev_b32 v5, 5, v1")
        a("v_lshl_add_u32 v4, v5, 3, v4")
        a("v_bfe_u32 v5, v1, 4, 1"); a("v_lshlrev_b32 v5, 5, v5")
        a("v_and_b32 v6, 1, v1"); a("v_lshl_add_u32 v5, v6, 4, v5")
        a("v_bfe_u32 v6, v1, 1, 1"); a("v_lshl_add_u32 v5, v6, 3, v5")
        a("v_lshl_add_u32 v%d, v4, 6, v5" % TR)
        a("v_mul_u32_u24 v4, 192, v4")
        a("v_add_u32 v%d, v4, v5" % (TR + 1))
        a("s_waitcnt lgkmcnt(0)")
        a("s_barrier")
        a("s_and_b32 s6, s3, 1"); a("s_lshl_b32 s6, s6, 11"); a("s_add_u32 s6, s6, %d" % WPH)
        a("v_add_u32 v4, s6, v%d" % TR)
        for t in range(2):
            for q in range(2):
                a("ds_read_b64_tr_b16 %s, v4 offset:%d" % (vr(WF + 4 * t + 2 * q, 2), (16 * t + 4 * q) * 64))
    def lpro(a):
        R = g.ln_regs()
        a("v_bfe_u32 v3, v0, 3, 5")
        a("s_lshl_b32 s6, s4, 7")
        a("v_add_u32 v3, s6, v3")
        a("v_lshlrev_b32 v3, 3, v3")
        for i in range(4):
            a("buffer_load_dwordx2 %s, v3, s[20:23], 0 offen offset:%d" % (vr(R["ST"] + 2 * i, 2), i * 256))
        g.loader_issue_first(a)
        a("v_and_b32 v2, 7, v0")
        a("v_lshlrev_b32 v%d, 6, v2" % R["TA"])
        a("v_add_u32 v%d, %d, v%d" % (R["TA"], TAB, R["TA"]))
        a("s_barrier")
        g.coef_reads(a)
        a("s_waitcnt lgkmcnt(0)")
    def epi(a):
        PHK = 0; VIM = 2 * 24576
        P = g.FR
        a("s_nop 15")
        a("s_lshl_b32 s6, s5, 1"); a("s_and_b32 s7, s3, 1"); a("s_add_u32 s6, s6, s7")
        a("s_lshl_b32 s7, s6, 18")
        a("s_lshl_b32 s33, s4, 2"); a("s_lshr_b32 s32, s3, 1"); a("s_lshl_b32 s32, s32, 1"); a("s_add_u32 s33, s33, s32")
        a("s_lshl_b32 s33, s33, 12"); a("s_add_u32 s7, s7, s33"); a("s_add_u32 s7, s7, %s" % hex(WS_PHIQ))
        srd(a, 16, P_WS, "s7", 8192)
        a("s_lshl_b32 s7, s6, 4"); a("s_add_u32 s7, s7, s4"); a("s_mul_i32 s7, s7, %d" % KVP_STRIDE)
        a("s_add_u32 s7, s7, %s" % hex(WS_KVP))
        srd(a, 20, P_WS, "s7", KVP_STRIDE)
        a("s_mov_b32 s70, %s" % hex(f32bits(LOG2E))); a("s_mov_b32 s71, s70")
        a("v_and_b32 v4, 31, v1"); a("v_add_u32 v4, s34, v4")
        a("v_lshrrev_b32 v5, 5, v1"); a("v_lshlrev_b32 v5, 4, v5")
        a("s_and_b32 s7, s3, 1")
        a("s_mul_i32 s32, s7, 24576"); a("s_lshl_b32 s33, s7, 13"); a("s_add_u32 s33, s33, %d" % VIM)
        a("v_mul_u32_u24 v6, 192, v4"); a("v_add3_u32 v6, v6, v5, s32")
        a("v_lshl_add_u32 v7, v4, 6, v5"); a("v_add_u32 v7, s33, v7")
        a("v_lshlrev_b32 v8, 4, v1")
        for i in range(2):
            for j in range(2):
                for e in range(8):
                    A = g.acc(i, j)
                    a("v_cvt_pk_bf16_f32 v%d, v%d, v%d" % (P + (i * 2 + j) * 8 + e, A + 2 * e, A + 2 * e + 1))
        for i in range(2):
            for j in range(2):
                A = g.acc(i, j); pk = P + (i * 2 + j) * 8
                a("v_mfma_f32_32x32x16_bf16 %s, %s, %s, 0" % (vr(A, 16), vr(WF, 4), vr(pk, 4)))
                a("v_mfma_f32_32x32x16_bf16 %s, %s, %s, %s" % (vr(A, 16), vr(WF + 4, 4), vr(pk + 4, 4), vr(A, 16)))
        for j in range(2):
            A = g.acc(2, j)
            for e in range(8):
                a("v_cvt_pk_bf16_f32 v%d, v%d, v%d" % (P + 32 + e, A + 2 * e, A + 2 * e + 1))
            for t in range(2):
                a("ds_write_b128 v7, %s offset:%d" % (vr(P + 32 + 4 * t, 4), j * 32 * 64 + t * 32))
            if j == 0: a("s_nop 1")
        EN = g.acc(2, 0)
        for i in (1, 0):
            for j in range(2):
                A = g.acc(i, j); pk = P + (i * 2 + j) * 8
                OUT = EN + 16
                a("v_max3_f32 v10, v%d, v%d, v%d" % (A, A + 1, A + 2))
                a("v_min3_f32 v12, v%d, v%d, v%d" % (A, A + 1, A + 2))
                for e in range(3, 15, 2):
                    a("v_max3_f32 v10, v10, v%d, v%d" % (A + e, A + e + 1))
                    a("v_min3_f32 v12, v12, v%d, v%d" % (A + e, A + e + 1))
                a("v_max_f32 v10, v10, v%d" % (A + 15))
                a("v_min_f32 v12, v12, v%d" % (A + 15))
                a("v_mov_b32 v11, v10"); a("v_mov_b32 v13, v12")
                a("s_nop 1")
                a("v_permlane32_swap_b32 v10, v11"); a("v_permlane32_swap_b32 v12, v13")
                a("v_max_f32 v10, v10, v11"); a("v_min_f32 v12, v12, v13")
                a("v_mul_f32 v10, s70, v10"); a("v_mul_f32 v12, s70, v12")
                for e in range(8):
                    a("v_pk_fma_f32 %s, %s, s[70:71], v[12:13] op_sel_hi:[1,1,0] neg_lo:[0,1,0] neg_hi:[0,1,0]" % (vr(EN + 2 * e, 2), vr(A + 2 * e, 2)))
                    a("v_pk_fma_f32 %s, %s, s[70:71], v[10:11] op_sel_hi:[1,1,0] neg_lo:[0,0,1] neg_hi:[0,0,1]" % (vr(A + 2 * e, 2), vr(A + 2 * e, 2)))
                for e in range(16):
                    a("v_exp_f32 v%d, v%d" % (A + e, A + e))
                    a("v_exp_f32 v%d, v%d" % (EN + e, EN + e))
                a("v_pk_add_f32 v[10:11], %s, %s" % (vr(A, 2), vr(A + 2, 2)))
                a("v_pk_add_f32 v[12:13], %s, %s" % (vr(EN, 2), vr(EN + 2, 2)))
                for e in range(2, 8):
                    a("v_pk_add_f32 v[10:11], v[10:11], %s" % vr(A + 2 * e, 2))
                    a("v_pk_add_f32 v[12:13], v[12:13], %s" % vr(EN + 2 * e, 2))
                a("v_add_f32 v10, v10, v11"); a("v_add_f32 v12, v12, v13")
                a("v_mov_b32 v11, v10"); a("v_mov_b32 v13, v12")
                a("s_nop 1")
                a("v_permlane32_swap_b32 v10, v11"); a("v_permlane32_swap_b32 v12, v13")
                a("v_add_f32 v10, v10, v11"); a("v_add_f32 v12, v12, v13")
                a("v_rcp_f32 v10, v10"); a("v_rcp_f32 v12, v12")
                a("s_nop 0")
                for e in range(8):
                    a("v_pk_mul_f32 %s, %s, v[10:11] op_sel_hi:[1,0]" % (vr(A + 2 * e, 2), vr(A + 2 * e, 2)))
                    a("v_pk_mul_f32 %s, %s, v[12:13] op_sel_hi:[1,0]" % (vr(EN + 2 * e, 2), vr(EN + 2 * e, 2)))
                for e in range(8):
                    a("v_cvt_pk_bf16_f32 v%d, v%d, v%d" % (pk + e, A + 2 * e, A + 2 * e + 1))
                for e in range(8):
                    a("v_cvt_pk_bf16_f32 v%d, v%d, v%d" % (A + e, EN + 2 * e, EN + 2 * e + 1))
                for q in range(4):
                    src = vr(pk + 4 * q, 4) if q < 2 else vr(A + 4 * (q - 2), 4)
                    if i == 1:
                        a("ds_write_b128 v6, %s offset:%d" % (src, j * 32 * 192 + q * 32))
                    else:
                        a("buffer_store_dwordx4 %s, v8, s[16:19], 0 offen offset:%d" % (src, q * 1024) if j == 0 else
                          "buffer_store_dwordx4 %s, v9, s[16:19], 0 offen offset:%d" % (src, q * 1024))
                if i == 1 and j == 1:
                    a("v_add_u32 v9, 4096, v8")
                    a("s_waitcnt lgkmcnt(0)")
                    a("s_barrier")
        a("s_lshr_b32 s7, s3, 1"); a("s_lshl_b32 s7, s7, 6"); a("s_add_u32 s32, s32, s7")
        a("v_add_u32 v4, s32, v%d" % (TR + 1))
        a("v_add_u32 v5, s33, v%d" % TR)
        KV = g.acc(1, 0); Z = g.acc(1, 1); FA = g.acc(2, 0)
        ON = 12
        for e in range(4): a("v_mov_b32 v%d, 0x3f803f80" % (ON + e))
        for half in range(2):
            for t in range(4):
                T = half * 4 + t
                for q in range(2):
                    a("ds_read_b64_tr_b16 %s, v4 offset:%d" % (vr(FA + 8 * t + 2 * q, 2), (16 * T + 4 * q) * 192))
                    a("ds_read_b64_tr_b16 %s, v5 offset:%d" % (vr(FA + 8 * t + 4 + 2 * q, 2), (16 * T + 4 * q) * 64))
            for t in range(4):
                a("s_waitcnt lgkmcnt(%d)" % (12 - 4 * t))
                first = half == 0 and t == 0
                a("v_mfma_f32_32x32x16_bf16 %s, %s, %s, %s" % (vr(KV, 16), vr(FA + 8 * t, 4), vr(FA + 8 * t + 4, 4), "0" if first else vr(KV, 16)))
                a("v_mfma_f32_32x32x16_bf16 %s, %s, %s, %s" % (vr(Z, 16), vr(FA + 8 * t, 4), vr(ON, 4), "0" if first else vr(Z, 16)))
        a("s_lshr_b32 s7, s3, 1")
        a("s_lshl_b32 s6, s7, 12")
        a("s_lshl_b32 s7, s7, 7"); a("s_add_u32 s7, s7, 8192")
        a("v_lshrrev_b32 v5, 5, v1"); a("v_lshlrev_b32 v5, 6, v5")
        a("s_nop 10")
        for q in range(4):
            a("buffer_store_dwordx4 %s, v8, s[20:23], s6 offen offset:%d" % (vr(KV + 4 * q, 4), q * 1024))
        a("s_mov_b32 exec_lo, 1"); a("s_mov_b32 exec_hi, 1")
        for q in range(4):
            a("buffer_store_dwordx4 %s, v5, s[20:23], s7 offen offset:%d" % (vr(Z + 4 * q, 4), q * 16))
    kn = g.emit(a, tilemap_16x16_r8c4, setup, cpro, lpro, epi)
    return kn, 256, 256, 512, lds

def k2b(a):
    kn = "k2b_kernel"
    kernel_head(a, kn)
    end = a.newlabel("k2b_end")
    a("s_cmp_ge_u32 s2, 256")
    a("s_cbranch_scc1 %s" % end)
    load_kernargs(a)
    a("v_lshrrev_b32 v1, 6, v0")
    a("s_lshr_b32 s6, s2, 3")
    a("s_and_b32 s4, s6, 7"); a("s_bfe_u32 s7, s2, 0x20001"); a("s_lshl_b32 s7, s7, 3"); a("s_add_u32 s4, s4, s7")
    a("s_lshr_b32 s5, s6, 3"); a("s_and_b32 s7, s2, 1"); a("s_lshl_b32 s7, s7, 2"); a("s_add_u32 s5, s5, s7")
    a("v_readfirstlane_b32 s3, v1")
    a("v_and_b32 v1, 63, v0")
    a("v_lshlrev_b32 v2, 4, v1")
    a("s_waitcnt lgkmcnt(0)")
    a("s_mul_i32 s6, s4, %d" % (16 * KVP_STRIDE)); a("s_add_u32 s6, s6, %s" % hex(WS_KVP))
    srd(a, 8, P_WS, "s6", 16 * KVP_STRIDE)
    a("s_lshl_b32 s5, s5, 3"); a("s_add_u32 s5, s5, s3")
    a("s_lshl_b32 s6, s4, 6"); a("s_add_u32 s6, s6, s5"); a("s_lshl_b32 s6, s6, 12"); a("s_add_u32 s6, s6, %s" % hex(WS_PHIQ))
    srd(a, 12, P_WS, "s6", 4096)
    a("s_lshl_b32 s6, s5, 17"); a("s_add_u32 s6, s6, %s" % hex(WS_O))
    srd(a, 16, P_WS, "s6", 131072)
    a("s_lshl_b32 s6, s3, 10")
    a("v_add_u32 v3, s6, v2")
    PL = 64
    for p in range(16):
        a("s_mov_b32 s%d, %d" % (20 + p, p * KVP_STRIDE))
        a("buffer_load_dwordx4 %s, v3, s[8:11], s%d offen" % (vr(PL + 4 * p, 4), 20 + p))
    a("v_lshlrev_b32 v4, 2, v1")
    a("s_mul_i32 s6, s3, %d" % (2 * KVP_STRIDE)); a("s_add_u32 s6, s6, 8192"); a("s_add_u32 s7, s6, %d" % KVP_STRIDE)
    a("buffer_load_dword v8, v4, s[8:11], s6 offen")
    a("buffer_load_dword v9, v4, s[8:11], s7 offen")
    for q in range(4):
        a("buffer_load_dwordx4 %s, v2, s[12:15], 0 offen offset:%d" % (vr(16 + 4 * q, 4), q * 1024))
    for p in range(1, 16):
        a("s_waitcnt vmcnt(%d)" % (6 + 15 - p))
        a("v_pk_add_f32 %s, %s, %s" % (vr(PL, 2), vr(PL, 2), vr(PL + 4 * p, 2)))
        a("v_pk_add_f32 %s, %s, %s" % (vr(PL + 2, 2), vr(PL + 2, 2), vr(PL + 4 * p + 2, 2)))
    a("v_cvt_pk_bf16_f32 v10, v%d, v%d" % (PL, PL + 1))
    a("v_cvt_pk_bf16_f32 v11, v%d, v%d" % (PL + 2, PL + 3))
    a("s_lshr_b32 s6, s3, 1"); a("s_lshl_b32 s6, s6, 10"); a("s_and_b32 s7, s3, 1"); a("s_lshl_b32 s7, s7, 3"); a("s_add_u32 s6, s6, s7")
    a("v_add_u32 v5, s6, v2")
    a("ds_write_b64 v5, v[10:11]")
    a("s_waitcnt vmcnt(4)")
    a("v_add_f32 v8, v8, v9")
    a("s_lshl_b32 s6, s3, 8")
    a("v_add_u32 v5, s6, v4")
    a("ds_write_b32 v5, v8 offset:4096")
    a("s_waitcnt lgkmcnt(0)")
    a("s_barrier")
    for T in range(4):
        a("ds_read_b128 %s, v2 offset:%d" % (vr(32 + 4 * T, 4), T * 1024))
    for w in range(8):
        a("ds_read_b32 v%d, v4 offset:%d" % (64 + w, 4096 + 256 * w))
    a("s_waitcnt lgkmcnt(0)")
    a("v_add_f32 v64, v64, v65"); a("v_add_f32 v66, v66, v67"); a("v_add_f32 v68, v68, v69"); a("v_add_f32 v70, v70, v71")
    a("v_add_f32 v64, v64, v66"); a("v_add_f32 v68, v68, v70"); a("v_add_f32 v64, v64, v68")
    a("v_cvt_pk_bf16_f32 v64, v64, v64")
    a("s_lshl_b32 s6, s3, 7"); a("s_add_u32 s6, s6, 6144")
    a("v_lshl_add_u32 v5, v1, 1, s6")
    a("ds_write_b16 v5, v64")
    a("v_lshrrev_b32 v6, 5, v1")
    a("v_lshl_add_u32 v5, v6, 5, s6")
    a("s_waitcnt lgkmcnt(0)")
    for T in range(4):
        a("ds_read_b128 %s, v5 offset:%d" % (vr(48 + 4 * T, 4), (T >> 1) * 64 + (T & 1) * 16))
    a("s_waitcnt vmcnt(0)")
    NUM = 64; DEN = 80
    for T in range(4):
        a("v_mfma_f32_32x32x16_bf16 %s, %s, %s, %s" % (vr(NUM, 16), vr(32 + 4 * T, 4), vr(16 + 4 * T, 4), "0" if T == 0 else vr(NUM, 16)))
    a("s_waitcnt lgkmcnt(0)")
    for T in range(4):
        a("v_mfma_f32_32x32x16_bf16 %s, %s, %s, %s" % (vr(DEN, 16), vr(48 + 4 * T, 4), vr(16 + 4 * T, 4), "0" if T == 0 else vr(DEN, 16)))
    a("v_and_b32 v5, 31, v1"); a("v_lshlrev_b32 v5, 12, v5"); a("v_lshl_add_u32 v5, v6, 4, v5")
    a("s_lshl_b32 s6, s4, 6")
    a("s_lshr_b32 s7, s4, 1"); a("s_add_u32 s7, s7, 4"); a("s_mul_i32 s7, s7, 37"); a("s_lshr_b32 s7, s7, 8")
    a("s_lshl_b32 s7, s7, 7"); a("s_add_u32 s6, s6, s7")
    a("s_nop 6")
    a("v_add_f32 v8, %s, v%d" % (hex(f32bits(1e-6)), DEN))
    a("v_rcp_f32 v8, v8")
    a("s_nop 0")
    for e in range(8):
        a("v_pk_mul_f32 %s, %s, v[8:9] op_sel_hi:[1,0]" % (vr(NUM + 2 * e, 2), vr(NUM + 2 * e, 2)))
    for e in range(8):
        a("v_cvt_pk_bf16_f32 v%d, v%d, v%d" % (16 + e, NUM + 2 * e, NUM + 2 * e + 1))
    a("buffer_store_dwordx4 v[16:19], v5, s[16:19], s6 offen")
    a("buffer_store_dwordx4 v[20:23], v5, s[16:19], s6 offen offset:32")
    a.label(end)
    a("s_endpgm")
    return kn, 128, 256, 512, 8192

def k_res(a, name, K, xoff, ldx, wp, resp, resoff, gate_idx, outp, outoff, stats):
    g = Gemm(name, 128, 64, K, 32, 4, 1, ldx, 2048, 256)
    g.colbytes = 128
    RX = g.CFREE; GA = RX + 16
    def setup(a):
        xw_srds(a, g, P_WS, xoff, wp, 0, K * 2048)
        a("s_lshl_b32 s6, s4, 18"); a("s_lshl_b32 s7, s5, 7"); a("s_add_u32 s6, s6, s7")
        a("s_sub_u32 s7, %d, s6" % (2048 * 2048))
        if resoff:
            a("s_add_u32 s32, s6, %s" % hex(resoff)); srd(a, 16, resp, "s32", "s7")
        else:
            srd(a, 16, resp, "s6", "s7")
        if outoff:
            a("s_add_u32 s32, s6, %s" % hex(outoff)); srd(a, 20, outp, "s32", "s7")
        else:
            srd(a, 20, outp, "s6", "s7")
        a("s_lshl_b32 s6, s5, 8"); a("s_add_u32 s6, s6, %d" % (WS_MOD + gate_idx * 4096))
        srd(a, 24, P_WS, "s6", 256)
        srd(a, 28, P_WS, WS_SUM2, 16384)
    def cpro(a):
        a("v_and_b32 v4, 31, v1"); a("v_add_u32 v4, s34, v4")
        a("v_lshrrev_b32 v5, 5, v1")
        a("v_lshlrev_b32 v6, 11, v4"); a("v_lshl_add_u32 v6, v5, 4, v6")
        a("v_lshlrev_b32 v7, 5, v5")
        for i in range(2):
            for p in range(2):
                a("buffer_load_dwordx4 %s, v6, s[16:19], 0 offen offset:%d" % (vr(RX + (i * 2 + p) * 4, 4), i * 64 + p * 32))
        for i in range(2):
            for p in range(2):
                for h in range(2):
                    a("buffer_load_dwordx4 %s, v7, s[24:27], 0 offen offset:%d" % (vr(GA + ((i * 2 + p) * 2 + h) * 4, 4), i * 128 + p * 64 + h * 16))
        a("s_lshl_b32 s6, s4, 7")
        a("v_add_u32 v8, s6, v4"); a("v_lshl_add_u32 v8, v5, 11, v8"); a("v_lshlrev_b32 v8, 2, v8")
    def lpro(a):
        g.loader_issue_first(a)
    def epi(a):
        a("s_waitcnt vmcnt(0)")
        a("s_nop 8")
        T = g.FR
        for i in range(2):
            A = g.acc(i, 0)
            for e in range(8):
                unpack2(a, T + 2 * e, RX + i * 8 + e)
            for e in range(8):
                a("v_pk_fma_f32 %s, %s, %s, %s" % (vr(A + 2 * e, 2), vr(A + 2 * e, 2), vr(GA + i * 16 + 2 * e, 2), vr(T + 2 * e, 2)))
            for e in range(8):
                a("v_cvt_pk_bf16_f32 v%d, v%d, v%d" % (RX + i * 8 + e, A + 2 * e, A + 2 * e + 1))
            for p in range(2):
                a("buffer_store_dwordx4 %s, v6, s[20:23], 0 offen offset:%d" % (vr(RX + (i * 2 + p) * 4, 4), i * 64 + p * 32))
        if stats:
            A = g.ACC
            for e in range(16):
                unpack2(a, A + 2 * e, RX + e)
            a("v_pk_add_f32 v[10:11], %s, %s" % (vr(A, 2), vr(A + 2, 2)))
            a("v_pk_mul_f32 v[12:13], %s, %s" % (vr(A, 2), vr(A, 2)))
            a("v_pk_fma_f32 v[12:13], %s, %s, v[12:13]" % (vr(A + 2, 2), vr(A + 2, 2)))
            for e in range(2, 16):
                a("v_pk_add_f32 v[10:11], v[10:11], %s" % vr(A + 2 * e, 2))
                a("v_pk_fma_f32 v[12:13], %s, %s, v[12:13]" % (vr(A + 2 * e, 2), vr(A + 2 * e, 2)))
            a("v_add_f32 v10, v10, v11"); a("v_add_f32 v12, v12, v13")
            a("s_nop 1")
            a("v_permlane32_swap_b32 v10, v12")
            a("v_add_f32 v10, v10, v12")
            a("buffer_atomic_add_f32 v10, v8, s[28:31], 0 offen")
    kn = g.emit(a, tilemap_16x16_r4c8, setup, cpro, lpro, epi)
    return kn, 256, 256, 512, g.LDS_MAIN

def k4(a):
    g = Gemm("k4", 128, 224, 1024, 16, 2, 2, 2048, 7168, 256)
    g.colbytes = 448
    TAB = g.LDS_MAIN
    lds = TAB + 8192
    add_ln_xform(g, TAB)
    def setup(a):
        xw_srds(a, g, P_WS, WS_X1, P_WIN, 0, 1024 * 7168)
        srd(a, 16, P_WS, WS_MOD, 6144 * 4)
        srd(a, 20, P_WS, WS_SUM2, 16384)
        a("s_and_b32 s6, s5, 7"); a("s_mul_i32 s6, s6, 448")
        a("s_mul_i32 s7, s4, %d" % (128 * 3584)); a("s_add_u32 s6, s6, s7")
        a("s_sub_u32 s7, %d, s6" % (2048 * 3584))
        a("s_lshr_b32 s32, s5, 3"); a("s_mul_i32 s32, s32, %s" % hex(WS_Z2 - WS_Z1)); a("s_add_u32 s6, s6, s32")
        a("s_add_u32 s6, s6, %s" % hex(WS_Z1))
        srd(a, 24, P_WS, "s6", "s7")
        srd(a, 28, P_WS, WS_SUM3, 16384)
    def cpro(a):
        build_coef_table(a, g, 4, 3)
        a("s_waitcnt lgkmcnt(0)")
        a("s_barrier")
    def lpro(a):
        R = g.ln_regs()
        a("v_bfe_u32 v3, v0, 3, 5")
        a("s_lshl_b32 s6, s4, 7")
        a("v_add_u32 v3, s6, v3")
        a("v_lshlrev_b32 v3, 2, v3")
        a("s_mov_b32 s6, 8192")
        for i in range(4):
            a("buffer_load_dword v%d, v3, s[20:23], 0 offen offset:%d" % (R["T"] + 2 * i, i * 128))
            a("buffer_load_dword v%d, v3, s[20:23], s6 offen offset:%d" % (R["T"] + 2 * i + 1, i * 128))
        g.loader_issue_first(a)
        a("v_and_b32 v2, 7, v0")
        a("v_lshlrev_b32 v%d, 6, v2" % R["TA"])
        a("v_add_u32 v%d, %d, v%d" % (R["TA"], TAB, R["TA"]))
        a("s_waitcnt vmcnt(%d)" % (g.D * g.L))
        for i in range(4):
            stats_from_sums(a, R["T"] + 2 * i, R["T"] + 2 * i + 1, R["ST"] + 2 * i, 1024, R["O"])
        a("s_barrier")
        g.coef_reads(a)
        a("s_waitcnt lgkmcnt(0)")
    def epi(a):
        K1 = 2.0 * math.sqrt(2.0 / math.pi) * LOG2E
        a("s_mov_b32 s70, %s" % hex(f32bits(-K1 * 0.044715))); a("s_mov_b32 s71, s70")
        a("v_mov_b32 v10, %s" % hex(f32bits(-K1))); a("v_mov_b32 v11, v10")
        a("v_mov_b32 v12, 1.0"); a("v_mov_b32 v13, 1.0")
        a("v_and_b32 v4, 15, v1"); a("v_add_u32 v4, s34, v4")
        a("s_mov_b32 s6, 3584"); a("v_mul_lo_u32 v4, s6, v4")
        a("s_lshl_b32 s6, s35, 1"); a("v_add_u32 v4, s6, v4")
        a("v_lshrrev_b32 v5, 4, v1")
        a("v_lshl_add_u32 v7, v5, 3, v4")
        a("v_and_b32 v6, 1, v5"); a("v_lshl_add_u32 v6, v6, 5, v4")
        a("v_lshrrev_b32 v5, 1, v5"); a("v_lshl_add_u32 v6, v5, 4, v6")
        T = g.FR
        PK = T + 28
        SM = PK + 16
        zlab = a.newlabel("k4_nostat")
        for j in range(4):
            As = [g.acc(i, j) for i in range(7)]
            for i in range(7):
                for h in range(2):
                    a("v_pk_mul_f32 %s, %s, %s" % (vr(T + 4 * i + 2 * h, 2), vr(As[i] + 2 * h, 2), vr(As[i] + 2 * h, 2)))
            for i in range(7):
                for h in range(2):
                    t = vr(T + 4 * i + 2 * h, 2)
                    a("v_pk_fma_f32 %s, %s, s[70:71], v[10:11]" % (t, t))
            for i in range(7):
                for h in range(2):
                    t = vr(T + 4 * i + 2 * h, 2)
                    a("v_pk_mul_f32 %s, %s, %s" % (t, t, vr(As[i] + 2 * h, 2)))
            for e in range(28): a("v_exp_f32 v%d, v%d" % (T + e, T + e))
            for e in range(14): a("v_pk_add_f32 %s, %s, v[12:13]" % (vr(T + 2 * e, 2), vr(T + 2 * e, 2)))
            for e in range(28): a("v_rcp_f32 v%d, v%d" % (T + e, T + e))
            for i in range(7):
                for h in range(2):
                    t = vr(T + 4 * i + 2 * h, 2)
                    a("v_pk_mul_f32 %s, %s, %s" % (t, t, vr(As[i] + 2 * h, 2)))
            for i in range(7):
                dst = As[i - (i & 1)] + 2 * (i & 1)
                for h in range(2):
                    a("v_cvt_pk_bf16_f32 v%d, v%d, v%d" % (dst + h, T + 4 * i + 2 * h, T + 4 * i + 2 * h + 1))
            for i in range(7):
                dst = As[i - (i & 1)] + 2 * (i & 1)
                for h in range(2):
                    unpack2(a, T + 4 * i + 2 * h, dst + h)
            s, q = SM + 4 * j, SM + 4 * j + 2
            a("v_pk_add_f32 %s, %s, %s" % (vr(s, 2), vr(T, 2), vr(T + 2, 2)))
            a("v_pk_mul_f32 %s, %s, %s" % (vr(q, 2), vr(T, 2), vr(T, 2)))
            a("v_pk_fma_f32 %s, %s, %s, %s" % (vr(q, 2), vr(T + 2, 2), vr(T + 2, 2), vr(q, 2)))
            for e in range(2, 14):
                a("v_pk_add_f32 %s, %s, %s" % (vr(s, 2), vr(s, 2), vr(T + 2 * e, 2)))
                a("v_pk_fma_f32 %s, %s, %s, %s" % (vr(q, 2), vr(T + 2 * e, 2), vr(T + 2 * e, 2), vr(q, 2)))
            a("s_mov_b32 s6, %d" % (j * 16 * 3584))
            for p in range(3):
                b = As[2 * p]
                a("v_permlane16_swap_b32 v%d, v%d" % (b, b + 2))
                a("v_permlane16_swap_b32 v%d, v%d" % (b + 1, b + 3))
            for p in range(3):
                a("buffer_store_dwordx4 %s, v6, s[24:27], s6 offen offset:%d" % (vr(As[2 * p], 4), p * 64))
            a("buffer_store_dwordx2 %s, v7, s[24:27], s6 offen offset:192" % vr(As[6], 2))
        a("s_cmp_lt_u32 s5, 8")
        a("s_cbranch_scc1 %s" % zlab)
        for j in range(4):
            s, q = SM + 4 * j, SM + 4 * j + 2
            a("v_add_f32 v%d, v%d, v%d" % (s, s, s + 1)); a("v_add_f32 v%d, v%d, v%d" % (q, q, q + 1))
        a("s_nop 1")
        for j in range(4):
            a("v_permlane32_swap_b32 v%d, v%d" % (SM + 4 * j, SM + 4 * j + 2))
        for j in range(4):
            a("v_add_f32 v%d, v%d, v%d" % (SM + 4 * j, SM + 4 * j, SM + 4 * j + 2))
        a("s_nop 1")
        for jp in range(2):
            a("v_permlane16_swap_b32 v%d, v%d" % (SM + 8 * jp, SM + 8 * jp + 4))
        for jp in range(2):
            a("v_add_f32 v%d, v%d, v%d" % (SM + 8 * jp, SM + 8 * jp, SM + 8 * jp + 4))
        a("s_lshl_b32 s6, s4, 7"); a("s_add_u32 s6, s6, s34")
        a("v_and_b32 v4, 31, v1"); a("v_add_u32 v4, s6, v4")
        a("v_lshrrev_b32 v5, 5, v1"); a("v_lshl_add_u32 v4, v5, 11, v4"); a("v_lshlrev_b32 v4, 2, v4")
        for jp in range(2):
            a("buffer_atomic_add_f32 v%d, v4, s[28:31], 0 offen offset:%d" % (SM + 8 * jp, jp * 128))
        a.label(zlab)
    old_main = g.compute_main
    def cm(a):
        old_main(a)
        a("s_nop 8")
    g.compute_main = cm
    kn = g.emit(a, tilemap_16x16_r8c4, setup, cpro, lpro, epi)
    return kn, 256, 256, 512, lds

def k5(a):
    g = Gemm("k5", 128, 128, 2048, 32, 2, 2, 4096, 3584, 224)
    g.colbytes = 256
    TAB = g.LDS_MAIN
    lds = TAB + 16384
    Z1 = g.CFREE; BS = Z1 + 32
    def regs():
        b = g.LT
        return dict(ST=b, T=b + 4, O=b + 12, TA=b + 20)
    def st_reads(a):
        R = regs()
        for hh in range(2):
            a("ds_read_b64 %s, v%d offset:%d" % (vr(R["ST"] + 2 * hh, 2), R["TA"], hh * 64))
        a("v_add_u32 v%d, 512, v%d" % (R["TA"], R["TA"]))
    cnt = [0]
    def wform(a, ld, src, j):
        R = regs()
        st = R["ST"] + 2 * ld["hh"]
        o = R["O"] + 4 * (cnt[0] & 1); cnt[0] += 1
        for d in range(4):
            unpack2(a, R["T"] + 2 * d, src + d)
        for d in range(4):
            t = vr(R["T"] + 2 * d, 2)
            a("v_pk_fma_f32 %s, %s, %s, %s op_sel:[0,0,1] op_sel_hi:[1,0,1]" % (t, t, vr(st, 2), vr(st, 2)))
        for d in range(4):
            a("v_cvt_pk_bf16_f32 v%d, v%d, v%d" % (o + d, R["T"] + 2 * d, R["T"] + 2 * d + 1))
        return o
    def after(a, ld, i):
        if i == g.L - 1:
            st_reads(a)
    g.wform = wform
    g.after_load = after
    def setup(a):
        xw_srds(a, g, P_WSP, 0, P_WS, WS_Z2, 2048 * 3584)
        srd(a, 16, P_WS, WS_SUM3, 16384)
        a("s_mul_i32 s6, s4, %d" % (128 * 3584)); a("s_lshl_b32 s7, s5, 8"); a("s_add_u32 s6, s6, s7")
        a("s_sub_u32 s7, %d, s6" % (2048 * 3584))
        a("s_add_u32 s32, s6, %s" % hex(WS_Z1)); srd(a, 20, P_WS, "s32", "s7")
        a("s_add_u32 s32, s6, %s" % hex(WS_U)); srd(a, 24, P_WS, "s32", "s7")
        a("s_lshl_b32 s6, s4, 8")
        srd(a, 28, P_BSP, "s6", 256)
    def cpro(a):
        a("v_lshlrev_b32 v4, 5, v0")
        a("s_mov_b32 s6, 8192")
        a("buffer_load_dwordx4 v[16:19], v4, s[16:19], 0 offen")
        a("buffer_load_dwordx4 v[20:23], v4, s[16:19], 0 offen offset:16")
        a("buffer_load_dwordx4 v[24:27], v4, s[16:19], s6 offen")
        a("buffer_load_dwordx4 v[28:31], v4, s[16:19], s6 offen offset:16")
        a("v_and_b32 v4, 31, v1"); a("v_add_u32 v4, s34, v4")
        a("v_lshlrev_b32 v7, 1, v4")
        a("s_mov_b32 s6, 3584"); a("v_mul_lo_u32 v6, s6, v4")
        a("v_lshrrev_b32 v5, 5, v1"); a("v_lshl_add_u32 v6, v5, 4, v6")
        a("s_lshl_b32 s6, s35, 1"); a("v_add_u32 v6, s6, v6")
        a("s_mov_b32 s32, %d" % (32 * 3584))
        for j in range(2):
            a("buffer_load_ushort v%d, v7, s[28:31], 0 offen offset:%d" % (BS + 2 * j, j * 64))
        for j in range(2):
            for i in range(2):
                for p in range(2):
                    a("buffer_load_dwordx4 %s, v6, s[20:23], %s offen offset:%d" % (vr(Z1 + ((j * 2 + i) * 2 + p) * 4, 4), "s32" if j else "0", i * 64 + p * 32))
        a("s_waitcnt vmcnt(10)")
        for e in range(8):
            stats_from_sums(a, 16 + e, 24 + e, 32 + 2 * e, 1792, 8)
        a("v_lshlrev_b32 v4, 6, v0")
        a("v_add_u32 v4, %d, v4" % TAB)
        for q in range(4):
            a("ds_write_b128 v4, %s offset:%d" % (vr(32 + 4 * q, 4), 16 * q))
        a("s_waitcnt lgkmcnt(0)")
        a("s_barrier")
    def lpro(a):
        R = regs()
        g.loader_issue_first(a)
        a("v_lshlrev_b32 v%d, 3, v%d" % (R["TA"], g.vWrow))
        a("v_add_u32 v%d, %d, v%d" % (R["TA"], TAB, R["TA"]))
        a("s_barrier")
        st_reads(a)
        a("s_waitcnt lgkmcnt(0)")
    def epi(a):
        a("s_waitcnt vmcnt(0)")
        for j in range(2): a("v_lshlrev_b32 v%d, 16, v%d" % (BS + 2 * j, BS + 2 * j))
        a("s_nop 8")
        T = g.FR
        for j in range(2):
            for i in range(2):
                A = g.acc(i, j); z = Z1 + (j * 2 + i) * 8
                for e in range(8):
                    unpack2(a, T + 2 * e, z + e)
                for e in range(8):
                    a("v_pk_add_f32 %s, %s, %s op_sel_hi:[1,0]" % (vr(A + 2 * e, 2), vr(A + 2 * e, 2), vr(BS + 2 * j, 2)))
                for e in range(8):
                    a("v_pk_mul_f32 %s, %s, %s" % (vr(A + 2 * e, 2), vr(A + 2 * e, 2), vr(T + 2 * e, 2)))
                for e in range(8):
                    a("v_cvt_pk_bf16_f32 v%d, v%d, v%d" % (z + e, A + 2 * e, A + 2 * e + 1))
                for p in range(2):
                    a("buffer_store_dwordx4 %s, v6, s[24:27], %s offen offset:%d" % (vr(z + 4 * p, 4), "s32" if j else "0", i * 64 + p * 32))
    kn = g.emit(a, tilemap_16x14, setup, cpro, lpro, epi)
    return kn, 256, 224, 512, lds

def build(path, order=None):
    a = Asm()
    ks = {}
    ks["k0"] = k0(a)
    ks["k2"] = k2(a)
    ks["k2b"] = k2b(a)
    ks["k3"] = k_res(a, "k3", 1024, WS_O, 2048, P_WO, P_X, 0, 2, P_WS, WS_X1, True)
    ks["k4"] = k4(a)
    ks["k5"] = k5(a)
    ks["k6"] = k_res(a, "k6", 1792, WS_U, 3584, P_WOUT, P_WS, WS_X1, 5, P_OUT, 0, False)
    order = order or ["k0", "k2", "k2b", "k3", "k4", "k5", "k6"]
    ref = open("cdna_kernels/%s.s.ref" % NAME).read().split("\n")
    head = [l for l in ref if l.startswith(";") and "@launch" not in l and "Override" not in l and "grid=ceil" not in l]
    head = head[:15]
    out = list(head)
    for k in order:
        kn, vg, grid, blk, lds = ks[k]
        out.append("; @launch kernel=%s grid=(%d,1,1) block=(%d,1,1) lds=%d" % (kn, grid, blk, lds))
    out.append('.amdgcn_target "amdgcn-amd-amdhsa--gfx950"')
    out.append(".text")
    out += a.lines
    out.append('.section .rodata,"a"')
    for k, (kn, vg, grid, blk, lds) in ks.items():
        out.append(kernel_desc(kn, vg))
    open(path, "w").write("\n".join(out) + "\n")

if __name__ == "__main__":
    build(sys.argv[1] if len(sys.argv) > 1 else "cdna_kernels/%s.s" % NAME)
```

```python
from gen2 import *
from kernels import bf16_round, multi_swap_red, multi_dpp_red, stats_from_sums
import kernels as K1

WS_UV = 0x10000
WS_XCH = 0x80000
WS_H1 = 0x3000000
WS_Y = 0x3800000
LP = 4096
CFG = dict(S2=4, S3=4, S4=3, S5=4, S6=4, D=0, F=1, PF=1, ST=0)

WS_MP1 = 0x20000
WS_MP2 = 0x30000
WS_XE = 0x40000

def sum8(a, b):
    a("v_add_f32 v%d, v%d, v%d" % (b, b, b + 1)); a("v_add_f32 v%d, v%d, v%d" % (b + 2, b + 2, b + 3))
    a("v_add_f32 v%d, v%d, v%d" % (b + 4, b + 4, b + 5)); a("v_add_f32 v%d, v%d, v%d" % (b + 6, b + 6, b + 7))
    a("v_add_f32 v%d, v%d, v%d" % (b, b, b + 2)); a("v_add_f32 v%d, v%d, v%d" % (b + 4, b + 4, b + 6))
    a("v_add_f32 v%d, v%d, v%d" % (b, b, b + 4))

class ModTile:
    def __init__(self, n, base, wsrd, csrd, sbase):
        self.n = n; self.C = base; self.E = base + n; self.W = (base + 2 * n + 3) // 4 * 4
        self.T = self.W + 4 * n; self.AC = self.T + 8; self.vo = self.AC + 8; self.end = self.vo + 2
        self.wsrd, self.csrd, self.sb = wsrd, csrd, sbase
    def issue(self, a, s_row0, s_colb):
        a("v_lshrrev_b32 v%d, 3, v0" % self.vo)
        a("v_add_u32 v%d, %s, v%d" % (self.vo, s_row0, self.vo))
        a("s_movk_i32 s6, 0x3000")
        a("v_mul_lo_u32 v%d, s6, v%d" % (self.vo + 1, self.vo))
        a("v_lshlrev_b32 v%d, 1, v%d" % (self.vo, self.vo))
        a("v_and_b32 v%d, 7, v0" % self.T)
        a("v_lshl_add_u32 v%d, v%d, 4, v%d" % (self.vo + 1, self.T, self.vo + 1))
        for i in range(self.n):
            a("buffer_load_ushort v%d, v%d, %s, 0 offen offset:%d" % (self.C + i, self.vo, sr(self.csrd, 4), 128 * i))
        for i in range(self.n):
            a("s_add_u32 s%d, %s, %d" % (self.sb + i, s_colb, i * 64 * 12288))
            a("buffer_load_dwordx4 %s, v%d, %s, s%d offen" % (vr(self.W + 4 * i, 4), self.vo + 1, sr(self.wsrd, 4), self.sb + i))
        return 2 * self.n
    def compute(self, a, younger, lds):
        n, C, E = self.n, self.C, self.E
        a("s_mov_b32 s6, %s" % hex(f32bits(-LOG2E)))
        a("s_waitcnt vmcnt(%d)" % (n + younger))
        for i in range(n): a("v_lshlrev_b32 v%d, 16, v%d" % (C + i, C + i))
        for i in range(n): a("v_mul_f32 v%d, s6, v%d" % (E + i, C + i))
        for i in range(n): a("v_exp_f32 v%d, v%d" % (E + i, E + i))
        a("s_nop 0")
        for i in range(n): a("v_add_f32 v%d, 1.0, v%d" % (E + i, E + i))
        for i in range(n): a("v_rcp_f32 v%d, v%d" % (E + i, E + i))
        a("s_nop 0")
        for i in range(n): a("v_mul_f32 v%d, v%d, v%d" % (C + i, C + i, E + i))
        for i in range(n): a("v_cvt_pk_bf16_f32 v%d, v%d, v%d" % (C + i, C + i, C + i))
        for i in range(n): a("v_lshlrev_b32 v%d, 16, v%d" % (C + i, C + i))
        for i in range(n):
            a("s_waitcnt vmcnt(%d)" % (n - 1 - i + younger))
            for d in range(4): unpack2(a, self.T + 2 * d, self.W + 4 * i + d)
            for e in range(8):
                if i == 0: a("v_mul_f32 v%d, v%d, v%d" % (self.AC + e, C, self.T + e))
                else: a("v_fmac_f32 v%d, v%d, v%d" % (self.AC + e, C + i, self.T + e))
        xs = list(range(self.AC, self.AC + 8)); ts = list(range(self.T, self.T + 8))
        multi_dpp_red(a, xs, [8])
        multi_swap_red(a, "v_add_f32", 16, xs, ts)
        multi_swap_red(a, "v_add_f32", 32, xs, ts)
        a("s_lshl_b32 s6, s3, 8"); a("s_add_u32 s6, s6, %d" % lds)
        a("v_and_b32 v%d, 7, v0" % self.vo)
        a("v_lshl_add_u32 v%d, v%d, 5, s6" % (self.vo, self.vo))
        a("s_mov_b64 exec, 0xff")
        a("ds_write_b128 v%d, %s" % (self.vo, vr(self.AC, 4)))
        a("ds_write_b128 v%d, %s offset:16" % (self.vo, vr(self.AC + 4, 4)))
        a("s_mov_b64 exec, -1")
    def finish(self, a, lds, osrd, s_off):
        a("v_lshlrev_b32 v%d, 2, v2" % self.vo)
        for w in range(8): a("ds_read_b32 v%d, v%d offset:%d" % (self.T + w, self.vo, lds + 256 * w))
        a("s_waitcnt lgkmcnt(0)")
        sum8(a, self.T)
        a("buffer_store_dword v%d, v%d, %s, %s offen" % (self.T, self.vo, sr(osrd, 4), s_off))

def k0(a):
    kn = "k0_kernel"
    kernel_head(a, kn)
    end = a.newlabel("k0_end")
    a("s_cmp_ge_u32 s2, 256")
    a("s_cbranch_scc1 %s" % end)
    load_kernargs(a)
    a("v_lshrrev_b32 v1, 6, v0")
    a("v_and_b32 v2, 63, v0")
    a("v_readfirstlane_b32 s3, v1")
    a("s_and_b32 s4, s2, 31"); a("s_lshl_b32 s4, s4, 7")
    a("s_lshr_b32 s5, s2, 5"); a("s_lshl_b32 s5, s5, 7")
    a("v_lshlrev_b32 v3, 4, v2")
    a("s_lshl_b32 s7, s2, 3"); a("s_add_u32 s7, s7, s3")
    a("s_lshl_b32 s32, s7, 11")
    a("s_waitcnt lgkmcnt(0)")
    srd(a, 8, P_WMOD, 0, 1024 * 6144 * 2)
    srd(a, 12, P_C, 0, 2048)
    srd(a, 16, P_X, 0, 2048 * 2048)
    mt = ModTile(2, 72, 8, 12, 20)
    mt.issue(a, "s5", "s4")
    a("buffer_load_dwordx4 v[8:11], v3, s[16:19], s32 offen")
    a("buffer_load_dwordx4 v[12:15], v3, s[16:19], s32 offen offset:1024")
    y = 2
    if CFG["PF"]:
        a("v_lshlrev_b32 v4, 7, v0")
        touch(a, P_WQKV, 24576, "s2", 4, 24, 5); y += 1
    a("s_lshl_b32 s6, s2, 10"); a("s_add_u32 s6, s6, %s" % hex(WS_XCH))
    srd(a, 28, P_WS, "s6", 1024)
    a("v_lshlrev_b32 v4, 4, v0")
    for e in range(4): a("v_mov_b32 v%d, -1" % (64 + e))
    a("buffer_store_dwordx4 v[64:67], v4, s[28:31], 0 offen")
    a("s_mul_i32 s6, s2, 192"); a("s_add_u32 s6, s6, %s" % hex(WS_SUM2))
    srd(a, 64, P_WS, "s6", 192)
    for e in range(4): a("v_mov_b32 v%d, 0" % (68 + e))
    a("buffer_store_dwordx4 v[68:71], v4, s[64:67], 0 offen")
    y += 2
    srd(a, 68, P_WS, WS_MP1, 65536)
    srd(a, 72, P_WS, WS_ST1, 16384)
    mt.compute(a, y, 0)
    a("s_waitcnt lgkmcnt(0)")
    a("s_barrier")
    nf = a.newlabel("k0_nf")
    a("s_cmp_lg_u32 s3, 0")
    a("s_cbranch_scc1 %s" % nf)
    a("s_lshl_b32 s5, s5, 6"); a("s_lshl_b32 s4, s4, 1"); a("s_add_u32 s4, s4, s5")
    mt.finish(a, 0, 68, "s4")
    a.label(nf)
    a("s_waitcnt vmcnt(%d)" % (y - 2))
    U = 16
    for d in range(8): unpack2(a, U + 2 * d, 8 + d)
    a("v_pk_add_f32 v[64:65], %s, %s" % (vr(U, 2), vr(U + 2, 2)))
    a("v_pk_add_f32 v[66:67], %s, %s" % (vr(U + 4, 2), vr(U + 6, 2)))
    a("v_pk_add_f32 v[68:69], %s, %s" % (vr(U + 8, 2), vr(U + 10, 2)))
    a("v_pk_add_f32 v[70:71], %s, %s" % (vr(U + 12, 2), vr(U + 14, 2)))
    a("v_pk_add_f32 v[64:65], v[64:65], v[66:67]")
    a("v_pk_add_f32 v[68:69], v[68:69], v[70:71]")
    a("v_pk_add_f32 v[64:65], v[64:65], v[68:69]")
    a("v_add_f32 v64, v64, v65")
    multi_dpp_red(a, [64], [1, 2, 4, 8])
    multi_swap_red(a, "v_add_f32", 16, [64], [65])
    multi_swap_red(a, "v_add_f32", 32, [64], [65])
    a("s_mov_b32 s6, %s" % hex(f32bits(1.0 / 1024)))
    a("v_mul_f32 v64, s6, v64")
    for k in range(8):
        b = U + 2 * k
        a("v_pk_add_f32 %s, %s, v[64:65] op_sel_hi:[1,0] neg_lo:[0,1] neg_hi:[0,1]" % (vr(b, 2), vr(b, 2)))
    a("v_pk_mul_f32 v[66:67], %s, %s" % (vr(U, 2), vr(U, 2)))
    a("v_pk_mul_f32 v[68:69], %s, %s" % (vr(U + 2, 2), vr(U + 2, 2)))
    for k in range(2, 8):
        t = 66 + 2 * (k & 1)
        a("v_pk_fma_f32 %s, %s, %s, %s" % (vr(t, 2), vr(U + 2 * k, 2), vr(U + 2 * k, 2), vr(t, 2)))
    a("v_pk_add_f32 v[66:67], v[66:67], v[68:69]")
    a("v_add_f32 v66, v66, v67")
    multi_dpp_red(a, [66], [1, 2, 4, 8])
    multi_swap_red(a, "v_add_f32", 16, [66], [67])
    multi_swap_red(a, "v_add_f32", 32, [66], [67])
    a("v_mov_b32 v6, %s" % hex(f32bits(1e-5)))
    a("v_fma_f32 v66, v66, s6, v6")
    a("v_rsq_f32 v66, v66")
    a("s_lshl_b32 s7, s7, 3")
    a("v_mov_b32 v6, 0")
    a("v_mul_f32 v67, -v64, v66")
    a("s_mov_b64 exec, 1")
    a("buffer_store_dwordx2 v[66:67], v6, s[72:75], s7 offen")
    a("s_waitcnt vmcnt(0)")
    a.label(end)
    a("s_endpgm")
    return kn, mt.end, 256, 512, 2048

def k1(a):
    kn = "k1_kernel"
    kernel_head(a, kn)
    end = a.newlabel("k1_end")
    a("s_cmp_ge_u32 s2, 256")
    a("s_cbranch_scc1 %s" % end)
    load_kernargs(a)
    a("v_lshrrev_b32 v1, 6, v0")
    a("v_and_b32 v2, 63, v0")
    a("v_readfirstlane_b32 s3, v1")
    a("s_and_b32 s4, s2, 1"); a("s_lshl_b32 s4, s4, 3"); a("s_bfe_u32 s5, s2, 0x30001"); a("s_add_u32 s4, s4, s5")
    a("s_lshr_b32 s5, s2, 4")
    a("v_lshrrev_b32 v3, 3, v0")
    a("v_and_b32 v4, 7, v0")
    a("v_lshlrev_b32 v5, 11, v3"); a("v_lshl_add_u32 v5, v4, 4, v5")
    a("v_lshlrev_b32 v6, 3, v3")
    a("v_lshlrev_b32 v7, 2, v2"); a("v_lshl_add_u32 v7, v1, 12, v7")
    a("s_lshl_b32 s6, s4, 18"); a("s_lshl_b32 s7, s5, 7"); a("s_add_u32 s32, s6, s7")
    a("s_lshl_b32 s33, s5, 8"); a("s_add_u32 s33, s33, %s" % hex(WS_MP1))
    a("s_lshl_b32 s34, s4, 10"); a("s_add_u32 s34, s34, %s" % hex(WS_ST1))
    a("s_waitcnt lgkmcnt(0)")
    srd(a, 16, P_WS, "s33", 65536)
    srd(a, 8, P_X, "s32", 128 * 2048)
    srd(a, 12, P_WS, "s34", 1024)
    nc = a.newlabel("k1_nc")
    a("s_cmp_ge_u32 s3, 2")
    a("s_cbranch_scc1 %s" % nc)
    for p in range(8):
        a("s_mov_b32 s%d, %d" % (64 + p, p * 8192))
        a("buffer_load_dword v%d, v7, s[16:19], s%d offen" % (32 + p, 64 + p))
    a.label(nc)
    a("s_mov_b32 s6, %d" % (64 * 2048))
    a("buffer_load_dwordx4 v[8:11], v5, s[8:11], 0 offen")
    a("buffer_load_dwordx4 v[12:15], v5, s[8:11], s6 offen")
    a("buffer_load_dwordx2 v[16:17], v6, s[12:15], 0 offen")
    a("buffer_load_dwordx2 v[18:19], v6, s[12:15], 0 offen offset:512")
    srd(a, 20, P_WMOD, 0, 1024 * 6144 * 2)
    srd(a, 24, P_C, 0, 2048)
    a("s_and_b32 s35, s2, 63"); a("s_lshl_b32 s35, s35, 7"); a("s_add_u32 s7, s35, 4096")
    a("s_lshr_b32 s33, s2, 6"); a("s_lshl_b32 s33, s33, 8")
    mt = ModTile(4, 72, 20, 24, 72)
    y = mt.issue(a, "s33", "s7")
    s_lmap(a, 32, 5, 6, False)
    a("s_lshl_b32 s6, s4, 19"); a("s_add_u32 s32, s32, s6")
    a("s_add_u32 s32, s32, %s" % hex(WS_H1))
    srd(a, 28, P_WS, "s32", 128 * LP)
    a("v_lshlrev_b32 v3, 12, v3"); a("v_lshl_add_u32 v3, v4, 4, v3")
    nc2 = a.newlabel("k1_nc2")
    a("s_cmp_ge_u32 s3, 2")
    a("s_cbranch_scc1 %s" % nc2)
    a("s_waitcnt vmcnt(%d)" % (4 + y))
    sum8(a, 32)
    bf16_round(a, 32, 32)
    a("s_cmp_eq_u32 s3, 1"); a("s_cselect_b32 s6, 1.0, 0")
    a("v_add_f32 v32, s6, v32")
    bf16_round(a, 32, 32)
    a("v_lshlrev_b32 v7, 2, v0")
    a("ds_write_b32 v7, v32 offset:2048")
    a("s_waitcnt lgkmcnt(0)")
    a.label(nc2)
    a("s_barrier")
    a("v_lshlrev_b32 v7, 5, v4")
    SA = 32; CA = 40; U = 48
    a("ds_read_b128 %s, v7 offset:2048" % vr(SA, 4)); a("ds_read_b128 %s, v7 offset:2064" % vr(SA + 4, 4))
    a("ds_read_b128 %s, v7 offset:2304" % vr(CA, 4)); a("ds_read_b128 %s, v7 offset:2320" % vr(CA + 4, 4))
    a("s_waitcnt vmcnt(%d)" % y)
    for d in range(8): unpack2(a, U + 2 * d, 8 + d)
    for d in range(8):
        t = vr(U + 2 * d, 2); st = vr(16 + 2 * (d >> 2), 2)
        a("v_pk_fma_f32 %s, %s, %s, %s op_sel:[0,0,1] op_sel_hi:[1,0,1]" % (t, t, st, st))
    a("s_waitcnt lgkmcnt(0)")
    for d in range(8):
        t = vr(U + 2 * d, 2)
        a("v_pk_fma_f32 %s, %s, %s, %s" % (t, t, vr(CA + 2 * (d & 3), 2), vr(SA + 2 * (d & 3), 2)))
    for d in range(8): a("v_cvt_pk_bf16_f32 v%d, v%d, v%d" % (8 + d, U + 2 * d, U + 2 * d + 1))
    a("s_mov_b32 s6, %d" % (64 * LP))
    a("buffer_store_dwordx4 v[8:11], v3, s[28:31], 0 offen")
    a("buffer_store_dwordx4 v[12:15], v3, s[28:31], s6 offen")
    mt.compute(a, 2, 0)
    srd(a, 16, P_WS, WS_MP2, 65536)
    a("s_waitcnt lgkmcnt(0)")
    a("s_barrier")
    a("s_cmp_lg_u32 s3, 0")
    a("s_cbranch_scc1 %s" % end)
    a("s_lshl_b32 s33, s33, 6"); a("s_lshl_b32 s35, s35, 1"); a("s_add_u32 s33, s33, s35")
    mt.finish(a, 0, 16, "s33")
    a("s_endpgm")
    a.label(end)
    a("s_endpgm")
    return kn, mt.end, 256, 512, 4096

def k2(a):
    g = Gemm2("k2", 128, 1024, 32, 2, 2, LP, 6144, 256, CFG["S2"],
              [(8, [(0, 0)]), (8, [(0, 2048)]), (8, [(0, 4096)])])
    lds = max(g.LDS_MAIN, 65536)
    g.xskip = True
    WF = g.CFREE
    TR = WF + 8
    RAW = WF + 12
    g.pf = dict(R=8, C=4, T=[0, 2048, 4096], D=CFG["D"], first=CFG["F"])
    def setup(a):
        xw_srds2(a, g, P_WS, WS_H1, P_WQKV, 0, 1024 * 6144, 128)
        a("s_lshl_b32 s6, s5, 12")
        srd(a, 24, P_WPHI, "s6", 4096)
    def cpro(a):
        a("v_and_b32 v10, 0x13, v1")
        a("v_bfe_u32 v11, v1, 2, 1"); a("v_lshl_add_u32 v10, v11, 3, v10")
        a("v_bfe_u32 v11, v1, 3, 1"); a("v_lshl_add_u32 v10, v11, 2, v10")
        a("v_lshlrev_b32 v10, 1, v10")
        a("v_lshrrev_b32 v11, 5, v1"); a("v_lshl_add_u32 v10, v11, 9, v10")
        a("s_lshl_b32 s6, s35, 11")
        for t in range(2):
            for e in range(8):
                a("buffer_load_ushort v%d, v10, s[24:27], s6 offen offset:%d" % (RAW + 8 * t + e, (16 * t + e) * 64))
        a("v_bfe_u32 v10, v1, 2, 2")
        a("v_lshrrev_b32 v11, 5, v1")
        a("v_lshl_add_u32 v10, v11, 3, v10")
        a("v_bfe_u32 v11, v1, 4, 1"); a("v_lshlrev_b32 v11, 5, v11")
        a("v_and_b32 v12, 1, v1"); a("v_lshl_add_u32 v11, v12, 4, v11")
        a("v_bfe_u32 v12, v1, 1, 1"); a("v_lshl_add_u32 v11, v12, 3, v11")
        a("v_lshl_add_u32 v%d, v10, 6, v11" % TR)
        a("v_mul_u32_u24 v10, 192, v10")
        a("v_add_u32 v%d, v10, v11" % (TR + 1))
    def lpro(a):
        g.loader_first(a)
    def epi(a):
        PHK = 0; VIM = 2 * 24576
        P = g.FR
        a("s_waitcnt vmcnt(0)")
        for e in range(8):
            a("v_lshl_or_b32 v%d, v%d, 16, v%d" % (WF + e, RAW + 1 + 2 * e, RAW + 2 * e))
        a("s_lshl_b32 s6, s5, 1"); a("s_add_u32 s6, s6, s35")
        a("s_lshl_b32 s7, s6, 18")
        a("s_lshl_b32 s33, s4, 2"); a("s_lshr_b32 s32, s3, 1"); a("s_lshl_b32 s32, s32, 1"); a("s_add_u32 s33, s33, s32")
        a("s_lshl_b32 s33, s33, 12"); a("s_add_u32 s7, s7, s33"); a("s_add_u32 s7, s7, %s" % hex(WS_PHIQ))
        srd(a, 16, P_WS, "s7", 8192)
        a("s_lshl_b32 s7, s6, 4"); a("s_add_u32 s7, s7, s4"); a("s_mul_i32 s7, s7, %d" % KVP_STRIDE)
        a("s_add_u32 s7, s7, %s" % hex(WS_KVP))
        srd(a, 20, P_WS, "s7", KVP_STRIDE)
        a("s_mov_b32 s70, %s" % hex(f32bits(LOG2E))); a("s_mov_b32 s71, s70")
        a("v_and_b32 v4, 31, v1"); a("v_add_u32 v4, s34, v4")
        a("v_lshrrev_b32 v5, 5, v1"); a("v_lshlrev_b32 v5, 4, v5")
        a("s_mul_i32 s32, s35, 24576"); a("s_lshl_b32 s33, s35, 13"); a("s_add_u32 s33, s33, %d" % VIM)
        a("v_mul_u32_u24 v6, 192, v4"); a("v_add3_u32 v6, v6, v5, s32")
        a("v_lshl_add_u32 v7, v4, 6, v5"); a("v_add_u32 v7, s33, v7")
        a("v_lshlrev_b32 v8, 4, v1")
        for i in range(2):
            for j in range(2):
                for e in range(8):
                    A = g.acc(i, j)
                    a("v_cvt_pk_bf16_f32 v%d, v%d, v%d" % (P + (i * 2 + j) * 8 + e, A + 2 * e, A + 2 * e + 1))
        for i in (1, 0):
            for j in range(2):
                A = g.acc(i, j); pk = P + (i * 2 + j) * 8
                a("v_mfma_f32_32x32x16_bf16 %s, %s, %s, 0" % (vr(A, 16), vr(WF, 4), vr(pk, 4)))
                a("v_mfma_f32_32x32x16_bf16 %s, %s, %s, %s" % (vr(A, 16), vr(WF + 4, 4), vr(pk + 4, 4), vr(A, 16)))
        for j in range(2):
            A = g.acc(2, j)
            for e in range(8):
                a("v_cvt_pk_bf16_f32 v%d, v%d, v%d" % (P + 32 + e, A + 2 * e, A + 2 * e + 1))
            for t in range(2):
                a("ds_write_b128 v7, %s offset:%d" % (vr(P + 32 + 4 * t, 4), j * 32 * 64 + t * 32))
            if j == 0: a("s_nop 1")
        EN = g.acc(2, 0)
        for i in (1, 0):
            for j in range(2):
                A = g.acc(i, j); pk = P + (i * 2 + j) * 8
                a("v_max3_f32 v10, v%d, v%d, v%d" % (A, A + 1, A + 2))
                a("v_min3_f32 v12, v%d, v%d, v%d" % (A, A + 1, A + 2))
                for e in range(3, 15, 2):
                    a("v_max3_f32 v10, v10, v%d, v%d" % (A + e, A + e + 1))
                    a("v_min3_f32 v12, v12, v%d, v%d" % (A + e, A + e + 1))
                a("v_max_f32 v10, v10, v%d" % (A + 15))
                a("v_min_f32 v12, v12, v%d" % (A + 15))
                a("v_mov_b32 v11, v10"); a("v_mov_b32 v13, v12")
                a("s_nop 1")
                a("v_permlane32_swap_b32 v10, v11"); a("v_permlane32_swap_b32 v12, v13")
                a("v_max_f32 v10, v10, v11"); a("v_min_f32 v12, v12, v13")
                a("v_mul_f32 v10, s70, v10"); a("v_mul_f32 v12, s70, v12")
                for e in range(8):
                    a("v_pk_fma_f32 %s, %s, s[70:71], v[12:13] op_sel_hi:[1,1,0] neg_lo:[0,1,0] neg_hi:[0,1,0]" % (vr(EN + 2 * e, 2), vr(A + 2 * e, 2)))
                    a("v_pk_fma_f32 %s, %s, s[70:71], v[10:11] op_sel_hi:[1,1,0] neg_lo:[0,0,1] neg_hi:[0,0,1]" % (vr(A + 2 * e, 2), vr(A + 2 * e, 2)))
                for e in range(16):
                    a("v_exp_f32 v%d, v%d" % (A + e, A + e))
                    a("v_exp_f32 v%d, v%d" % (EN + e, EN + e))
                a("v_pk_add_f32 v[10:11], %s, %s" % (vr(A, 2), vr(A + 2, 2)))
                a("v_pk_add_f32 v[12:13], %s, %s" % (vr(EN, 2), vr(EN + 2, 2)))
                for e in range(2, 8):
                    a("v_pk_add_f32 v[10:11], v[10:11], %s" % vr(A + 2 * e, 2))
                    a("v_pk_add_f32 v[12:13], v[12:13], %s" % vr(EN + 2 * e, 2))
                a("v_add_f32 v10, v10, v11"); a("v_add_f32 v12, v12, v13")
                a("v_mov_b32 v11, v10"); a("v_mov_b32 v13, v12")
                a("s_nop 1")
                a("v_permlane32_swap_b32 v10, v11"); a("v_permlane32_swap_b32 v12, v13")
                a("v_add_f32 v10, v10, v11"); a("v_add_f32 v12, v12, v13")
                a("v_rcp_f32 v10, v10"); a("v_rcp_f32 v12, v12")
                a("s_nop 0")
                for e in range(8):
                    a("v_pk_mul_f32 %s, %s, v[10:11] op_sel_hi:[1,0]" % (vr(A + 2 * e, 2), vr(A + 2 * e, 2)))
                    a("v_pk_mul_f32 %s, %s, v[12:13] op_sel_hi:[1,0]" % (vr(EN + 2 * e, 2), vr(EN + 2 * e, 2)))
                for e in range(8):
                    a("v_cvt_pk_bf16_f32 v%d, v%d, v%d" % (pk + e, A + 2 * e, A + 2 * e + 1))
                for e in range(8):
                    a("v_cvt_pk_bf16_f32 v%d, v%d, v%d" % (A + e, EN + 2 * e, EN + 2 * e + 1))
                for q in range(4):
                    src = vr(pk + 4 * q, 4) if q < 2 else vr(A + 4 * (q - 2), 4)
                    if i == 1:
                        a("ds_write_b128 v6, %s offset:%d" % (src, j * 32 * 192 + q * 32))
                    else:
                        a("buffer_store_dwordx4 %s, v%d, s[16:19], 0 offen offset:%d" % (src, 8 + j, q * 1024))
                if i == 1 and j == 1:
                    a("v_add_u32 v9, 4096, v8")
                    g.stamp(a, 3)
                    a("s_waitcnt lgkmcnt(0)")
                    a("s_barrier")
                    g.stamp(a, 4)
        a("s_lshr_b32 s7, s3, 1"); a("s_lshl_b32 s7, s7, 6"); a("s_add_u32 s32, s32, s7")
        a("v_add_u32 v4, s32, v%d" % (TR + 1))
        a("v_add_u32 v5, s33, v%d" % TR)
        KV = g.acc(1, 0); Z = g.acc(1, 1); FA = g.acc(2, 0)
        g.stamp(a, 5)
        if DBG["stamp"]: a("s_waitcnt lgkmcnt(0)")
        ON = 12
        for e in range(4): a("v_mov_b32 v%d, 0x3f803f80" % (ON + e))
        for half in range(2):
            for t in range(4):
                T = half * 4 + t
                for q in range(2):
                    a("ds_read_b64_tr_b16 %s, v4 offset:%d" % (vr(FA + 8 * t + 2 * q, 2), (16 * T + 4 * q) * 192))
                    a("ds_read_b64_tr_b16 %s, v5 offset:%d" % (vr(FA + 8 * t + 4 + 2 * q, 2), (16 * T + 4 * q) * 64))
            for t in range(4):
                a("s_waitcnt lgkmcnt(%d)" % (12 - 4 * t))
                first = half == 0 and t == 0
                a("v_mfma_f32_32x32x16_bf16 %s, %s, %s, %s" % (vr(KV, 16), vr(FA + 8 * t, 4), vr(FA + 8 * t + 4, 4), "0" if first else vr(KV, 16)))
                a("v_mfma_f32_32x32x16_bf16 %s, %s, %s, %s" % (vr(Z, 16), vr(FA + 8 * t, 4), vr(ON, 4), "0" if first else vr(Z, 16)))
        a("s_lshr_b32 s7, s3, 1")
        a("s_lshl_b32 s6, s7, 12")
        a("s_lshl_b32 s7, s7, 7"); a("s_add_u32 s7, s7, 8192")
        a("v_lshrrev_b32 v5, 5, v1"); a("v_lshlrev_b32 v5, 6, v5")
        a("s_nop 10")
        g.stamp(a, 6)
        for q in range(4):
            a("buffer_store_dwordx4 %s, v8, s[20:23], s6 offen offset:%d" % (vr(KV + 4 * q, 4), q * 1024))
        a("s_mov_b32 exec_lo, 1"); a("s_mov_b32 exec_hi, 1")
        for q in range(4):
            a("buffer_store_dwordx4 %s, v5, s[20:23], s7 offen offset:%d" % (vr(Z + 4 * q, 4), q * 16))
    def lepi(a):
        if CFG["PF"]:
            a("v_and_b32 v2, 255, v0"); a("v_lshlrev_b32 v2, 7, v2")
            touch(a, P_WO, 8192, "s2", 2, 8, 60)
            touch(a, P_WIN, 28672, "s2", 2, 12, 61)
            a("s_barrier")
            a("s_waitcnt vmcnt(0)")
    kn = g.emit(a, tilemap_16x16_r8c4, setup, cpro, lpro, epi, lepi)
    return kn, 256, 256, 512, lds

def k2b(a):
    mark = len(a.lines)
    kn, vg, grid, blk, lds = K1.k2b(a)
    fin = a.newlabel("k2b_fin")
    i = next(i for i in range(mark, len(a.lines)) if "s_cbranch_scc1" in a.lines[i])
    endl = a.lines[i].split()[-1]
    a.lines[i] = "    s_cbranch_scc1 %s" % fin
    a.label(fin)
    a("s_cmp_ge_u32 s2, %d" % (256 + 8))
    a("s_cbranch_scc1 %s" % endl)
    load_kernargs(a)
    a("s_mov_b32 s3, 0")
    a("s_sub_u32 s4, s2, 256")
    a("s_lshl_b32 s5, s4, 11")
    a("v_lshlrev_b32 v1, 2, v0"); a("v_add_u32 v1, s5, v1")
    a("s_waitcnt lgkmcnt(0)")
    srd(a, 8, P_WS, WS_MP2, 65536)
    srd(a, 12, P_WS, WS_MOD + 8192, 16384)
    srd(a, 16, P_WS, WS_XE, 4096)
    for p in range(4):
        a("s_mov_b32 s%d, %d" % (20 + p, p * 16384))
        a("buffer_load_dword v%d, v1, s[8:11], s%d offen" % (4 + p, 20 + p))
    a("s_lshr_b32 s5, s4, 1")
    a("s_cmp_eq_u32 s5, 2"); a("s_cselect_b32 s6, 1.0, 0")
    a("s_sub_u32 s7, 2, s5"); a("s_lshl_b32 s7, s7, 11")
    a("s_and_b32 s5, s4, 1"); a("s_lshl_b32 s5, s5, 10"); a("s_add_u32 s7, s7, s5")
    a("v_lshlrev_b32 v2, 1, v0"); a("v_add_u32 v2, s7, v2")
    a("s_waitcnt vmcnt(0)")
    a("v_add_f32 v4, v4, v5"); a("v_add_f32 v6, v6, v7"); a("v_add_f32 v4, v4, v6")
    bf16_round(a, 4, 4)
    a("v_add_f32 v4, s6, v4")
    a("v_cvt_pk_bf16_f32 v4, v4, v4")
    a("buffer_store_short v4, v2, s[16:19], 0 offen")
    a("v_lshlrev_b32 v5, 16, v4")
    a("buffer_store_dword v5, v1, s[12:15], 0 offen")
    a("s_endpgm")
    return kn, vg, 256 + 8, blk, lds

def rm_addr(a, vrow, vld, t):
    a("v_lshrrev_b32 v%d, 3, v1" % t)
    a("s_lshl_b32 s32, s3, 4")
    a("v_add_u32 v%d, s32, v%d" % (vrow, t))
    a("v_and_b32 v%d, 7, v1" % vld)
    a("v_lshlrev_b32 v%d, 1, v%d" % (vld, vld))
    a("v_xor_b32 v%d, v%d, v%d" % (vld, vld, t))
    a("v_lshlrev_b32 v%d, 4, v%d" % (vld, vld))
    a("v_lshl_add_u32 v%d, v%d, 8, v%d" % (vld, vrow, vld))
    a("v_xor_b32 v%d, 16, v%d" % (vld + 1, vld))

def stage32_addr(a, g, SA, t):
    a("v_and_b32 v%d, 31, v1" % t); a("v_add_u32 v%d, s34, v%d" % (t, t))
    a("v_lshrrev_b32 v%d, 5, v1" % SA); a("v_lshlrev_b32 v%d, 1, v%d" % (SA, SA))
    a("v_and_b32 v%d, 7, v1" % (SA + 1)); a("v_xor_b32 v%d, v%d, v%d" % (SA, SA, SA + 1))
    a("v_lshlrev_b32 v%d, 4, v%d" % (SA, SA)); a("v_lshl_add_u32 v%d, v%d, 8, v%d" % (SA, t, SA))
    if g.wgn == 2:
        a("s_lshl_b32 s6, s35, 7"); a("v_add_u32 v%d, s6, v%d" % (SA, SA))
    for k, x in enumerate((16, 64, 80)): a("v_xor_b32 v%d, %d, v%d" % (SA + 1 + k, x, SA))

def stage32(a, SA, tiles):
    a("s_nop 10")
    for A, off in tiles:
        for q in range(4):
            a("ds_write_b128 v%d, %s offset:%d" % (SA + q, vr(A + 4 * q, 4), off))

def compact8(a, dst, vals, vperm, sm):
    a("v_mov_b32 v%d, v%d" % (dst, vals[0]))
    for c in range(1, len(vals)):
        a("s_mov_b32 s%d, %s" % (sm, hex(0x01010101 << c))); a("s_mov_b32 s%d, s%d" % (sm + 1, sm))
        a("v_cndmask_b32 v%d, v%d, v%d, %s" % (dst, dst, vals[c], sr(sm, 2)))
    a("ds_bpermute_b32 v%d, v%d, v%d" % (dst, vperm, dst))

def k_res(a, name, K, xoff, wp, resp, resoff, gate_idx, outp, outoff, stats, S):
    g = Gemm2(name, 128, K, 32, 4, 1, LP, 2048, 256, S, [(8, [(0, 0)])])
    g.xskip = True
    RX = g.CFREE; GA = RX + 8; CB = GA + 8; VO2 = CB + 8; VO4 = VO2 + 1; VLD = VO2 + 2; VAT = VO2 + 4; VPM = VO2 + 5
    F = VO2 + 8; T = F + 16; SA = T + 16
    UVW = g.LDS_MAIN; TB = UVW + 32768
    lds = TB + 2048 if stats else g.LDS_MAIN
    def setup(a):
        xw_srds2(a, g, P_WS, xoff, wp, 0, K * 2048, 128)
        a("s_lshl_b32 s6, s4, 18"); a("s_lshl_b32 s7, s5, 7"); a("s_add_u32 s6, s6, s7")
        a("s_sub_u32 s7, %d, s6" % (2048 * 2048))
        if resoff:
            a("s_add_u32 s32, s6, %s" % hex(resoff)); srd(a, 16, resp, "s32", "s7")
        else:
            srd(a, 16, resp, "s6", "s7")
        if outoff:
            a("s_add_u32 s32, s6, %s" % hex(outoff)); srd(a, 20, outp, "s32", "s7")
        else:
            srd(a, 20, outp, "s6", "s7")
        if stats:
            s_lmap(a, 32, 5, 6, False)
            a("s_lshl_b32 s6, s4, 19"); a("s_add_u32 s32, s32, s6")
            a("s_add_u32 s32, s32, %s" % hex(WS_Y)); srd(a, 72, P_WS, "s32", 128 * LP)
            a("s_lshl_b32 s6, s4, 9"); a("s_add_u32 s6, s6, %s" % hex(WS_SUM2))
            srd(a, 28, P_WS, "s6", 8192 + 512)
        a("s_lshl_b32 s6, s5, 8"); a("s_add_u32 s6, s6, %d" % (WS_MOD + gate_idx * 4096))
        srd(a, 24, P_WS, "s6", 8192 + 256)
        a("s_movk_i32 s96, 0x4000")
        a("s_mov_b32 s97, 0x8000")
        a("s_movk_i32 s98, 0x2000")
    g.pf = None
    def rm_loads(a):
        rm_addr(a, VO4, VLD, 10)
        a("v_and_b32 v11, 7, v1")
        a("v_lshlrev_b32 v12, 5, v11"); a("v_lshlrev_b32 v11, 4, v11")
        a("v_lshl_add_u32 v%d, v%d, 11, v11" % (VO2, VO4))
        a("v_lshl_add_u32 v%d, v%d, 12, v11" % (VO4, VO4))
        a("buffer_load_dwordx4 %s, v%d, s[16:19], 0 offen" % (vr(RX, 4), VO2))
        a("buffer_load_dwordx4 %s, v%d, s[16:19], s96 offen" % (vr(RX + 4, 4), VO2))
        a("buffer_load_dwordx4 %s, v12, s[24:27], 0 offen" % vr(GA, 4))
        a("buffer_load_dwordx4 %s, v12, s[24:27], 0 offen offset:16" % vr(GA + 4, 4))
        if stats:
            a("buffer_load_dwordx4 %s, v12, s[24:27], s98 offen" % vr(CB, 4))
            a("buffer_load_dwordx4 %s, v12, s[24:27], s98 offen offset:16" % vr(CB + 4, 4))
            a("v_and_b32 v11, 7, v1"); a("v_lshlrev_b32 v11, 5, v11"); a("v_lshl_add_u32 v%d, v10, 2, v11" % VPM)
            a("v_and_b32 v11, 15, v1"); a("v_bfe_u32 v10, v1, 4, 1")
            a("s_lshl_b32 s32, s3, 6")
            a("v_lshl_add_u32 v11, v11, 2, s32"); a("v_lshl_add_u32 v%d, v10, 13, v11" % VAT)
            return 6
        return 4
    def cpro(a):
        stage32_addr(a, g, SA, 10)
    g.cpost0 = rm_loads
    def lpro(a):
        g.loader_first(a)
    UB = 144
    def etile(a):
        n = 0
        if stats:
            a("s_lshr_b32 s6, s2, 3")
            a("s_cmp_ge_u32 s6, 14"); a("s_cselect_b32 s7, 14, 0"); a("s_cselect_b32 s32, 1, 0")
            a("s_sub_u32 s7, s6, s7")
            a("s_and_b32 s33, s2, 1"); a("s_lshl_b32 s33, s33, 1"); a("s_add_u32 s32, s32, s33")
            a("s_cmp_ge_u32 s7, 7"); a("s_cselect_b32 s33, 21, 0"); a("s_add_u32 s33, s33, s7")
            a("s_bfe_u32 s6, s2, 0x20001"); a("s_mul_i32 s6, s6, 7"); a("s_add_u32 s33, s33, s6")
            a("s_cmp_lt_u32 s7, 14"); a("s_cselect_b32 s99, -1, 0")
            a("s_lshl_b32 s32, s32, 2"); a("s_add_u32 s32, s32, s34"); a("s_lshl_b32 s32, s32, 6")
            a("s_lshl_b32 s6, s32, 2"); a("s_add_u32 s6, s6, %d" % (WS_MOD + 3 * 4096))
            srd(a, 68, P_WS, "s6", 4096 + 256)
            a("v_lshlrev_b32 v2, 2, v1")
            a("s_movk_i32 s6, 0x1000")
            a("buffer_load_dword v%d, v2, s[68:71], s6 offen" % UB)
            a("buffer_load_dword v%d, v2, s[68:71], 0 offen" % (UB + 1))
            a("s_lshl_b32 s35, s33, 7")
            a("s_mul_i32 s6, s32, 7168"); a("s_add_u32 s6, s6, s35")
            a("s_and_b32 s7, s99, %d" % (64 * 7168))
            srd(a, 8, P_WIN, "s6", "s7")
            a("s_xor_b32 s6, s32, 512"); a("s_mul_i32 s6, s6, 7168"); a("s_add_u32 s6, s6, s35")
            srd(a, 12, P_WIN, "s6", "s7")
            a("v_lshrrev_b32 v2, 3, v1"); a("v_and_b32 v3, 7, v1")
            a("v_bfe_u32 v4, v1, 4, 1"); a("v_lshlrev_b32 v4, 2, v4"); a("v_xor_b32 v3, v3, v4")
            a("v_mul_u32_u24 v2, 7168, v2"); a("v_lshl_add_u32 v2, v3, 4, v2")
            a("s_lshl_b32 s65, s34, 13"); a("s_add_u32 s65, s65, %d" % UVW)
            a("s_mov_b32 s6, 0")
            for i in range(8):
                a("s_add_u32 m0, s65, %d" % (i * 1024))
                if i: a("s_add_u32 s6, s6, %d" % (8 * 7168))
                else: a("s_nop 0")
                a("buffer_load_dwordx4 v2, s[8:11], s6 offen lds")
            n = 10
        n += rm_loads(a)
        if stats:
            a("v_mul_u32_u24 v2, 7168, v1")
            a("buffer_load_dword v255, v2, s[12:15], 0 offen")
            n += 1
        assert n == g.etile_n
    g.etile = etile; g.etile_n = 17 if stats else 4; g.etile_wait = False
    def lepi(a):
        if not stats:
            a("s_waitcnt vmcnt(0)")
            return
        M = UB; AD = UB + 2; AF = UB + 8; BF = AF + 32; D = BF + 32
        a("s_lshl_b32 s6, s34, 9"); a("s_add_u32 s6, s6, %d" % TB)
        a("v_lshl_add_u32 v2, v1, 1, s6")
        a("v_mov_b32 v3, 0")
        a("ds_write_b16 v2, v3 offset:256")
        a("v_and_b32 v4, 31, v1"); a("v_lshrrev_b32 v5, 5, v1"); a("v_lshl_add_u32 v6, v5, 4, s6")
        a("v_min_u32 v7, 2, v4"); a("v_lshl_add_u32 v%d, v7, 7, v6" % AD)
        a("v_subrev_u32 v7, 4, v4"); a("v_min_u32 v7, 2, v7"); a("v_lshl_add_u32 v%d, v7, 7, v6" % (AD + 1))
        a("v_bfe_u32 v10, v1, 2, 2"); a("v_lshl_add_u32 v10, v5, 3, v10")
        a("v_bfe_u32 v11, v1, 4, 1"); a("v_lshlrev_b32 v11, 5, v11")
        a("v_and_b32 v13, 1, v1"); a("v_lshl_add_u32 v11, v13, 4, v11")
        a("v_bfe_u32 v13, v1, 1, 1"); a("v_lshl_add_u32 v11, v13, 3, v11")
        a("v_bfe_u32 v13, v1, 3, 1"); a("v_lshl_add_u32 v11, v13, 6, v11")
        a("v_lshl_add_u32 v11, v10, 7, v11"); a("v_add_u32 v%d, s65, v11" % (AD + 2))
        a("v_xor_b32 v%d, 64, v%d" % (AD + 3, AD + 2))
        a("s_waitcnt vmcnt(15)")
        a("ds_write_b16_d16_hi v2, v%d" % M)
        a("ds_write_b16_d16_hi v2, v%d offset:128" % (M + 1))
        a("v_and_b32 v10, 0x33, v1")
        a("v_bfe_u32 v11, v1, 2, 1"); a("v_lshl_add_u32 v10, v11, 3, v10")
        a("v_bfe_u32 v11, v1, 3, 1"); a("v_lshl_add_u32 v10, v11, 2, v10")
        a("v_lshlrev_b32 v10, 2, v10")
        a("s_lshl_b32 s6, s33, 8"); a("s_add_u32 s6, s6, %s" % hex(WS_UV))
        a("s_and_b32 s7, s99, %d" % (16384 + 256))
        a("s_waitcnt lgkmcnt(0)")
        for s_ in range(4):
            for h in range(2): a("ds_read_b128 %s, v%d offset:%d" % (vr(AF + 8 * s_ + 4 * h, 4), AD + h, 32 * s_))
        a("s_waitcnt vmcnt(7)")
        srd(a, 8, P_WS, "s6", "s7")
        for s_ in range(4):
            for h in range(2):
                for q in range(2):
                    a("ds_read_b64_tr_b16 %s, v%d offset:%d" % (vr(BF + 8 * s_ + 4 * h + 2 * q, 2), AD + 2 + h, (16 * s_ + 4 * q) * 128))
            if s_ == 1: a("s_waitcnt lgkmcnt(8)")
        for k in range(8):
            a("s_waitcnt lgkmcnt(%d)" % max(0, 14 - 2 * k))
            a("v_mfma_f32_32x32x16_bf16 %s, %s, %s, %s" % (vr(D, 16), vr(AF + 4 * k, 4), vr(BF + 4 * k, 4), "0" if k == 0 else vr(D, 16)))
        a("s_waitcnt vmcnt(1)")
        a("s_nop 10")
        a("buffer_atomic_add_f32 v%d, v10, s[8:11], 0 offen" % D)
        a("buffer_atomic_add_f32 v%d, v10, s[8:11], s96 offen" % (D + 1))
    def epi(a):
        stage32(a, SA, [(g.acc(0, 0), 0), (g.acc(1, 0), 128)])
        a("s_waitcnt vmcnt(0)")
    def common(a):
        a("s_waitcnt lgkmcnt(0)")
        g.stamp(a, 3)
        a("s_barrier")
        g.stamp(a, 4)
        for i in range(2):
            for h in range(2): a("ds_read_b128 %s, v%d offset:%d" % (vr(F + 8 * i + 4 * h, 4), VLD + h, 2048 * i))
        for e in range(8): unpack2(a, T + 2 * e, RX + e)
        for i in range(2):
            a("s_waitcnt lgkmcnt(%d)" % (2 - 2 * i))
            for e in range(4):
                x = vr(F + 8 * i + 2 * e, 2)
                a("v_pk_fma_f32 %s, %s, %s, %s" % (x, x, vr(GA + 2 * e, 2), vr(T + 8 * i + 2 * e, 2)))
            for e in range(4):
                a("v_cvt_pk_bf16_f32 v%d, v%d, v%d" % (RX + 4 * i + e, F + 8 * i + 2 * e, F + 8 * i + 2 * e + 1))
            a("buffer_store_dwordx4 %s, v%d, s[20:23], %s offen" % (vr(RX + 4 * i, 4), VO2, "s96" if i else "0"))
        if stats:
            for e in range(8): unpack2(a, F + 2 * e, RX + e)
            for i in range(2):
                for e in range(4):
                    a("v_pk_mul_f32 %s, %s, %s" % (vr(T + 8 * i + 2 * e, 2), vr(F + 8 * i + 2 * e, 2), vr(CB + 2 * e, 2)))
            for i in range(2):
                for e in range(4):
                    a("v_cvt_pk_bf16_f32 v%d, v%d, v%d" % (GA + 4 * i + e, T + 8 * i + 2 * e, T + 8 * i + 2 * e + 1))
                a("buffer_store_dwordx4 %s, v%d, s[72:75], %s offen" % (vr(GA + 4 * i, 4), VO4, "s97" if i else "0"))
            for i in range(2):
                s_, q_ = vr(T + 4 * i, 2), vr(T + 4 * i + 2, 2)
                x = lambda e: vr(F + 8 * i + 2 * e, 2)
                a("v_pk_add_f32 %s, %s, %s" % (s_, x(0), x(1)))
                a("v_pk_mul_f32 %s, %s, %s" % (q_, x(0), x(0)))
                a("v_pk_fma_f32 %s, %s, %s, %s" % (q_, x(1), x(1), q_))
                for e in (2, 3):
                    a("v_pk_add_f32 %s, %s, %s" % (s_, s_, x(e)))
                    a("v_pk_fma_f32 %s, %s, %s, %s" % (q_, x(e), x(e), q_))
            for k in range(4): a("v_add_f32 v%d, v%d, v%d" % (T + 2 * k, T + 2 * k, T + 2 * k + 1))
            red8(a, [T, T + 2, T + 4, T + 6])
            compact8(a, T + 8, [T, T + 4, T + 2, T + 6], VPM, 66)
            a("s_mov_b32 exec_hi, 0")
            a("s_waitcnt lgkmcnt(0)")
            a("buffer_atomic_add_f32 v%d, v%d, s[28:31], 0 offen" % (T + 8, VAT))
    kn = g.emit(a, tilemap_16x16_r4c8, setup, cpro, lpro, epi, lepi, common)
    return kn, 256 if stats else 144, 256, 512, lds

def k4(a):
    Z2 = 3584
    ZO = WS_Z2 - WS_Z1
    g = Gemm2("k4", 128, 1024, 16, 2, 2, LP, 7168, 256, CFG["S4"],
              [(8, [(0, "s72")]), (8, [(0, "s73")]), (8, [(0, "s74")]), (4, [(0, "s75")])])
    g.xskip = True
    UVT = g.LDS_MAIN
    RST = UVT + 2048
    lds = RST + 1024
    SA = g.CFREE
    def nib(v): return sum(x << (4 * i) for i, x in enumerate(v))
    def setup(a):
        xw_srds2(a, g, P_WS, WS_Y, P_WIN, 0, 1024 * 7168, 0)
        srd(a, 16, P_WS, WS_UV, 32768)
        srd(a, 20, P_WS, WS_SUM2, 16384)
        a("s_lshl_b32 s6, s4, 19")
        a("s_add_u32 s6, s6, %s" % hex(WS_Z1))
        srd(a, 24, P_WS, "s6", ZO + 128 * LP)
        a("s_lshl_b32 s6, s4, 14"); a("s_add_u32 s6, s6, %s" % hex(WS_XCH))
        srd(a, 28, P_WS, "s6", 16384)
        a("s_and_b32 s6, s5, 3"); a("s_lshl_b32 s7, s6, 2")
        a("s_lshr_b32 s32, s5, 2"); a("s_mul_i32 s32, s32, 896")
        for r, tab in ((72, [0, 4, 8, 10]), (73, [2, 0, 10, 12]), (74, [4, 2, 12, 8]), (75, [6, 6, 7, 7])):
            a("s_lshr_b32 s%d, %s, s7" % (r, hex(nib(tab))))
            a("s_and_b32 s%d, s%d, 15" % (r, r))
            a("s_lshl_b32 s%d, s%d, 6" % (r, r))
            a("s_add_u32 s%d, s%d, s32" % (r, r))
        a("s_add_u32 s72, s72, %d" % Z2)
        a("s_add_u32 s6, s6, 1"); a("s_and_b32 s33, s6, 2")
        a("s_cmp_eq_u32 s33, 0")
        a("s_cselect_b32 s6, %d, 0" % Z2); a("s_add_u32 s73, s73, s6")
        a("s_sub_u32 s6, %d, s6" % Z2); a("s_add_u32 s75, s75, s6")
        a("s_mov_b32 s98, s33")
    g.pf = None
    def cpro0(a):
        a("s_cmp_eq_u32 s3, 0")
        a("s_cselect_b32 s6, s72, s74"); a("s_cselect_b32 s7, s73, s75")
        a("v_mov_b32 v10, s6"); a("v_mov_b32 v11, s7")
        a("v_cmp_gt_u32 vcc, 32, v1")
        a("v_bfe_u32 v12, v0, 1, 4"); a("v_and_b32 v13, 1, v0")
        a("v_cndmask_b32 v10, v11, v10, vcc")
        a("v_lshlrev_b32 v10, 1, v10")
        a("v_lshl_add_u32 v10, v12, 4, v10")
        a("v_lshl_add_u32 v10, v13, 14, v10")
        a("buffer_load_dwordx4 v[16:19], v10, s[16:19], 0 offen")
        a("s_lshl_b32 s6, s4, 9"); a("s_add_u32 s7, s6, 8192")
        a("v_and_b32 v11, 127, v0"); a("v_lshlrev_b32 v11, 2, v11")
        a("buffer_load_dword v20, v11, s[20:23], s6 offen")
        a("buffer_load_dword v21, v11, s[20:23], s7 offen")
    g.cpro0 = cpro0
    def cpro(a):
        a("v_lshrrev_b32 v12, 5, v0"); a("v_lshlrev_b32 v12, 9, v12")
        a("v_and_b32 v11, 1, v0"); a("v_lshl_add_u32 v12, v11, 8, v12")
        a("v_bfe_u32 v11, v0, 1, 1"); a("v_lshl_add_u32 v12, v11, 7, v12")
        a("v_bfe_u32 v11, v0, 2, 3"); a("v_lshl_add_u32 v12, v11, 4, v12")
        a("v_add_u32 v12, %d, v12" % UVT)
        a("v_and_b32 v11, 127, v0"); a("v_lshlrev_b32 v11, 3, v11"); a("v_add_u32 v11, %d, v11" % RST)
        a("v_and_b32 v10, 15, v1"); a("v_add_u32 v10, s34, v10")
        a("v_lshrrev_b32 v13, 4, v1"); a("v_and_b32 v14, 7, v1"); a("v_xor_b32 v13, v13, v14")
        a("s_lshl_b32 s6, s35, 2")
        a("v_xor_b32 v14, s6, v13"); a("v_bfe_u32 v15, v1, 3, 1"); a("v_xor_b32 v14, v14, v15")
        a("v_lshlrev_b32 v14, 4, v14"); a("v_lshl_add_u32 v%d, v10, 7, v14" % (SA + 2))
        a("v_add_u32 v%d, %d, v%d" % (SA + 2, 98304, SA + 2))
        a("s_lshl_b32 s6, s35, 7")
        a("v_lshl_add_u32 v13, v13, 4, s6"); a("v_lshl_add_u32 v%d, v10, 8, v13" % SA)
        a("v_xor_b32 v%d, 64, v%d" % (SA + 1, SA))
        a("v_add_u32 v%d, 0x10000, v%d" % (SA + 3, SA)); a("v_add_u32 v%d, 0x10000, v%d" % (SA + 4, SA + 1))
        a("v_cmp_gt_u32 vcc, 112, v0")
        a("s_waitcnt vmcnt(%d)" % g.npf)
        stats_from_sums(a, 20, 21, 22, 1024, 24)
        a("ds_write_b64 v11, v[22:23]")
        a("s_and_saveexec_b64 s[66:67], vcc")
        a("ds_write_b128 v12, v[16:19]")
        a("s_mov_b64 exec, s[66:67]")
        a("s_waitcnt lgkmcnt(0)")
    def lpro(a):
        g.loader_first(a)
    def epi(a):
        a("s_nop 6")
        for i in range(7):
            for j in range(4):
                if i < 4: a("ds_write_b128 v%d, %s offset:%d" % (SA + (i & 1), vr(g.acc(i, j), 4), (i >> 1) * 32768 + j * 4096))
                elif i < 6: a("ds_write_b128 v%d, %s offset:%d" % (SA + 3 + (i & 1), vr(g.acc(i, j), 4), j * 4096))
                else: a("ds_write_b128 v%d, %s offset:%d" % (SA + 2, vr(g.acc(i, j), 4), j * 2048))
    def lepi(a):
        if CFG["PF"]:
            a("v_and_b32 v2, 255, v0"); a("v_lshlrev_b32 v2, 7, v2")
            touch(a, P_WSP, 32768, "s2", 2, 8, 255)
    VLD = 2; VLH = 4; VUV = 6; VO = 7; VOH = 8; VXP = 9; VPM = 14; VXS = 15
    ST = 16; STH = 20; MK = 22; SM = 24; PL = 32; T = 48; UV = 64; ZK = 80; F = 112; PK = 176; VL2 = 222; VUH = 224
    def gelu(a, items, U):
        n = len(items)
        for k, (A, st) in enumerate(items):
            for e in range(4):
                a("v_pk_fma_f32 %s, %s, %s, %s op_sel:[0,1,0] op_sel_hi:[1,1,1]" % (vr(T + 8 * k + 2 * e, 2), vr(U + 2 * e, 2), vr(st, 2), vr(U + 8 + 2 * e, 2)))
        for k, (A, st) in enumerate(items):
            for e in range(4):
                x = vr(A + 2 * e, 2)
                a("v_pk_fma_f32 %s, %s, %s, %s op_sel_hi:[1,0,1]" % (x, x, vr(st, 2), vr(T + 8 * k + 2 * e, 2)))
        for k, (A, st) in enumerate(items):
            for e in range(4): a("v_pk_mul_f32 %s, %s, %s" % (vr(T + 8 * k + 2 * e, 2), vr(A + 2 * e, 2), vr(A + 2 * e, 2)))
        for e in range(4 * n):
            t = vr(T + 2 * e, 2); a("v_pk_fma_f32 %s, %s, s[70:71], v[10:11]" % (t, t))
        for k, (A, st) in enumerate(items):
            for e in range(4):
                t = vr(T + 8 * k + 2 * e, 2); a("v_pk_mul_f32 %s, %s, %s" % (t, t, vr(A + 2 * e, 2)))
        for e in range(8 * n): a("v_exp_f32 v%d, v%d" % (T + e, T + e))
        for e in range(4 * n): a("v_pk_add_f32 %s, %s, v[12:13]" % (vr(T + 2 * e, 2), vr(T + 2 * e, 2)))
        for e in range(8 * n): a("v_rcp_f32 v%d, v%d" % (T + e, T + e))
        for k, (A, st) in enumerate(items):
            for e in range(4):
                t = vr(T + 8 * k + 2 * e, 2); a("v_pk_mul_f32 %s, %s, %s" % (t, t, vr(A + 2 * e, 2)))
    def freg(gi): return F + 16 * gi
    def rd_group(a, gi):
        if gi < 3:
            for i in range(2):
                for h in range(2):
                    off = gi * 32768 + i * 2048
                    if gi < 2: a("ds_read_b128 %s, v%d offset:%d" % (vr(freg(gi) + 8 * i + 4 * h, 4), VLD + h, off))
                    else: a("ds_read_b128 %s, v%d offset:%d" % (vr(freg(gi) + 8 * i + 4 * h, 4), VL2 + h, off - 65536))
            return 4
        for h in range(2): a("ds_read_b128 %s, v%d" % (vr(freg(3) + 4 * h, 4), VLH + h))
        return 2
    def rd_uv(a, gi):
        for q in range(4): a("ds_read_b128 %s, v%d offset:%d" % (vr(UV + 4 * q, 4), VUV if gi < 3 else VUH, gi * 512 + q * 128))
    def items(gi): return [(freg(gi), ST), (freg(gi) + 8, ST + 2)] if gi < 3 else [(freg(3), STH)]
    def store(a, gi, src):
        if gi < 3:
            a("s_add_u32 s6, s%d, 0x8000" % (72 + gi))
            a("buffer_store_dwordx4 %s, v%d, s[24:27], s%d offen" % (vr(src, 4), VO, 72 + gi))
            a("buffer_store_dwordx4 %s, v%d, s[24:27], s6 offen" % (vr(src + 4, 4), VO))
        else:
            a("buffer_store_dwordx4 %s, v%d, s[24:27], s75 offen" % (vr(src, 4), VOH))
    def poll(a):
        for k in range(4):
            a("buffer_load_dwordx2 %s, v%d, s[28:31], 0 offen offset:%d sc1" % (vr(PL + 2 * k, 2), VXP, (k & 1) * 1024 + (k >> 1) * 64))
    def variant(a, G2, G1):
        rd_uv(a, G2[0])
        rd_group(a, G2[0])
        n1 = rd_group(a, G2[1])
        a("s_waitcnt lgkmcnt(%d)" % n1)
        for x, gi in enumerate(G2):
            gelu(a, items(gi), UV)
            rd_uv(a, G2[1] if x == 0 else G1[0])
            if x == 1:
                for gj in G1: rd_group(a, gj)
            n = len(items(gi))
            for e in range(4 * n): a("v_cvt_pk_bf16_f32 v%d, v%d, v%d" % (PK + e, T + 2 * e, T + 2 * e + 1))
            Z = ZK + 16 * x
            for e in range(4 * n): unpack2(a, Z + 2 * e, PK + e)
            for k in range(n):
                if gi < 3: s_, q_ = vr(SM + 4 * k, 2), vr(SM + 4 * k + 2, 2)
                else: s_, q_ = vr(T, 2), vr(T + 2, 2)
                z = lambda e: vr(Z + 8 * k + 2 * e, 2)
                if x == 0 or gi == 3:
                    a("v_pk_add_f32 %s, %s, %s" % (s_, z(0), z(1)))
                    a("v_pk_mul_f32 %s, %s, %s" % (q_, z(0), z(0)))
                    a("v_pk_fma_f32 %s, %s, %s, %s" % (q_, z(1), z(1), q_))
                    r = (2, 3)
                else: r = range(4)
                for e in r:
                    a("v_pk_add_f32 %s, %s, %s" % (s_, s_, z(e)))
                    a("v_pk_fma_f32 %s, %s, %s, %s" % (q_, z(e), z(e), q_))
            if gi == 3:
                for k in range(2):
                    for c in range(2):
                        d = vr(SM + 4 * k + 2 * c, 2)
                        a("v_pk_fma_f32 %s, %s, %s, %s op_sel:[0,%d,0] op_sel_hi:[1,%d,1]" % (d, vr(T + 2 * c, 2), vr(MK, 2), d, k, k))
            if x == 0: a("s_waitcnt lgkmcnt(0)")
        for k in range(4): a("v_add_f32 v%d, v%d, v%d" % (SM + 2 * k, SM + 2 * k, SM + 2 * k + 1))
        red8(a, [SM, SM + 2, SM + 4, SM + 6])
        a("s_mov_b32 s66, 0x02020202"); a("s_mov_b32 s67, s66")
        a("v_cndmask_b32 v%d, v%d, v%d, s[66:67]" % (SM, SM, SM + 4))
        a("v_cndmask_b32 v%d, v%d, v%d, s[66:67]" % (SM + 1, SM + 2, SM + 6))
        a("ds_bpermute_b32 v%d, v%d, v%d" % (SM, VPM, SM))
        a("v_and_b32 v%d, -2, v%d" % (SM + 1, SM + 1))
        a("ds_bpermute_b32 v%d, v%d, v%d" % (SM + 1, VPM, SM + 1))
        a("s_mov_b64 exec, 0xffff")
        a("s_waitcnt lgkmcnt(0)")
        a("buffer_store_dwordx2 %s, v%d, s[28:31], s32 offen sc1" % (vr(SM, 2), VXS))
        a("s_mov_b64 exec, -1")
        g.stamp(a, 5)
        for x, gi in enumerate(G1):
            gelu(a, items(gi), UV)
            if x == 0: rd_uv(a, G1[1])
            n = len(items(gi))
            for e in range(4 * n): a("v_cvt_pk_bf16_f32 v%d, v%d, v%d" % (freg(gi) + e, T + 2 * e, T + 2 * e + 1))
            if x == 1: poll(a)
            store(a, gi, freg(gi))
            if x == 0: a("s_waitcnt lgkmcnt(0)")
        g.stamp(a, 6)
        L = a.newlabel("k4_poll"); D = a.newlabel("k4_pdone"); C = a.newlabel("k4_pchk")
        a("s_mov_b32 s66, 0x40000")
        a("s_waitcnt vmcnt(%d)" % len(items(G1[1])))
        a("s_branch %s" % C)
        a.label(L)
        poll(a)
        a("s_waitcnt vmcnt(0)")
        a.label(C)
        a("v_max_u32 v%d, v%d, v%d" % (T, PL + 1, PL + 3))
        a("v_max3_u32 v%d, v%d, v%d, v%d" % (T, T, PL + 5, PL + 7))
        a("v_cmp_eq_u32 vcc, -1, v%d" % T)
        a("s_sub_u32 s66, s66, 1")
        a("s_cbranch_scc1 %s" % D)
        a("s_cbranch_vccz %s" % D)
        a("s_sleep 1")
        a("s_branch %s" % L)
        a.label(D)
        for k in range(2): a("v_pk_add_f32 %s, %s, %s" % (vr(PL + 4 * k, 2), vr(PL + 4 * k, 2), vr(PL + 4 * k + 2, 2)))
        a("s_nop 0")
        red8(a, [PL, PL + 1, PL + 4, PL + 5])
        n_ = 1792
        for k in range(2): a("v_mul_f32 v%d, %s, v%d" % (PL + 4 * k, hex(f32bits(1.0 / n_)), PL + 4 * k))
        for k in range(2): a("v_mul_f32 v%d, %s, v%d" % (ST + 2 * k, hex(f32bits(1.0 / n_)), PL + 4 * k + 1))
        for k in range(2): a("v_fma_f32 v%d, -v%d, v%d, v%d" % (ST + 2 * k, PL + 4 * k, PL + 4 * k, ST + 2 * k))
        for k in range(2): a("v_max_f32 v%d, 0, v%d" % (ST + 2 * k, ST + 2 * k))
        for k in range(2): a("v_add_f32 v%d, %s, v%d" % (ST + 2 * k, hex(f32bits(1e-5)), ST + 2 * k))
        for k in range(2): a("v_rsq_f32 v%d, v%d" % (ST + 2 * k, ST + 2 * k))
        a("s_nop 0")
        for k in range(2): a("v_mul_f32 v%d, -v%d, v%d" % (ST + 2 * k + 1, PL + 4 * k, ST + 2 * k))
        if 3 in G2:
            for c in range(2): a("v_cndmask_b32 v%d, v%d, v%d, s[68:69]" % (STH + c, ST + c, ST + 2 + c))
        for x, gi in enumerate(G2):
            Z = ZK + 16 * x
            for k, (_, st) in enumerate(items(gi)):
                for e in range(4):
                    z = vr(Z + 8 * k + 2 * e, 2)
                    a("v_pk_fma_f32 %s, %s, %s, %s op_sel:[0,0,1] op_sel_hi:[1,0,1]" % (z, z, vr(st, 2), vr(st, 2)))
            for e in range(4 * len(items(gi))): a("v_cvt_pk_bf16_f32 v%d, v%d, v%d" % (T + 8 * x + e, Z + 2 * e, Z + 2 * e + 1))
            store(a, gi, T + 8 * x)
    def common(a):
        K1_ = 2.0 * math.sqrt(2.0 / math.pi) * LOG2E
        R = T
        rm_addr(a, R, VLD, R + 1)
        a("v_and_b32 v%d, 7, v1" % (R + 2)); a("v_bfe_u32 v%d, v1, 2, 1" % (R + 3)); a("v_and_b32 v%d, 3, v1" % (R + 4))
        a("v_add_u32 v%d, 0x10000, v%d" % (VL2, VLD)); a("v_add_u32 v%d, 0x10000, v%d" % (VL2 + 1, VLD + 1))
        a("v_lshlrev_b32 v%d, 4, v%d" % (VUV, R + 2))
        a("v_lshl_add_u32 v%d, v%d, 12, v%d" % (VO, R, VUV))
        a("v_add_u32 v%d, %d, v%d" % (VUV, UVT, VUV))
        a("v_lshl_add_u32 v%d, v%d, 3, v%d" % (R + 5, R + 3, R))
        a("v_lshlrev_b32 v%d, 4, v%d" % (VOH, R + 4))
        a("v_add_u32 v%d, %d, v%d" % (VUH, UVT, VOH))
        a("v_lshl_add_u32 v%d, v%d, 12, v%d" % (VOH, R + 5, VOH))
        a("v_lshlrev_b32 v%d, 1, v%d" % (VLH, R + 4)); a("v_xor_b32 v%d, v%d, v%d" % (VLH, VLH, R + 1)); a("v_xor_b32 v%d, v%d, v%d" % (VLH, VLH, R + 3))
        a("v_lshlrev_b32 v%d, 4, v%d" % (VLH, VLH)); a("v_lshl_add_u32 v%d, v%d, 7, v%d" % (VLH, R + 5, VLH))
        a("v_add_u32 v%d, %d, v%d" % (VLH, 98304, VLH)); a("v_xor_b32 v%d, 16, v%d" % (VLH + 1, VLH))
        a("v_lshlrev_b32 v%d, 3, v%d" % (R + 6, R))
        a("v_lshl_add_u32 v%d, v%d, 11, v%d" % (VXP, R + 2, R + 6))
        a("v_add_u32 v%d, %d, v%d" % (R + 6, RST, R + 6))
        a("ds_read_b64 %s, v%d" % (vr(ST, 2), R + 6)); a("ds_read_b64 %s, v%d offset:64" % (vr(ST + 2, 2), R + 6))
        a("v_lshlrev_b32 v%d, 5, v%d" % (VPM, R + 2)); a("v_lshl_add_u32 v%d, v%d, 2, v%d" % (VPM, R + 1, VPM))
        a("v_lshlrev_b32 v%d, 3, v1" % VXS)
        a("v_cvt_f32_u32 v%d, v%d" % (MK + 1, R + 3)); a("v_sub_f32 v%d, 1.0, v%d" % (MK, MK + 1))
        a("s_lshl_b32 s32, s5, 10"); a("s_lshl_b32 s6, s3, 7"); a("s_add_u32 s32, s32, s6")
        a("s_mov_b32 s68, 0xf0f0f0f0"); a("s_mov_b32 s69, s68")
        a("s_mov_b32 s70, %s" % hex(f32bits(-K1_ * 0.044715))); a("s_mov_b32 s71, s70")
        a("v_mov_b32 v10, %s" % hex(f32bits(-K1_))); a("v_mov_b32 v11, v10")
        a("v_mov_b32 v12, 1.0"); a("v_mov_b32 v13, 1.0")
        for r in range(72, 76):
            a("s_cmp_ge_u32 s%d, %d" % (r, Z2))
            a("s_cselect_b32 s7, %d, 0" % Z2); a("s_cselect_b32 s33, %d, 0" % ZO)
            a("s_sub_u32 s%d, s%d, s7" % (r, r))
            s_lmap(a, r, r, 6)
            a("s_add_u32 s%d, s%d, s33" % (r, r))
        a("s_waitcnt lgkmcnt(0)")
        for c in range(2): a("v_cndmask_b32 v%d, v%d, v%d, s[68:69]" % (STH + c, ST + c, ST + 2 + c))
        g.stamp(a, 3)
        a("s_barrier")
        g.stamp(a, 4)
        LB = a.newlabel("k4_tb"); LE = a.newlabel("k4_te")
        a("s_cmp_lg_u32 s98, 0")
        a("s_cbranch_scc1 %s" % LB)
        variant(a, [0, 1], [2, 3])
        a("s_branch %s" % LE)
        a.label(LB)
        variant(a, [0, 3], [1, 2])
        a.label(LE)
    kn = g.emit(a, tilemap_16x16_r8c4, setup, cpro, lpro, epi, lepi, common)
    return kn, 256, 256, 512, lds

def k5(a):
    g = Gemm2("k5", 128, 2048, 32, 2, 2, 4096, LP, 224, CFG["S5"], [(8, [(0, "s72")]), (8, [(0, "s73")])])
    Z1 = g.CFREE; BS = Z1 + 16; VO = BS + 4; VLD = VO + 2; SA = VLD + 2; F = SA + 4; T = F + 32
    def setup(a):
        xw_srds2(a, g, P_WSP, 0, P_WS, WS_Z2, 2048 * LP, 0)
        a("s_lshl_b32 s6, s4, 19")
        a("s_add_u32 s32, s6, %s" % hex(WS_Z1)); srd(a, 20, P_WS, "s32", 128 * LP)
        a("s_add_u32 s32, s6, %s" % hex(WS_U)); srd(a, 24, P_WS, "s32", 128 * LP)
        a("s_lshl_b32 s6, s4, 8")
        srd(a, 28, P_BSP, "s6", 256)
        a("s_lshl_b32 s7, s5, 1")
        s_lmap(a, 72, 7, 6, False)
        a("s_add_u32 s7, s7, 1")
        s_lmap(a, 73, 7, 6, False)
        a("s_add_u32 s74, s72, 0x8000"); a("s_add_u32 s75, s73, 0x8000")
    def rm_loads(a):
        rm_addr(a, VO, VLD, 10)
        a("v_lshlrev_b32 v12, 1, v%d" % VO)
        a("v_and_b32 v11, 7, v1"); a("v_lshlrev_b32 v11, 4, v11")
        a("v_lshl_add_u32 v%d, v%d, 12, v11" % (VO, VO))
        for i in range(2): a("buffer_load_ushort v%d, v12, s[28:31], 0 offen offset:%d" % (BS + 2 * i, 16 * i))
        for k in range(4): a("buffer_load_dwordx4 %s, v%d, s[20:23], s%d offen" % (vr(Z1 + 4 * k, 4), VO, 72 + k))
    def cpro(a):
        stage32_addr(a, g, SA, 10)
    g.cpost0 = rm_loads
    g.pf = None
    def lpro(a):
        g.loader_first(a)
    g.etile = rm_loads; g.etile_n = 6; g.etile_wait = False
    def epi(a):
        stage32(a, SA, [(g.acc(i, j), i * 32768 + j * 8192) for i in range(2) for j in range(2)])
    def common(a):
        a("s_waitcnt vmcnt(0)")
        for i in range(2): a("v_lshlrev_b32 v%d, 16, v%d" % (BS + 2 * i, BS + 2 * i))
        a("s_waitcnt lgkmcnt(0)")
        g.stamp(a, 3)
        a("s_barrier")
        g.stamp(a, 4)
        for k in range(4):
            for h in range(2): a("ds_read_b128 %s, v%d offset:%d" % (vr(F + 8 * k + 4 * h, 4), VLD + h, (k & 1) * 32768 + (k >> 1) * 2048))
        for k in range(4):
            t = T + 8 * (k & 1)
            for e in range(4): unpack2(a, t + 2 * e, Z1 + 4 * k + e)
            a("s_waitcnt lgkmcnt(%d)" % (6 - 2 * k))
            if DBG["stamp"]: a("s_waitcnt lgkmcnt(0)")
            for e in range(4):
                x = vr(F + 8 * k + 2 * e, 2)
                a("v_pk_add_f32 %s, %s, %s op_sel_hi:[1,0]" % (x, x, vr(BS + 2 * (k >> 1), 2)))
            for e in range(4):
                x = vr(F + 8 * k + 2 * e, 2)
                a("v_pk_mul_f32 %s, %s, %s" % (x, x, vr(t + 2 * e, 2)))
            for e in range(4):
                a("v_cvt_pk_bf16_f32 v%d, v%d, v%d" % (Z1 + 4 * k + e, F + 8 * k + 2 * e, F + 8 * k + 2 * e + 1))
            a("buffer_store_dwordx4 %s, v%d, s[24:27], s%d offen" % (vr(Z1 + 4 * k, 4), VO, 72 + k))
    def extra(a, end):
        a("s_cmp_ge_u32 s2, 256")
        a("s_cbranch_scc1 %s" % end)
        load_kernargs(a)
        a("s_sub_u32 s2, s2, 224")
        a("v_lshlrev_b32 v2, 7, v0")
        a("v_add_u32 v3, 0x10000, v2")
        a("s_waitcnt lgkmcnt(0)")
        touch(a, P_WOUT, 114688, "s2", 2, 8, 4)
        a("buffer_load_dword v5, v3, s[8:11], 0 offen")
        a("s_waitcnt vmcnt(0)")
    if CFG["PF"]: g.extra = extra
    kn = g.emit(a, tilemap_16x14, setup, cpro, lpro, epi, None, common)
    return kn, T + 16, 256 if CFG["PF"] else 224, 512, g.LDS_MAIN

ORDER = ["k0", "k1", "k2", "k2b", "k3", "k4", "k5", "k6"]
def build(path, order=None):
    a = Asm()
    ks = {}
    def small(fn, name):
        m = len(a.lines)
        r = fn(a)
        if DBG["stamp"]:
            body = a.lines[m:]; del a.lines[m:]
            st = Stamper(name)
            armed = False
            for k, l in enumerate(body):
                t = l.strip()
                if t.startswith("s_load_dwordx4 s[60:63]"): armed = True
                if t == "s_endpgm" and not body[k - 1].endswith(":"):
                    a("s_mov_b64 exec, -1"); st.stamp_out(a)
                if t.endswith(":") and "_end" in t:
                    a("s_mov_b64 exec, -1"); st.stamp_out(a); a("s_endpgm")
                a.lines.append(l)
                if armed and t == "s_waitcnt lgkmcnt(0)":
                    st.stamp(a, 0); armed = False
        return r
    ks["k0"] = small(k0, "k0")
    ks["k1"] = small(k1, "k1")
    ks["k2"] = k2(a)
    ks["k2b"] = small(k2b, "k2b")
    ks["k3"] = k_res(a, "k3", 1024, WS_O, P_WO, P_X, 0, 2, P_WS, WS_X1, True, CFG["S3"])
    ks["k4"] = k4(a)
    ks["k5"] = k5(a)
    ks["k6"] = k_res(a, "k6", 1792, WS_U, P_WOUT, P_WS, WS_X1, 5, P_OUT, 0, False, CFG["S6"])
    order = order or ORDER
    if CFG["ST"]:
        fl = ["", " sc1", " sc0 sc1", " nt"][CFG["ST"]]
        a.lines = [l + fl if ("buffer_store_dwordx" in l and "sc1" not in l) else l for l in a.lines]
    ref = open("cdna_kernels/%s.s.ref" % NAME).read().split("\n")
    head = [l for l in ref if l.startswith(";") and "@launch" not in l and "Override" not in l and "grid=ceil" not in l]
    head = head[:15]
    out = list(head)
    for k in order:
        kn, vg, grid, blk, lds = ks[k]
        out.append("; @launch kernel=%s grid=(%d,1,1) block=(%d,1,1) lds=%d" % (kn, grid, blk, lds))
    out.append('.amdgcn_target "amdgcn-amd-amdhsa--gfx950"')
    out.append(".text")
    out += a.lines
    out.append('.section .rodata,"a"')
    for k, (kn, vg, grid, blk, lds) in ks.items():
        out.append(kernel_desc(kn, vg))
    open(path, "w").write("\n".join(out) + "\n")

if __name__ == "__main__":
    build(sys.argv[1] if len(sys.argv) > 1 else "cdna_kernels/%s.s" % NAME)
```

```python
from gen import *

STAMP_OFF = 0x4000000
KIDX = dict(k0=0, k1=1, k2=2, k2b=3, k3=4, k4=5, k5=6, k6=7)

class Stamper:
    def __init__(self, name): self.name = name

class Gemm2:
    def __init__(self, name, BM, K, mf, wgm, wgn, ldx, ldw, ntiles, S, groups):
        self.name, self.BM, self.K, self.mf = name, BM, K, mf
        self.wgm, self.wgn, self.ldx, self.ldw, self.ntiles, self.S = wgm, wgn, ldx, ldw, ntiles, S
        self.groups = groups
        self.xskip = False
        self.etile_wait = True
        self.cpost0 = None
        self.ltouch = []
        self.nk = K // 64
        self.XI = BM * 128
        self.goff = []
        o = self.XI
        for nch, _ in groups:
            self.goff.append(o); o += 64 * nch * 16
        self.STG = o
        assert self.STG % 4096 == 0
        self.P = self.STG // 4096
        self.LDS_MAIN = S * self.STG
        self.WM = BM // wgm
        self.NT = self.WM // mf
        self.NS = 4 if mf == 32 else 2
        self.accn = 16 if mf == 32 else 4
        full = [g for g, (n, _) in enumerate(groups) if n == 8]
        half = [g for g, (n, _) in enumerate(groups) if n == 4]
        self.wt = []
        if mf == 32:
            if wgn == 2:
                self.nwa = 1
                for g in full: self.wt.append((0, self.goff[g], 128))
            else:
                self.nwa = 2
                for g in full:
                    for h in range(2): self.wt.append((h, self.goff[g], 128))
            assert not half
        else:
            assert wgn == 2
            self.nwa = 2 + len(half)
            for g in full:
                for o in range(2): self.wt.append((o, self.goff[g], 128))
            for g in half: self.wt.append((2, self.goff[g], 64))
        self.MT = len(self.wt)
        self.VX = 2
        self.VW = self.VX + self.NS
        assert self.VW + self.nwa <= 9
        self.FR = 16
        self.nfr = (self.NT + self.MT) * 4
        self.ACC = self.FR + 2 * self.nfr
        self.nacc = self.NT * self.MT * self.accn
        self.CFREE = self.ACC + self.nacc
        self.prio = 2
        self.pf = None
        self.etile = None
        self.cpro0 = None
        self.extra = None
        self.PFD = 255
        self.etile_n = 0

    def acc(self, i, j): return self.ACC + (i * self.NT + j) * self.accn
    def xfrag(self, s, j): return self.FR + s * self.nfr + j * 4
    def wfrag(self, s, i): return self.FR + s * self.nfr + (self.NT + i) * 4

    def reads(self, sub, fs):
        xs, ws = [], []
        for j in range(self.NT):
            xs.append("ds_read_b128 %s, v%d offset:%d" % (vr(self.xfrag(fs, j), 4), self.VX + sub, j * self.mf * 128))
        kr = 16 if self.mf == 32 else 32
        for i, (ar, imm, pitch) in enumerate(self.wt):
            for q in range(2):
                ws.append("ds_read_b64_tr_b16 %s, v%d offset:%d" % (vr(self.wfrag(fs, i) + 2 * q, 2), self.VW + ar,
                                                                    imm + (kr * sub + 4 * q) * pitch))
        return ws[0:2] + xs + ws[2:]

    def mfmas(self, fs):
        op = "v_mfma_f32_32x32x16_bf16" if self.mf == 32 else "v_mfma_f32_16x16x32_bf16"
        out = []
        for i in range(self.MT):
            for j in range(self.NT):
                A = self.acc(i, j)
                out.append("%s %s, %s, %s, %s" % (op, vr(A, self.accn), vr(self.wfrag(fs, i), 4),
                                                  vr(self.xfrag(fs, j), 4), vr(A, self.accn)))
        return out

    def compute_addr(self, a):
        mf = self.mf
        if self.wgn == 1:
            a("s_mul_i32 s34, s3, %d" % self.WM); a("s_mov_b32 s35, 0")
        else:
            a("s_lshr_b32 s34, s3, 1"); a("s_mul_i32 s34, s34, %d" % self.WM)
            a("s_and_b32 s35, s3, 1")
        sh = 5 if mf == 32 else 4
        X = self.VX
        a("v_and_b32 v10, %d, v1" % (mf - 1))
        a("v_bfe_u32 v11, v1, 1, 3")
        a("v_lshrrev_b32 v12, %d, v1" % sh)
        a("v_xor_b32 v11, v11, v12")
        a("v_add_u32 v10, s34, v10")
        a("v_lshlrev_b32 v10, 7, v10")
        a("v_lshl_add_u32 v%d, v11, 4, v10" % X)
        for s in range(1, self.NS):
            a("v_xor_b32 v%d, %d, v%d" % (X + s, s * (32 if mf == 32 else 64), X))
        W = self.VW
        a("v_bfe_u32 v10, v1, 2, 2")
        a("v_lshl_add_u32 v10, v12, 3, v10")
        if mf == 32:
            a("v_bfe_u32 v11, v1, 4, 1"); a("v_lshlrev_b32 v11, 5, v11")
            a("v_and_b32 v13, 1, v1"); a("v_lshl_add_u32 v11, v13, 4, v11")
            a("v_bfe_u32 v13, v1, 1, 1"); a("v_lshl_add_u32 v11, v13, 3, v11")
            a("v_bfe_u32 v13, v1, 3, 1"); a("v_lshl_add_u32 v11, v13, 6, v11")
            a("v_lshl_add_u32 v%d, v10, 7, v11" % W)
            if self.wgn == 2:
                a("s_lshl_b32 s6, s35, 6")
                a("v_xor_b32 v%d, s6, v%d" % (W, W))
            else:
                a("v_xor_b32 v%d, 64, v%d" % (W + 1, W))
        else:
            a("v_and_b32 v11, 3, v1"); a("v_lshlrev_b32 v11, 3, v11")
            a("v_bfe_u32 v13, v1, 4, 1")
            if self.nwa == 3:
                a("v_xor_b32 v14, s35, v13"); a("v_lshl_add_u32 v14, v14, 5, v11")
                a("v_lshl_add_u32 v%d, v10, 6, v14" % (W + 2))
            a("v_xor_b32 v13, s35, v13"); a("v_lshl_add_u32 v11, v13, 6, v11")
            a("v_bfe_u32 v13, v1, 3, 1"); a("v_lshl_add_u32 v11, v13, 5, v11")
            a("v_lshl_add_u32 v%d, v10, 7, v11" % W)
            a("v_xor_b32 v%d, 32, v%d" % (W + 1, W))

    def interleave(self, a, mf, rd, first_after=None, tail=()):
        if DBG["nomfma"]: mf = ["s_nop 0"] * len(mf)
        if DBG["noread"]: rd = []
        rd = list(rd) + list(tail)
        n = len(mf)
        per = 2 if self.mf == 32 else 1
        per = max(per, -(-len(rd) // max(1, n - 1)))
        ri = 0
        for t, m in enumerate(mf):
            a(m)
            if t == 0 and first_after:
                for x in first_after: a(x)
            for _ in range(per):
                if ri < len(rd):
                    a(rd[ri]); ri += 1
        while ri < len(rd):
            a(rd[ri]); ri += 1

    def slot_next(self, a):
        a("s_add_u32 s64, s64, %d" % self.STG)
        a("s_cmp_eq_u32 s64, %d" % (self.S * self.STG))
        a("s_cselect_b32 s65, %s, s67" % (hex((-(self.S - 1) * self.STG) & 0xffffffff)))
        a("s_cselect_b32 s64, 0, s64")

    def compute_main(self, a):
        for r in range(self.nacc):
            a("v_mov_b32 v%d, 0" % (self.ACC + r))
        a("s_mov_b32 s64, 0")
        a("s_mov_b32 s67, %d" % self.STG)
        a("s_mov_b32 s6, %d" % self.nk)
        a("s_barrier")
        self.stamp(a, 1)
        for x in self.reads(0, 0): a(x)
        if self.cpost0: self.cpost0(a)
        L = a.newlabel(self.name + "_cl")
        a.lines.append(".p2align 4")
        a.label(L)
        self.slot_next(a)
        for sub in range(self.NS):
            fs = sub & 1
            a("s_waitcnt lgkmcnt(0)")
            if sub < self.NS - 1:
                tail = ["v_add_u32 v%d, s65, v%d" % (self.VX + sub + 1, self.VX + sub + 1)]
                if sub == 0:
                    tail.append("v_add_u32 v%d, s65, v%d" % (self.VX, self.VX))
                    if self.pf and self.pf["D"]:
                        tail += ["buffer_load_dword v%d, v15, s[68:71], s96 offen" % self.PFD, "s_add_u32 s96, s96, s97"]
                if sub == self.NS - 2:
                    tail += ["v_add_u32 v%d, s65, v%d" % (self.VW + w, self.VW + w) for w in range(self.nwa)]
                self.interleave(a, self.mfmas(fs), self.reads(sub + 1, fs ^ 1), tail=tail)
            else:
                self.interleave(a, self.mfmas(fs), self.reads(0, fs ^ 1), first_after=["s_sub_u32 s6, s6, 1", "s_barrier"])
        a("s_cmp_lg_u32 s6, 0")
        a("s_cbranch_scc1 %s" % L)
        a("s_waitcnt lgkmcnt(0)")

    def loader_setup(self, a):
        self.pieces = []
        a("s_sub_u32 s34, s3, 4")
        a("v_and_b32 v1, 63, v0")
        a("v_lshrrev_b32 v2, 3, v1")
        a("v_and_b32 v3, 7, v1")
        a("s_lshl_b32 s6, s34, 3")
        a("v_add_u32 v2, s6, v2")
        r = 16
        a("v_bfe_u32 v4, v2, 1, 3")
        a("v_xor_b32 v4, v4, v3")
        a("s_mov_b32 s6, %d" % self.ldx)
        a("v_mul_lo_u32 v5, s6, v2")
        for i in range(self.BM // 32):
            if i == 0: a("v_lshl_add_u32 v%d, v4, 4, v5" % r)
            else: a("v_add_u32 v%d, %d, v%d" % (r, 32 * self.ldx, r - 1))
            self.pieces.append((r, 8, 7)); r += 1
        if self.mf == 32:
            a("v_bfe_u32 v4, v2, 1, 1"); a("v_lshlrev_b32 v4, 2, v4")
        else:
            a("v_bfe_u32 v4, v2, 1, 1"); a("v_lshlrev_b32 v4, 1, v4")
            a("v_bfe_u32 v6, v2, 3, 1"); a("v_lshl_add_u32 v4, v6, 2, v4")
        a("v_xor_b32 v4, v4, v3")
        a("s_mov_b32 s6, %d" % self.ldw)
        a("v_mul_lo_u32 v5, s6, v2")
        a("v_lshl_add_u32 v5, v4, 4, v5")
        def chunkmap(dst, base, ch, cm):
            a("v_add_u32 v%d, %s, v%d" % (dst, cm[0][1], base))
            for fc, bo in cm[1:]:
                adj = bo - 16 * fc
                a("v_add_u32 v7, %d, v%d" % (adj & 0xffffffff, base))
                a("v_cmp_le_u32 vcc, %d, v%d" % (fc, ch))
                a("s_nop 1")
                a("v_cndmask_b32 v%d, v%d, v7, vcc" % (dst, dst))
        for nch, cm in self.groups:
            if nch == 8:
                chunkmap(r, 5, 4, cm)
                a("v_add_u32 v%d, %d, v%d" % (r + 1, 32 * self.ldw, r))
                self.pieces.append((r, 12, 33)); self.pieces.append((r + 1, 12, 33)); r += 2
            else:
                a("v_lshrrev_b32 v2, 2, v1"); a("s_lshl_b32 s35, s34, 4"); a("v_add_u32 v2, s35, v2")
                a("v_and_b32 v3, 3, v1")
                a("v_bfe_u32 v6, v2, 3, 1"); a("v_lshlrev_b32 v6, 1, v6"); a("v_xor_b32 v6, v6, v3")
                a("v_mul_lo_u32 v8, s6, v2"); a("v_lshl_add_u32 v8, v6, 4, v8")
                chunkmap(r, 8, 6, cm)
                self.pieces.append((r, 12, 33)); r += 1
        assert len(self.pieces) == self.P
        self.LFREE = r
        a("s_lshl_b32 s64, s34, 10")
        a("s_add_u32 s65, s64, %d" % (self.S * self.STG))
        a("s_mov_b32 s7, 0")
        a("s_mov_b32 s33, 0")

    def xlike_voffs(self, a, r, pitch, n, extra=()):
        a("v_lshrrev_b32 v2, 3, v1"); a("v_and_b32 v3, 7, v1")
        a("s_lshl_b32 s6, s34, 3"); a("v_add_u32 v2, s6, v2")
        a("v_bfe_u32 v4, v2, 1, 3"); a("v_xor_b32 v4, v4, v3")
        a("s_mov_b32 s6, %d" % pitch); a("v_mul_lo_u32 v5, s6, v2")
        a("v_lshl_add_u32 v%d, v4, 4, v5" % r)
        for i in range(1, n): a("v_add_u32 v%d, %d, v%d" % (r + i, 32 * pitch * i, r))
        for x, off in enumerate(extra):
            for i in range(n): a("v_add_u32 v%d, %d, v%d" % (r + n * (x + 1) + i, off, r + i))

    def dma(self, a, i, vo, srd_, so="0"):
        a("s_add_u32 m0, s64, %d" % (i * 4096))
        a("s_nop 0")
        a("buffer_load_dwordx4 v%d, %s, %s offen lds" % (vo, sr(srd_, 4), so))

    def issue_stage(self, a, first=False):
        if not (DBG["noload"] and not first):
            for i, (vo, srd_, so) in enumerate(self.pieces):
                a("s_add_u32 m0, s64, %d" % (i * 4096))
                a("s_nop 0")
                a("buffer_load_dwordx4 v%d, %s, s%d offen %slds" % (vo, sr(srd_, 4), so, ["", "nt ", "sc1 ", "sc0 ", "sc0 sc1 ", "sc1 nt "][DBG.get("cb", 0)]))
        a("s_add_u32 s7, s7, 128")
        if self.xskip:
            a("s_and_b32 s6, s7, 0x380"); a("s_cmp_eq_u32 s6, 0x180"); a("s_cselect_b32 s6, 128, 0"); a("s_add_u32 s7, s7, s6")
        a("s_add_u32 s33, s33, %d" % (64 * self.ldw))
        a("s_add_u32 s64, s64, %d" % self.STG)
        a("s_cmp_eq_u32 s64, s65")
        a("s_cselect_b32 s6, %d, 0" % (self.S * self.STG))
        a("s_sub_u32 s64, s64, s6")

    def loader_first(self, a):
        for st in range(2):
            self.issue_stage(a, True)

    def loader_main(self, a):
        S, P, nk = self.S, self.P, self.nk
        assert (S - 1) * P + self.etile_n <= 63
        issued = 2
        j = 0
        self.stamp(a, 1)
        while True:
            a("s_waitcnt vmcnt(%d)" % ((issued - 1 - j) * P))
            if j == 0: self.stamp(a, 2)
            a("s_barrier")
            n = 0
            while n < 2 and issued <= j + S - 1:
                self.issue_stage(a); issued += 1; n += 1
            j += 1
            if issued == j + S - 1: break
        cnt = nk - issued
        assert cnt >= 1
        a("s_mov_b32 s66, %d" % cnt)
        L = a.newlabel(self.name + "_ll")
        a.lines.append(".p2align 4")
        a.label(L)
        a("s_waitcnt vmcnt(%d)" % ((S - 2) * P))
        a("s_barrier")
        self.issue_stage(a)
        self.ool = []
        for sg, fn in self.ltouch:
            lo = a.newlabel(self.name + "_t"); lb = a.newlabel(self.name + "_tb")
            a("s_cmp_eq_u32 s66, s%d" % sg)
            a("s_cbranch_scc1 %s" % lo)
            a.label(lb)
            self.ool.append((lo, lb, fn))
        a("s_sub_u32 s66, s66, 1")
        a("s_cmp_lg_u32 s66, 0")
        a("s_cbranch_scc1 %s" % L)
        j += cnt
        extra = 0
        while j < nk:
            a("s_waitcnt vmcnt(%d)" % ((nk - 1 - j) * P + extra))
            a("s_barrier")
            if self.etile and not extra:
                self.etile(a); extra = self.etile_n
            j += 1
        if extra and self.etile_wait: a("s_waitcnt vmcnt(0)")
        a("s_barrier")

    def pf_setup(self, a):
        pf = self.pf
        R, C, T, D = pf["R"], pf["C"], pf["T"], pf["D"]
        lr = R.bit_length() - 1
        nx = -(-self.BM // C)
        nr = 64 // R
        lnr = nr.bit_length() - 1
        a("s_lshr_b32 s6, s2, 3")
        a("s_lshr_b32 s7, s6, %d" % lr)
        a("s_and_b32 s6, s6, %d" % (R - 1))
        a("s_mul_i32 s7, s7, %d" % nx)
        a("v_add_u32 v10, s7, v1")
        a("s_mov_b32 s7, %d" % self.ldx)
        a("v_mul_lo_u32 v10, s7, v10")
        a("v_bfrev_b32 v12, 1")
        a("v_cmp_gt_u32 vcc, %d, v1" % nx)
        a("s_lshl_b32 s6, s6, %d" % lnr)
        a("v_and_b32 v11, %d, v1" % (nr - 1))
        a("v_cndmask_b32 v10, v12, v10, vcc")
        a("v_add_u32 v11, s6, v11")
        a("s_mov_b32 s7, %d" % self.ldw)
        a("v_mul_lo_u32 v11, s7, v11")
        a("v_add_u32 v13, %d, v11" % T[0])
        for t in range(1, len(T) + 1):
            if t * nr >= 64: break
            if t < len(T): a("v_add_u32 v14, %d, v11" % T[t])
            a("v_cmp_le_u32 vcc, %d, v1" % (t * nr))
            a("s_nop 1")
            a("v_cndmask_b32 v13, v13, v%d, vcc" % (14 if t < len(T) else 12))
        a("s_movk_i32 s97, 128")
        a("s_cmp_eq_u32 s3, 0")
        a("s_cselect_b64 s[68:69], s[8:9], s[12:13]")
        a("s_cselect_b64 s[70:71], s[10:11], s[14:15]")
        a("s_cselect_b32 s97, s97, %d" % (64 * self.ldw))
        a("s_cselect_b64 vcc, -1, 0")
        a("s_cmp_ge_u32 s3, 2")
        a("s_cselect_b32 s70, 0, s70")
        a("v_cndmask_b32 v15, v13, v10, vcc")
        a("s_mul_i32 s96, s97, %d" % pf["first"])
        for d in range(pf["first"], D):
            self.pf_issue(a)

    def pf_issue(self, a):
        a("buffer_load_dword v%d, v15, s[68:71], s96 offen" % self.PFD)
        a("s_add_u32 s96, s96, s97")

    def stamp(self, a, i):
        if DBG["stamp"]:
            a("s_memtime s[%d:%d]" % (80 + 2 * i, 81 + 2 * i))
            if i == 0:
                a("s_memrealtime s[76:77]")
                for j in range(1, 8): a("s_mov_b64 s[%d:%d], 0" % (80 + 2 * j, 81 + 2 * j))

    def stamp_out(self, a):
        if DBG["stamp"]:
            a("s_waitcnt vmcnt(0)")
            self.stamp(a, 7)
            a("s_memrealtime s[78:79]")
            a("s_waitcnt lgkmcnt(0)")
            a("s_mov_b64 exec, 1")
            a("s_lshl_b32 s6, s2, 3"); a("s_add_u32 s6, s6, s3"); a("s_lshl_b32 s6, s6, 7")
            a("s_add_u32 s6, s6, %s" % hex(STAMP_OFF + KIDX[self.name] * 0x80000))
            srd(a, 8, P_WS, "s6", 128)
            a("v_mov_b32 v1, 0")
            for i in range(20):
                a("v_mov_b32 v2, s%d" % (76 + i))
                a("buffer_store_dword v2, v1, s[8:11], 0 offen offset:%d" % (4 * i))

    def emit(self, a, tilemap, setup, cpro, lpro, epi, lepi=None, common=None):
        kn = self.name + "_kernel"
        kernel_head(a, kn)
        end = a.newlabel(self.name + "_end")
        ldr = a.newlabel(self.name + "_ldr")
        xl = a.newlabel(self.name + "_x")
        a("s_cmp_ge_u32 s2, %d" % self.ntiles)
        a("s_cbranch_scc1 %s" % (xl if self.extra else end))
        load_kernargs(a)
        a("v_lshrrev_b32 v1, 6, v0")
        tilemap(a)
        a("v_readfirstlane_b32 s3, v1")
        a("s_waitcnt lgkmcnt(0)")
        self.stamp(a, 0)
        setup(a)
        a("s_cmp_ge_u32 s3, 4")
        a("s_cbranch_scc1 %s" % ldr)
        if self.prio: a("s_setprio %d" % self.prio)
        a("v_and_b32 v1, 63, v0")
        if self.cpro0: self.cpro0(a)
        self.npf = 0
        if self.pf and self.pf["D"]:
            self.pf_setup(a); self.npf = self.pf["D"] - self.pf["first"]
        self.compute_addr(a)
        cpro(a)
        self.compute_main(a)
        self.stamp(a, 2)
        epi(a)
        if common:
            cl = a.newlabel(self.name + "_com")
            a("s_branch %s" % cl)
        else:
            self.stamp_out(a)
            a("s_endpgm")
        a.label(ldr)
        self.loader_setup(a)
        lpro(a)
        self.loader_main(a)
        if lepi: lepi(a)
        if common:
            a.label(cl)
            common(a)
        self.stamp_out(a)
        a.label(end)
        a("s_endpgm")
        for lo, lb, fn in self.ool:
            a.label(lo)
            fn(a)
            a("s_branch %s" % lb)
        if self.extra:
            a.label(xl)
            self.extra(a, end)
            a("s_endpgm")
        return kn


def xw_srds2(a, g, xp, xoff, wp, woff, wtotal, colbytes, shadow=0):
    ldx = g.ldx
    a("s_mul_i32 s6, s4, %d" % (g.BM * ldx))
    if xoff: a("s_add_u32 s6, s6, %s" % hex(xoff))
    srd(a, 8, xp, "s6", g.BM * ldx)
    a("s_mul_i32 s6, s5, %d" % colbytes)
    a("s_sub_u32 s7, %s, s6" % hex(wtotal))
    if woff: a("s_add_u32 s6, s6, %s" % hex(woff))
    if shadow:
        a("s_and_b32 s14, s5, 7"); a("s_cmp_eq_u32 s14, 3")
        a("s_cselect_b64 s[12:13], %s, %s" % (sr(ptr(P_WS), 2), sr(ptr(wp), 2)))
        a("s_cselect_b32 s14, %s, 0" % hex(shadow + 128))
        a("s_add_u32 s6, s6, s14")
        a("s_add_u32 s12, s12, s6"); a("s_addc_u32 s13, s13, 0")
        a("s_mov_b32 s14, s7"); a("s_mov_b32 s15, 0x00020000")
    else:
        srd(a, 12, wp, "s6", "s7")

def shadow_voff(a, vd, vt, tmp):
    a("v_lshrrev_b32 v%d, 3, v%d" % (vd, vt)); a("v_and_b32 v%d, 7, v%d" % (tmp, vt))
    a("v_lshlrev_b32 v%d, 10, v%d" % (vd, vd)); a("v_lshl_add_u32 v%d, v%d, 4, v%d" % (vd, tmp, vd))
    a("v_add_u32 v%d, 384, v%d" % (vd, vd))

def shadow_srd(a, sd, shadow, slice_bytes, wg):
    a("s_mul_i32 s6, %s, %d" % (wg, slice_bytes))
    a("s_add_u32 s6, s6, %s" % hex(shadow + 128))
    srd(a, sd, P_WS, "s6", slice_bytes)


def touch(a, p, slice_bytes, wg, vtid, sd, vd, off=0):
    a("s_mul_i32 s6, %s, %d" % (wg, slice_bytes))
    if off: a("s_add_u32 s6, s6, %d" % off)
    srd(a, sd, p, "s6", slice_bytes)
    a("buffer_load_dword v%d, v%d, %s, 0 offen" % (vd, vtid, sr(sd, 4)))

Stamper.stamp = Gemm2.stamp
Stamper.stamp_out = Gemm2.stamp_out


def lmap(j):
    return j + (j + 4) // 7

def s_lmap(a, dst, src, tmp, bytes_in=True):
    if bytes_in:
        a("s_lshr_b32 s%d, s%d, 7" % (tmp, src)); a("s_add_u32 s%d, s%d, 4" % (tmp, tmp))
    else:
        a("s_add_u32 s%d, s%d, 4" % (tmp, src))
    a("s_mul_i32 s%d, s%d, 37" % (tmp, tmp)); a("s_lshr_b32 s%d, s%d, 8" % (tmp, tmp))
    if bytes_in:
        a("s_lshl_b32 s%d, s%d, 7" % (tmp, tmp)); a("s_add_u32 s%d, s%d, s%d" % (dst, src, tmp))
    else:
        a("s_add_u32 s%d, s%d, s%d" % (dst, src, tmp)); a("s_lshl_b32 s%d, s%d, 7" % (dst, dst))

def red8(a, xs):
    for m in ("quad_perm:[1,0,3,2]", "quad_perm:[2,3,0,1]", "row_half_mirror"):
        if len(xs) < 3: a("s_nop 1")
        for x in xs:
            a("v_add_f32_dpp v%d, v%d, v%d %s row_mask:0xf bank_mask:0xf" % (x, x, x, m))


def code_touch(a, start, end, sd, voff, vd, back=False):
    lp = a.newlabel("pc")
    a("s_getpc_b64 %s" % sr(sd, 2))
    a.label(lp)
    if back:
        a("s_sub_u32 s%d, s%d, %s-%s" % (sd, sd, lp, start))
        a("s_subb_u32 s%d, s%d, 0" % (sd + 1, sd + 1))
    else:
        a("s_add_u32 s%d, s%d, %s-%s" % (sd, sd, start, lp))
        a("s_addc_u32 s%d, s%d, 0" % (sd + 1, sd + 1))
    a("s_mov_b32 s%d, %s-%s" % (sd + 2, end, start))
    a("s_mov_b32 s%d, 0x00020000" % (sd + 3))
    a("buffer_load_dword v%d, v%d, %s, 0 offen" % (vd, voff, sr(sd, 4)))
```

```python
from gen2 import *
from kernels import bf16_round, multi_swap_red, multi_dpp_red, stats_from_sums
import kernels as K1

WS_UV = 0x10000
WS_XCH = 0x80000
WS_H1 = 0x3000000
WS_Y = 0x3800000
LP = 4096
CFG = dict(S2=4, S3=4, S4=3, S5=4, S6=4, D=0, F=1, PF=1, ST=0, CT=1, SH=1, ET=1, HP=4, IK=0, IF=1, LPR=3, PG=10, H2S=100, H2W=44, H1W=16, NP=1, ZW=4, ACK=0, SPB=0x40000)

def ctouch(a, start, end):
    if CFG["CT"]:
        a("v_and_b32 v2, 255, v0"); a("v_lshlrev_b32 v2, 7, v2")
        code_touch(a, start, end, 68, 2, 3, True)


WS_MP1 = 0x20000
WS_MP2 = 0x30000
XK_SB = 16 * 1024
WS_XK = 0x100000
WS_XR = WS_XK + 256 * XK_SB
XR_CB = 8192 + 8192 + 256
XK_INIT = XK_SB + (16 * XR_CB + 255) // 256 // 16 * 16 + 16
WS_SQ = 0x5000000
WS_SO = 0x5800000
WS_SW = 0x5C00000

def xk_init(a, sd, vm1, v16):
    a("s_mul_i32 s6, s2, %d" % XK_INIT); a("s_add_u32 s6, s6, %s" % hex(WS_XK))
    srd(a, sd, P_WS, "s6", XK_INIT)
    for k in range(3):
        a("s_mov_b32 s6, %d" % (8192 * k))
        a("buffer_store_dwordx4 %s, v%d, %s, s6 offen%s" % (vr(vm1, 4), v16, sr(sd, 4), ["", " sc1", " nt", " sc0 sc1"][CFG["IF"]]))

def sum8(a, b):
    a("v_add_f32 v%d, v%d, v%d" % (b, b, b + 1)); a("v_add_f32 v%d, v%d, v%d" % (b + 2, b + 2, b + 3))
    a("v_add_f32 v%d, v%d, v%d" % (b + 4, b + 4, b + 5)); a("v_add_f32 v%d, v%d, v%d" % (b + 6, b + 6, b + 7))
    a("v_add_f32 v%d, v%d, v%d" % (b, b, b + 2)); a("v_add_f32 v%d, v%d, v%d" % (b + 4, b + 4, b + 6))
    a("v_add_f32 v%d, v%d, v%d" % (b, b, b + 4))

class ModTile:
    def __init__(self, n, base, wsrd, csrd, sbase):
        self.n = n; self.C = base; self.E = base + n; self.W = (base + 2 * n + 3) // 4 * 4
        self.T = self.W + 4 * n; self.AC = self.T + 8; self.vo = self.AC + 8; self.end = self.vo + 2
        self.wsrd, self.csrd, self.sb = wsrd, csrd, sbase
    def issue(self, a, s_row0, s_colb):
        a("v_lshrrev_b32 v%d, 3, v0" % self.vo)
        a("v_add_u32 v%d, %s, v%d" % (self.vo, s_row0, self.vo))
        a("s_movk_i32 s6, 0x3000")
        a("v_mul_lo_u32 v%d, s6, v%d" % (self.vo + 1, self.vo))
        a("v_lshlrev_b32 v%d, 1, v%d" % (self.vo, self.vo))
        a("v_and_b32 v%d, 7, v0" % self.T)
        a("v_lshl_add_u32 v%d, v%d, 4, v%d" % (self.vo + 1, self.T, self.vo + 1))
        for i in range(self.n):
            a("buffer_load_ushort v%d, v%d, %s, 0 offen offset:%d" % (self.C + i, self.vo, sr(self.csrd, 4), 128 * i))
        for i in range(self.n):
            a("s_add_u32 s%d, %s, %d" % (self.sb + i, s_colb, i * 64 * 12288))
            a("buffer_load_dwordx4 %s, v%d, %s, s%d offen" % (vr(self.W + 4 * i, 4), self.vo + 1, sr(self.wsrd, 4), self.sb + i))
        return 2 * self.n
    def compute(self, a, younger, lds):
        n, C, E = self.n, self.C, self.E
        a("s_mov_b32 s6, %s" % hex(f32bits(-LOG2E)))
        a("s_waitcnt vmcnt(%d)" % (n + younger))
        for i in range(n): a("v_lshlrev_b32 v%d, 16, v%d" % (C + i, C + i))
        for i in range(n): a("v_mul_f32 v%d, s6, v%d" % (E + i, C + i))
        for i in range(n): a("v_exp_f32 v%d, v%d" % (E + i, E + i))
        a("s_nop 0")
        for i in range(n): a("v_add_f32 v%d, 1.0, v%d" % (E + i, E + i))
        for i in range(n): a("v_rcp_f32 v%d, v%d" % (E + i, E + i))
        a("s_nop 0")
        for i in range(n): a("v_mul_f32 v%d, v%d, v%d" % (C + i, C + i, E + i))
        for i in range(n): a("v_cvt_pk_bf16_f32 v%d, v%d, v%d" % (C + i, C + i, C + i))
        for i in range(n): a("v_lshlrev_b32 v%d, 16, v%d" % (C + i, C + i))
        for i in range(n):
            a("s_waitcnt vmcnt(%d)" % (n - 1 - i + younger))
            for d in range(4): unpack2(a, self.T + 2 * d, self.W + 4 * i + d)
            for e in range(8):
                if i == 0: a("v_mul_f32 v%d, v%d, v%d" % (self.AC + e, C, self.T + e))
                else: a("v_fmac_f32 v%d, v%d, v%d" % (self.AC + e, C + i, self.T + e))
        xs = list(range(self.AC, self.AC + 8)); ts = list(range(self.T, self.T + 8))
        multi_dpp_red(a, xs, [8])
        multi_swap_red(a, "v_add_f32", 16, xs, ts)
        multi_swap_red(a, "v_add_f32", 32, xs, ts)
        a("s_lshl_b32 s6, s3, 8"); a("s_add_u32 s6, s6, %d" % lds)
        a("v_and_b32 v%d, 7, v0" % self.vo)
        a("v_lshl_add_u32 v%d, v%d, 5, s6" % (self.vo, self.vo))
        a("s_mov_b64 exec, 0xff")
        a("ds_write_b128 v%d, %s" % (self.vo, vr(self.AC, 4)))
        a("ds_write_b128 v%d, %s offset:16" % (self.vo, vr(self.AC + 4, 4)))
        a("s_mov_b64 exec, -1")
    def finish(self, a, lds, osrd, s_off):
        a("v_lshlrev_b32 v%d, 2, v2" % self.vo)
        for w in range(8): a("ds_read_b32 v%d, v%d offset:%d" % (self.T + w, self.vo, lds + 256 * w))
        a("s_waitcnt lgkmcnt(0)")
        sum8(a, self.T)
        a("buffer_store_dword v%d, v%d, %s, %s offen" % (self.T, self.vo, sr(osrd, 4), s_off))

def k0(a):
    kn = "k0_kernel"
    kernel_head(a, kn)
    end = a.newlabel("k0_end")
    a("s_cmp_ge_u32 s2, 256")
    a("s_cbranch_scc1 %s" % end)
    load_kernargs(a)
    a("v_lshrrev_b32 v1, 6, v0")
    a("v_and_b32 v2, 63, v0")
    a("v_readfirstlane_b32 s3, v1")
    a("s_and_b32 s4, s2, 31"); a("s_lshl_b32 s4, s4, 7")
    a("s_lshr_b32 s5, s2, 5"); a("s_lshl_b32 s5, s5, 7")
    a("v_lshlrev_b32 v3, 4, v2")
    a("s_lshl_b32 s7, s2, 3"); a("s_add_u32 s7, s7, s3")
    a("s_lshl_b32 s32, s7, 11")
    a("s_waitcnt lgkmcnt(0)")
    srd(a, 8, P_WMOD, 0, 1024 * 6144 * 2)
    srd(a, 12, P_C, 0, 2048)
    srd(a, 16, P_X, 0, 2048 * 2048)
    mt = ModTile(2, 72, 8, 12, 20)
    mt.issue(a, "s5", "s4")
    a("buffer_load_dwordx4 v[8:11], v3, s[16:19], s32 offen")
    a("buffer_load_dwordx4 v[12:15], v3, s[16:19], s32 offen offset:1024")
    y = 2
    if CFG["PF"]:
        a("v_lshlrev_b32 v4, 7, v0")
        touch(a, P_WQKV, 24576, "s2", 4, 24, 5); y += 1
        if CFG["SH"]:
            shadow_voff(a, 32, 0, 33)
            a("buffer_load_dwordx4 v[36:39], v32, s[24:27], 0 offen"); y += 1
            shadow_srd(a, 96, WS_SQ, 24576, "s2")
        if CFG["CT"]:
            code_touch(a, "k1_kernel", "L_code_end", 24, 4, 7); y += 1
    a("s_lshl_b32 s6, s2, 10"); a("s_add_u32 s6, s6, %s" % hex(WS_XCH))
    srd(a, 28, P_WS, "s6", 1024)
    a("v_lshlrev_b32 v4, 4, v0")
    for e in range(4): a("v_mov_b32 v%d, -1" % (64 + e))
    a("buffer_store_dwordx4 v[64:67], v4, s[28:31], 0 offen")
    if CFG["IK"] == 0:
        xk_init(a, 28, 64, 4)
        y += 3
    a("s_mul_i32 s6, s2, 192"); a("s_add_u32 s6, s6, %s" % hex(WS_SUM2))
    srd(a, 64, P_WS, "s6", 192)
    for e in range(4): a("v_mov_b32 v%d, 0" % (68 + e))
    a("buffer_store_dwordx4 v[68:71], v4, s[64:67], 0 offen")
    y += 2
    srd(a, 68, P_WS, WS_MP1, 65536)
    srd(a, 72, P_WS, WS_ST1, 16384)
    mt.compute(a, y, 0)
    a("s_waitcnt lgkmcnt(0)")
    a("s_barrier")
    nf = a.newlabel("k0_nf")
    a("s_cmp_lg_u32 s3, 0")
    a("s_cbranch_scc1 %s" % nf)
    a("s_lshl_b32 s5, s5, 6"); a("s_lshl_b32 s4, s4, 1"); a("s_add_u32 s4, s4, s5")
    mt.finish(a, 0, 68, "s4")
    a.label(nf)
    a("s_waitcnt vmcnt(%d)" % (y - 2))
    U = 16
    for d in range(8): unpack2(a, U + 2 * d, 8 + d)
    a("v_pk_add_f32 v[64:65], %s, %s" % (vr(U, 2), vr(U + 2, 2)))
    a("v_pk_add_f32 v[66:67], %s, %s" % (vr(U + 4, 2), vr(U + 6, 2)))
    a("v_pk_add_f32 v[68:69], %s, %s" % (vr(U + 8, 2), vr(U + 10, 2)))
    a("v_pk_add_f32 v[70:71], %s, %s" % (vr(U + 12, 2), vr(U + 14, 2)))
    a("v_pk_add_f32 v[64:65], v[64:65], v[66:67]")
    a("v_pk_add_f32 v[68:69], v[68:69], v[70:71]")
    a("v_pk_add_f32 v[64:65], v[64:65], v[68:69]")
    a("v_add_f32 v64, v64, v65")
    multi_dpp_red(a, [64], [1, 2, 4, 8])
    multi_swap_red(a, "v_add_f32", 16, [64], [65])
    multi_swap_red(a, "v_add_f32", 32, [64], [65])
    a("s_mov_b32 s6, %s" % hex(f32bits(1.0 / 1024)))
    a("v_mul_f32 v64, s6, v64")
    for k in range(8):
        b = U + 2 * k
        a("v_pk_add_f32 %s, %s, v[64:65] op_sel_hi:[1,0] neg_lo:[0,1] neg_hi:[0,1]" % (vr(b, 2), vr(b, 2)))
    a("v_pk_mul_f32 v[66:67], %s, %s" % (vr(U, 2), vr(U, 2)))
    a("v_pk_mul_f32 v[68:69], %s, %s" % (vr(U + 2, 2), vr(U + 2, 2)))
    for k in range(2, 8):
        t = 66 + 2 * (k & 1)
        a("v_pk_fma_f32 %s, %s, %s, %s" % (vr(t, 2), vr(U + 2 * k, 2), vr(U + 2 * k, 2), vr(t, 2)))
    a("v_pk_add_f32 v[66:67], v[66:67], v[68:69]")
    a("v_add_f32 v66, v66, v67")
    multi_dpp_red(a, [66], [1, 2, 4, 8])
    multi_swap_red(a, "v_add_f32", 16, [66], [67])
    multi_swap_red(a, "v_add_f32", 32, [66], [67])
    a("v_mov_b32 v6, %s" % hex(f32bits(1e-5)))
    a("v_fma_f32 v66, v66, s6, v6")
    a("v_rsq_f32 v66, v66")
    a("s_lshl_b32 s7, s7, 3")
    a("v_mov_b32 v6, 0")
    a("v_mul_f32 v67, -v64, v66")
    a("s_mov_b64 exec, 1")
    a("buffer_store_dwordx2 v[66:67], v6, s[72:75], s7 offen")
    if CFG["SH"]:
        a("s_mov_b64 exec, -1")
        a("s_waitcnt vmcnt(%d)" % (6 if CFG["IK"] == 0 else 3))
        a("buffer_store_dwordx4 v[36:39], v32, s[96:99], 0 offen")
    a.label(end)
    a("s_endpgm")
    return kn, mt.end, 256, 512, 2048

def k1(a):
    kn = "k1_kernel"
    kernel_head(a, kn)
    end = a.newlabel("k1_end")
    a("s_cmp_ge_u32 s2, 256")
    a("s_cbranch_scc1 %s" % end)
    load_kernargs(a)
    a("v_lshrrev_b32 v1, 6, v0")
    a("v_and_b32 v2, 63, v0")
    a("v_readfirstlane_b32 s3, v1")
    a("s_and_b32 s4, s2, 1"); a("s_lshl_b32 s4, s4, 3"); a("s_bfe_u32 s5, s2, 0x30001"); a("s_add_u32 s4, s4, s5")
    a("s_lshr_b32 s5, s2, 4")
    a("v_lshrrev_b32 v3, 3, v0")
    a("v_and_b32 v4, 7, v0")
    a("v_lshlrev_b32 v5, 11, v3"); a("v_lshl_add_u32 v5, v4, 4, v5")
    a("v_lshlrev_b32 v6, 3, v3")
    a("v_lshlrev_b32 v7, 2, v2"); a("v_lshl_add_u32 v7, v1, 12, v7")
    a("s_lshl_b32 s6, s4, 18"); a("s_lshl_b32 s7, s5, 7"); a("s_add_u32 s32, s6, s7")
    a("s_lshl_b32 s33, s5, 8"); a("s_add_u32 s33, s33, %s" % hex(WS_MP1))
    a("s_lshl_b32 s34, s4, 10"); a("s_add_u32 s34, s34, %s" % hex(WS_ST1))
    a("s_waitcnt lgkmcnt(0)")
    srd(a, 16, P_WS, "s33", 65536)
    srd(a, 8, P_X, "s32", 128 * 2048)
    srd(a, 12, P_WS, "s34", 1024)
    nc = a.newlabel("k1_nc")
    a("s_cmp_ge_u32 s3, 2")
    a("s_cbranch_scc1 %s" % nc)
    for p in range(8):
        a("s_mov_b32 s%d, %d" % (64 + p, p * 8192))
        a("buffer_load_dword v%d, v7, s[16:19], s%d offen" % (32 + p, 64 + p))
    a.label(nc)
    a("s_mov_b32 s6, %d" % (64 * 2048))
    a("buffer_load_dwordx4 v[8:11], v5, s[8:11], 0 offen")
    a("buffer_load_dwordx4 v[12:15], v5, s[8:11], s6 offen")
    a("buffer_load_dwordx2 v[16:17], v6, s[12:15], 0 offen")
    a("buffer_load_dwordx2 v[18:19], v6, s[12:15], 0 offen offset:512")
    srd(a, 20, P_WMOD, 0, 1024 * 6144 * 2)
    srd(a, 24, P_C, 0, 2048)
    a("s_and_b32 s35, s2, 63"); a("s_lshl_b32 s35, s35, 7"); a("s_add_u32 s7, s35, 4096")
    a("s_lshr_b32 s33, s2, 6"); a("s_lshl_b32 s33, s33, 8")
    mt = ModTile(4, 72, 20, 24, 72)
    y = mt.issue(a, "s33", "s7")
    s_lmap(a, 32, 5, 6, False)
    a("s_lshl_b32 s6, s4, 19"); a("s_add_u32 s32, s32, s6")
    a("s_add_u32 s32, s32, %s" % hex(WS_H1))
    srd(a, 28, P_WS, "s32", 128 * LP)
    a("v_lshlrev_b32 v3, 12, v3"); a("v_lshl_add_u32 v3, v4, 4, v3")
    nc2 = a.newlabel("k1_nc2")
    a("s_cmp_ge_u32 s3, 2")
    a("s_cbranch_scc1 %s" % nc2)
    a("s_waitcnt vmcnt(%d)" % (4 + y))
    sum8(a, 32)
    bf16_round(a, 32, 32)
    a("s_cmp_eq_u32 s3, 1"); a("s_cselect_b32 s6, 1.0, 0")
    a("v_add_f32 v32, s6, v32")
    bf16_round(a, 32, 32)
    a("v_lshlrev_b32 v7, 2, v0")
    a("ds_write_b32 v7, v32 offset:2048")
    a("s_waitcnt lgkmcnt(0)")
    a.label(nc2)
    a("s_barrier")
    a("v_lshlrev_b32 v7, 5, v4")
    SA = 32; CA = 40; U = 48
    a("ds_read_b128 %s, v7 offset:2048" % vr(SA, 4)); a("ds_read_b128 %s, v7 offset:2064" % vr(SA + 4, 4))
    a("ds_read_b128 %s, v7 offset:2304" % vr(CA, 4)); a("ds_read_b128 %s, v7 offset:2320" % vr(CA + 4, 4))
    a("s_waitcnt vmcnt(%d)" % y)
    for d in range(8): unpack2(a, U + 2 * d, 8 + d)
    for d in range(8):
        t = vr(U + 2 * d, 2); st = vr(16 + 2 * (d >> 2), 2)
        a("v_pk_fma_f32 %s, %s, %s, %s op_sel:[0,0,1] op_sel_hi:[1,0,1]" % (t, t, st, st))
    a("s_waitcnt lgkmcnt(0)")
    for d in range(8):
        t = vr(U + 2 * d, 2)
        a("v_pk_fma_f32 %s, %s, %s, %s" % (t, t, vr(CA + 2 * (d & 3), 2), vr(SA + 2 * (d & 3), 2)))
    for d in range(8): a("v_cvt_pk_bf16_f32 v%d, v%d, v%d" % (8 + d, U + 2 * d, U + 2 * d + 1))
    a("s_mov_b32 s6, %d" % (64 * LP))
    a("buffer_store_dwordx4 v[8:11], v3, s[28:31], 0 offen")
    a("buffer_store_dwordx4 v[12:15], v3, s[28:31], s6 offen")
    yy = 2
    if CFG["IK"] == 1:
        a("v_lshlrev_b32 v5, 4, v0")
        for e in range(4): a("v_mov_b32 v%d, -1" % (16 + e))
        xk_init(a, 96, 16, 5); yy += 3
    mt.compute(a, yy, 0)
    srd(a, 16, P_WS, WS_MP2, 65536)
    a("s_waitcnt lgkmcnt(0)")
    a("s_barrier")
    a("s_cmp_lg_u32 s3, 0")
    a("s_cbranch_scc1 %s" % end)
    a("s_lshl_b32 s33, s33, 6"); a("s_lshl_b32 s35, s35, 1"); a("s_add_u32 s33, s33, s35")
    mt.finish(a, 0, 16, "s33")
    a("s_endpgm")
    a.label(end)
    a("s_endpgm")
    return kn, mt.end, 256, 512, 4096

def spin(a, name, issue, check, sleep=1, slot=None, wait=True):
    L = a.newlabel(name + "_l"); D = a.newlabel(name + "_d")
    a("s_mov_b32 s66, %d" % CFG["SPB"])
    a.label(L)
    issue(a)
    if wait: a("s_waitcnt vmcnt(0)")
    check(a)
    a("s_sub_u32 s66, s66, 1")
    a("s_cbranch_scc1 %s" % D)
    a("s_cbranch_vccz %s" % D)
    if sleep: a("s_sleep %d" % sleep)
    a("s_branch %s" % L)
    a.label(D)
    if slot and DBG["stamp"]:
        a("s_waitcnt lgkmcnt(0)")
        a("s_sub_u32 s66, 0x40000, s66")
        a("s_add_u32 s%d, s80, s66" % (80 + 2 * slot)); a("s_addc_u32 s%d, s81, 0" % (81 + 2 * slot))

def pspin(a, name, regs, issue, gap, slot=None):
    L = a.newlabel(name + "_l"); D = a.newlabel(name + "_d")
    n = len(regs)
    a("s_mov_b32 s66, %d" % CFG["SPB"])
    for k, r in enumerate(regs):
        issue(a, r)
        if k < n - 1: a("s_sleep %d" % gap)
    a.label(L)
    for k, r in enumerate(regs):
        a("s_waitcnt vmcnt(%d)" % (n - 1))
        a("v_cmp_eq_u32 vcc, -1, v%d" % r)
        a("s_sub_u32 s66, s66, 1")
        a("s_cbranch_scc1 %s" % D)
        a("s_cbranch_vccz %s" % D)
        issue(a, r)
    a("s_branch %s" % L)
    a.label(D)
    if slot and DBG["stamp"]:
        a("s_waitcnt lgkmcnt(0)")
        a("s_sub_u32 s66, 0x40000, s66")
        a("s_add_u32 s%d, s80, s66" % (80 + 2 * slot)); a("s_addc_u32 s%d, s81, 0" % (81 + 2 * slot))

def k2(a):
    g = Gemm2("k2", 128, 1024, 32, 2, 2, LP, 6144, 256, CFG["S2"],
              [(8, [(0, 0)]), (8, [(0, 2048)]), (8, [(0, 4096)])])
    lds = max(g.LDS_MAIN, 81920)
    g.xskip = True
    WF = g.CFREE
    TR = WF + 8
    RAW = WF + 12
    VIM = 2 * 24576; KVF = 65536; ZF = KVF + 8192
    g.pf = None
    def setup(a):
        xw_srds2(a, g, P_WS, WS_H1, P_WQKV, 0, 1024 * 6144, 128, WS_SQ * CFG["SH"])
        a("s_lshl_b32 s6, s5, 12")
        srd(a, 24, P_WPHI, "s6", 4096)
        a("s_mul_i32 s6, s5, %d" % (16 * XK_SB)); a("s_add_u32 s6, s6, %s" % hex(WS_XK))
        srd(a, 16, P_WS, "s6", 16 * XK_SB)
        a("s_mul_i32 s6, s5, %d" % XR_CB); a("s_add_u32 s6, s6, %s" % hex(WS_XR))
        srd(a, 20, P_WS, "s6", XR_CB)
    def cpro(a):
        a("v_and_b32 v10, 0x13, v1")
        a("v_bfe_u32 v11, v1, 2, 1"); a("v_lshl_add_u32 v10, v11, 3, v10")
        a("v_bfe_u32 v11, v1, 3, 1"); a("v_lshl_add_u32 v10, v11, 2, v10")
        a("v_lshlrev_b32 v10, 1, v10")
        a("v_lshrrev_b32 v11, 5, v1"); a("v_lshl_add_u32 v10, v11, 9, v10")
        a("s_lshl_b32 s6, s35, 11")
        for t in range(2):
            for e in range(8):
                a("buffer_load_ushort v%d, v10, s[24:27], s6 offen offset:%d" % (RAW + 8 * t + e, (16 * t + e) * 64))
        s_lmap(a, 32, 5, 6, False)
        a("s_lshl_b32 s6, s4, 19"); a("s_add_u32 s32, s32, s6")
        a("s_add_u32 s32, s32, %s" % hex(WS_O)); srd(a, 28, P_WS, "s32", 128 * LP)
        a("v_bfe_u32 v10, v1, 2, 2")
        a("v_lshrrev_b32 v13, 5, v1")
        a("v_lshl_add_u32 v10, v13, 3, v10")
        a("v_bfe_u32 v11, v1, 4, 1"); a("v_lshlrev_b32 v11, 5, v11")
        a("v_and_b32 v12, 1, v1"); a("v_lshl_add_u32 v11, v12, 4, v11")
        a("v_bfe_u32 v12, v1, 1, 1"); a("v_lshl_add_u32 v11, v12, 3, v11")
        a("s_lshr_b32 s33, s3, 1")
        a("s_lshl_b32 s6, s35, 13"); a("s_add_u32 s6, s6, %d" % VIM)
        a("v_lshl_add_u32 v%d, v10, 6, v11" % TR); a("v_add_u32 v%d, s6, v%d" % (TR, TR))
        a("s_mul_i32 s6, s35, 24576"); a("s_lshl_b32 s7, s33, 6"); a("s_add_u32 s6, s6, s7")
        a("v_mul_u32_u24 v10, 192, v10"); a("v_add3_u32 v%d, v10, v11, s6" % (TR + 1))
        a("v_and_b32 v10, 31, v1"); a("v_lshlrev_b32 v10, 4, v10")
        a("v_lshl_add_u32 v%d, v13, 14, v10" % (TR + 2))
        a("s_lshl_b32 s6, s35, 1"); a("s_add_u32 s6, s6, s33")
        a("s_lshl_b32 s7, s6, 16"); a("s_lshl_b32 s32, s4, 10"); a("s_add_u32 s72, s7, s32")
        a("s_add_u32 s73, s72, %d" % (2 * XK_SB))
        a("s_lshl_b32 s6, s6, 7"); a("s_lshl_b32 s7, s4, 9"); a("s_add_u32 s74, s6, s7"); a("s_add_u32 s74, s74, 8192")
        a("v_and_b32 v10, 0x13, v1")
        a("v_bfe_u32 v11, v1, 2, 1"); a("v_lshl_add_u32 v10, v11, 3, v10")
        a("v_bfe_u32 v11, v1, 3, 1"); a("v_lshl_add_u32 v10, v11, 2, v10")
        a("v_lshlrev_b32 v%d, 2, v10" % (TR + 3))
        a("s_lshl_b32 s96, s4, 2"); a("s_add_u32 s96, s96, 16384")
        a("s_cmp_eq_u32 s3, 0"); a("s_cselect_b64 s[98:99], 1, 0")
        a("v_mov_b32 v14, 0")
    def lpro(a):
        g.loader_first(a)
        ctouch(a, "k2_kernel", "k4_kernel")
    def hint(a):
        a("s_mov_b64 exec, s[98:99]")
        a("buffer_store_dword v14, v14, s[20:23], s96 offen sc1")
        a("s_mov_b64 exec, -1")
    def kvphase(a):
        KV = g.acc(1, 0); Z = g.acc(1, 1); FA = g.acc(2, 0); ON = RAW
        for half in range(2):
            for t in range(4):
                T = half * 4 + t
                for q in range(2):
                    a("ds_read_b64_tr_b16 %s, v%d offset:%d" % (vr(FA + 8 * t + 2 * q, 2), TR + 1, (16 * T + 4 * q) * 192))
                    a("ds_read_b64_tr_b16 %s, v%d offset:%d" % (vr(FA + 8 * t + 4 + 2 * q, 2), TR, (16 * T + 4 * q) * 64))
            if half == 0:
                for e in range(4): a("v_mov_b32 v%d, 0x3f803f80" % (ON + e))
            if half + 2 == CFG["HP"]: hint(a)
            if DBG["stamp"] and half == 0: a("s_waitcnt lgkmcnt(0)")
            for t in range(4):
                a("s_waitcnt lgkmcnt(%d)" % (12 - 4 * t))
                first = half == 0 and t == 0
                a("v_mfma_f32_32x32x16_bf16 %s, %s, %s, %s" % (vr(KV, 16), vr(FA + 8 * t, 4), vr(FA + 8 * t + 4, 4), "0" if first else vr(KV, 16)))
                a("v_mfma_f32_32x32x16_bf16 %s, %s, %s, %s" % (vr(Z, 16), vr(ON, 4), vr(FA + 8 * t, 4), "0" if first else vr(Z, 16)))
        if CFG["HP"] == 4: hint(a)
        a("s_nop 10")
        for q in range(4):
            a("buffer_store_dwordx4 %s, v%d, s[16:19], s%d offen offset:%d sc1" % (vr(KV + 4 * q, 4), TR + 2, 72 + (q >> 1), (q & 1) * 512))
        a("s_mov_b32 exec_hi, 0")
        a("buffer_store_dword v%d, v%d, s[20:23], s74 offen sc1" % (Z, TR + 3))
        a("s_mov_b64 exec, -1")
        if CFG["ACK"] & 1: a("s_waitcnt vmcnt(0)")
        if CFG["HP"] == 5: hint(a)
    def epi(a):
        P = g.FR
        a("s_waitcnt vmcnt(0)")
        for e in range(8):
            a("v_lshl_or_b32 v%d, v%d, 16, v%d" % (WF + e, RAW + 1 + 2 * e, RAW + 2 * e))
        a("s_mov_b32 s70, %s" % hex(f32bits(LOG2E))); a("s_mov_b32 s71, s70")
        a("v_and_b32 v4, 31, v1"); a("v_add_u32 v4, s34, v4")
        a("v_lshrrev_b32 v5, 5, v1"); a("v_lshlrev_b32 v5, 4, v5")
        a("s_mul_i32 s32, s35, 24576"); a("s_lshl_b32 s33, s35, 13"); a("s_add_u32 s33, s33, %d" % VIM)
        a("v_mul_u32_u24 v6, 192, v4"); a("v_add3_u32 v6, v6, v5, s32")
        a("v_lshl_add_u32 v7, v4, 6, v5"); a("v_add_u32 v7, s33, v7")
        for i in range(2):
            for j in range(2):
                for e in range(8):
                    A = g.acc(i, j)
                    a("v_cvt_pk_bf16_f32 v%d, v%d, v%d" % (P + (i * 2 + j) * 8 + e, A + 2 * e, A + 2 * e + 1))
        for i in (1, 0):
            for j in range(2):
                A = g.acc(i, j); pk = P + (i * 2 + j) * 8
                a("v_mfma_f32_32x32x16_bf16 %s, %s, %s, 0" % (vr(A, 16), vr(WF, 4), vr(pk, 4)))
                a("v_mfma_f32_32x32x16_bf16 %s, %s, %s, %s" % (vr(A, 16), vr(WF + 4, 4), vr(pk + 4, 4), vr(A, 16)))
        for j in range(2):
            A = g.acc(2, j)
            for e in range(8):
                a("v_cvt_pk_bf16_f32 v%d, v%d, v%d" % (P + 32 + e, A + 2 * e, A + 2 * e + 1))
            for t in range(2):
                a("ds_write_b128 v7, %s offset:%d" % (vr(P + 32 + 4 * t, 4), j * 32 * 64 + t * 32))
            if j == 0: a("s_nop 1")
        EN = g.acc(2, 0)
        for i in (1, 0):
            for j in range(2):
                A = g.acc(i, j); pk = P + (i * 2 + j) * 8
                a("v_max3_f32 v10, v%d, v%d, v%d" % (A, A + 1, A + 2))
                a("v_min3_f32 v12, v%d, v%d, v%d" % (A, A + 1, A + 2))
                for e in range(3, 15, 2):
                    a("v_max3_f32 v10, v10, v%d, v%d" % (A + e, A + e + 1))
                    a("v_min3_f32 v12, v12, v%d, v%d" % (A + e, A + e + 1))
                a("v_max_f32 v10, v10, v%d" % (A + 15))
                a("v_min_f32 v12, v12, v%d" % (A + 15))
                a("v_mov_b32 v11, v10"); a("v_mov_b32 v13, v12")
                a("s_nop 1")
                a("v_permlane32_swap_b32 v10, v11"); a("v_permlane32_swap_b32 v12, v13")
                a("v_max_f32 v10, v10, v11"); a("v_min_f32 v12, v12, v13")
                a("v_mul_f32 v10, s70, v10"); a("v_mul_f32 v12, s70, v12")
                for e in range(8):
                    a("v_pk_fma_f32 %s, %s, s[70:71], v[12:13] op_sel_hi:[1,1,0] neg_lo:[0,1,0] neg_hi:[0,1,0]" % (vr(EN + 2 * e, 2), vr(A + 2 * e, 2)))
                    a("v_pk_fma_f32 %s, %s, s[70:71], v[10:11] op_sel_hi:[1,1,0] neg_lo:[0,0,1] neg_hi:[0,0,1]" % (vr(A + 2 * e, 2), vr(A + 2 * e, 2)))
                for e in range(16):
                    a("v_exp_f32 v%d, v%d" % (A + e, A + e))
                    a("v_exp_f32 v%d, v%d" % (EN + e, EN + e))
                a("v_pk_add_f32 v[10:11], %s, %s" % (vr(A, 2), vr(A + 2, 2)))
                a("v_pk_add_f32 v[12:13], %s, %s" % (vr(EN, 2), vr(EN + 2, 2)))
                for e in range(2, 8):
                    a("v_pk_add_f32 v[10:11], v[10:11], %s" % vr(A + 2 * e, 2))
                    a("v_pk_add_f32 v[12:13], v[12:13], %s" % vr(EN + 2 * e, 2))
                a("v_add_f32 v10, v10, v11"); a("v_add_f32 v12, v12, v13")
                a("v_mov_b32 v11, v10"); a("v_mov_b32 v13, v12")
                a("s_nop 1")
                a("v_permlane32_swap_b32 v10, v11"); a("v_permlane32_swap_b32 v12, v13")
                a("v_add_f32 v10, v10, v11"); a("v_add_f32 v12, v12, v13")
                a("v_rcp_f32 v10, v10"); a("v_rcp_f32 v12, v12")
                a("s_nop 0")
                if i == 1 and j == 1 and CFG["HP"] == 0: hint(a)
                for e in range(8):
                    a("v_pk_mul_f32 %s, %s, v[10:11] op_sel_hi:[1,0]" % (vr(A + 2 * e, 2), vr(A + 2 * e, 2)))
                    a("v_pk_mul_f32 %s, %s, v[12:13] op_sel_hi:[1,0]" % (vr(EN + 2 * e, 2), vr(EN + 2 * e, 2)))
                for e in range(8):
                    a("v_cvt_pk_bf16_f32 v%d, v%d, v%d" % (pk + e, A + 2 * e, A + 2 * e + 1))
                for e in range(8):
                    a("v_cvt_pk_bf16_f32 v%d, v%d, v%d" % (A + e, EN + 2 * e, EN + 2 * e + 1))
                if i == 1:
                    for q in range(4):
                        src = vr(pk + 4 * q, 4) if q < 2 else vr(A + 4 * (q - 2), 4)
                        a("ds_write_b128 v6, %s offset:%d" % (src, j * 32 * 192 + q * 32))
                if i == 1 and j == 1:
                    if CFG["HP"] == 1: hint(a)
                    g.stamp(a, 3)
                    a("s_waitcnt lgkmcnt(0)")
                    a("s_barrier")
                    kvphase(a)
                    g.stamp(a, 4)
        a("s_lshl_b32 s6, s35, 12"); a("s_add_u32 s6, s6, %d" % KVF)
        a("v_lshl_add_u32 v6, v1, 4, s6")
        a("s_lshl_b32 s6, s35, 7"); a("s_add_u32 s6, s6, %d" % ZF)
        a("v_add_u32 v7, s6, v5")
        a("v_lshl_add_u32 v4, v4, 12, v5")
        a("s_lshl_b32 s6, s35, 6"); a("s_add_u32 s7, s6, %d" % (32 * LP))
        g.stamp(a, 5)
        a("s_barrier")
        g.stamp(a, 6)
        KV = g.acc(1, 0); Z = g.acc(1, 1); NUM = [g.acc(2, 0), RAW + 20]; DEN = [g.acc(2, 1), RAW + 36]
        for T in range(4): a("ds_read_b128 %s, v7 offset:%d" % (vr(Z + 4 * T, 4), T * 32))
        for T in range(4): a("ds_read_b128 %s, v6 offset:%d" % (vr(KV + 4 * T, 4), T * 1024))
        def phq(j, T): return vr(P + j * 8 + 4 * T, 4) if T < 2 else vr(g.acc(0, j) + 4 * (T - 2), 4)
        a("s_waitcnt lgkmcnt(%d)" % (0 if DBG["stamp"] else 4))
        for j in range(2):
            for T in range(4):
                a("v_mfma_f32_32x32x16_bf16 %s, %s, %s, %s" % (vr(DEN[j], 16), vr(Z + 4 * T, 4), phq(j, T), "0" if T == 0 else vr(DEN[j], 16)))
        a("s_waitcnt lgkmcnt(0)")
        for j in range(2):
            for T in range(4):
                a("v_mfma_f32_32x32x16_bf16 %s, %s, %s, %s" % (vr(NUM[j], 16), vr(KV + 4 * T, 4), phq(j, T), "0" if T == 0 else vr(NUM[j], 16)))
            if j == 0:
                for jj in range(2): a("v_add_f32 v%d, %s, v%d" % (8 + 2 * jj, hex(f32bits(1e-6)), DEN[jj]))
                for jj in range(2): a("v_rcp_f32 v%d, v%d" % (8 + 2 * jj, 8 + 2 * jj))
        for j in range(2):
            if j == 1: a("s_nop 2")
            for e in range(8):
                a("v_pk_mul_f32 %s, %s, %s op_sel_hi:[1,0]" % (vr(NUM[j] + 2 * e, 2), vr(NUM[j] + 2 * e, 2), vr(8 + 2 * j, 2)))
            for e in range(8):
                a("v_cvt_pk_bf16_f32 v%d, v%d, v%d" % (DEN[j] + e, NUM[j] + 2 * e, NUM[j] + 2 * e + 1))
            a("buffer_store_dwordx4 %s, v4, s[28:31], s%d offen" % (vr(DEN[j], 4), 6 + j))
            a("buffer_store_dwordx4 %s, v4, s[28:31], s%d offen offset:32" % (vr(DEN[j] + 4, 4), 6 + j))
    def etile(a):
        a("v_and_b32 v3, 255, v0"); a("v_lshlrev_b32 v2, 7, v3")
        a("s_cmp_lt_u32 s2, 16"); a("s_cselect_b32 s7, 0x10000, 0")
        srd(a, 8, P_WS, WS_MP2, "s7")
        a("s_lshl_b32 s6, s2, 10")
        a("v_lshl_add_u32 v6, v3, 2, s6")
        for p in range(4):
            a("s_mov_b32 s7, %d" % (p * 16384))
            a("buffer_load_dword v%d, v6, s[8:11], s7 offen" % (68 + p))
        touch(a, P_WO, 8192, "s2", 2, 8, 60)
        shadow_voff(a, 4, 3, 5)
        a("buffer_load_dwordx4 v[64:67], v4, s[8:11], 0 offen")
        touch(a, P_WIN, 28672, "s2", 2, 12, 61)
    g.etile = etile; g.etile_n = 7; g.etile_wait = False
    def lepi(a):
        PL = 144; FLG = ZF + 512
        a("v_lshlrev_b32 v7, 4, v1")
        a("s_lshl_b32 s6, s4, 14")
        a("v_add_u32 v16, s6, v7")
        for k in range(1, 4): a("v_add_u32 v%d, %d, v16" % (16 + k, 4096 * k))
        a("v_and_b32 v10, 15, v1")
        a("v_lshlrev_b32 v21, 2, v10"); a("v_add_u32 v21, 16384, v21")
        a("s_lshl_b32 s6, s4, 9")
        a("v_add_u32 v22, s6, v7")
        a("v_add_u32 v24, 4096, v7")
        a("v_lshlrev_b32 v25, 3, v1"); a("v_add_u32 v25, 8192, v25"); a("v_add_u32 v23, 4096, v25")
        a("v_add_u32 v26, %d, v7" % KVF)
        a("v_lshlrev_b32 v27, 2, v1"); a("v_add_u32 v27, %d, v27" % ZF)
        a("s_lshl_b32 s32, s4, 2"); a("s_add_u32 s32, s32, %d" % (16384 + 128))
        a("v_mov_b32 v28, 0"); a("v_mov_b32 v29, %d" % FLG)
        a("ds_write_b32 v29, v28")
        srd(a, 12, P_WS, WS_MOD + 8192, 16384)
        a("s_lshr_b32 s6, s2, 2"); a("s_cmp_eq_u32 s6, 2"); a("s_cselect_b32 s7, 1.0, 0")
        a("s_waitcnt vmcnt(3)")
        a("v_add_f32 v68, v68, v69"); a("v_add_f32 v70, v70, v71"); a("v_add_f32 v68, v68, v70")
        bf16_round(a, 68, 68)
        a("v_add_f32 v68, s7, v68")
        bf16_round(a, 68, 68)
        a("buffer_store_dword v68, v6, s[12:15], 0 offen")
        shadow_srd(a, 8, WS_SO, 8192, "s2")
        a("s_waitcnt vmcnt(2)")
        a("buffer_store_dwordx4 v[64:67], v4, s[8:11], 0 offen")
        a("s_setprio %d" % CFG["LPR"])
        a("s_waitcnt lgkmcnt(0)")
        a("s_barrier")
        g.stamp(a, 3)
        lz = a.newlabel("k2_lz"); lg = a.newlabel("k2_lg"); nr2 = a.newlabel("k2_nr2")
        a("s_cmp_eq_u32 s34, 1"); a("s_cbranch_scc1 %s" % lz)
        a("s_cmp_eq_u32 s34, 2"); a("s_cbranch_scc1 %s" % lg)
        a("s_cmp_eq_u32 s34, 3"); a("s_cbranch_scc1 %s" % nr2)
        a("s_sleep %d" % CFG["H1W"])
        pspin(a, "k2_h", [36, 37, 38, 39][:CFG["NP"]], lambda a, r: a("buffer_load_dword v%d, v21, s[20:23], 0 offen sc1" % r), CFG["PG"])
        a("ds_write_b32 v29, v29")
        g.stamp(a, 4)
        def hint2(a):
            a("s_mov_b64 exec, 1")
            a("buffer_store_dword v28, v28, s[20:23], s32 offen sc1")
            a("s_mov_b64 exec, -1")
        def r_issue(a):
            hx = 0
            for p in range(16):
                a("buffer_load_dwordx4 %s, v%d, s[16:19], 0 offen offset:%d sc1" % (vr(PL + 4 * p, 4), 16 + (p >> 2), (p & 3) * 1024))
            if CFG["H2S"] < 100:
                a("s_sleep %d" % CFG["H2S"])
                hint2(a); hx = 1
            for p in range(1, 16):
                a("s_waitcnt vmcnt(%d)" % (15 + hx - p))
                if p == 1 and CFG["H2S"] == 100: hint2(a); hx += 1
                for h in range(2): a("v_pk_add_f32 %s, %s, %s" % (vr(PL + 2 * h, 2), vr(PL + 2 * h, 2), vr(PL + 4 * p + 2 * h, 2)))
        def r_check(a):
            a("v_pk_add_f32 v[30:31], %s, %s" % (vr(PL, 2), vr(PL + 2, 2)))
            a("v_cvt_pk_bf16_f32 v32, v%d, v%d" % (PL, PL + 1)); a("v_cvt_pk_bf16_f32 v33, v%d, v%d" % (PL + 2, PL + 3))
            a("v_cmp_u_f32 vcc, v30, v31")
            a("v_mov_b32 v34, v32"); a("v_mov_b32 v35, v33")
        spin(a, "k2_r", r_issue, r_check, 0, 1, False)
        a("v_permlane32_swap_b32 v32, v34"); a("v_permlane32_swap_b32 v33, v35")
        a("s_mov_b32 exec_hi, 0")
        a("buffer_store_dwordx4 v[32:35], v22, s[20:23], 0 offen sc1")
        a("s_mov_b64 exec, -1")
        if CFG["H2S"] == 101: hint2(a)
        g.stamp(a, 5)
        a("s_branch %s" % nr2)
        a.label(lz)
        L = a.newlabel("k2_fl"); D = a.newlabel("k2_fd")
        a("s_mov_b32 s66, 0x1000000")
        a.label(L)
        a("s_sleep 2")
        a("ds_read_b32 v30, v29")
        a("s_waitcnt lgkmcnt(0)")
        a("v_cmp_eq_u32 vcc, 0, v30")
        a("s_sub_u32 s66, s66, 1")
        a("s_cbranch_scc1 %s" % D)
        a("s_cbranch_vccnz %s" % L)
        a.label(D)
        a("s_sleep %d" % CFG["ZW"])
        def z_issue(a):
            for p in range(16):
                a("buffer_load_dwordx2 %s, v%d, s[20:23], 0 offen offset:%d sc1" % (vr(PL + 2 * p, 2), 25 if p < 8 else 23, (p & 7) * 512))
            for p in range(1, 16):
                a("s_waitcnt vmcnt(%d)" % (15 - p))
                a("v_pk_add_f32 %s, %s, %s" % (vr(PL, 2), vr(PL, 2), vr(PL + 2 * p, 2)))
        spin(a, "k2_z", z_issue, lambda a: a("v_cmp_u_f32 vcc, v%d, v%d" % (PL, PL + 1)), 4, 2, False)
        a("v_cvt_pk_bf16_f32 v30, v%d, v%d" % (PL, PL + 1))
        a("ds_write_b32 v27, v30")
        a("s_waitcnt lgkmcnt(0)")
        g.stamp(a, 5)
        a("s_branch %s" % nr2)
        a.label(lg)
        a("s_sleep %d" % CFG["H2W"])
        pspin(a, "k2_h2", [40, 41, 42, 43][:CFG["NP"]], lambda a, r: a("buffer_load_dword v%d, v21, s[20:23], 0 offen offset:128 sc1" % r), CFG["PG"])
        g.stamp(a, 6)
        def g_issue(a):
            for i in range(8): a("buffer_load_dwordx4 %s, v%d, s[20:23], 0 offen offset:%d sc1" % (vr(PL + 4 * i, 4), 7 if i < 4 else 24, (i & 3) * 1024))
        def g_check(a):
            a("v_max3_u32 v30, v%d, v%d, v%d" % (PL + 1, PL + 3, PL + 5))
            a("v_max3_u32 v31, v%d, v%d, v%d" % (PL + 7, PL + 9, PL + 11))
            for k in range(2):
                a("v_max3_u32 v30, v30, v%d, v%d" % (PL + 13 + 8 * k, PL + 15 + 8 * k))
                a("v_max3_u32 v31, v31, v%d, v%d" % (PL + 17 + 8 * k, PL + 19 + 8 * k))
            a("v_max3_u32 v30, v30, v%d, v%d" % (PL + 29, PL + 31))
            a("v_max_u32 v30, v30, v31")
            a("v_cmp_eq_u32 vcc, -1, v30")
        spin(a, "k2_g", g_issue, g_check, 0, 2)
        for h in range(8): a("ds_write_b128 v26, %s offset:%d" % (vr(PL + 4 * h, 4), h * 1024))
        a("s_waitcnt lgkmcnt(0)")
        a.label(nr2)
        a("s_barrier")
    kn = g.emit(a, tilemap_16x16_r8c4, setup, cpro, lpro, epi, lepi)
    return kn, 256, 256, 512, lds

def rm_addr(a, vrow, vld, t):
    a("v_lshrrev_b32 v%d, 3, v1" % t)
    a("s_lshl_b32 s32, s3, 4")
    a("v_add_u32 v%d, s32, v%d" % (vrow, t))
    a("v_and_b32 v%d, 7, v1" % vld)
    a("v_lshlrev_b32 v%d, 1, v%d" % (vld, vld))
    a("v_xor_b32 v%d, v%d, v%d" % (vld, vld, t))
    a("v_lshlrev_b32 v%d, 4, v%d" % (vld, vld))
    a("v_lshl_add_u32 v%d, v%d, 8, v%d" % (vld, vrow, vld))
    a("v_xor_b32 v%d, 16, v%d" % (vld + 1, vld))

def stage32_addr(a, g, SA, t):
    a("v_and_b32 v%d, 31, v1" % t); a("v_add_u32 v%d, s34, v%d" % (t, t))
    a("v_lshrrev_b32 v%d, 5, v1" % SA); a("v_lshlrev_b32 v%d, 1, v%d" % (SA, SA))
    a("v_and_b32 v%d, 7, v1" % (SA + 1)); a("v_xor_b32 v%d, v%d, v%d" % (SA, SA, SA + 1))
    a("v_lshlrev_b32 v%d, 4, v%d" % (SA, SA)); a("v_lshl_add_u32 v%d, v%d, 8, v%d" % (SA, t, SA))
    if g.wgn == 2:
        a("s_lshl_b32 s6, s35, 7"); a("v_add_u32 v%d, s6, v%d" % (SA, SA))
    for k, x in enumerate((16, 64, 80)): a("v_xor_b32 v%d, %d, v%d" % (SA + 1 + k, x, SA))

def stage32(a, SA, tiles):
    a("s_nop 10")
    for A, off in tiles:
        for q in range(4):
            a("ds_write_b128 v%d, %s offset:%d" % (SA + q, vr(A + 4 * q, 4), off))

def compact8(a, dst, vals, vperm, sm):
    a("v_mov_b32 v%d, v%d" % (dst, vals[0]))
    for c in range(1, len(vals)):
        a("s_mov_b32 s%d, %s" % (sm, hex(0x01010101 << c))); a("s_mov_b32 s%d, s%d" % (sm + 1, sm))
        a("v_cndmask_b32 v%d, v%d, v%d, %s" % (dst, dst, vals[c], sr(sm, 2)))
    a("ds_bpermute_b32 v%d, v%d, v%d" % (dst, vperm, dst))

def k_res(a, name, K, xoff, wp, resp, resoff, gate_idx, outp, outoff, stats, S, shadow):
    g = Gemm2(name, 128, K, 32, 4, 1, LP, 2048, 256, S, [(8, [(0, 0)])])
    g.xskip = True
    RX = g.CFREE; GA = RX + 8; CB = GA + 8; VO2 = CB + 8; VO4 = VO2 + 1; VLD = VO2 + 2; VAT = VO2 + 4; VPM = VO2 + 5
    F = VO2 + 8; T = F + 16; SA = T + 16
    UVW = g.LDS_MAIN; TB = UVW + 32768
    lds = TB + 2048 if stats else g.LDS_MAIN
    def setup(a):
        xw_srds2(a, g, P_WS, xoff, wp, 0, K * 2048, 128, shadow * CFG["SH"])
        a("s_lshl_b32 s6, s4, 18"); a("s_lshl_b32 s7, s5, 7"); a("s_add_u32 s6, s6, s7")
        a("s_sub_u32 s7, %d, s6" % (2048 * 2048))
        if resoff:
            a("s_add_u32 s32, s6, %s" % hex(resoff)); srd(a, 16, resp, "s32", "s7")
        else:
            srd(a, 16, resp, "s6", "s7")
        if outoff:
            a("s_add_u32 s32, s6, %s" % hex(outoff)); srd(a, 20, outp, "s32", "s7")
        else:
            srd(a, 20, outp, "s6", "s7")
        if stats:
            s_lmap(a, 32, 5, 6, False)
            a("s_lshl_b32 s6, s4, 19"); a("s_add_u32 s32, s32, s6")
            a("s_add_u32 s32, s32, %s" % hex(WS_Y)); srd(a, 72, P_WS, "s32", 128 * LP)
            a("s_lshl_b32 s6, s4, 9"); a("s_add_u32 s6, s6, %s" % hex(WS_SUM2))
            srd(a, 28, P_WS, "s6", 8192 + 512)
        a("s_lshl_b32 s6, s5, 8"); a("s_add_u32 s6, s6, %d" % (WS_MOD + gate_idx * 4096))
        srd(a, 24, P_WS, "s6", 8192 + 256)
        a("s_movk_i32 s96, 0x4000")
        a("s_mov_b32 s97, 0x8000")
        a("s_movk_i32 s98, 0x2000")
    g.pf = None
    def rm_loads(a):
        rm_addr(a, VO4, VLD, 10)
        a("v_and_b32 v11, 7, v1")
        a("v_lshlrev_b32 v12, 5, v11"); a("v_lshlrev_b32 v11, 4, v11")
        a("v_lshl_add_u32 v%d, v%d, 11, v11" % (VO2, VO4))
        a("v_lshl_add_u32 v%d, v%d, 12, v11" % (VO4, VO4))
        a("buffer_load_dwordx4 %s, v%d, s[16:19], 0 offen" % (vr(RX, 4), VO2))
        a("buffer_load_dwordx4 %s, v%d, s[16:19], s96 offen" % (vr(RX + 4, 4), VO2))
        a("buffer_load_dwordx4 %s, v12, s[24:27], 0 offen" % vr(GA, 4))
        a("buffer_load_dwordx4 %s, v12, s[24:27], 0 offen offset:16" % vr(GA + 4, 4))
        if stats:
            a("buffer_load_dwordx4 %s, v12, s[24:27], s98 offen" % vr(CB, 4))
            a("buffer_load_dwordx4 %s, v12, s[24:27], s98 offen offset:16" % vr(CB + 4, 4))
            a("v_and_b32 v11, 7, v1"); a("v_lshlrev_b32 v11, 5, v11"); a("v_lshl_add_u32 v%d, v10, 2, v11" % VPM)
            a("v_and_b32 v11, 15, v1"); a("v_bfe_u32 v10, v1, 4, 1")
            a("s_lshl_b32 s32, s3, 6")
            a("v_lshl_add_u32 v11, v11, 2, s32"); a("v_lshl_add_u32 v%d, v10, 13, v11" % VAT)
            return 6
        return 4
    def cpro(a):
        stage32_addr(a, g, SA, 10)
    g.cpost0 = rm_loads
    def lpro(a):
        g.loader_first(a)
        ctouch(a, "k3_kernel" if stats else "k6_kernel", "k5_kernel" if stats else "L_code_end")
    UB = 144
    def etile(a):
        n = 0
        if stats:
            a("s_lshr_b32 s6, s2, 3")
            a("s_cmp_ge_u32 s6, 14"); a("s_cselect_b32 s7, 14, 0"); a("s_cselect_b32 s32, 1, 0")
            a("s_sub_u32 s7, s6, s7")
            a("s_and_b32 s33, s2, 1"); a("s_lshl_b32 s33, s33, 1"); a("s_add_u32 s32, s32, s33")
            a("s_cmp_ge_u32 s7, 7"); a("s_cselect_b32 s33, 21, 0"); a("s_add_u32 s33, s33, s7")
            a("s_bfe_u32 s6, s2, 0x20001"); a("s_mul_i32 s6, s6, 7"); a("s_add_u32 s33, s33, s6")
            a("s_cmp_lt_u32 s7, 14"); a("s_cselect_b32 s99, -1, 0")
            a("s_lshl_b32 s32, s32, 2"); a("s_add_u32 s32, s32, s34"); a("s_lshl_b32 s32, s32, 6")
            a("s_lshl_b32 s6, s32, 2"); a("s_add_u32 s6, s6, %d" % (WS_MOD + 3 * 4096))
            srd(a, 68, P_WS, "s6", 4096 + 256)
            a("v_lshlrev_b32 v2, 2, v1")
            a("s_movk_i32 s6, 0x1000")
            a("buffer_load_dword v%d, v2, s[68:71], s6 offen" % UB)
            a("buffer_load_dword v%d, v2, s[68:71], 0 offen" % (UB + 1))
            a("s_lshl_b32 s35, s33, 7")
            a("s_mul_i32 s6, s32, 7168"); a("s_add_u32 s6, s6, s35")
            a("s_and_b32 s7, s99, %d" % (64 * 7168))
            srd(a, 8, P_WIN, "s6", "s7")
            a("s_xor_b32 s6, s32, 512"); a("s_mul_i32 s6, s6, 7168"); a("s_add_u32 s6, s6, s35")
            srd(a, 12, P_WIN, "s6", "s7")
            a("v_lshrrev_b32 v2, 3, v1"); a("v_and_b32 v3, 7, v1")
            a("v_bfe_u32 v4, v1, 4, 1"); a("v_lshlrev_b32 v4, 2, v4"); a("v_xor_b32 v3, v3, v4")
            a("v_mul_u32_u24 v2, 7168, v2"); a("v_lshl_add_u32 v2, v3, 4, v2")
            a("s_lshl_b32 s65, s34, 13"); a("s_add_u32 s65, s65, %d" % UVW)
            a("s_mov_b32 s6, 0")
            for i in range(8):
                a("s_add_u32 m0, s65, %d" % (i * 1024))
                if i: a("s_add_u32 s6, s6, %d" % (8 * 7168))
                else: a("s_nop 0")
                a("buffer_load_dwordx4 v2, s[8:11], s6 offen lds")
            n = 10
        n += rm_loads(a)
        if stats:
            a("v_mul_u32_u24 v2, 7168, v1")
            a("buffer_load_dword v255, v2, s[12:15], 0 offen")
            n += 1
        assert n == g.etile_n
    g.etile = etile; g.etile_n = 17 if stats else 4; g.etile_wait = False
    def lepi(a):
        if not stats:
            a("s_waitcnt vmcnt(0)")
            return
        M = UB; AD = UB + 2; AF = UB + 8; BF = AF + 32; D = BF + 32
        a("s_lshl_b32 s6, s34, 9"); a("s_add_u32 s6, s6, %d" % TB)
        a("v_lshl_add_u32 v2, v1, 1, s6")
        a("v_mov_b32 v3, 0")
        a("ds_write_b16 v2, v3 offset:256")
        a("v_and_b32 v4, 31, v1"); a("v_lshrrev_b32 v5, 5, v1"); a("v_lshl_add_u32 v6, v5, 4, s6")
        a("v_min_u32 v7, 2, v4"); a("v_lshl_add_u32 v%d, v7, 7, v6" % AD)
        a("v_subrev_u32 v7, 4, v4"); a("v_min_u32 v7, 2, v7"); a("v_lshl_add_u32 v%d, v7, 7, v6" % (AD + 1))
        a("v_bfe_u32 v10, v1, 2, 2"); a("v_lshl_add_u32 v10, v5, 3, v10")
        a("v_bfe_u32 v11, v1, 4, 1"); a("v_lshlrev_b32 v11, 5, v11")
        a("v_and_b32 v13, 1, v1"); a("v_lshl_add_u32 v11, v13, 4, v11")
        a("v_bfe_u32 v13, v1, 1, 1"); a("v_lshl_add_u32 v11, v13, 3, v11")
        a("v_bfe_u32 v13, v1, 3, 1"); a("v_lshl_add_u32 v11, v13, 6, v11")
        a("v_lshl_add_u32 v11, v10, 7, v11"); a("v_add_u32 v%d, s65, v11" % (AD + 2))
        a("v_xor_b32 v%d, 64, v%d" % (AD + 3, AD + 2))
        a("s_waitcnt vmcnt(15)")
        a("ds_write_b16_d16_hi v2, v%d" % M)
        a("ds_write_b16_d16_hi v2, v%d offset:128" % (M + 1))
        a("v_and_b32 v10, 0x33, v1")
        a("v_bfe_u32 v11, v1, 2, 1"); a("v_lshl_add_u32 v10, v11, 3, v10")
        a("v_bfe_u32 v11, v1, 3, 1"); a("v_lshl_add_u32 v10, v11, 2, v10")
        a("v_lshlrev_b32 v10, 2, v10")
        a("s_lshl_b32 s6, s33, 8"); a("s_add_u32 s6, s6, %s" % hex(WS_UV))
        a("s_and_b32 s7, s99, %d" % (16384 + 256))
        a("s_waitcnt lgkmcnt(0)")
        for s_ in range(4):
            for h in range(2): a("ds_read_b128 %s, v%d offset:%d" % (vr(AF + 8 * s_ + 4 * h, 4), AD + h, 32 * s_))
        a("s_waitcnt vmcnt(7)")
        srd(a, 8, P_WS, "s6", "s7")
        for s_ in range(4):
            for h in range(2):
                for q in range(2):
                    a("ds_read_b64_tr_b16 %s, v%d offset:%d" % (vr(BF + 8 * s_ + 4 * h + 2 * q, 2), AD + 2 + h, (16 * s_ + 4 * q) * 128))
            if s_ == 1: a("s_waitcnt lgkmcnt(8)")
        for k in range(8):
            a("s_waitcnt lgkmcnt(%d)" % max(0, 14 - 2 * k))
            a("v_mfma_f32_32x32x16_bf16 %s, %s, %s, %s" % (vr(D, 16), vr(AF + 4 * k, 4), vr(BF + 4 * k, 4), "0" if k == 0 else vr(D, 16)))
        a("s_waitcnt vmcnt(1)")
        a("s_nop 10")
        a("buffer_atomic_add_f32 v%d, v10, s[8:11], 0 offen" % D)
        a("buffer_atomic_add_f32 v%d, v10, s[8:11], s96 offen" % (D + 1))
    def epi(a):
        stage32(a, SA, [(g.acc(0, 0), 0), (g.acc(1, 0), 128)])
        a("s_waitcnt vmcnt(0)")
    def common(a):
        a("s_waitcnt lgkmcnt(0)")
        g.stamp(a, 3)
        a("s_barrier")
        g.stamp(a, 4)
        for i in range(2):
            for h in range(2): a("ds_read_b128 %s, v%d offset:%d" % (vr(F + 8 * i + 4 * h, 4), VLD + h, 2048 * i))
        for e in range(8): unpack2(a, T + 2 * e, RX + e)
        for i in range(2):
            a("s_waitcnt lgkmcnt(%d)" % (2 - 2 * i))
            for e in range(4):
                x = vr(F + 8 * i + 2 * e, 2)
                a("v_pk_fma_f32 %s, %s, %s, %s" % (x, x, vr(GA + 2 * e, 2), vr(T + 8 * i + 2 * e, 2)))
            for e in range(4):
                a("v_cvt_pk_bf16_f32 v%d, v%d, v%d" % (RX + 4 * i + e, F + 8 * i + 2 * e, F + 8 * i + 2 * e + 1))
            a("buffer_store_dwordx4 %s, v%d, s[20:23], %s offen" % (vr(RX + 4 * i, 4), VO2, "s96" if i else "0"))
        if stats:
            for e in range(8): unpack2(a, F + 2 * e, RX + e)
            for i in range(2):
                for e in range(4):
                    a("v_pk_mul_f32 %s, %s, %s" % (vr(T + 8 * i + 2 * e, 2), vr(F + 8 * i + 2 * e, 2), vr(CB + 2 * e, 2)))
            for i in range(2):
                for e in range(4):
                    a("v_cvt_pk_bf16_f32 v%d, v%d, v%d" % (GA + 4 * i + e, T + 8 * i + 2 * e, T + 8 * i + 2 * e + 1))
                a("buffer_store_dwordx4 %s, v%d, s[72:75], %s offen" % (vr(GA + 4 * i, 4), VO4, "s97" if i else "0"))
            for i in range(2):
                s_, q_ = vr(T + 4 * i, 2), vr(T + 4 * i + 2, 2)
                x = lambda e: vr(F + 8 * i + 2 * e, 2)
                a("v_pk_add_f32 %s, %s, %s" % (s_, x(0), x(1)))
                a("v_pk_mul_f32 %s, %s, %s" % (q_, x(0), x(0)))
                a("v_pk_fma_f32 %s, %s, %s, %s" % (q_, x(1), x(1), q_))
                for e in (2, 3):
                    a("v_pk_add_f32 %s, %s, %s" % (s_, s_, x(e)))
                    a("v_pk_fma_f32 %s, %s, %s, %s" % (q_, x(e), x(e), q_))
            for k in range(4): a("v_add_f32 v%d, v%d, v%d" % (T + 2 * k, T + 2 * k, T + 2 * k + 1))
            red8(a, [T, T + 2, T + 4, T + 6])
            compact8(a, T + 8, [T, T + 4, T + 2, T + 6], VPM, 66)
            a("s_mov_b32 exec_hi, 0")
            a("s_waitcnt lgkmcnt(0)")
            a("buffer_atomic_add_f32 v%d, v%d, s[28:31], 0 offen" % (T + 8, VAT))
    kn = g.emit(a, tilemap_16x16_r4c8, setup, cpro, lpro, epi, lepi, common)
    return kn, 256 if stats else 144, 256, 512, lds

def k4(a):
    Z2 = 3584
    ZO = WS_Z2 - WS_Z1
    g = Gemm2("k4", 128, 1024, 16, 2, 2, LP, 7168, 256, CFG["S4"],
              [(8, [(0, "s72")]), (8, [(0, "s73")]), (8, [(0, "s74")]), (4, [(0, "s75")])])
    g.xskip = True
    UVT = g.LDS_MAIN
    RST = UVT + 2048
    lds = RST + 1024
    SA = g.CFREE
    def nib(v): return sum(x << (4 * i) for i, x in enumerate(v))
    def setup(a):
        xw_srds2(a, g, P_WS, WS_Y, P_WIN, 0, 1024 * 7168, 0)
        srd(a, 16, P_WS, WS_UV, 32768)
        srd(a, 20, P_WS, WS_SUM2, 16384)
        a("s_lshl_b32 s6, s4, 19")
        a("s_add_u32 s6, s6, %s" % hex(WS_Z1))
        srd(a, 24, P_WS, "s6", ZO + 128 * LP)
        a("s_lshl_b32 s6, s4, 14"); a("s_add_u32 s6, s6, %s" % hex(WS_XCH))
        srd(a, 28, P_WS, "s6", 16384)
        a("s_and_b32 s6, s5, 3"); a("s_lshl_b32 s7, s6, 2")
        a("s_lshr_b32 s32, s5, 2"); a("s_mul_i32 s32, s32, 896")
        for r, tab in ((72, [0, 4, 8, 10]), (73, [2, 0, 10, 12]), (74, [4, 2, 12, 8]), (75, [6, 6, 7, 7])):
            a("s_lshr_b32 s%d, %s, s7" % (r, hex(nib(tab))))
            a("s_and_b32 s%d, s%d, 15" % (r, r))
            a("s_lshl_b32 s%d, s%d, 6" % (r, r))
            a("s_add_u32 s%d, s%d, s32" % (r, r))
        a("s_add_u32 s72, s72, %d" % Z2)
        a("s_add_u32 s6, s6, 1"); a("s_and_b32 s33, s6, 2")
        a("s_cmp_eq_u32 s33, 0")
        a("s_cselect_b32 s6, %d, 0" % Z2); a("s_add_u32 s73, s73, s6")
        a("s_sub_u32 s6, %d, s6" % Z2); a("s_add_u32 s75, s75, s6")
        a("s_mov_b32 s98, s33")
    g.pf = None
    def cpro0(a):
        a("s_cmp_eq_u32 s3, 0")
        a("s_cselect_b32 s6, s72, s74"); a("s_cselect_b32 s7, s73, s75")
        a("v_mov_b32 v10, s6"); a("v_mov_b32 v11, s7")
        a("v_cmp_gt_u32 vcc, 32, v1")
        a("v_bfe_u32 v12, v0, 1, 4"); a("v_and_b32 v13, 1, v0")
        a("v_cndmask_b32 v10, v11, v10, vcc")
        a("v_lshlrev_b32 v10, 1, v10")
        a("v_lshl_add_u32 v10, v12, 4, v10")
        a("v_lshl_add_u32 v10, v13, 14, v10")
        a("buffer_load_dwordx4 v[16:19], v10, s[16:19], 0 offen")
        a("s_lshl_b32 s6, s4, 9"); a("s_add_u32 s7, s6, 8192")
        a("v_and_b32 v11, 127, v0"); a("v_lshlrev_b32 v11, 2, v11")
        a("buffer_load_dword v20, v11, s[20:23], s6 offen")
        a("buffer_load_dword v21, v11, s[20:23], s7 offen")
    g.cpro0 = cpro0
    def cpro(a):
        a("v_lshrrev_b32 v12, 5, v0"); a("v_lshlrev_b32 v12, 9, v12")
        a("v_and_b32 v11, 1, v0"); a("v_lshl_add_u32 v12, v11, 8, v12")
        a("v_bfe_u32 v11, v0, 1, 1"); a("v_lshl_add_u32 v12, v11, 7, v12")
        a("v_bfe_u32 v11, v0, 2, 3"); a("v_lshl_add_u32 v12, v11, 4, v12")
        a("v_add_u32 v12, %d, v12" % UVT)
        a("v_and_b32 v11, 127, v0"); a("v_lshlrev_b32 v11, 3, v11"); a("v_add_u32 v11, %d, v11" % RST)
        a("v_and_b32 v10, 15, v1"); a("v_add_u32 v10, s34, v10")
        a("v_lshrrev_b32 v13, 4, v1"); a("v_and_b32 v14, 7, v1"); a("v_xor_b32 v13, v13, v14")
        a("s_lshl_b32 s6, s35, 2")
        a("v_xor_b32 v14, s6, v13"); a("v_bfe_u32 v15, v1, 3, 1"); a("v_xor_b32 v14, v14, v15")
        a("v_lshlrev_b32 v14, 4, v14"); a("v_lshl_add_u32 v%d, v10, 7, v14" % (SA + 2))
        a("v_add_u32 v%d, %d, v%d" % (SA + 2, 98304, SA + 2))
        a("s_lshl_b32 s6, s35, 7")
        a("v_lshl_add_u32 v13, v13, 4, s6"); a("v_lshl_add_u32 v%d, v10, 8, v13" % SA)
        a("v_xor_b32 v%d, 64, v%d" % (SA + 1, SA))
        a("v_add_u32 v%d, 0x10000, v%d" % (SA + 3, SA)); a("v_add_u32 v%d, 0x10000, v%d" % (SA + 4, SA + 1))
        a("v_cmp_gt_u32 vcc, 112, v0")
        a("s_waitcnt vmcnt(%d)" % g.npf)
        stats_from_sums(a, 20, 21, 22, 1024, 24)
        a("ds_write_b64 v11, v[22:23]")
        a("s_and_saveexec_b64 s[66:67], vcc")
        a("ds_write_b128 v12, v[16:19]")
        a("s_mov_b64 exec, s[66:67]")
        a("s_waitcnt lgkmcnt(0)")
    def lpro(a):
        g.loader_first(a)
        ctouch(a, "k4_kernel", "k6_kernel")
    def epi(a):
        a("s_nop 6")
        for i in range(7):
            for j in range(4):
                if i < 4: a("ds_write_b128 v%d, %s offset:%d" % (SA + (i & 1), vr(g.acc(i, j), 4), (i >> 1) * 32768 + j * 4096))
                elif i < 6: a("ds_write_b128 v%d, %s offset:%d" % (SA + 3 + (i & 1), vr(g.acc(i, j), 4), j * 4096))
                else: a("ds_write_b128 v%d, %s offset:%d" % (SA + 2, vr(g.acc(i, j), 4), j * 2048))
    def etile(a):
        a("v_and_b32 v2, 255, v0"); a("v_lshlrev_b32 v2, 7, v2")
        touch(a, P_WSP, 32768, "s2", 2, 8, 255)
    if CFG["ET"]:
        g.etile = etile; g.etile_n = 1; g.etile_wait = False
    def lepi(a):
        if not CFG["ET"]: etile(a)
    VLD = 2; VLH = 4; VUV = 6; VO = 7; VOH = 8; VXP = 9; VPM = 14; VXS = 15
    ST = 16; STH = 20; MK = 22; SM = 24; PL = 32; T = 48; UV = 64; ZK = 80; F = 112; PK = 176; VL2 = 222; VUH = 224
    def gelu(a, items, U):
        n = len(items)
        for k, (A, st) in enumerate(items):
            for e in range(4):
                a("v_pk_fma_f32 %s, %s, %s, %s op_sel:[0,1,0] op_sel_hi:[1,1,1]" % (vr(T + 8 * k + 2 * e, 2), vr(U + 2 * e, 2), vr(st, 2), vr(U + 8 + 2 * e, 2)))
        for k, (A, st) in enumerate(items):
            for e in range(4):
                x = vr(A + 2 * e, 2)
                a("v_pk_fma_f32 %s, %s, %s, %s op_sel_hi:[1,0,1]" % (x, x, vr(st, 2), vr(T + 8 * k + 2 * e, 2)))
        for k, (A, st) in enumerate(items):
            for e in range(4): a("v_pk_mul_f32 %s, %s, %s" % (vr(T + 8 * k + 2 * e, 2), vr(A + 2 * e, 2), vr(A + 2 * e, 2)))
        for e in range(4 * n):
            t = vr(T + 2 * e, 2); a("v_pk_fma_f32 %s, %s, s[70:71], v[10:11]" % (t, t))
        for k, (A, st) in enumerate(items):
            for e in range(4):
                t = vr(T + 8 * k + 2 * e, 2); a("v_pk_mul_f32 %s, %s, %s" % (t, t, vr(A + 2 * e, 2)))
        for e in range(8 * n): a("v_exp_f32 v%d, v%d" % (T + e, T + e))
        for e in range(4 * n): a("v_pk_add_f32 %s, %s, v[12:13]" % (vr(T + 2 * e, 2), vr(T + 2 * e, 2)))
        for e in range(8 * n): a("v_rcp_f32 v%d, v%d" % (T + e, T + e))
        for k, (A, st) in enumerate(items):
            for e in range(4):
                t = vr(T + 8 * k + 2 * e, 2); a("v_pk_mul_f32 %s, %s, %s" % (t, t, vr(A + 2 * e, 2)))
    def freg(gi): return F + 16 * gi
    def rd_group(a, gi):
        if gi < 3:
            for i in range(2):
                for h in range(2):
                    off = gi * 32768 + i * 2048
                    if gi < 2: a("ds_read_b128 %s, v%d offset:%d" % (vr(freg(gi) + 8 * i + 4 * h, 4), VLD + h, off))
                    else: a("ds_read_b128 %s, v%d offset:%d" % (vr(freg(gi) + 8 * i + 4 * h, 4), VL2 + h, off - 65536))
            return 4
        for h in range(2): a("ds_read_b128 %s, v%d" % (vr(freg(3) + 4 * h, 4), VLH + h))
        return 2
    def rd_uv(a, gi):
        for q in range(4): a("ds_read_b128 %s, v%d offset:%d" % (vr(UV + 4 * q, 4), VUV if gi < 3 else VUH, gi * 512 + q * 128))
    def items(gi): return [(freg(gi), ST), (freg(gi) + 8, ST + 2)] if gi < 3 else [(freg(3), STH)]
    def store(a, gi, src):
        if gi < 3:
            a("s_add_u32 s6, s%d, 0x8000" % (72 + gi))
            a("buffer_store_dwordx4 %s, v%d, s[24:27], s%d offen" % (vr(src, 4), VO, 72 + gi))
            a("buffer_store_dwordx4 %s, v%d, s[24:27], s6 offen" % (vr(src + 4, 4), VO))
        else:
            a("buffer_store_dwordx4 %s, v%d, s[24:27], s75 offen" % (vr(src, 4), VOH))
    def poll(a):
        for k in range(4):
            a("buffer_load_dwordx2 %s, v%d, s[28:31], 0 offen offset:%d sc1" % (vr(PL + 2 * k, 2), VXP, (k & 1) * 1024 + (k >> 1) * 64))
    def variant(a, G2, G1):
        rd_uv(a, G2[0])
        rd_group(a, G2[0])
        n1 = rd_group(a, G2[1])
        a("s_waitcnt lgkmcnt(%d)" % n1)
        for x, gi in enumerate(G2):
            gelu(a, items(gi), UV)
            rd_uv(a, G2[1] if x == 0 else G1[0])
            if x == 1:
                for gj in G1: rd_group(a, gj)
            n = len(items(gi))
            for e in range(4 * n): a("v_cvt_pk_bf16_f32 v%d, v%d, v%d" % (PK + e, T + 2 * e, T + 2 * e + 1))
            Z = ZK + 16 * x
            for e in range(4 * n): unpack2(a, Z + 2 * e, PK + e)
            for k in range(n):
                if gi < 3: s_, q_ = vr(SM + 4 * k, 2), vr(SM + 4 * k + 2, 2)
                else: s_, q_ = vr(T, 2), vr(T + 2, 2)
                z = lambda e: vr(Z + 8 * k + 2 * e, 2)
                if x == 0 or gi == 3:
                    a("v_pk_add_f32 %s, %s, %s" % (s_, z(0), z(1)))
                    a("v_pk_mul_f32 %s, %s, %s" % (q_, z(0), z(0)))
                    a("v_pk_fma_f32 %s, %s, %s, %s" % (q_, z(1), z(1), q_))
                    r = (2, 3)
                else: r = range(4)
                for e in r:
                    a("v_pk_add_f32 %s, %s, %s" % (s_, s_, z(e)))
                    a("v_pk_fma_f32 %s, %s, %s, %s" % (q_, z(e), z(e), q_))
            if gi == 3:
                for k in range(2):
                    for c in range(2):
                        d = vr(SM + 4 * k + 2 * c, 2)
                        a("v_pk_fma_f32 %s, %s, %s, %s op_sel:[0,%d,0] op_sel_hi:[1,%d,1]" % (d, vr(T + 2 * c, 2), vr(MK, 2), d, k, k))
            if x == 0: a("s_waitcnt lgkmcnt(0)")
        for k in range(4): a("v_add_f32 v%d, v%d, v%d" % (SM + 2 * k, SM + 2 * k, SM + 2 * k + 1))
        red8(a, [SM, SM + 2, SM + 4, SM + 6])
        a("s_mov_b32 s66, 0x02020202"); a("s_mov_b32 s67, s66")
        a("v_cndmask_b32 v%d, v%d, v%d, s[66:67]" % (SM, SM, SM + 4))
        a("v_cndmask_b32 v%d, v%d, v%d, s[66:67]" % (SM + 1, SM + 2, SM + 6))
        a("ds_bpermute_b32 v%d, v%d, v%d" % (SM, VPM, SM))
        a("v_and_b32 v%d, -2, v%d" % (SM + 1, SM + 1))
        a("ds_bpermute_b32 v%d, v%d, v%d" % (SM + 1, VPM, SM + 1))
        a("s_mov_b64 exec, 0xffff")
        a("s_waitcnt lgkmcnt(0)")
        a("buffer_store_dwordx2 %s, v%d, s[28:31], s32 offen sc1" % (vr(SM, 2), VXS))
        a("s_mov_b64 exec, -1")
        g.stamp(a, 5)
        for x, gi in enumerate(G1):
            gelu(a, items(gi), UV)
            if x == 0: rd_uv(a, G1[1])
            n = len(items(gi))
            for e in range(4 * n): a("v_cvt_pk_bf16_f32 v%d, v%d, v%d" % (freg(gi) + e, T + 2 * e, T + 2 * e + 1))
            if x == 1: poll(a)
            store(a, gi, freg(gi))
            if x == 0: a("s_waitcnt lgkmcnt(0)")
        g.stamp(a, 6)
        L = a.newlabel("k4_poll"); D = a.newlabel("k4_pdone"); C = a.newlabel("k4_pchk")
        a("s_mov_b32 s66, 0x40000")
        a("s_waitcnt vmcnt(%d)" % len(items(G1[1])))
        a("s_branch %s" % C)
        a.label(L)
        poll(a)
        a("s_waitcnt vmcnt(0)")
        a.label(C)
        a("v_max_u32 v%d, v%d, v%d" % (T, PL + 1, PL + 3))
        a("v_max3_u32 v%d, v%d, v%d, v%d" % (T, T, PL + 5, PL + 7))
        a("v_cmp_eq_u32 vcc, -1, v%d" % T)
        a("s_sub_u32 s66, s66, 1")
        a("s_cbranch_scc1 %s" % D)
        a("s_cbranch_vccz %s" % D)
        a("s_sleep 1")
        a("s_branch %s" % L)
        a.label(D)
        for k in range(2): a("v_pk_add_f32 %s, %s, %s" % (vr(PL + 4 * k, 2), vr(PL + 4 * k, 2), vr(PL + 4 * k + 2, 2)))
        a("s_nop 0")
        red8(a, [PL, PL + 1, PL + 4, PL + 5])
        n_ = 1792
        for k in range(2): a("v_mul_f32 v%d, %s, v%d" % (PL + 4 * k, hex(f32bits(1.0 / n_)), PL + 4 * k))
        for k in range(2): a("v_mul_f32 v%d, %s, v%d" % (ST + 2 * k, hex(f32bits(1.0 / n_)), PL + 4 * k + 1))
        for k in range(2): a("v_fma_f32 v%d, -v%d, v%d, v%d" % (ST + 2 * k, PL + 4 * k, PL + 4 * k, ST + 2 * k))
        for k in range(2): a("v_max_f32 v%d, 0, v%d" % (ST + 2 * k, ST + 2 * k))
        for k in range(2): a("v_add_f32 v%d, %s, v%d" % (ST + 2 * k, hex(f32bits(1e-5)), ST + 2 * k))
        for k in range(2): a("v_rsq_f32 v%d, v%d" % (ST + 2 * k, ST + 2 * k))
        a("s_nop 0")
        for k in range(2): a("v_mul_f32 v%d, -v%d, v%d" % (ST + 2 * k + 1, PL + 4 * k, ST + 2 * k))
        if 3 in G2:
            for c in range(2): a("v_cndmask_b32 v%d, v%d, v%d, s[68:69]" % (STH + c, ST + c, ST + 2 + c))
        for x, gi in enumerate(G2):
            Z = ZK + 16 * x
            for k, (_, st) in enumerate(items(gi)):
                for e in range(4):
                    z = vr(Z + 8 * k + 2 * e, 2)
                    a("v_pk_fma_f32 %s, %s, %s, %s op_sel:[0,0,1] op_sel_hi:[1,0,1]" % (z, z, vr(st, 2), vr(st, 2)))
            for e in range(4 * len(items(gi))): a("v_cvt_pk_bf16_f32 v%d, v%d, v%d" % (T + 8 * x + e, Z + 2 * e, Z + 2 * e + 1))
            store(a, gi, T + 8 * x)
    def common(a):
        K1_ = 2.0 * math.sqrt(2.0 / math.pi) * LOG2E
        R = T
        rm_addr(a, R, VLD, R + 1)
        a("v_and_b32 v%d, 7, v1" % (R + 2)); a("v_bfe_u32 v%d, v1, 2, 1" % (R + 3)); a("v_and_b32 v%d, 3, v1" % (R + 4))
        a("v_add_u32 v%d, 0x10000, v%d" % (VL2, VLD)); a("v_add_u32 v%d, 0x10000, v%d" % (VL2 + 1, VLD + 1))
        a("v_lshlrev_b32 v%d, 4, v%d" % (VUV, R + 2))
        a("v_lshl_add_u32 v%d, v%d, 12, v%d" % (VO, R, VUV))
        a("v_add_u32 v%d, %d, v%d" % (VUV, UVT, VUV))
        a("v_lshl_add_u32 v%d, v%d, 3, v%d" % (R + 5, R + 3, R))
        a("v_lshlrev_b32 v%d, 4, v%d" % (VOH, R + 4))
        a("v_add_u32 v%d, %d, v%d" % (VUH, UVT, VOH))
        a("v_lshl_add_u32 v%d, v%d, 12, v%d" % (VOH, R + 5, VOH))
        a("v_lshlrev_b32 v%d, 1, v%d" % (VLH, R + 4)); a("v_xor_b32 v%d, v%d, v%d" % (VLH, VLH, R + 1)); a("v_xor_b32 v%d, v%d, v%d" % (VLH, VLH, R + 3))
        a("v_lshlrev_b32 v%d, 4, v%d" % (VLH, VLH)); a("v_lshl_add_u32 v%d, v%d, 7, v%d" % (VLH, R + 5, VLH))
        a("v_add_u32 v%d, %d, v%d" % (VLH, 98304, VLH)); a("v_xor_b32 v%d, 16, v%d" % (VLH + 1, VLH))
        a("v_lshlrev_b32 v%d, 3, v%d" % (R + 6, R))
        a("v_lshl_add_u32 v%d, v%d, 11, v%d" % (VXP, R + 2, R + 6))
        a("v_add_u32 v%d, %d, v%d" % (R + 6, RST, R + 6))
        a("ds_read_b64 %s, v%d" % (vr(ST, 2), R + 6)); a("ds_read_b64 %s, v%d offset:64" % (vr(ST + 2, 2), R + 6))
        a("v_lshlrev_b32 v%d, 5, v%d" % (VPM, R + 2)); a("v_lshl_add_u32 v%d, v%d, 2, v%d" % (VPM, R + 1, VPM))
        a("v_lshlrev_b32 v%d, 3, v1" % VXS)
        a("v_cvt_f32_u32 v%d, v%d" % (MK + 1, R + 3)); a("v_sub_f32 v%d, 1.0, v%d" % (MK, MK + 1))
        a("s_lshl_b32 s32, s5, 10"); a("s_lshl_b32 s6, s3, 7"); a("s_add_u32 s32, s32, s6")
        a("s_mov_b32 s68, 0xf0f0f0f0"); a("s_mov_b32 s69, s68")
        a("s_mov_b32 s70, %s" % hex(f32bits(-K1_ * 0.044715))); a("s_mov_b32 s71, s70")
        a("v_mov_b32 v10, %s" % hex(f32bits(-K1_))); a("v_mov_b32 v11, v10")
        a("v_mov_b32 v12, 1.0"); a("v_mov_b32 v13, 1.0")
        for r in range(72, 76):
            a("s_cmp_ge_u32 s%d, %d" % (r, Z2))
            a("s_cselect_b32 s7, %d, 0" % Z2); a("s_cselect_b32 s33, %d, 0" % ZO)
            a("s_sub_u32 s%d, s%d, s7" % (r, r))
            s_lmap(a, r, r, 6)
            a("s_add_u32 s%d, s%d, s33" % (r, r))
        a("s_waitcnt lgkmcnt(0)")
        for c in range(2): a("v_cndmask_b32 v%d, v%d, v%d, s[68:69]" % (STH + c, ST + c, ST + 2 + c))
        g.stamp(a, 3)
        a("s_barrier")
        g.stamp(a, 4)
        LB = a.newlabel("k4_tb"); LE = a.newlabel("k4_te")
        a("s_cmp_lg_u32 s98, 0")
        a("s_cbranch_scc1 %s" % LB)
        variant(a, [0, 1], [2, 3])
        a("s_branch %s" % LE)
        a.label(LB)
        variant(a, [0, 3], [1, 2])
        a.label(LE)
    kn = g.emit(a, tilemap_16x16_r8c4, setup, cpro, lpro, epi, lepi, common)
    return kn, 256, 256, 512, lds

def k5(a):
    g = Gemm2("k5", 128, 2048, 32, 2, 2, 4096, LP, 224, CFG["S5"], [(8, [(0, "s72")]), (8, [(0, "s73")])])
    Z1 = g.CFREE; BS = Z1 + 16; VO = BS + 4; VLD = VO + 2; SA = VLD + 2; F = SA + 4; T = F + 32
    def setup(a):
        xw_srds2(a, g, P_WSP, 0, P_WS, WS_Z2, 2048 * LP, 0)
        a("s_lshl_b32 s6, s4, 19")
        a("s_add_u32 s32, s6, %s" % hex(WS_Z1)); srd(a, 20, P_WS, "s32", 128 * LP)
        a("s_add_u32 s32, s6, %s" % hex(WS_U)); srd(a, 24, P_WS, "s32", 128 * LP)
        a("s_lshl_b32 s6, s4, 8")
        srd(a, 28, P_BSP, "s6", 256)
        a("s_lshl_b32 s7, s5, 1")
        s_lmap(a, 72, 7, 6, False)
        a("s_add_u32 s7, s7, 1")
        s_lmap(a, 73, 7, 6, False)
        a("s_add_u32 s74, s72, 0x8000"); a("s_add_u32 s75, s73, 0x8000")
    def rm_loads(a):
        rm_addr(a, VO, VLD, 10)
        a("v_lshlrev_b32 v12, 1, v%d" % VO)
        a("v_and_b32 v11, 7, v1"); a("v_lshlrev_b32 v11, 4, v11")
        a("v_lshl_add_u32 v%d, v%d, 12, v11" % (VO, VO))
        for i in range(2): a("buffer_load_ushort v%d, v12, s[28:31], 0 offen offset:%d" % (BS + 2 * i, 16 * i))
        for k in range(4): a("buffer_load_dwordx4 %s, v%d, s[20:23], s%d offen" % (vr(Z1 + 4 * k, 4), VO, 72 + k))
    def cpro(a):
        stage32_addr(a, g, SA, 10)
    g.cpost0 = rm_loads
    g.pf = None
    def lpro(a):
        g.loader_first(a)
        ctouch(a, "k5_kernel", "L_code_end")
    g.etile = rm_loads; g.etile_n = 6; g.etile_wait = False
    def epi(a):
        stage32(a, SA, [(g.acc(i, j), i * 32768 + j * 8192) for i in range(2) for j in range(2)])
    def common(a):
        a("s_waitcnt vmcnt(0)")
        for i in range(2): a("v_lshlrev_b32 v%d, 16, v%d" % (BS + 2 * i, BS + 2 * i))
        a("s_waitcnt lgkmcnt(0)")
        g.stamp(a, 3)
        a("s_barrier")
        g.stamp(a, 4)
        for k in range(4):
            for h in range(2): a("ds_read_b128 %s, v%d offset:%d" % (vr(F + 8 * k + 4 * h, 4), VLD + h, (k & 1) * 32768 + (k >> 1) * 2048))
        for k in range(4):
            t = T + 8 * (k & 1)
            for e in range(4): unpack2(a, t + 2 * e, Z1 + 4 * k + e)
            a("s_waitcnt lgkmcnt(%d)" % (6 - 2 * k))
            if DBG["stamp"]: a("s_waitcnt lgkmcnt(0)")
            for e in range(4):
                x = vr(F + 8 * k + 2 * e, 2)
                a("v_pk_add_f32 %s, %s, %s op_sel_hi:[1,0]" % (x, x, vr(BS + 2 * (k >> 1), 2)))
            for e in range(4):
                x = vr(F + 8 * k + 2 * e, 2)
                a("v_pk_mul_f32 %s, %s, %s" % (x, x, vr(t + 2 * e, 2)))
            for e in range(4):
                a("v_cvt_pk_bf16_f32 v%d, v%d, v%d" % (Z1 + 4 * k + e, F + 8 * k + 2 * e, F + 8 * k + 2 * e + 1))
            a("buffer_store_dwordx4 %s, v%d, s[24:27], s%d offen" % (vr(Z1 + 4 * k, 4), VO, 72 + k))
    def extra(a, end):
        a("s_cmp_ge_u32 s2, 256")
        a("s_cbranch_scc1 %s" % end)
        load_kernargs(a)
        a("s_sub_u32 s2, s2, 224")
        a("v_lshlrev_b32 v2, 7, v0")
        a("v_add_u32 v3, 0x10000, v2")
        a("s_waitcnt lgkmcnt(0)")
        touch(a, P_WOUT, 114688, "s2", 2, 8, 4)
        a("buffer_load_dword v5, v3, s[8:11], 0 offen")
        shadow_voff(a, 6, 0, 7)
        a("v_add_u32 v7, 0x10000, v6")
        a("buffer_load_dwordx4 v[8:11], v6, s[8:11], 0 offen")
        a("buffer_load_dwordx4 v[12:15], v7, s[8:11], 0 offen")
        shadow_srd(a, 12, WS_SW, 114688, "s2")
        a("s_waitcnt vmcnt(0)")
        a("buffer_store_dwordx4 v[8:11], v6, s[12:15], 0 offen")
        a("buffer_store_dwordx4 v[12:15], v7, s[12:15], 0 offen")
    if CFG["PF"]: g.extra = extra
    kn = g.emit(a, tilemap_16x14, setup, cpro, lpro, epi, None, common)
    return kn, T + 16, 256 if CFG["PF"] else 224, 512, g.LDS_MAIN

ORDER = ["k0", "k1", "k2", "k3", "k4", "k5", "k6"]
def build(path, order=None):
    a = Asm()
    ks = {}
    def small(fn, name):
        m = len(a.lines)
        r = fn(a)
        if DBG["stamp"]:
            body = a.lines[m:]; del a.lines[m:]
            st = Stamper(name)
            armed = False
            for k, l in enumerate(body):
                t = l.strip()
                if t.startswith("s_load_dwordx4 s[60:63]"): armed = True
                if t == "s_endpgm" and not body[k - 1].endswith(":"):
                    a("s_mov_b64 exec, -1"); st.stamp_out(a)
                if t.endswith(":") and "_end" in t:
                    a("s_mov_b64 exec, -1"); st.stamp_out(a); a("s_endpgm")
                a.lines.append(l)
                if armed and t == "s_waitcnt lgkmcnt(0)":
                    st.stamp(a, 0); armed = False
        return r
    ks["k0"] = small(k0, "k0")
    ks["k1"] = small(k1, "k1")
    ks["k2"] = k2(a)
    ks["k3"] = k_res(a, "k3", 1024, WS_O, P_WO, P_X, 0, 2, P_WS, WS_X1, True, CFG["S3"], WS_SO)
    ks["k4"] = k4(a)
    ks["k5"] = k5(a)
    ks["k6"] = k_res(a, "k6", 1792, WS_U, P_WOUT, P_WS, WS_X1, 5, P_OUT, 0, False, CFG["S6"], WS_SW)
    a.label("L_code_end")
    a("s_endpgm")
    order = order or ORDER
    if CFG["ST"]:
        fl = ["", " sc1", " sc0 sc1", " nt"][CFG["ST"]]
        a.lines = [l + fl if ("buffer_store_dwordx" in l and "sc1" not in l) else l for l in a.lines]
    ref = open("cdna_kernels/%s.s.ref" % NAME).read().split("\n")
    head = [l for l in ref if l.startswith(";") and "@launch" not in l and "Override" not in l and "grid=ceil" not in l]
    head = head[:15]
    out = list(head)
    for k in order:
        kn, vg, grid, blk, lds = ks[k]
        out.append("; @launch kernel=%s grid=(%d,1,1) block=(%d,1,1) lds=%d" % (kn, grid, blk, lds))
    out.append('.amdgcn_target "amdgcn-amd-amdhsa--gfx950"')
    out.append(".text")
    out += a.lines
    out.append('.section .rodata,"a"')
    for k, (kn, vg, grid, blk, lds) in ks.items():
        out.append(kernel_desc(kn, vg))
    open(path, "w").write("\n".join(out) + "\n")

if __name__ == "__main__":
    build(sys.argv[1] if len(sys.argv) > 1 else "cdna_kernels/%s.s" % NAME)
```

```python
from gen import *

STAMP_OFF = 0x4000000
KIDX = dict(k0=0, k1=1, k2=2, k2b=3, k3=4, k4=5, k5=6, k6=7)

class Stamper:
    def __init__(self, name): self.name = name

class Gemm2:
    def __init__(self, name, BM, K, mf, wgm, wgn, ldx, ldw, ntiles, S, groups):
        self.name, self.BM, self.K, self.mf = name, BM, K, mf
        self.wgm, self.wgn, self.ldx, self.ldw, self.ntiles, self.S = wgm, wgn, ldx, ldw, ntiles, S
        self.groups = groups
        self.xskip = False
        self.etile_wait = True
        self.cpost0 = None
        self.ltouch = []
        self.nk = K // 64
        self.XI = BM * 128
        self.goff = []
        o = self.XI
        for nch, _ in groups:
            self.goff.append(o); o += 64 * nch * 16
        self.STG = o
        assert self.STG % 4096 == 0
        self.P = self.STG // 4096
        self.LDS_MAIN = S * self.STG
        self.WM = BM // wgm
        self.NT = self.WM // mf
        self.NS = 4 if mf == 32 else 2
        self.accn = 16 if mf == 32 else 4
        full = [g for g, (n, _) in enumerate(groups) if n == 8]
        half = [g for g, (n, _) in enumerate(groups) if n == 4]
        self.wt = []
        if mf == 32:
            if wgn == 2:
                self.nwa = 1
                for g in full: self.wt.append((0, self.goff[g], 128))
            else:
                self.nwa = 2
                for g in full:
                    for h in range(2): self.wt.append((h, self.goff[g], 128))
            assert not half
        else:
            assert wgn == 2
            self.nwa = 2 + len(half)
            for g in full:
                for o in range(2): self.wt.append((o, self.goff[g], 128))
            for g in half: self.wt.append((2, self.goff[g], 64))
        self.MT = len(self.wt)
        self.VX = 2
        self.VW = self.VX + self.NS
        assert self.VW + self.nwa <= 9
        self.FR = 16
        self.nfr = (self.NT + self.MT) * 4
        self.ACC = self.FR + 2 * self.nfr
        self.nacc = self.NT * self.MT * self.accn
        self.CFREE = self.ACC + self.nacc
        self.prio = 2
        self.pf = None
        self.etile = None
        self.cpro0 = None
        self.extra = None
        self.PFD = 255
        self.etile_n = 0
        self.dep = 8
        self.npre = S - 1
        self.poll = None
        self.flagoff = None
        self.pw = 0
        self.psl = 1
        self.bst = True

    def acc(self, i, j): return self.ACC + (i * self.NT + j) * self.accn
    def xfrag(self, s, j): return self.FR + s * self.nfr + j * 4
    def wfrag(self, s, i): return self.FR + s * self.nfr + (self.NT + i) * 4

    def reads(self, sub, fs):
        xs, ws = [], []
        for j in range(self.NT):
            xs.append("ds_read_b128 %s, v%d offset:%d" % (vr(self.xfrag(fs, j), 4), self.VX + sub, j * self.mf * 128))
        kr = 16 if self.mf == 32 else 32
        for i, (ar, imm, pitch) in enumerate(self.wt):
            for q in range(2):
                ws.append("ds_read_b64_tr_b16 %s, v%d offset:%d" % (vr(self.wfrag(fs, i) + 2 * q, 2), self.VW + ar,
                                                                    imm + (kr * sub + 4 * q) * pitch))
        return ws[0:2] + xs + ws[2:]

    def mfmas(self, fs):
        op = "v_mfma_f32_32x32x16_bf16" if self.mf == 32 else "v_mfma_f32_16x16x32_bf16"
        out = []
        for i in range(self.MT):
            for j in range(self.NT):
                A = self.acc(i, j)
                out.append("%s %s, %s, %s, %s" % (op, vr(A, self.accn), vr(self.wfrag(fs, i), 4),
                                                  vr(self.xfrag(fs, j), 4), vr(A, self.accn)))
        return out

    def compute_addr(self, a):
        mf = self.mf
        if self.wgn == 1:
            a("s_mul_i32 s34, s3, %d" % self.WM); a("s_mov_b32 s35, 0")
        else:
            a("s_lshr_b32 s34, s3, 1"); a("s_mul_i32 s34, s34, %d" % self.WM)
            a("s_and_b32 s35, s3, 1")
        sh = 5 if mf == 32 else 4
        X = self.VX
        a("v_and_b32 v10, %d, v1" % (mf - 1))
        a("v_bfe_u32 v11, v1, 1, 3")
        a("v_lshrrev_b32 v12, %d, v1" % sh)
        a("v_xor_b32 v11, v11, v12")
        a("v_add_u32 v10, s34, v10")
        a("v_lshlrev_b32 v10, 7, v10")
        a("v_lshl_add_u32 v%d, v11, 4, v10" % X)
        for s in range(1, self.NS):
            a("v_xor_b32 v%d, %d, v%d" % (X + s, s * (32 if mf == 32 else 64), X))
        W = self.VW
        a("v_bfe_u32 v10, v1, 2, 2")
        a("v_lshl_add_u32 v10, v12, 3, v10")
        if mf == 32:
            a("v_bfe_u32 v11, v1, 4, 1"); a("v_lshlrev_b32 v11, 5, v11")
            a("v_and_b32 v13, 1, v1"); a("v_lshl_add_u32 v11, v13, 4, v11")
            a("v_bfe_u32 v13, v1, 1, 1"); a("v_lshl_add_u32 v11, v13, 3, v11")
            a("v_bfe_u32 v13, v1, 3, 1"); a("v_lshl_add_u32 v11, v13, 6, v11")
            a("v_lshl_add_u32 v%d, v10, 7, v11" % W)
            if self.wgn == 2:
                a("s_lshl_b32 s6, s35, 6")
                a("v_xor_b32 v%d, s6, v%d" % (W, W))
            else:
                a("v_xor_b32 v%d, 64, v%d" % (W + 1, W))
        else:
            a("v_and_b32 v11, 3, v1"); a("v_lshlrev_b32 v11, 3, v11")
            a("v_bfe_u32 v13, v1, 4, 1")
            if self.nwa == 3:
                a("v_xor_b32 v14, s35, v13"); a("v_lshl_add_u32 v14, v14, 5, v11")
                a("v_lshl_add_u32 v%d, v10, 6, v14" % (W + 2))
            a("v_xor_b32 v13, s35, v13"); a("v_lshl_add_u32 v11, v13, 6, v11")
            a("v_bfe_u32 v13, v1, 3, 1"); a("v_lshl_add_u32 v11, v13, 5, v11")
            a("v_lshl_add_u32 v%d, v10, 7, v11" % W)
            a("v_xor_b32 v%d, 32, v%d" % (W + 1, W))

    def interleave(self, a, mf, rd, first_after=None, tail=()):
        if DBG["nomfma"]: mf = ["s_nop 0"] * len(mf)
        if DBG["noread"]: rd = []
        rd = list(rd) + list(tail)
        n = len(mf)
        per = 2 if self.mf == 32 else 1
        per = max(per, -(-len(rd) // max(1, n - 1)))
        ri = 0
        for t, m in enumerate(mf):
            a(m)
            if t == 0 and first_after:
                for x in first_after: a(x)
            for _ in range(per):
                if ri < len(rd):
                    a(rd[ri]); ri += 1
        while ri < len(rd):
            a(rd[ri]); ri += 1

    def slot_next(self, a):
        a("s_add_u32 s64, s64, %d" % self.STG)
        a("s_cmp_eq_u32 s64, %d" % (self.S * self.STG))
        a("s_cselect_b32 s65, %s, s67" % (hex((-(self.S - 1) * self.STG) & 0xffffffff)))
        a("s_cselect_b32 s64, 0, s64")

    def zero_acc(self, a):
        for r in range(self.nacc):
            a("v_mov_b32 v%d, 0" % (self.ACC + r))

    def compute_main(self, a):
        a("s_mov_b32 s64, 0")
        a("s_mov_b32 s67, %d" % self.STG)
        a("s_mov_b32 s6, %d" % self.nk)
        a("s_barrier")
        self.stamp(a, 1)
        for x in self.reads(0, 0): a(x)
        if self.cpost0: self.cpost0(a)
        L = a.newlabel(self.name + "_cl")
        a.lines.append(".p2align 4")
        a.label(L)
        self.slot_next(a)
        for sub in range(self.NS):
            fs = sub & 1
            a("s_waitcnt lgkmcnt(0)")
            if sub < self.NS - 1:
                tail = ["v_add_u32 v%d, s65, v%d" % (self.VX + sub + 1, self.VX + sub + 1)]
                if sub == 0:
                    tail.append("v_add_u32 v%d, s65, v%d" % (self.VX, self.VX))
                    if self.pf and self.pf["D"]:
                        tail += ["buffer_load_dword v%d, v15, s[68:71], s96 offen" % self.PFD, "s_add_u32 s96, s96, s97"]
                if sub == self.NS - 2:
                    tail += ["v_add_u32 v%d, s65, v%d" % (self.VW + w, self.VW + w) for w in range(self.nwa)]
                self.interleave(a, self.mfmas(fs), self.reads(sub + 1, fs ^ 1), tail=tail)
            else:
                self.interleave(a, self.mfmas(fs), self.reads(0, fs ^ 1), first_after=["s_sub_u32 s6, s6, 1", "s_barrier"])
        a("s_cmp_lg_u32 s6, 0")
        a("s_cbranch_scc1 %s" % L)
        a("s_waitcnt lgkmcnt(0)")

    def loader_setup(self, a):
        self.pieces = []
        a("s_sub_u32 s34, s3, 4")
        a("v_and_b32 v1, 63, v0")
        a("v_lshrrev_b32 v2, 3, v1")
        a("v_and_b32 v3, 7, v1")
        a("s_lshl_b32 s6, s34, 3")
        a("v_add_u32 v2, s6, v2")
        r = 16
        a("v_bfe_u32 v4, v2, 1, 3")
        a("v_xor_b32 v4, v4, v3")
        a("s_mov_b32 s6, %d" % self.ldx)
        a("v_mul_lo_u32 v5, s6, v2")
        for i in range(self.BM // 32):
            if i == 0: a("v_lshl_add_u32 v%d, v4, 4, v5" % r)
            else: a("v_add_u32 v%d, %d, v%d" % (r, 32 * self.ldx, r - 1))
            self.pieces.append((r, 8, 7)); r += 1
        if self.mf == 32:
            a("v_bfe_u32 v4, v2, 1, 1"); a("v_lshlrev_b32 v4, 2, v4")
        else:
            a("v_bfe_u32 v4, v2, 1, 1"); a("v_lshlrev_b32 v4, 1, v4")
            a("v_bfe_u32 v6, v2, 3, 1"); a("v_lshl_add_u32 v4, v6, 2, v4")
        a("v_xor_b32 v4, v4, v3")
        a("s_mov_b32 s6, %d" % self.ldw)
        a("v_mul_lo_u32 v5, s6, v2")
        a("v_lshl_add_u32 v5, v4, 4, v5")
        def chunkmap(dst, base, ch, cm):
            a("v_add_u32 v%d, %s, v%d" % (dst, cm[0][1], base))
            for fc, bo in cm[1:]:
                adj = bo - 16 * fc
                a("v_add_u32 v7, %d, v%d" % (adj & 0xffffffff, base))
                a("v_cmp_le_u32 vcc, %d, v%d" % (fc, ch))
                a("s_nop 1")
                a("v_cndmask_b32 v%d, v%d, v7, vcc" % (dst, dst))
        for nch, cm in self.groups:
            if nch == 8:
                chunkmap(r, 5, 4, cm)
                a("v_add_u32 v%d, %d, v%d" % (r + 1, 32 * self.ldw, r))
                self.pieces.append((r, 12, 33)); self.pieces.append((r + 1, 12, 33)); r += 2
            else:
                a("v_lshrrev_b32 v2, 2, v1"); a("s_lshl_b32 s35, s34, 4"); a("v_add_u32 v2, s35, v2")
                a("v_and_b32 v3, 3, v1")
                a("v_bfe_u32 v6, v2, 3, 1"); a("v_lshlrev_b32 v6, 1, v6"); a("v_xor_b32 v6, v6, v3")
                a("v_mul_lo_u32 v8, s6, v2"); a("v_lshl_add_u32 v8, v6, 4, v8")
                chunkmap(r, 8, 6, cm)
                self.pieces.append((r, 12, 33)); r += 1
        assert len(self.pieces) == self.P
        self.LFREE = r
        a("s_lshl_b32 s64, s34, 10")
        a("s_add_u32 s65, s64, %d" % (self.S * self.STG))
        a("s_mov_b32 s7, 0")
        a("s_mov_b32 s33, 0")

    def xlike_voffs(self, a, r, pitch, n, extra=()):
        a("v_lshrrev_b32 v2, 3, v1"); a("v_and_b32 v3, 7, v1")
        a("s_lshl_b32 s6, s34, 3"); a("v_add_u32 v2, s6, v2")
        a("v_bfe_u32 v4, v2, 1, 3"); a("v_xor_b32 v4, v4, v3")
        a("s_mov_b32 s6, %d" % pitch); a("v_mul_lo_u32 v5, s6, v2")
        a("v_lshl_add_u32 v%d, v4, 4, v5" % r)
        for i in range(1, n): a("v_add_u32 v%d, %d, v%d" % (r + i, 32 * pitch * i, r))
        for x, off in enumerate(extra):
            for i in range(n): a("v_add_u32 v%d, %d, v%d" % (r + n * (x + 1) + i, off, r + i))

    def dma(self, a, i, vo, srd_, so="0"):
        a("s_add_u32 m0, s64, %d" % (i * 4096))
        a("s_nop 0")
        a("buffer_load_dwordx4 v%d, %s, %s offen lds" % (vo, sr(srd_, 4), so))

    def issue_stage(self, a, first=False):
        if not (DBG["noload"] and not first):
            for i, (vo, srd_, so) in enumerate(self.pieces):
                a("s_add_u32 m0, s64, %d" % (i * 4096))
                a("s_nop 0")
                a("buffer_load_dwordx4 v%d, %s, s%d offen %slds" % (vo, sr(srd_, 4), so, "sc1 " if srd_ == self.dep else ""))
        a("s_add_u32 s7, s7, 128")
        if self.xskip:
            a("s_and_b32 s6, s7, 0x380"); a("s_cmp_eq_u32 s6, 0x180"); a("s_cselect_b32 s6, 128, 0"); a("s_add_u32 s7, s7, s6")
        a("s_add_u32 s33, s33, %d" % (64 * self.ldw))
        a("s_add_u32 s64, s64, %d" % self.STG)
        a("s_cmp_eq_u32 s64, s65")
        a("s_cselect_b32 s6, %d, 0" % (self.S * self.STG))
        a("s_sub_u32 s64, s64, s6")

    def loader_first(self, a):
        for st in range(2):
            self.issue_stage(a, True)
        self.q = [0] * self.P + [1] * self.P

    def issue_pre(self, a, st, sel):
        a("s_mov_b32 s6, %d" % ((lmap(st) if self.xskip else st) * 128 if sel == 8 else st * 64 * self.ldw))
        for i, (vo, srd_, so) in enumerate(self.pieces):
            if srd_ != sel: continue
            a("s_add_u32 m0, s64, %d" % (st * self.STG + i * 4096))
            a("s_nop 0")
            a("buffer_load_dwordx4 v%d, %s, s6 offen %slds" % (vo, sr(srd_, 4), "sc1 " if srd_ == self.dep else ""))
            self.q.append(st)

    def pre_done(self, a):
        n = self.npre
        a("s_mov_b32 s7, %d" % ((lmap(n) if self.xskip else n) * 128))
        a("s_mov_b32 s33, %d" % (n * 64 * self.ldw))
        a("s_add_u32 s64, s64, %d" % (n * self.STG))

    def loader_main(self, a):
        S, P, nk = self.S, self.P, self.nk
        assert (S - 1) * P + self.etile_n <= 63
        q = self.q
        issued = max(x for x in q if x < 99) + 1
        j = 0
        self.stamp(a, 1)
        def cnt(j): return len(q) - 1 - max(i for i, x in enumerate(q) if x <= j)
        while True:
            a("s_waitcnt vmcnt(%d)" % cnt(j))
            if j == 0: self.stamp(a, 2)
            a("s_barrier")
            n = 0
            while n < 2 and issued <= j + S - 1:
                self.issue_stage(a); q += [issued] * P; issued += 1; n += 1
            j += 1
            if issued == j + S - 1 and all(cnt(t) >= (issued - 1 - t) * P for t in range(j, issued)): break
        cnt = nk - issued
        assert cnt >= 1
        a("s_mov_b32 s66, %d" % cnt)
        L = a.newlabel(self.name + "_ll")
        a.lines.append(".p2align 4")
        a.label(L)
        a("s_waitcnt vmcnt(%d)" % ((S - 2) * P))
        a("s_barrier")
        self.issue_stage(a)
        for sg, fn in self.ltouch:
            lo = a.newlabel(self.name + "_t"); lb = a.newlabel(self.name + "_tb")
            assert 1 <= sg <= cnt
            a("s_cmp_eq_u32 s66, %d" % sg)
            a("s_cbranch_scc1 %s" % lo)
            a.label(lb)
            OOL.append((lo, lb, fn))
        a("s_sub_u32 s66, s66, 1")
        a("s_cmp_lg_u32 s66, 0")
        a("s_cbranch_scc1 %s" % L)
        j += cnt
        extra = 0
        while j < nk:
            a("s_waitcnt vmcnt(%d)" % ((nk - 1 - j) * P + extra))
            a("s_barrier")
            if self.etile and not extra:
                self.etile(a); extra = self.etile_n
            j += 1
        if extra and self.etile_wait: a("s_waitcnt vmcnt(0)")
        a("s_barrier")

    def pf_setup(self, a):
        pf = self.pf
        R, C, T, D = pf["R"], pf["C"], pf["T"], pf["D"]
        lr = R.bit_length() - 1
        nx = -(-self.BM // C)
        nr = 64 // R
        lnr = nr.bit_length() - 1
        a("s_lshr_b32 s6, s2, 3")
        a("s_lshr_b32 s7, s6, %d" % lr)
        a("s_and_b32 s6, s6, %d" % (R - 1))
        a("s_mul_i32 s7, s7, %d" % nx)
        a("v_add_u32 v10, s7, v1")
        a("s_mov_b32 s7, %d" % self.ldx)
        a("v_mul_lo_u32 v10, s7, v10")
        a("v_bfrev_b32 v12, 1")
        a("v_cmp_gt_u32 vcc, %d, v1" % nx)
        a("s_lshl_b32 s6, s6, %d" % lnr)
        a("v_and_b32 v11, %d, v1" % (nr - 1))
        a("v_cndmask_b32 v10, v12, v10, vcc")
        a("v_add_u32 v11, s6, v11")
        a("s_mov_b32 s7, %d" % self.ldw)
        a("v_mul_lo_u32 v11, s7, v11")
        a("v_add_u32 v13, %d, v11" % T[0])
        for t in range(1, len(T) + 1):
            if t * nr >= 64: break
            if t < len(T): a("v_add_u32 v14, %d, v11" % T[t])
            a("v_cmp_le_u32 vcc, %d, v1" % (t * nr))
            a("s_nop 1")
            a("v_cndmask_b32 v13, v13, v%d, vcc" % (14 if t < len(T) else 12))
        a("s_movk_i32 s97, 128")
        a("s_cmp_eq_u32 s3, 0")
        a("s_cselect_b64 s[68:69], s[8:9], s[12:13]")
        a("s_cselect_b64 s[70:71], s[10:11], s[14:15]")
        a("s_cselect_b32 s97, s97, %d" % (64 * self.ldw))
        a("s_cselect_b64 vcc, -1, 0")
        a("s_cmp_ge_u32 s3, 2")
        a("s_cselect_b32 s70, 0, s70")
        a("v_cndmask_b32 v15, v13, v10, vcc")
        a("s_mul_i32 s96, s97, %d" % pf["first"])
        for d in range(pf["first"], D):
            self.pf_issue(a)

    def pf_issue(self, a):
        a("buffer_load_dword v%d, v15, s[68:71], s96 offen" % self.PFD)
        a("s_add_u32 s96, s96, s97")

    def stamp(self, a, i):
        if DBG["stamp"]:
            a("s_memtime s[%d:%d]" % (80 + 2 * i, 81 + 2 * i))
            if i == 0:
                a("s_memrealtime s[76:77]")
                for j in range(1, 8): a("s_mov_b64 s[%d:%d], 0" % (80 + 2 * j, 81 + 2 * j))

    def stamp_out(self, a):
        if DBG["stamp"]:
            a("s_waitcnt vmcnt(0)")
            self.stamp(a, 7)
            a("s_memrealtime s[78:79]")
            a("s_waitcnt lgkmcnt(0)")
            a("s_mov_b64 exec, 1")
            a("s_lshl_b32 s6, s2, 3"); a("s_add_u32 s6, s6, s3"); a("s_lshl_b32 s6, s6, 7")
            a("s_add_u32 s6, s6, %s" % hex(STAMP_OFF + KIDX[self.name] * 0x80000))
            srd(a, 8, P_WS, "s6", 128)
            a("v_mov_b32 v1, 0")
            for i in range(20):
                a("v_mov_b32 v2, s%d" % (76 + i))
                a("buffer_store_dword v2, v1, s[8:11], 0 offen offset:%d" % (4 * i))

    def flag_store(self, a):
        srd(a, 68, P_WS, WS_FL, FL_BYTES)
        a("v_mov_b32 v10, 0")
        a("s_cmp_eq_u32 s3, 0"); a("s_cselect_b64 exec, 1, 0")
        a("buffer_store_dword v10, v10, s[68:71], s100 offen sc1")
        a("s_mov_b64 exec, -1")

    def emit(self, a, tilemap, setup, cpro, lpro, epi, lepi=None, common=None, prev=None, last=True, nxt=None):
        kn = self.name + "_kernel"
        ldr = a.newlabel(self.name + "_ldr")
        xl = a.newlabel(self.name + "_x")
        self.q = []
        if prev is None:
            kernel_head(a, kn)
            CH["end"] = a.newlabel(self.name + "_end")
            del OOL[:]
            a("s_cmp_ge_u32 s2, 256")
            a("s_cbranch_scc1 %s" % CH["end"])
            load_kernargs(a)
            a("v_lshrrev_b32 v1, 6, v0")
            tilemap(a)
            a("v_readfirstlane_b32 s3, v1")
            a("s_waitcnt lgkmcnt(0)")
        else:
            a.label("L_phase_" + self.name)
            a("s_mov_b64 exec, -1")
            prev.stamp_out(a)
            a("s_mov_b64 exec, -1")
            tilemap(a)
        end = CH["end"]
        self.stamp(a, 0)
        if self.extra:
            a("s_cmp_ge_u32 s2, %d" % self.ntiles)
            a("s_cbranch_scc1 %s" % xl)
        setup(a)
        a("s_cmp_ge_u32 s3, 4")
        a("s_cbranch_scc1 %s" % ldr)
        if self.prio: a("s_setprio %d" % self.prio)
        a("v_and_b32 v1, 63, v0")
        self.compute_addr(a)
        if prev is None:
            cpro(a)
            self.zero_acc(a)
        else:
            cpro(a)
            self.poll[0](a)
            self.zero_acc(a)
            a("s_waitcnt vmcnt(0)")
            a("s_barrier")
            self.flag_store(a)
            if self.bst: self.stamp(a, 5)
            np_ = a.newlabel(self.name + "_np")
            a("s_cmp_lg_u32 s3, 1")
            a("s_cbranch_scc1 %s" % np_)
            if self.pw: a("s_sleep %d" % self.pw)
            spin(a, self.name + "_dep", self.poll[1], self.poll[2], self.psl)
            a.label(np_)
            a("s_barrier")
            if self.bst: self.stamp(a, 6)
        if self.flagoff: self.flagoff(a)
        self.compute_main(a)
        self.stamp(a, 2)
        epi(a)
        cl = a.newlabel(self.name + "_com")
        a("s_branch %s" % cl)
        a.label(ldr)
        self.loader_setup(a)
        if prev is None:
            self.loader_first(a)
        else:
            a("s_setprio 0")
            a("s_waitcnt vmcnt(0)")
            a("s_barrier")
            for st in range(self.npre): self.issue_pre(a, st, 20 - self.dep)
            a("s_barrier")
            for st in range(self.npre): self.issue_pre(a, st, self.dep)
            self.pre_done(a)
        if self.flagoff: self.flagoff(a)
        lpro(a)
        self.loader_main(a)
        if lepi: lepi(a)
        a.label(cl)
        if common: common(a)
        if self.extra:
            OOL.append((xl, None, lambda a: self.extra(a, prev is not None, nxt if not last else end)))
        if last:
            a("s_mov_b64 exec, -1")
            if self.flagoff:
                a("s_waitcnt vmcnt(0)")
                a("s_barrier")
                self.flag_store(a)
            self.stamp_out(a)
            a.label(end)
            a("s_endpgm")
            for lo, lb, fn in OOL:
                a.label(lo)
                fn(a)
                if lb: a("s_branch %s" % lb)
        return kn


OOL = []
CH = {}
WS_FL = 0xC0000
FL_BYTES = 16384
SPB = 0x40000

def spin(a, name, issue, check, sleep=1, slot=None, wait=True):
    L = a.newlabel(name + "_l"); D = a.newlabel(name + "_d")
    a("s_mov_b32 s66, %d" % SPB)
    a.label(L)
    issue(a)
    if wait: a("s_waitcnt vmcnt(0)")
    check(a)
    a("s_sub_u32 s66, s66, 1")
    a("s_cbranch_scc1 %s" % D)
    a("s_cbranch_vccz %s" % D)
    if sleep: a("s_sleep %d" % sleep)
    a("s_branch %s" % L)
    a.label(D)
    if slot and DBG["stamp"]:
        a("s_waitcnt lgkmcnt(0)")
        a("s_sub_u32 s66, 0x40000, s66")
        a("s_add_u32 s%d, s80, s66" % (80 + 2 * slot)); a("s_addc_u32 s%d, s81, 0" % (81 + 2 * slot))


def xw_srds2(a, g, xp, xoff, wp, woff, wtotal, colbytes, shadow=0):
    ldx = g.ldx
    a("s_mul_i32 s6, s4, %d" % (g.BM * ldx))
    if xoff: a("s_add_u32 s6, s6, %s" % hex(xoff))
    srd(a, 8, xp, "s6", g.BM * ldx)
    a("s_mul_i32 s6, s5, %d" % colbytes)
    a("s_sub_u32 s7, %s, s6" % hex(wtotal))
    if woff: a("s_add_u32 s6, s6, %s" % hex(woff))
    if shadow:
        a("s_and_b32 s14, s5, 7"); a("s_cmp_eq_u32 s14, 3")
        a("s_cselect_b64 s[12:13], %s, %s" % (sr(ptr(P_WS), 2), sr(ptr(wp), 2)))
        a("s_cselect_b32 s14, %s, 0" % hex(shadow + 128))
        a("s_add_u32 s6, s6, s14")
        a("s_add_u32 s12, s12, s6"); a("s_addc_u32 s13, s13, 0")
        a("s_mov_b32 s14, s7"); a("s_mov_b32 s15, 0x00020000")
    else:
        srd(a, 12, wp, "s6", "s7")

def shadow_voff(a, vd, vt, tmp):
    a("v_lshrrev_b32 v%d, 3, v%d" % (vd, vt)); a("v_and_b32 v%d, 7, v%d" % (tmp, vt))
    a("v_lshlrev_b32 v%d, 10, v%d" % (vd, vd)); a("v_lshl_add_u32 v%d, v%d, 4, v%d" % (vd, tmp, vd))
    a("v_add_u32 v%d, 384, v%d" % (vd, vd))

def shadow_srd(a, sd, shadow, slice_bytes, wg):
    a("s_mul_i32 s6, %s, %d" % (wg, slice_bytes))
    a("s_add_u32 s6, s6, %s" % hex(shadow + 128))
    srd(a, sd, P_WS, "s6", slice_bytes)


def touch(a, p, slice_bytes, wg, vtid, sd, vd, off=0):
    a("s_mul_i32 s6, %s, %d" % (wg, slice_bytes))
    if off: a("s_add_u32 s6, s6, %d" % off)
    srd(a, sd, p, "s6", slice_bytes)
    a("buffer_load_dword v%d, v%d, %s, 0 offen" % (vd, vtid, sr(sd, 4)))

Stamper.stamp = Gemm2.stamp
Stamper.stamp_out = Gemm2.stamp_out


def lmap(j):
    return j + (j + 4) // 7

def s_lmap(a, dst, src, tmp, bytes_in=True):
    if bytes_in:
        a("s_lshr_b32 s%d, s%d, 7" % (tmp, src)); a("s_add_u32 s%d, s%d, 4" % (tmp, tmp))
    else:
        a("s_add_u32 s%d, s%d, 4" % (tmp, src))
    a("s_mul_i32 s%d, s%d, 37" % (tmp, tmp)); a("s_lshr_b32 s%d, s%d, 8" % (tmp, tmp))
    if bytes_in:
        a("s_lshl_b32 s%d, s%d, 7" % (tmp, tmp)); a("s_add_u32 s%d, s%d, s%d" % (dst, src, tmp))
    else:
        a("s_add_u32 s%d, s%d, s%d" % (dst, src, tmp)); a("s_lshl_b32 s%d, s%d, 7" % (dst, dst))

def red8(a, xs):
    for m in ("quad_perm:[1,0,3,2]", "quad_perm:[2,3,0,1]", "row_half_mirror"):
        if len(xs) < 3: a("s_nop 1")
        for x in xs:
            a("v_add_f32_dpp v%d, v%d, v%d %s row_mask:0xf bank_mask:0xf" % (x, x, x, m))


def code_touch(a, start, end, sd, voff, vd, back=False):
    lp = a.newlabel("pc")
    a("s_getpc_b64 %s" % sr(sd, 2))
    a.label(lp)
    if back:
        a("s_sub_u32 s%d, s%d, %s-%s" % (sd, sd, lp, start))
        a("s_subb_u32 s%d, s%d, 0" % (sd + 1, sd + 1))
    else:
        a("s_add_u32 s%d, s%d, %s-%s" % (sd, sd, start, lp))
        a("s_addc_u32 s%d, s%d, 0" % (sd + 1, sd + 1))
    a("s_mov_b32 s%d, %s-%s" % (sd + 2, end, start))
    a("s_mov_b32 s%d, 0x00020000" % (sd + 3))
    a("buffer_load_dword v%d, v%d, %s, 0 offen" % (vd, voff, sr(sd, 4)))
```

```python
from gen import *

STAMP_OFF = 0x4000000
KIDX = dict(k0=6, k1=0, k2=1, k3=2, k4=3, k5=4, k6=5)

class Stamper:
    def __init__(self, name): self.name = name; self.post_free = None; self.lwait = False

class Gemm2:
    def __init__(self, name, BM, K, mf, wgm, wgn, ldx, ldw, ntiles, S, groups):
        self.name, self.BM, self.K, self.mf = name, BM, K, mf
        self.wgm, self.wgn, self.ldx, self.ldw, self.ntiles, self.S = wgm, wgn, ldx, ldw, ntiles, S
        self.groups = groups
        self.xskip = False
        self.etile_wait = True
        self.cpost0 = None
        self.ltouch = []
        self.nk = K // 64
        self.XI = BM * 128
        self.goff = []
        o = self.XI
        for nch, _ in groups:
            self.goff.append(o); o += 64 * nch * 16
        self.STG = o
        assert self.STG % 4096 == 0
        self.P = self.STG // 4096
        self.LDS_MAIN = S * self.STG
        self.WM = BM // wgm
        self.NT = self.WM // mf
        self.NS = 4 if mf == 32 else 2
        self.accn = 16 if mf == 32 else 4
        full = [g for g, (n, _) in enumerate(groups) if n == 8]
        half = [g for g, (n, _) in enumerate(groups) if n == 4]
        self.wt = []
        if mf == 32:
            if wgn == 2:
                self.nwa = 1
                for g in full: self.wt.append((0, self.goff[g], 128))
            else:
                self.nwa = 2
                for g in full:
                    for h in range(2): self.wt.append((h, self.goff[g], 128))
            assert not half
        else:
            assert wgn == 2
            self.nwa = 2 + len(half)
            for g in full:
                for o in range(2): self.wt.append((o, self.goff[g], 128))
            for g in half: self.wt.append((2, self.goff[g], 64))
        self.MT = len(self.wt)
        self.VX = 2
        self.VW = self.VX + self.NS
        assert self.VW + self.nwa <= 9
        self.FR = 16
        self.nfr = (self.NT + self.MT) * 4
        self.ACC = self.FR + 2 * self.nfr
        self.nacc = self.NT * self.MT * self.accn
        self.CFREE = self.ACC + self.nacc
        self.prio = 2
        self.pf = None
        self.etile = None
        self.cpro0 = None
        self.extra = None
        self.PFD = 255
        self.etile_n = 0
        self.dep = 8
        self.npre = S - 1
        self.poll = None
        self.flagoff = None
        self.pw = 0
        self.lwait = True
        self.cpre0 = None
        self.dyn = False
        self.R = 8
        self.fl = None
        self.post_free = None
        self.trickle = None
        self.psl = 1
        self.bst = True

    def acc(self, i, j): return self.ACC + (i * self.NT + j) * self.accn
    def xfrag(self, s, j): return self.FR + s * self.nfr + j * 4
    def wfrag(self, s, i): return self.FR + s * self.nfr + (self.NT + i) * 4

    def reads(self, sub, fs):
        xs, ws = [], []
        for j in range(self.NT):
            xs.append("ds_read_b128 %s, v%d offset:%d" % (vr(self.xfrag(fs, j), 4), self.VX + sub, j * self.mf * 128))
        kr = 16 if self.mf == 32 else 32
        for i, (ar, imm, pitch) in enumerate(self.wt):
            for q in range(2):
                ws.append("ds_read_b64_tr_b16 %s, v%d offset:%d" % (vr(self.wfrag(fs, i) + 2 * q, 2), self.VW + ar,
                                                                    imm + (kr * sub + 4 * q) * pitch))
        return ws[0:2] + xs + ws[2:]

    def mfmas(self, fs):
        op = "v_mfma_f32_32x32x16_bf16" if self.mf == 32 else "v_mfma_f32_16x16x32_bf16"
        out = []
        for i in range(self.MT):
            for j in range(self.NT):
                A = self.acc(i, j)
                out.append("%s %s, %s, %s, %s" % (op, vr(A, self.accn), vr(self.wfrag(fs, i), 4),
                                                  vr(self.xfrag(fs, j), 4), vr(A, self.accn)))
        return out

    def compute_addr(self, a):
        mf = self.mf
        if self.wgn == 1:
            a("s_mul_i32 s34, s3, %d" % self.WM); a("s_mov_b32 s35, 0")
        else:
            a("s_lshr_b32 s34, s3, 1"); a("s_mul_i32 s34, s34, %d" % self.WM)
            a("s_and_b32 s35, s3, 1")
        sh = 5 if mf == 32 else 4
        X = self.VX
        a("v_and_b32 v10, %d, v1" % (mf - 1))
        a("v_bfe_u32 v11, v1, 1, 3")
        a("v_lshrrev_b32 v12, %d, v1" % sh)
        a("v_xor_b32 v11, v11, v12")
        a("v_add_u32 v10, s34, v10")
        a("v_lshlrev_b32 v10, 7, v10")
        a("v_lshl_add_u32 v%d, v11, 4, v10" % X)
        for s in range(1, self.NS):
            a("v_xor_b32 v%d, %d, v%d" % (X + s, s * (32 if mf == 32 else 64), X))
        W = self.VW
        a("v_bfe_u32 v10, v1, 2, 2")
        a("v_lshl_add_u32 v10, v12, 3, v10")
        if mf == 32:
            a("v_bfe_u32 v11, v1, 4, 1"); a("v_lshlrev_b32 v11, 5, v11")
            a("v_and_b32 v13, 1, v1"); a("v_lshl_add_u32 v11, v13, 4, v11")
            a("v_bfe_u32 v13, v1, 1, 1"); a("v_lshl_add_u32 v11, v13, 3, v11")
            a("v_bfe_u32 v13, v1, 3, 1"); a("v_lshl_add_u32 v11, v13, 6, v11")
            a("v_lshl_add_u32 v%d, v10, 7, v11" % W)
            if self.wgn == 2:
                a("s_lshl_b32 s6, s35, 6")
                a("v_xor_b32 v%d, s6, v%d" % (W, W))
            else:
                a("v_xor_b32 v%d, 64, v%d" % (W + 1, W))
        else:
            a("v_and_b32 v11, 3, v1"); a("v_lshlrev_b32 v11, 3, v11")
            a("v_bfe_u32 v13, v1, 4, 1")
            if self.nwa == 3:
                a("v_xor_b32 v14, s35, v13"); a("v_lshl_add_u32 v14, v14, 5, v11")
                a("v_lshl_add_u32 v%d, v10, 6, v14" % (W + 2))
            a("v_xor_b32 v13, s35, v13"); a("v_lshl_add_u32 v11, v13, 6, v11")
            a("v_bfe_u32 v13, v1, 3, 1"); a("v_lshl_add_u32 v11, v13, 5, v11")
            a("v_lshl_add_u32 v%d, v10, 7, v11" % W)
            a("v_xor_b32 v%d, 32, v%d" % (W + 1, W))

    def interleave(self, a, mf, rd, first_after=None, tail=()):
        if DBG["nomfma"]: mf = ["s_nop 0"] * len(mf)
        if DBG["noread"]: rd = []
        rd = list(rd) + list(tail)
        n = len(mf)
        per = 2 if self.mf == 32 else 1
        per = max(per, -(-len(rd) // max(1, n - 1)))
        ri = 0
        for t, m in enumerate(mf):
            a(m)
            if t == 0 and first_after:
                for x in first_after: a(x)
            for _ in range(per):
                if ri < len(rd):
                    a(rd[ri]); ri += 1
        while ri < len(rd):
            a(rd[ri]); ri += 1

    def slot_next(self, a):
        a("s_add_u32 s64, s64, %d" % self.STG)
        a("s_cmp_eq_u32 s64, %d" % (self.S * self.STG))
        a("s_cselect_b32 s65, %s, s67" % (hex((-(self.S - 1) * self.STG) & 0xffffffff)))
        a("s_cselect_b32 s64, 0, s64")

    def zero_acc(self, a):
        for r in range(self.nacc):
            a("v_mov_b32 v%d, 0" % (self.ACC + r))

    def compute_main(self, a):
        a("s_mov_b32 s64, 0")
        a("s_mov_b32 s67, %d" % self.STG)
        a("s_mov_b32 s6, %d" % self.nk)
        a("s_barrier")
        self.stamp(a, 1)
        for x in self.reads(0, 0): a(x)
        if self.cpost0: self.cpost0(a)
        L = a.newlabel(self.name + "_cl")
        a.lines.append(".p2align 4")
        a.label(L)
        self.slot_next(a)
        for sub in range(self.NS):
            fs = sub & 1
            a("s_waitcnt lgkmcnt(0)")
            if sub < self.NS - 1:
                tail = ["v_add_u32 v%d, s65, v%d" % (self.VX + sub + 1, self.VX + sub + 1)]
                if sub == 0:
                    tail.append("v_add_u32 v%d, s65, v%d" % (self.VX, self.VX))
                    if self.pf and self.pf["D"]:
                        tail += ["buffer_load_dword v%d, v15, s[68:71], s96 offen" % self.PFD, "s_add_u32 s96, s96, s97"]
                if sub == self.NS - 2:
                    tail += ["v_add_u32 v%d, s65, v%d" % (self.VW + w, self.VW + w) for w in range(self.nwa)]
                self.interleave(a, self.mfmas(fs), self.reads(sub + 1, fs ^ 1), tail=tail)
            else:
                self.interleave(a, self.mfmas(fs), self.reads(0, fs ^ 1), first_after=["s_sub_u32 s6, s6, 1", "s_barrier"])
        a("s_cmp_lg_u32 s6, 0")
        a("s_cbranch_scc1 %s" % L)
        a("s_waitcnt lgkmcnt(0)")

    def loader_setup(self, a):
        self.pieces = []
        a("s_sub_u32 s34, s3, 4")
        a("v_and_b32 v1, 63, v0")
        a("v_lshrrev_b32 v2, 3, v1")
        a("v_and_b32 v3, 7, v1")
        a("s_lshl_b32 s6, s34, 3")
        a("v_add_u32 v2, s6, v2")
        r = 16
        a("v_bfe_u32 v4, v2, 1, 3")
        a("v_xor_b32 v4, v4, v3")
        a("s_mov_b32 s6, %d" % self.ldx)
        a("v_mul_lo_u32 v5, s6, v2")
        for i in range(self.BM // 32):
            if i == 0: a("v_lshl_add_u32 v%d, v4, 4, v5" % r)
            else: a("v_add_u32 v%d, %d, v%d" % (r, 32 * self.ldx, r - 1))
            self.pieces.append((r, 8, 7)); r += 1
        if self.mf == 32:
            a("v_bfe_u32 v4, v2, 1, 1"); a("v_lshlrev_b32 v4, 2, v4")
        else:
            a("v_bfe_u32 v4, v2, 1, 1"); a("v_lshlrev_b32 v4, 1, v4")
            a("v_bfe_u32 v6, v2, 3, 1"); a("v_lshl_add_u32 v4, v6, 2, v4")
        a("v_xor_b32 v4, v4, v3")
        a("s_mov_b32 s6, %d" % self.ldw)
        a("v_mul_lo_u32 v5, s6, v2")
        a("v_lshl_add_u32 v5, v4, 4, v5")
        def chunkmap(dst, base, ch, cm):
            a("v_add_u32 v%d, %s, v%d" % (dst, cm[0][1], base))
            for fc, bo in cm[1:]:
                adj = bo - 16 * fc
                a("v_add_u32 v7, %d, v%d" % (adj & 0xffffffff, base))
                a("v_cmp_le_u32 vcc, %d, v%d" % (fc, ch))
                a("s_nop 1")
                a("v_cndmask_b32 v%d, v%d, v7, vcc" % (dst, dst))
        for nch, cm in self.groups:
            if nch == 8:
                chunkmap(r, 5, 4, cm)
                a("v_add_u32 v%d, %d, v%d" % (r + 1, 32 * self.ldw, r))
                self.pieces.append((r, 12, 33)); self.pieces.append((r + 1, 12, 33)); r += 2
            else:
                a("v_lshrrev_b32 v2, 2, v1"); a("s_lshl_b32 s35, s34, 4"); a("v_add_u32 v2, s35, v2")
                a("v_and_b32 v3, 3, v1")
                a("v_bfe_u32 v6, v2, 3, 1"); a("v_lshlrev_b32 v6, 1, v6"); a("v_xor_b32 v6, v6, v3")
                a("v_mul_lo_u32 v8, s6, v2"); a("v_lshl_add_u32 v8, v6, 4, v8")
                chunkmap(r, 8, 6, cm)
                self.pieces.append((r, 12, 33)); r += 1
        assert len(self.pieces) == self.P
        self.LFREE = r
        a("s_lshl_b32 s64, s34, 10")
        a("s_add_u32 s65, s64, %d" % (self.S * self.STG))
        a("s_mov_b32 s7, 0")
        a("s_mov_b32 s33, 0")

    def xlike_voffs(self, a, r, pitch, n, extra=()):
        a("v_lshrrev_b32 v2, 3, v1"); a("v_and_b32 v3, 7, v1")
        a("s_lshl_b32 s6, s34, 3"); a("v_add_u32 v2, s6, v2")
        a("v_bfe_u32 v4, v2, 1, 3"); a("v_xor_b32 v4, v4, v3")
        a("s_mov_b32 s6, %d" % pitch); a("v_mul_lo_u32 v5, s6, v2")
        a("v_lshl_add_u32 v%d, v4, 4, v5" % r)
        for i in range(1, n): a("v_add_u32 v%d, %d, v%d" % (r + i, 32 * pitch * i, r))
        for x, off in enumerate(extra):
            for i in range(n): a("v_add_u32 v%d, %d, v%d" % (r + n * (x + 1) + i, off, r + i))

    def dma(self, a, i, vo, srd_, so="0"):
        a("s_add_u32 m0, s64, %d" % (i * 4096))
        a("s_nop 0")
        a("buffer_load_dwordx4 v%d, %s, %s offen lds" % (vo, sr(srd_, 4), so))

    def issue_stage(self, a, first=False):
        if not (DBG["noload"] and not first):
            for i, (vo, srd_, so) in enumerate(self.pieces):
                a("s_add_u32 m0, s64, %d" % (i * 4096))
                a("s_nop 0")
                a("buffer_load_dwordx4 v%d, %s, s%d offen %slds" % (vo, sr(srd_, 4), so, "sc1 " if srd_ == self.dep else ""))
        if self.dyn:
            l1 = a.newlabel(self.name + "_lt"); b1 = a.newlabel(self.name + "_ltb")
            l2 = a.newlabel(self.name + "_pp"); b2 = a.newlabel(self.name + "_ppb")
            a("s_cmp_eq_u32 s99, 0"); a("s_cbranch_scc1 %s" % l1)
            a.label(b1)
            self.select(a, 7, 33)
            a("s_bcnt1_i32_b32 s6, s99"); a("s_cmp_eq_u32 s6, %d" % (self.S - 2)); a("s_cbranch_scc1 %s" % l2)
            a.label(b2)
            OOL.append((l1, b1, lambda a: self.late(a, b1))); OOL.append((l2, b2, lambda a: self.prepoll(a, b2)))
        else:
            a("s_add_u32 s7, s7, 128")
            if self.xskip:
                a("s_and_b32 s6, s7, 0x380"); a("s_cmp_eq_u32 s6, 0x180"); a("s_cselect_b32 s6, 128, 0"); a("s_add_u32 s7, s7, s6")
            a("s_add_u32 s33, s33, %d" % (64 * self.ldw))
        a("s_add_u32 s64, s64, %d" % self.STG)
        a("s_cmp_eq_u32 s64, s65")
        a("s_cselect_b32 s6, %d, 0" % (self.S * self.STG))
        a("s_sub_u32 s64, s64, s6")

    def select(self, a, sx, sw):
        a("s_ff1_i32_b32 s6, s99")
        a("s_bitset0_b32 s99, s6")
        a("s_mul_i32 s%d, s6, %d" % (sw, 64 * self.ldw))
        if self.xskip: s_lmap(a, sx, 6, sx, False)
        else: a("s_lshl_b32 s%d, s6, 7" % sx)

    def prepoll(self, a, back):
        a("s_cmp_eq_u32 s101, 0"); a("s_cbranch_scc1 %s" % back)
        self.fl["issue"](a, 30)

    def late(self, a, back):
        a("s_mov_b32 s99, s101"); a("s_mov_b32 s101, 0")
        a("s_cmp_eq_u32 s99, 0"); a("s_cbranch_scc1 %s" % back)
        a("s_waitcnt vmcnt(%d)" % ((self.S - 1) * self.P))
        L = a.newlabel(self.name + "_ls")
        a("s_mov_b32 s35, %d" % SPB)
        a.label(L)
        self.fl["mask"](a, 30, 6)
        a("s_cmp_eq_u32 s6, %s" % hex(self.fl["full"])); a("s_cbranch_scc1 %s" % back)
        a("s_sub_u32 s35, s35, 1"); a("s_cbranch_scc1 %s" % back)
        a("s_sleep 2")
        self.fl["issue"](a, 30)
        a("s_waitcnt vmcnt(0)")
        a("s_branch %s" % L)

    def loader_first(self, a):
        for st in range(2):
            self.issue_stage(a, True)
        self.q = [0] * self.P + [1] * self.P

    def issue_pre(self, a, st, sel, so_=None):
        if so_ is None:
            so_ = 6
            a("s_mov_b32 s6, %d" % ((lmap(st) if self.xskip else st) * 128 if sel == 8 else st * 64 * self.ldw))
        for i, (vo, srd_, so) in enumerate(self.pieces):
            if srd_ != sel: continue
            a("s_add_u32 m0, s64, %d" % (st * self.STG + i * 4096))
            a("s_nop 0")
            a("buffer_load_dwordx4 v%d, %s, s%d offen %slds" % (vo, sr(srd_, 4), so_, "sc1 " if srd_ == self.dep else ""))
            self.q.append(st)

    def pre_done(self, a):
        n = self.npre
        if self.dyn: self.select(a, 7, 33)
        else:
            a("s_mov_b32 s7, %d" % ((lmap(n) if self.xskip else n) * 128))
            a("s_mov_b32 s33, %d" % (n * 64 * self.ldw))
        a("s_add_u32 s64, s64, %d" % (n * self.STG))

    def loader_main(self, a):
        S, P, nk = self.S, self.P, self.nk
        assert (S - 1) * P + self.etile_n <= 63
        q = self.q
        Pe = P + (1 if self.trickle else 0)
        issued = max(x for x in q if x < 99) + 1
        j = 0
        self.stamp(a, 1)
        def cnt(j): return len(q) - 1 - max(i for i, x in enumerate(q) if x <= j)
        while True:
            a("s_waitcnt vmcnt(%d)" % cnt(j))
            if j == 0: self.stamp(a, 2)
            a("s_barrier")
            n = 0
            while n < 2 and issued <= j + S - 1:
                self.issue_stage(a); q += [issued] * P; issued += 1; n += 1
                if self.trickle:
                    self.trickle(a); q.append(99)
            j += 1
            if issued == j + S - 1 and all(cnt(t) >= (issued - 1 - t) * Pe for t in range(j, issued)): break
        cnt = nk - issued
        assert cnt >= 1
        a("s_mov_b32 s66, %d" % cnt)
        L = a.newlabel(self.name + "_ll")
        a.lines.append(".p2align 4")
        a.label(L)
        a("s_waitcnt vmcnt(%d)" % ((S - 2) * Pe))
        a("s_barrier")
        self.issue_stage(a)
        if self.trickle: self.trickle(a)
        for sg, fn in self.ltouch:
            lo = a.newlabel(self.name + "_t"); lb = a.newlabel(self.name + "_tb")
            assert 1 <= sg <= cnt
            a("s_cmp_eq_u32 s66, %d" % sg)
            a("s_cbranch_scc1 %s" % lo)
            a.label(lb)
            OOL.append((lo, lb, fn))
        a("s_sub_u32 s66, s66, 1")
        a("s_cmp_lg_u32 s66, 0")
        a("s_cbranch_scc1 %s" % L)
        j += cnt
        extra = 0
        while j < nk:
            a("s_waitcnt vmcnt(%d)" % ((nk - 1 - j) * P + extra))
            a("s_barrier")
            if self.etile and not extra:
                self.etile(a); extra = self.etile_n
            j += 1
        if extra and self.etile_wait: a("s_waitcnt vmcnt(0)")
        a("s_barrier")

    def pf_setup(self, a):
        pf = self.pf
        R, C, T, D = pf["R"], pf["C"], pf["T"], pf["D"]
        lr = R.bit_length() - 1
        nx = -(-self.BM // C)
        nr = 64 // R
        lnr = nr.bit_length() - 1
        a("s_lshr_b32 s6, s2, 3")
        a("s_lshr_b32 s7, s6, %d" % lr)
        a("s_and_b32 s6, s6, %d" % (R - 1))
        a("s_mul_i32 s7, s7, %d" % nx)
        a("v_add_u32 v10, s7, v1")
        a("s_mov_b32 s7, %d" % self.ldx)
        a("v_mul_lo_u32 v10, s7, v10")
        a("v_bfrev_b32 v12, 1")
        a("v_cmp_gt_u32 vcc, %d, v1" % nx)
        a("s_lshl_b32 s6, s6, %d" % lnr)
        a("v_and_b32 v11, %d, v1" % (nr - 1))
        a("v_cndmask_b32 v10, v12, v10, vcc")
        a("v_add_u32 v11, s6, v11")
        a("s_mov_b32 s7, %d" % self.ldw)
        a("v_mul_lo_u32 v11, s7, v11")
        a("v_add_u32 v13, %d, v11" % T[0])
        for t in range(1, len(T) + 1):
            if t * nr >= 64: break
            if t < len(T): a("v_add_u32 v14, %d, v11" % T[t])
            a("v_cmp_le_u32 vcc, %d, v1" % (t * nr))
            a("s_nop 1")
            a("v_cndmask_b32 v13, v13, v%d, vcc" % (14 if t < len(T) else 12))
        a("s_movk_i32 s97, 128")
        a("s_cmp_eq_u32 s3, 0")
        a("s_cselect_b64 s[68:69], s[8:9], s[12:13]")
        a("s_cselect_b64 s[70:71], s[10:11], s[14:15]")
        a("s_cselect_b32 s97, s97, %d" % (64 * self.ldw))
        a("s_cselect_b64 vcc, -1, 0")
        a("s_cmp_ge_u32 s3, 2")
        a("s_cselect_b32 s70, 0, s70")
        a("v_cndmask_b32 v15, v13, v10, vcc")
        a("s_mul_i32 s96, s97, %d" % pf["first"])
        for d in range(pf["first"], D):
            self.pf_issue(a)

    def pf_issue(self, a):
        a("buffer_load_dword v%d, v15, s[68:71], s96 offen" % self.PFD)
        a("s_add_u32 s96, s96, s97")

    def stamp(self, a, i):
        if DBG["stamp"]:
            a("s_memtime s[%d:%d]" % (80 + 2 * i, 81 + 2 * i))
            if i == 0:
                a("s_memrealtime s[76:77]")
                for j in range(1, 8): a("s_mov_b64 s[%d:%d], 0" % (80 + 2 * j, 81 + 2 * j))

    def stamp_save(self, a):
        if DBG["stamp"]:
            self.stamp(a, 7)
            a("s_memrealtime s[78:79]")
            a("s_waitcnt lgkmcnt(0)")
            for i in range(10):
                a("v_writelane_b32 v254, s%d, %d" % (76 + 2 * i, 10 * (KIDX[self.name] % 6) + i))

    def stamp_out(self, a):
        if DBG["stamp"]:
            a("s_waitcnt vmcnt(0)")
            self.stamp_save(a)
            a("s_lshl_b32 s6, s2, 3"); a("s_add_u32 s6, s6, s3"); a("s_lshl_b32 s6, s6, 8")
            a("s_add_u32 s6, s6, %s" % hex(STAMP_OFF + KIDX[self.name] * 0x80000))
            srd(a, 8, P_WS, "s6", 256)
            a("v_and_b32 v1, 63, v0"); a("v_lshlrev_b32 v1, 2, v1")
            a("buffer_store_dword v254, v1, s[8:11], 0 offen")

    def flag_store(self, a):
        srd(a, 68, P_WS, WS_FL, FL_BYTES)
        a("v_mov_b32 v10, 0")
        a("s_cmp_eq_u32 s3, 0"); a("s_cselect_b64 exec, 1, 0")
        a("buffer_store_dword v10, v10, s[68:71], s100 offen sc1")
        a("s_mov_b64 exec, -1")

    def emit(self, a, tilemap, setup, cpro, lpro, epi, lepi=None, common=None, prev=None, last=True, nxt=None):
        kn = self.name + "_kernel"
        ldr = a.newlabel(self.name + "_ldr")
        xl = a.newlabel(self.name + "_x")
        self.q = []
        if prev is None: self.dyn = False
        if prev is None:
            kernel_head(a, kn)
            CH["end"] = a.newlabel(self.name + "_end")
            del OOL[:]
            a("s_cmp_ge_u32 s2, 256")
            a("s_cbranch_scc1 %s" % CH["end"])
            load_kernargs(a)
            a("v_lshrrev_b32 v1, 6, v0")
            tilemap(a)
            a("v_readfirstlane_b32 s3, v1")
            a("s_waitcnt lgkmcnt(0)")
            if DBG["stamp"]: a("v_mov_b32 v254, 0")
        else:
            a.label("L_phase_" + self.name)
            a("s_mov_b64 exec, -1")
            prev.stamp_save(a)
            tilemap(a)
        end = CH["end"]
        self.stamp(a, 0)
        if self.extra:
            a("s_cmp_ge_u32 s2, %d" % self.ntiles)
            a("s_cbranch_scc1 %s" % xl)
        setup(a)
        a("s_cmp_ge_u32 s3, 4")
        a("s_cbranch_scc1 %s" % ldr)
        if self.prio: a("s_setprio %d" % self.prio)
        a("v_and_b32 v1, 63, v0")
        self.compute_addr(a)
        if prev is None:
            cpro(a)
            self.zero_acc(a)
        else:
            cpro(a)
            self.fl["prep"](a, 240)
            self.zero_acc(a)
            a("s_waitcnt vmcnt(0)")
            a("s_barrier")
            self.flag_store(a)
            if self.bst: self.stamp(a, 5)
            np_ = a.newlabel(self.name + "_np")
            a("s_cmp_lg_u32 s3, 1")
            a("s_cbranch_scc1 %s" % np_)
            if self.pw: a("s_sleep %d" % self.pw)
            L = a.newlabel(self.name + "_dl"); D = a.newlabel(self.name + "_dd")
            a("s_mov_b32 s66, %d" % SPB)
            a.label(L)
            self.fl["issue"](a, 240)
            a("s_waitcnt vmcnt(0)")
            self.fl["mask"](a, 240, 67)
            a("s_sub_u32 s66, s66, 1"); a("s_cselect_b32 s67, %s, s67" % hex(self.fl["full"]))
            a("s_bcnt1_i32_b32 s6, s67")
            if self.fl.get("must"): self.fl["must"](a)
            a("s_cmp_ge_u32 s6, %d" % (self.R if self.dyn else bin(self.fl["full"]).count("1")))
            a("s_cbranch_scc1 %s" % D)
            if self.psl: a("s_sleep %d" % self.psl)
            a("s_branch %s" % L)
            a.label(D)
            if self.dyn:
                a("v_mov_b32 v240, s67"); a("v_mov_b32 v241, %d" % MASKW)
                a("ds_write_b32 v241, v240")
                a("s_waitcnt lgkmcnt(0)")
            a.label(np_)
            a("s_barrier")
            if self.bst: self.stamp(a, 6)
        if self.flagoff: self.flagoff(a)
        if self.cpre0: self.cpre0(a)
        self.compute_main(a)
        self.stamp(a, 2)
        epi(a)
        cl = a.newlabel(self.name + "_com")
        a("s_branch %s" % cl)
        a.label(ldr)
        self.loader_setup(a)
        if prev is None:
            self.loader_first(a)
        else:
            a("s_setprio 0")
            if prev.lwait: a("s_waitcnt vmcnt(0)")
            a("s_barrier")
            for st in range(self.npre): self.issue_pre(a, st, 20 - self.dep)
            if prev.post_free: prev.post_free(a, len(self.q))
            if self.dyn:
                n = self.npre
                self.fl["prep"](a, 30)
                for r in range(32, 36): a("v_mov_b32 v%d, -1" % r)
                a("v_mov_b32 v36, %d" % MASKW)
                a("s_barrier")
                a("ds_read_b32 v36, v36")
                a("s_waitcnt lgkmcnt(0)")
                a("v_readfirstlane_b32 s99, v36")
                fast = a.newlabel(self.name + "_fast"); done = a.newlabel(self.name + "_pdone"); slow = a.newlabel(self.name + "_slow")
                a("s_andn2_b32 s101, %s, s99" % hex(self.fl["full"]))
                a("s_and_b32 s6, s101, %d" % ((1 << n) - 1))
                a("s_cbranch_scc1 %s" % slow)
                for st in range(n): self.issue_pre(a, st, self.dep)
                a("s_andn2_b32 s99, s99, %d" % ((1 << n) - 1))
                a.label(done)
                def slowf(a):
                    q = self.q; self.q = []
                    X, W = [7, 32, 35], [33, 66, 67]
                    for st in range(n): self.select(a, X[st], W[st])
                    for sel in (20 - self.dep, self.dep):
                        for st in range(n): self.issue_pre(a, st, sel, (X if sel == 8 else W)[st])
                    self.q = q
                OOL.append((slow, done, slowf))
            else:
                a("s_barrier")
                for st in range(self.npre): self.issue_pre(a, st, self.dep)
            self.pre_done(a)
        if self.flagoff: self.flagoff(a)
        lpro(a)
        self.loader_main(a)
        if lepi: lepi(a)
        a.label(cl)
        if common: common(a)
        if self.extra:
            OOL.append((xl, None, lambda a: self.extra(a, prev is not None, nxt if not last else end)))
        if last:
            a("s_mov_b64 exec, -1")
            if self.post_free: self.post_free(a, 0)
            if self.flagoff:
                a("s_waitcnt vmcnt(0)")
                a("s_barrier")
                self.flag_store(a)
            self.stamp_out(a)
            a.label(end)
            a("s_endpgm")
            for lo, lb, fn in OOL:
                a.label(lo)
                fn(a)
                if lb: a("s_branch %s" % lb)
        return kn


OOL = []
CH = {}
WS_FL = 0xC0000
FL_BYTES = 16384
SPB = 0x40000
MASKW = 163832

def spin(a, name, issue, check, sleep=1, slot=None, wait=True):
    L = a.newlabel(name + "_l"); D = a.newlabel(name + "_d")
    a("s_mov_b32 s66, %d" % SPB)
    a.label(L)
    issue(a)
    if wait: a("s_waitcnt vmcnt(0)")
    check(a)
    a("s_sub_u32 s66, s66, 1")
    a("s_cbranch_scc1 %s" % D)
    a("s_cbranch_vccz %s" % D)
    if sleep: a("s_sleep %d" % sleep)
    a("s_branch %s" % L)
    a.label(D)
    if slot and DBG["stamp"]:
        a("s_waitcnt lgkmcnt(0)")
        a("s_sub_u32 s66, 0x40000, s66")
        a("s_add_u32 s%d, s80, s66" % (80 + 2 * slot)); a("s_addc_u32 s%d, s81, 0" % (81 + 2 * slot))


def xw_srds2(a, g, xp, xoff, wp, woff, wtotal, colbytes, shadow=0):
    ldx = g.ldx
    a("s_mul_i32 s6, s4, %d" % (g.BM * ldx))
    if xoff: a("s_add_u32 s6, s6, %s" % hex(xoff))
    srd(a, 8, xp, "s6", g.BM * ldx)
    a("s_mul_i32 s6, s5, %d" % colbytes)
    a("s_sub_u32 s7, %s, s6" % hex(wtotal))
    if woff: a("s_add_u32 s6, s6, %s" % hex(woff))
    if shadow:
        a("s_and_b32 s14, s5, 7"); a("s_cmp_eq_u32 s14, 3")
        a("s_cselect_b64 s[12:13], %s, %s" % (sr(ptr(P_WS), 2), sr(ptr(wp), 2)))
        a("s_cselect_b32 s14, %s, 0" % hex(shadow + 128))
        a("s_add_u32 s6, s6, s14")
        a("s_add_u32 s12, s12, s6"); a("s_addc_u32 s13, s13, 0")
        a("s_mov_b32 s14, s7"); a("s_mov_b32 s15, 0x00020000")
    else:
        srd(a, 12, wp, "s6", "s7")

def shadow_voff(a, vd, vt, tmp):
    a("v_lshrrev_b32 v%d, 3, v%d" % (vd, vt)); a("v_and_b32 v%d, 7, v%d" % (tmp, vt))
    a("v_lshlrev_b32 v%d, 10, v%d" % (vd, vd)); a("v_lshl_add_u32 v%d, v%d, 4, v%d" % (vd, tmp, vd))
    a("v_add_u32 v%d, 384, v%d" % (vd, vd))

def shadow_srd(a, sd, shadow, slice_bytes, wg):
    a("s_mul_i32 s6, %s, %d" % (wg, slice_bytes))
    a("s_add_u32 s6, s6, %s" % hex(shadow + 128))
    srd(a, sd, P_WS, "s6", slice_bytes)


def touch(a, p, slice_bytes, wg, vtid, sd, vd, off=0):
    a("s_mul_i32 s6, %s, %d" % (wg, slice_bytes))
    if off: a("s_add_u32 s6, s6, %d" % off)
    srd(a, sd, p, "s6", slice_bytes)
    a("buffer_load_dword v%d, v%d, %s, 0 offen" % (vd, vtid, sr(sd, 4)))

Stamper.stamp = Gemm2.stamp
Stamper.stamp_out = Gemm2.stamp_out
Stamper.stamp_save = Gemm2.stamp_save


def lmap(j):
    return j + (j + 4) // 7

def s_lmap(a, dst, src, tmp, bytes_in=True):
    if bytes_in:
        a("s_lshr_b32 s%d, s%d, 7" % (tmp, src)); a("s_add_u32 s%d, s%d, 4" % (tmp, tmp))
    else:
        a("s_add_u32 s%d, s%d, 4" % (tmp, src))
    a("s_mul_i32 s%d, s%d, 37" % (tmp, tmp)); a("s_lshr_b32 s%d, s%d, 8" % (tmp, tmp))
    if bytes_in:
        a("s_lshl_b32 s%d, s%d, 7" % (tmp, tmp)); a("s_add_u32 s%d, s%d, s%d" % (dst, src, tmp))
    else:
        a("s_add_u32 s%d, s%d, s%d" % (dst, src, tmp)); a("s_lshl_b32 s%d, s%d, 7" % (dst, dst))

def red8(a, xs):
    for m in ("quad_perm:[1,0,3,2]", "quad_perm:[2,3,0,1]", "row_half_mirror"):
        if len(xs) < 3: a("s_nop 1")
        for x in xs:
            a("v_add_f32_dpp v%d, v%d, v%d %s row_mask:0xf bank_mask:0xf" % (x, x, x, m))


def code_touch(a, start, end, sd, voff, vd, back=False):
    lp = a.newlabel("pc")
    a("s_getpc_b64 %s" % sr(sd, 2))
    a.label(lp)
    if back:
        a("s_sub_u32 s%d, s%d, %s-%s" % (sd, sd, lp, start))
        a("s_subb_u32 s%d, s%d, 0" % (sd + 1, sd + 1))
    else:
        a("s_add_u32 s%d, s%d, %s-%s" % (sd, sd, start, lp))
        a("s_addc_u32 s%d, s%d, 0" % (sd + 1, sd + 1))
    a("s_mov_b32 s%d, %s-%s" % (sd + 2, end, start))
    a("s_mov_b32 s%d, 0x00020000" % (sd + 3))
    a("buffer_load_dword v%d, v%d, %s, 0 offen" % (vd, voff, sr(sd, 4)))
```

```python
from gen3 import *
import gen3
from kernels import bf16_round, multi_swap_red, multi_dpp_red, stats_from_sums
import kernels as K1

WS_UV = 0x10000
WS_XCH = 0x80000
WS_H1 = 0x3000000
WS_Y = 0x3800000
LP = 4096
CFG = dict(S2=4, S3=4, S4=3, S5=4, S6=4, D=0, F=1, PF=1, ST=0, CT=1, SH=1, ET=1, HP=4, IK=0, IF=1, LPR=3, PG=10, H2S=100, H2W=44, H1W=16, NP=1, ZW=4, ACK=0, SPB=0x40000,
           FU=0b1111, OS=1, EP=1, UT=1, PT=2, TK=0, DY=31, R3=8, R4=8, R5=16, R6=14, PW3=0, PW4=0, PW5=0, PW6=0, PS=1, ST01=0, HA=4, MD=1, R2=8, PW2=0, CT0=1, NPRE=9)

def ctouch(a, g, start, end):
    if CFG["CT"]:
        a("v_and_b32 v2, 255, v0"); a("v_lshlrev_b32 v2, 7, v2")
        code_touch(a, "L_code_" + start, "L_code_" + end, 68, 2, 3, True)
        g.q.append(99)
    srd(a, 68, P_WS, WS_FL, FL_BYTES)

def line_poll(g, ph, nflag, sh):
    def prep(a, r):
        a("v_lshrrev_b32 v%d, %d, v1" % (r, sh)); a("v_min_u32 v%d, %d, v%d" % (r, nflag - 1, r))
        a("s_lshl_b32 s6, s4, 7"); a("s_add_u32 s6, s6, %d" % (2048 * ph))
        a("v_lshl_add_u32 v%d, v%d, 2, s6" % (r, r))
    full = (1 << (nflag << sh)) - 1
    def mask(a, r, d):
        a("v_cmp_ne_u32 vcc, -1, v%d" % (r + 2))
        a("s_and_b32 s%d, vcc_lo, %s" % (d, hex(full)))
    g.fl = dict(prep=prep, issue=lambda a, r: a("buffer_load_dword v%d, v%d, s[68:71], 0 offen sc1" % (r + 2, r)), mask=mask, full=full)
    g.psl = CFG["PS"]

def all_prep(a, lines):
    if lines:
        a("v_lshrrev_b32 v38, 2, v1"); a("v_lshlrev_b32 v38, 7, v38"); a("v_and_b32 v39, 3, v1"); a("v_lshl_add_u32 v38, v39, 4, v38")
    else:
        a("v_lshlrev_b32 v38, 4, v1"); a("v_add_u32 v38, %d, v38" % (2048 * 6))
def all_issue(a, off): a("buffer_load_dwordx4 v[44:47], v38, s[68:71], 0 offen offset:%d sc1" % off)
def all_check(a, off):
    def chk(a):
        a("v_max3_u32 v44, v44, v45, v46"); a("v_max_u32 v44, v44, v47")
        a("v_cmp_eq_u32 vcc, -1, v44")
    ok = a.newlabel("fok")
    chk(a)
    a("s_cbranch_vccz %s" % ok)
    a("s_mov_b32 s32, s66")
    spin(a, "fl", lambda a: all_issue(a, off), chk, 4)
    a("s_mov_b32 s66, s32")
    a.label(ok)

def flag_rc(g, ph, line, ent):
    def f(a):
        a("s_lshl_b32 s100, s%d, 7" % line); a("s_lshl_b32 s6, s%d, 2" % ent)
        a("s_add_u32 s100, s100, s6"); a("s_add_u32 s100, s100, %d" % (2048 * ph))
    g.flagoff = f


WS_MP1 = 0x20000
WS_MODR = 0x18000
XK_SB = 16 * 1024
WS_XK = 0x100000
WS_XR = WS_XK + 256 * XK_SB
XR_CB = 8192 + 8192 + 256
XK_INIT = XK_SB + (16 * XR_CB + 255) // 256 // 16 * 16 + 16
WS_SQ = 0x5000000
WS_SO = 0x5800000
WS_SW = 0x5C00000

def xk_init(a, sd, vm1, v16):
    a("s_mul_i32 s6, s2, %d" % XK_INIT); a("s_add_u32 s6, s6, %s" % hex(WS_XK))
    srd(a, sd, P_WS, "s6", XK_INIT)
    for k in range(3):
        a("s_mov_b32 s6, %d" % (8192 * k))
        a("buffer_store_dwordx4 %s, v%d, %s, s6 offen%s" % (vr(vm1, 4), v16, sr(sd, 4), ["", " sc1", " nt", " sc0 sc1"][CFG["IF"]]))

def sum8(a, b):
    a("v_add_f32 v%d, v%d, v%d" % (b, b, b + 1)); a("v_add_f32 v%d, v%d, v%d" % (b + 2, b + 2, b + 3))
    a("v_add_f32 v%d, v%d, v%d" % (b + 4, b + 4, b + 5)); a("v_add_f32 v%d, v%d, v%d" % (b + 6, b + 6, b + 7))
    a("v_add_f32 v%d, v%d, v%d" % (b, b, b + 2)); a("v_add_f32 v%d, v%d, v%d" % (b + 4, b + 4, b + 6))
    a("v_add_f32 v%d, v%d, v%d" % (b, b, b + 4))

class ModTile:
    def __init__(self, n, base, wsrd, csrd, sbase):
        self.n = n; self.C = base; self.E = base + n; self.W = (base + 2 * n + 3) // 4 * 4
        self.T = self.W + 4 * n; self.AC = self.T + 8; self.vo = self.AC + 8; self.end = self.vo + 2
        self.wsrd, self.csrd, self.sb = wsrd, csrd, sbase
    def issue(self, a, s_row0, s_colb):
        a("v_lshrrev_b32 v%d, 3, v0" % self.vo)
        a("v_add_u32 v%d, %s, v%d" % (self.vo, s_row0, self.vo))
        a("s_movk_i32 s6, 0x3000")
        a("v_mul_lo_u32 v%d, s6, v%d" % (self.vo + 1, self.vo))
        a("v_lshlrev_b32 v%d, 1, v%d" % (self.vo, self.vo))
        a("v_and_b32 v%d, 7, v0" % self.T)
        a("v_lshl_add_u32 v%d, v%d, 4, v%d" % (self.vo + 1, self.T, self.vo + 1))
        for i in range(self.n):
            a("buffer_load_ushort v%d, v%d, %s, 0 offen offset:%d" % (self.C + i, self.vo, sr(self.csrd, 4), 128 * i))
        for i in range(self.n):
            a("s_add_u32 s%d, %s, %d" % (self.sb + i, s_colb, i * 64 * 12288))
            a("buffer_load_dwordx4 %s, v%d, %s, s%d offen" % (vr(self.W + 4 * i, 4), self.vo + 1, sr(self.wsrd, 4), self.sb + i))
        return 2 * self.n
    def compute(self, a, younger, lds):
        n, C, E = self.n, self.C, self.E
        a("s_mov_b32 s6, %s" % hex(f32bits(-LOG2E)))
        a("s_waitcnt vmcnt(%d)" % (n + younger))
        for i in range(n): a("v_lshlrev_b32 v%d, 16, v%d" % (C + i, C + i))
        for i in range(n): a("v_mul_f32 v%d, s6, v%d" % (E + i, C + i))
        for i in range(n): a("v_exp_f32 v%d, v%d" % (E + i, E + i))
        a("s_nop 0")
        for i in range(n): a("v_add_f32 v%d, 1.0, v%d" % (E + i, E + i))
        for i in range(n): a("v_rcp_f32 v%d, v%d" % (E + i, E + i))
        a("s_nop 0")
        for i in range(n): a("v_mul_f32 v%d, v%d, v%d" % (C + i, C + i, E + i))
        for i in range(n): a("v_cvt_pk_bf16_f32 v%d, v%d, v%d" % (C + i, C + i, C + i))
        for i in range(n): a("v_lshlrev_b32 v%d, 16, v%d" % (C + i, C + i))
        for i in range(n):
            a("s_waitcnt vmcnt(%d)" % (n - 1 - i + younger))
            for d in range(4): unpack2(a, self.T + 2 * d, self.W + 4 * i + d)
            for e in range(8):
                if i == 0: a("v_mul_f32 v%d, v%d, v%d" % (self.AC + e, C, self.T + e))
                else: a("v_fmac_f32 v%d, v%d, v%d" % (self.AC + e, C + i, self.T + e))
        xs = list(range(self.AC, self.AC + 8)); ts = list(range(self.T, self.T + 8))
        multi_dpp_red(a, xs, [8])
        multi_swap_red(a, "v_add_f32", 16, xs, ts)
        multi_swap_red(a, "v_add_f32", 32, xs, ts)
        a("s_lshl_b32 s6, s3, 8"); a("s_add_u32 s6, s6, %d" % lds)
        a("v_and_b32 v%d, 7, v0" % self.vo)
        a("v_lshl_add_u32 v%d, v%d, 5, s6" % (self.vo, self.vo))
        a("s_mov_b64 exec, 0xff")
        a("ds_write_b128 v%d, %s" % (self.vo, vr(self.AC, 4)))
        a("ds_write_b128 v%d, %s offset:16" % (self.vo, vr(self.AC + 4, 4)))
        a("s_mov_b64 exec, -1")
    def finish(self, a, lds, osrd, s_off):
        a("v_lshlrev_b32 v%d, 2, v2" % self.vo)
        for w in range(8): a("ds_read_b32 v%d, v%d offset:%d" % (self.T + w, self.vo, lds + 256 * w))
        a("s_waitcnt lgkmcnt(0)")
        sum8(a, self.T)
        a("buffer_store_dword v%d, v%d, %s, %s offen" % (self.T, self.vo, sr(osrd, 4), s_off))

def k0(a):
    kn = "k0_kernel"
    kernel_head(a, kn)
    end = a.newlabel("k0_end")
    a("s_cmp_ge_u32 s2, 256")
    a("s_cbranch_scc1 %s" % end)
    load_kernargs(a)
    a("v_lshrrev_b32 v1, 6, v0")
    a("v_and_b32 v2, 63, v0")
    a("v_readfirstlane_b32 s3, v1")
    a("s_and_b32 s4, s2, 31"); a("s_lshl_b32 s4, s4, 7")
    a("s_lshr_b32 s5, s2, 5"); a("s_lshl_b32 s5, s5, 7")
    a("v_lshlrev_b32 v3, 4, v2")
    a("s_lshl_b32 s7, s2, 3"); a("s_add_u32 s7, s7, s3")
    a("s_lshl_b32 s32, s7, 11")
    a("s_waitcnt lgkmcnt(0)")
    srd(a, 8, P_WMOD, 0, 1024 * 6144 * 2)
    srd(a, 12, P_C, 0, 2048)
    srd(a, 16, P_X, 0, 2048 * 2048)
    mt = ModTile(2, 72, 8, 12, 20)
    mt.issue(a, "s5", "s4")
    a("buffer_load_dwordx4 v[8:11], v3, s[16:19], s32 offen")
    a("buffer_load_dwordx4 v[12:15], v3, s[16:19], s32 offen offset:1024")
    y = 2
    shadow_voff(a, 32, 0, 33)
    for k, (pp, sz) in enumerate(((P_WQKV, 24576), (P_WO, 8192), (P_WOUT, 14336))):
        a("s_mul_i32 s6, s2, %d" % sz); srd(a, 24, pp, "s6", sz)
        a("buffer_load_dwordx4 %s, v32, s[24:27], 0 offen" % vr(36 + 4 * k, 4)); y += 1
    if CFG["CT0"]:
        a("v_lshlrev_b32 v4, 7, v0")
        code_touch(a, "k1_kernel", "L_code_k4", 24, 4, 7); y += 1
    a("s_lshl_b32 s6, s2, 10"); a("s_add_u32 s6, s6, %s" % hex(WS_XCH))
    srd(a, 28, P_WS, "s6", 1024)
    a("v_lshlrev_b32 v4, 4, v0")
    for e in range(4): a("v_mov_b32 v%d, -1" % (64 + e))
    a("buffer_store_dwordx4 v[64:67], v4, s[28:31], 0 offen")
    xk_init(a, 28, 64, 4)
    y += 3
    a("s_lshl_b32 s6, s2, 6"); a("s_add_u32 s6, s6, %s" % hex(WS_FL))
    srd(a, 28, P_WS, "s6", 64)
    a("buffer_store_dwordx4 v[64:67], v4, s[28:31], 0 offen"); y += 1
    a("s_lshl_b32 s6, s2, 8"); a("s_add_u32 s6, s6, %s" % hex(WS_SUM2))
    srd(a, 64, P_WS, "s6", 256)
    for e in range(4): a("v_mov_b32 v%d, 0" % (68 + e))
    a("buffer_store_dwordx4 v[68:71], v4, s[64:67], 0 offen")
    y += 2
    srd(a, 68, P_WS, WS_MP1, 65536)
    srd(a, 72, P_WS, WS_ST1, 16384)
    mt.compute(a, y, 0)
    a("s_waitcnt lgkmcnt(0)")
    a("s_barrier")
    nf = a.newlabel("k0_nf")
    a("s_cmp_lg_u32 s3, 0")
    a("s_cbranch_scc1 %s" % nf)
    a("s_lshl_b32 s5, s5, 6"); a("s_lshl_b32 s4, s4, 1"); a("s_add_u32 s4, s4, s5")
    mt.finish(a, 0, 68, "s4")
    a.label(nf)
    a("s_waitcnt vmcnt(%d)" % (y - 2))
    U = 16
    for d in range(8): unpack2(a, U + 2 * d, 8 + d)
    a("v_pk_add_f32 v[64:65], %s, %s" % (vr(U, 2), vr(U + 2, 2)))
    a("v_pk_add_f32 v[66:67], %s, %s" % (vr(U + 4, 2), vr(U + 6, 2)))
    a("v_pk_add_f32 v[68:69], %s, %s" % (vr(U + 8, 2), vr(U + 10, 2)))
    a("v_pk_add_f32 v[70:71], %s, %s" % (vr(U + 12, 2), vr(U + 14, 2)))
    a("v_pk_add_f32 v[64:65], v[64:65], v[66:67]")
    a("v_pk_add_f32 v[68:69], v[68:69], v[70:71]")
    a("v_pk_add_f32 v[64:65], v[64:65], v[68:69]")
    a("v_add_f32 v64, v64, v65")
    multi_dpp_red(a, [64], [1, 2, 4, 8])
    multi_swap_red(a, "v_add_f32", 16, [64], [65])
    multi_swap_red(a, "v_add_f32", 32, [64], [65])
    a("s_mov_b32 s6, %s" % hex(f32bits(1.0 / 1024)))
    a("v_mul_f32 v64, s6, v64")
    for k in range(8):
        b = U + 2 * k
        a("v_pk_add_f32 %s, %s, v[64:65] op_sel_hi:[1,0] neg_lo:[0,1] neg_hi:[0,1]" % (vr(b, 2), vr(b, 2)))
    a("v_pk_mul_f32 v[66:67], %s, %s" % (vr(U, 2), vr(U, 2)))
    a("v_pk_mul_f32 v[68:69], %s, %s" % (vr(U + 2, 2), vr(U + 2, 2)))
    for k in range(2, 8):
        t = 66 + 2 * (k & 1)
        a("v_pk_fma_f32 %s, %s, %s, %s" % (vr(t, 2), vr(U + 2 * k, 2), vr(U + 2 * k, 2), vr(t, 2)))
    a("v_pk_add_f32 v[66:67], v[66:67], v[68:69]")
    a("v_add_f32 v66, v66, v67")
    multi_dpp_red(a, [66], [1, 2, 4, 8])
    multi_swap_red(a, "v_add_f32", 16, [66], [67])
    multi_swap_red(a, "v_add_f32", 32, [66], [67])
    a("v_mov_b32 v6, %s" % hex(f32bits(1e-5)))
    a("v_fma_f32 v66, v66, s6, v6")
    a("v_rsq_f32 v66, v66")
    a("s_lshl_b32 s7, s7, 3")
    a("v_mov_b32 v6, 0")
    a("v_mul_f32 v67, -v64, v66")
    a("s_mov_b64 exec, 1")
    a("buffer_store_dwordx2 v[66:67], v6, s[72:75], s7 offen")
    a("s_mov_b64 exec, -1")
    for k, (sh, sz) in enumerate(((WS_SQ, 24576), (WS_SO, 8192), (WS_SW, 14336))): shadow_srd(a, 8 + 4 * k, sh, sz, "s2")
    a("s_waitcnt vmcnt(7)")
    for k in range(3): a("buffer_store_dwordx4 %s, v32, %s, 0 offen" % (vr(36 + 4 * k, 4), sr(8 + 4 * k, 4)))
    a.label(end)
    a("s_endpgm")
    return kn, mt.end, 256, 512, 2048

def p1(a):
    kernel_head(a, "k1_kernel")
    CH["end"] = a.newlabel("k1_end")
    del OOL[:]
    st = Stamper("k1")
    TB1 = 162816
    a("s_cmp_ge_u32 s2, 256")
    a("s_cbranch_scc1 %s" % CH["end"])
    load_kernargs(a)
    a("v_lshrrev_b32 v1, 6, v0")
    a("v_and_b32 v2, 63, v0")
    a("v_readfirstlane_b32 s3, v1")
    a("s_and_b32 s4, s2, 1"); a("s_lshl_b32 s4, s4, 3"); a("s_bfe_u32 s5, s2, 0x30001"); a("s_add_u32 s4, s4, s5")
    a("s_lshr_b32 s5, s2, 4")
    a("v_lshrrev_b32 v3, 3, v0")
    a("v_and_b32 v4, 7, v0")
    a("v_lshlrev_b32 v5, 11, v3"); a("v_lshl_add_u32 v5, v4, 4, v5")
    a("v_lshlrev_b32 v6, 3, v3")
    a("v_lshlrev_b32 v7, 2, v2"); a("v_lshl_add_u32 v7, v1, 12, v7")
    a("s_lshl_b32 s6, s4, 18"); a("s_lshl_b32 s7, s5, 7"); a("s_add_u32 s32, s6, s7")
    a("s_lshl_b32 s33, s5, 8"); a("s_add_u32 s33, s33, %s" % hex(WS_MP1))
    a("s_lshl_b32 s34, s4, 10"); a("s_add_u32 s34, s34, %s" % hex(WS_ST1))
    a("s_lshl_b32 s100, s4, 7"); a("s_lshl_b32 s6, s5, 2"); a("s_add_u32 s100, s100, s6"); a("s_add_u32 s100, s100, %d" % (2048 * 5))
    ldr = a.newlabel("k1_ldr")
    a("s_cmp_ge_u32 s3, 4")
    a("s_waitcnt lgkmcnt(0)")
    if DBG["stamp"]: a("v_mov_b32 v254, 0")
    st.stamp(a, 0)
    a("s_cbranch_scc1 %s" % ldr)
    srd(a, 16, P_WS, "s33", 65536)
    srd(a, 8, P_X, "s32", 128 * 2048)
    srd(a, 12, P_WS, "s34", 1024)
    nc = a.newlabel("k1_nc")
    a("s_cmp_ge_u32 s3, 2")
    a("s_cbranch_scc1 %s" % nc)
    for p in range(8):
        a("s_mov_b32 s%d, %d" % (64 + p, p * 8192))
        a("buffer_load_dword v%d, v7, s[16:19], s%d offen" % (32 + p, 64 + p))
    a.label(nc)
    for i in range(4):
        a("s_mov_b32 s6, %d" % (32 * 2048 * i))
        a("buffer_load_dwordx4 %s, v5, s[8:11], s6 offen" % vr(80 + 4 * i, 4))
    for i in range(4): a("buffer_load_dwordx2 %s, v6, s[12:15], 0 offen offset:%d" % (vr(16 + 2 * i, 2), 256 * i))
    s_lmap(a, 32, 5, 6, False)
    a("s_lshl_b32 s6, s4, 19"); a("s_add_u32 s32, s32, s6")
    a("s_add_u32 s32, s32, %s" % hex(WS_H1))
    srd(a, 28, P_WS, "s32", 128 * LP)
    a("v_lshlrev_b32 v3, 12, v3"); a("v_lshl_add_u32 v3, v4, 4, v3")
    nc2 = a.newlabel("k1_nc2")
    a("s_cmp_ge_u32 s3, 2")
    a("s_cbranch_scc1 %s" % nc2)
    a("s_waitcnt vmcnt(8)")
    sum8(a, 32)
    bf16_round(a, 32, 32)
    a("s_cmp_eq_u32 s3, 1"); a("s_cselect_b32 s6, 1.0, 0")
    a("v_add_f32 v32, s6, v32")
    bf16_round(a, 32, 32)
    a("v_lshlrev_b32 v7, 2, v0"); a("v_add_u32 v7, %d, v7" % TB1)
    a("ds_write_b32 v7, v32")
    a("s_waitcnt lgkmcnt(0)")
    a.label(nc2)
    a("v_lshlrev_b32 v7, 5, v4"); a("v_add_u32 v7, %d, v7" % TB1)
    SA = 32; CA = 40; U = 48
    a("s_waitcnt vmcnt(0)")
    for d in range(16): unpack2(a, U + 2 * d if d < 8 else 96 + 2 * (d - 8), 80 + d)
    ur = lambda d: U + 2 * d if d < 8 else 96 + 2 * (d - 8)
    for d in range(16):
        t = vr(ur(d), 2); sx = vr(16 + 2 * (d >> 2), 2)
        a("v_pk_fma_f32 %s, %s, %s, %s op_sel:[0,0,1] op_sel_hi:[1,0,1]" % (t, t, sx, sx))
    a("s_barrier")
    st.stamp(a, 1)
    a("ds_read_b128 %s, v7" % vr(SA, 4)); a("ds_read_b128 %s, v7 offset:16" % vr(SA + 4, 4))
    a("ds_read_b128 %s, v7 offset:256" % vr(CA, 4)); a("ds_read_b128 %s, v7 offset:272" % vr(CA + 4, 4))
    a("s_waitcnt lgkmcnt(0)")
    for i in range(4):
        for d in range(4 * i, 4 * i + 4):
            t = vr(ur(d), 2)
            a("v_pk_fma_f32 %s, %s, %s, %s" % (t, t, vr(CA + 2 * (d & 3), 2), vr(SA + 2 * (d & 3), 2)))
        for d in range(4 * i, 4 * i + 4): a("v_cvt_pk_bf16_f32 v%d, v%d, v%d" % (80 + d, ur(d), ur(d) + 1))
        a("s_mov_b32 s6, %d" % (32 * LP * i))
        a("buffer_store_dwordx4 %s, v3, s[28:31], s6 offen sc1" % vr(80 + 4 * i, 4))
    a("s_branch L_phase_k2")
    a.label(ldr)
    a("v_and_b32 v4, 255, v0"); a("v_lshlrev_b32 v4, 7, v4")
    touch(a, P_WQKV, 24576, "s2", 4, 24, 250)
    a("s_barrier")
    return st

def pspin(a, name, regs, issue, gap, slot=None):
    L = a.newlabel(name + "_l"); D = a.newlabel(name + "_d")
    n = len(regs)
    a("s_mov_b32 s66, %d" % CFG["SPB"])
    for k, r in enumerate(regs):
        issue(a, r)
        if k < n - 1: a("s_sleep %d" % gap)
    a.label(L)
    for k, r in enumerate(regs):
        a("s_waitcnt vmcnt(%d)" % (n - 1))
        a("v_cmp_eq_u32 vcc, -1, v%d" % r)
        a("s_sub_u32 s66, s66, 1")
        a("s_cbranch_scc1 %s" % D)
        a("s_cbranch_vccz %s" % D)
        issue(a, r)
    a("s_branch %s" % L)
    a.label(D)
    if slot and DBG["stamp"]:
        a("s_waitcnt lgkmcnt(0)")
        a("s_sub_u32 s66, 0x40000, s66")
        a("s_add_u32 s%d, s80, s66" % (80 + 2 * slot)); a("s_addc_u32 s%d, s81, 0" % (81 + 2 * slot))

def k2(a, **ch):
    g = Gemm2("k2", 128, 1024, 32, 2, 2, LP, 6144, 256, CFG["S2"],
              [(8, [(0, 0)]), (8, [(0, 2048)]), (8, [(0, 4096)])])
    lds = max(g.LDS_MAIN, 81920)
    g.xskip = True
    WF = g.CFREE
    TR = WF + 8
    RAW = WF + 12
    VIM = 2 * 24576; KVF = 65536; ZF = KVF + 8192
    g.pf = None
    def setup(a):
        xw_srds2(a, g, P_WS, WS_H1, P_WQKV, 0, 1024 * 6144, 128, WS_SQ * CFG["SH"])
        a("s_lshl_b32 s6, s5, 12")
        srd(a, 24, P_WPHI, "s6", 4096)
        a("s_mul_i32 s6, s5, %d" % (16 * XK_SB)); a("s_add_u32 s6, s6, %s" % hex(WS_XK))
        srd(a, 16, P_WS, "s6", 16 * XK_SB)
        a("s_mul_i32 s6, s5, %d" % XR_CB); a("s_add_u32 s6, s6, %s" % hex(WS_XR))
        srd(a, 20, P_WS, "s6", XR_CB)
    def cpro(a):
        s_lmap(a, 32, 5, 6, False)
        a("s_lshl_b32 s6, s4, 19"); a("s_add_u32 s32, s32, s6")
        a("s_add_u32 s32, s32, %s" % hex(WS_O)); srd(a, 28, P_WS, "s32", 128 * LP)
        a("v_bfe_u32 v10, v1, 2, 2")
        a("v_lshrrev_b32 v13, 5, v1")
        a("v_lshl_add_u32 v10, v13, 3, v10")
        a("v_bfe_u32 v11, v1, 4, 1"); a("v_lshlrev_b32 v11, 5, v11")
        a("v_and_b32 v12, 1, v1"); a("v_lshl_add_u32 v11, v12, 4, v11")
        a("v_bfe_u32 v12, v1, 1, 1"); a("v_lshl_add_u32 v11, v12, 3, v11")
        a("s_lshr_b32 s33, s3, 1")
        a("s_lshl_b32 s6, s35, 13"); a("s_add_u32 s6, s6, %d" % VIM)
        a("v_lshl_add_u32 v%d, v10, 6, v11" % TR); a("v_add_u32 v%d, s6, v%d" % (TR, TR))
        a("s_mul_i32 s6, s35, 24576"); a("s_lshl_b32 s7, s33, 6"); a("s_add_u32 s6, s6, s7")
        a("v_mul_u32_u24 v10, 192, v10"); a("v_add3_u32 v%d, v10, v11, s6" % (TR + 1))
        a("v_and_b32 v10, 31, v1"); a("v_lshlrev_b32 v10, 4, v10")
        a("v_lshl_add_u32 v%d, v13, 14, v10" % (TR + 2))
        a("s_lshl_b32 s6, s35, 1"); a("s_add_u32 s6, s6, s33")
        a("s_lshl_b32 s7, s6, 16"); a("s_lshl_b32 s32, s4, 10"); a("s_add_u32 s72, s7, s32")
        a("s_add_u32 s73, s72, %d" % (2 * XK_SB))
        a("s_lshl_b32 s6, s6, 7"); a("s_lshl_b32 s7, s4, 9"); a("s_add_u32 s74, s6, s7"); a("s_add_u32 s74, s74, 8192")
        a("v_and_b32 v10, 0x13, v1")
        a("v_bfe_u32 v11, v1, 2, 1"); a("v_lshl_add_u32 v10, v11, 3, v10")
        a("v_bfe_u32 v11, v1, 3, 1"); a("v_lshl_add_u32 v10, v11, 2, v10")
        a("v_lshlrev_b32 v%d, 2, v10" % (TR + 3))
        a("s_lshl_b32 s96, s4, 2"); a("s_add_u32 s96, s96, 16384")
        a("s_cmp_eq_u32 s3, 0"); a("s_cselect_b64 s[98:99], 1, 0")
        a("v_mov_b32 v14, 0")
    def lpro(a):
        ctouch(a, g, "k2", "k4")
    MW = RAW + 20; MC = 216; ME = 224; MT_ = 232; MA = 240
    def cpost0(a):
        a("v_and_b32 v10, 0x13, v1")
        a("v_bfe_u32 v11, v1, 2, 1"); a("v_lshl_add_u32 v10, v11, 3, v10")
        a("v_bfe_u32 v11, v1, 3, 1"); a("v_lshl_add_u32 v10, v11, 2, v10")
        a("v_lshlrev_b32 v10, 1, v10")
        a("v_lshrrev_b32 v11, 5, v1"); a("v_lshl_add_u32 v10, v11, 9, v10")
        a("s_lshl_b32 s32, s35, 11")
        for t in range(2):
            for e in range(8):
                a("buffer_load_ushort v%d, v10, s[24:27], s32 offen offset:%d" % (RAW + 8 * t + e, (16 * t + e) * 64))
        if CFG["MD"] == 1: mt_issue(a)
    g.cpost0 = cpost0
    def mt_issue(a):
        a("s_lshr_b32 s32, s2, 6"); a("s_lshl_b32 s32, s32, 2"); a("s_add_u32 s32, s32, s3"); a("s_lshl_b32 s32, s32, 6")
        a("s_lshl_b32 s66, s32, 1")
        srd(a, 68, P_C, "s66", 128)
        a("v_lshrrev_b32 v10, 3, v1"); a("v_lshlrev_b32 v11, 1, v10")
        for i in range(8): a("buffer_load_ushort v%d, v11, s[68:71], 0 offen offset:%d" % (MC + i, 16 * i))
        a("s_mul_i32 s32, s32, 12288"); a("s_and_b32 s66, s2, 63"); a("s_lshl_b32 s66, s66, 7")
        a("s_add_u32 s32, s32, s66"); a("s_add_u32 s32, s32, 4096")
        srd(a, 68, P_WMOD, "s32", 64 * 12288 - 4096 - 63 * 128)
        a("v_mul_u32_u24 v10, 0x3000, v10"); a("v_and_b32 v11, 7, v1"); a("v_lshl_add_u32 v10, v11, 4, v10")
        for i in range(8):
            a("s_mov_b32 s32, %d" % (8 * 12288 * i))
            a("buffer_load_dwordx4 %s, v10, s[68:71], s32 offen" % vr(MW + 4 * i, 4))
    if CFG["MD"] == 0: g.cpre0 = mt_issue
    def mt_compute(a):
        n, C, E = 8, MC, ME
        a("s_mov_b32 s6, %s" % hex(f32bits(-LOG2E)))
        for i in range(n): a("v_lshlrev_b32 v%d, 16, v%d" % (C + i, C + i))
        for i in range(n): a("v_mul_f32 v%d, s6, v%d" % (E + i, C + i))
        for i in range(n): a("v_exp_f32 v%d, v%d" % (E + i, E + i))
        for i in range(n): a("v_add_f32 v%d, 1.0, v%d" % (E + i, E + i))
        for i in range(n): a("v_rcp_f32 v%d, v%d" % (E + i, E + i))
        for i in range(n): a("v_mul_f32 v%d, v%d, v%d" % (C + i, C + i, E + i))
        for i in range(n): a("v_cvt_pk_bf16_f32 v%d, v%d, v%d" % (C + i, C + i, C + i))
        for i in range(n): a("v_lshlrev_b32 v%d, 16, v%d" % (C + i, C + i))
        for i in range(n):
            t = MT_ if i & 1 else ME
            for d in range(4): unpack2(a, t + 2 * d, MW + 4 * i + d)
            for e in range(8):
                if i == 0: a("v_mul_f32 v%d, v%d, v%d" % (MA + e, C, t + e))
                else: a("v_fmac_f32 v%d, v%d, v%d" % (MA + e, C + i, t + e))
        xs = list(range(MA, MA + 8)); ts = list(range(MT_, MT_ + 8))
        multi_dpp_red(a, xs, [8])
        multi_swap_red(a, "v_add_f32", 16, xs, ts)
        multi_swap_red(a, "v_add_f32", 32, xs, ts)
        for e in range(1, 8):
            a("s_mov_b32 s32, %s" % hex((0xff << (8 * e)) & 0xffffffff)); a("s_mov_b32 s33, %s" % hex((0xff << (8 * e)) >> 32))
            a("v_cndmask_b32 v%d, v%d, v%d, s[32:33]" % (MA, MA, MA + e))
        a("s_and_b32 s6, s2, 63"); a("s_lshl_b32 s6, s6, 8"); a("s_add_u32 s6, s6, %d" % WS_MODR)
        srd(a, 68, P_WS, "s6", 256)
        a("v_and_b32 v%d, 7, v1" % MT_); a("v_lshrrev_b32 v%d, 3, v1" % (MT_ + 1))
        a("v_lshlrev_b32 v%d, 2, v%d" % (MT_ + 1, MT_ + 1)); a("v_lshl_add_u32 v%d, v%d, 5, v%d" % (MT_, MT_, MT_ + 1))
        a("buffer_atomic_add_f32 v%d, v%d, s[68:71], 0 offen" % (MA, MT_))
    line_poll(g, 5, 16, 0); g.pw = CFG["PW2"]; g.dyn = CFG["DY"] & 16; g.R = CFG["R2"]; g.bst = False; g.lwait = False
    def hint(a):
        a("s_mov_b64 exec, s[98:99]")
        a("buffer_store_dword v14, v14, s[20:23], s96 offen sc1")
        a("s_mov_b64 exec, -1")
    def kvphase(a):
        KV = g.acc(1, 0); Z = g.acc(1, 1); FA = g.acc(2, 0); ON = RAW
        for half in range(2):
            for t in range(4):
                T = half * 4 + t
                for q in range(2):
                    a("ds_read_b64_tr_b16 %s, v%d offset:%d" % (vr(FA + 8 * t + 2 * q, 2), TR + 1, (16 * T + 4 * q) * 192))
                    a("ds_read_b64_tr_b16 %s, v%d offset:%d" % (vr(FA + 8 * t + 4 + 2 * q, 2), TR, (16 * T + 4 * q) * 64))
            if half == 0:
                for e in range(4): a("v_mov_b32 v%d, 0x3f803f80" % (ON + e))
            if half + 2 == CFG["HP"]: hint(a)
            if DBG["stamp"] and half == 0: a("s_waitcnt lgkmcnt(0)")
            for t in range(4):
                a("s_waitcnt lgkmcnt(%d)" % (12 - 4 * t))
                first = half == 0 and t == 0
                a("v_mfma_f32_32x32x16_bf16 %s, %s, %s, %s" % (vr(KV, 16), vr(FA + 8 * t, 4), vr(FA + 8 * t + 4, 4), "0" if first else vr(KV, 16)))
                a("v_mfma_f32_32x32x16_bf16 %s, %s, %s, %s" % (vr(Z, 16), vr(ON, 4), vr(FA + 8 * t, 4), "0" if first else vr(Z, 16)))
        if CFG["HP"] == 4: hint(a)
        a("s_nop 10")
        for q in range(4):
            a("buffer_store_dwordx4 %s, v%d, s[16:19], s%d offen offset:%d sc1" % (vr(KV + 4 * q, 4), TR + 2, 72 + (q >> 1), (q & 1) * 512))
        a("s_mov_b32 exec_hi, 0")
        a("buffer_store_dword v%d, v%d, s[20:23], s74 offen sc1" % (Z, TR + 3))
        a("s_mov_b64 exec, -1")
        if CFG["ACK"] & 1: a("s_waitcnt vmcnt(0)")
        if CFG["HP"] == 5: hint(a)
    def epi(a):
        P = g.FR
        a("s_waitcnt vmcnt(0)")
        for e in range(8):
            a("v_lshl_or_b32 v%d, v%d, 16, v%d" % (WF + e, RAW + 1 + 2 * e, RAW + 2 * e))
        a("s_mov_b32 s70, %s" % hex(f32bits(LOG2E))); a("s_mov_b32 s71, s70")
        a("v_and_b32 v4, 31, v1"); a("v_add_u32 v4, s34, v4")
        a("v_lshrrev_b32 v5, 5, v1"); a("v_lshlrev_b32 v5, 4, v5")
        a("s_mul_i32 s32, s35, 24576"); a("s_lshl_b32 s33, s35, 13"); a("s_add_u32 s33, s33, %d" % VIM)
        a("v_mul_u32_u24 v6, 192, v4"); a("v_add3_u32 v6, v6, v5, s32")
        a("v_lshl_add_u32 v7, v4, 6, v5"); a("v_add_u32 v7, s33, v7")
        for i in range(2):
            for j in range(2):
                for e in range(8):
                    A = g.acc(i, j)
                    a("v_cvt_pk_bf16_f32 v%d, v%d, v%d" % (P + (i * 2 + j) * 8 + e, A + 2 * e, A + 2 * e + 1))
        for i in (1, 0):
            for j in range(2):
                A = g.acc(i, j); pk = P + (i * 2 + j) * 8
                a("v_mfma_f32_32x32x16_bf16 %s, %s, %s, 0" % (vr(A, 16), vr(WF, 4), vr(pk, 4)))
                a("v_mfma_f32_32x32x16_bf16 %s, %s, %s, %s" % (vr(A, 16), vr(WF + 4, 4), vr(pk + 4, 4), vr(A, 16)))
        for j in range(2):
            A = g.acc(2, j)
            for e in range(8):
                a("v_cvt_pk_bf16_f32 v%d, v%d, v%d" % (P + 32 + e, A + 2 * e, A + 2 * e + 1))
            for t in range(2):
                a("ds_write_b128 v7, %s offset:%d" % (vr(P + 32 + 4 * t, 4), j * 32 * 64 + t * 32))
            if j == 0: a("s_nop 1")
        EN = g.acc(2, 0)
        for i in (1, 0):
            for j in range(2):
                A = g.acc(i, j); pk = P + (i * 2 + j) * 8
                a("v_max3_f32 v10, v%d, v%d, v%d" % (A, A + 1, A + 2))
                a("v_min3_f32 v12, v%d, v%d, v%d" % (A, A + 1, A + 2))
                for e in range(3, 15, 2):
                    a("v_max3_f32 v10, v10, v%d, v%d" % (A + e, A + e + 1))
                    a("v_min3_f32 v12, v12, v%d, v%d" % (A + e, A + e + 1))
                a("v_max_f32 v10, v10, v%d" % (A + 15))
                a("v_min_f32 v12, v12, v%d" % (A + 15))
                a("v_mov_b32 v11, v10"); a("v_mov_b32 v13, v12")
                a("s_nop 1")
                a("v_permlane32_swap_b32 v10, v11"); a("v_permlane32_swap_b32 v12, v13")
                a("v_max_f32 v10, v10, v11"); a("v_min_f32 v12, v12, v13")
                a("v_mul_f32 v10, s70, v10"); a("v_mul_f32 v12, s70, v12")
                for e in range(8):
                    a("v_pk_fma_f32 %s, %s, s[70:71], v[12:13] op_sel_hi:[1,1,0] neg_lo:[0,1,0] neg_hi:[0,1,0]" % (vr(EN + 2 * e, 2), vr(A + 2 * e, 2)))
                    a("v_pk_fma_f32 %s, %s, s[70:71], v[10:11] op_sel_hi:[1,1,0] neg_lo:[0,0,1] neg_hi:[0,0,1]" % (vr(A + 2 * e, 2), vr(A + 2 * e, 2)))
                for e in range(16):
                    a("v_exp_f32 v%d, v%d" % (A + e, A + e))
                    a("v_exp_f32 v%d, v%d" % (EN + e, EN + e))
                a("v_pk_add_f32 v[10:11], %s, %s" % (vr(A, 2), vr(A + 2, 2)))
                a("v_pk_add_f32 v[12:13], %s, %s" % (vr(EN, 2), vr(EN + 2, 2)))
                for e in range(2, 8):
                    a("v_pk_add_f32 v[10:11], v[10:11], %s" % vr(A + 2 * e, 2))
                    a("v_pk_add_f32 v[12:13], v[12:13], %s" % vr(EN + 2 * e, 2))
                a("v_add_f32 v10, v10, v11"); a("v_add_f32 v12, v12, v13")
                a("v_mov_b32 v11, v10"); a("v_mov_b32 v13, v12")
                a("s_nop 1")
                a("v_permlane32_swap_b32 v10, v11"); a("v_permlane32_swap_b32 v12, v13")
                a("v_add_f32 v10, v10, v11"); a("v_add_f32 v12, v12, v13")
                a("v_rcp_f32 v10, v10"); a("v_rcp_f32 v12, v12")
                a("s_nop 0")
                if i == 1 and j == 1 and CFG["HP"] == 0: hint(a)
                for e in range(8):
                    a("v_pk_mul_f32 %s, %s, v[10:11] op_sel_hi:[1,0]" % (vr(A + 2 * e, 2), vr(A + 2 * e, 2)))
                    a("v_pk_mul_f32 %s, %s, v[12:13] op_sel_hi:[1,0]" % (vr(EN + 2 * e, 2), vr(EN + 2 * e, 2)))
                for e in range(8):
                    a("v_cvt_pk_bf16_f32 v%d, v%d, v%d" % (pk + e, A + 2 * e, A + 2 * e + 1))
                for e in range(8):
                    a("v_cvt_pk_bf16_f32 v%d, v%d, v%d" % (A + e, EN + 2 * e, EN + 2 * e + 1))
                if i == 1:
                    for q in range(4):
                        src = vr(pk + 4 * q, 4) if q < 2 else vr(A + 4 * (q - 2), 4)
                        a("ds_write_b128 v6, %s offset:%d" % (src, j * 32 * 192 + q * 32))
                if i == 1 and j == 1:
                    if CFG["HP"] == 1: hint(a)
                    g.stamp(a, 3)
                    a("s_waitcnt lgkmcnt(0)")
                    a("s_barrier")
                    kvphase(a)
                    g.stamp(a, 4)
        mt_compute(a)
        a("s_lshl_b32 s6, s35, 12"); a("s_add_u32 s6, s6, %d" % KVF)
        a("v_lshl_add_u32 v6, v1, 4, s6")
        a("s_lshl_b32 s6, s35, 7"); a("s_add_u32 s6, s6, %d" % ZF)
        a("v_add_u32 v7, s6, v5")
        if CFG["OS"] == 1:
            a("v_and_b32 v4, 15, v1"); a("v_add_u32 v4, s34, v4"); a("v_bfe_u32 v3, v1, 4, 1")
            a("v_lshl_add_u32 v3, v3, 5, v5"); a("v_lshl_add_u32 v4, v4, 12, v3")
        else:
            a("s_lshl_b32 s6, s3, 12")
            a("v_and_b32 v2, 31, v1"); a("v_lshl_add_u32 v2, v2, 6, v5"); a("v_add_u32 v2, s6, v2")
            a("v_lshl_add_u32 v3, v1, 4, s6")
            a("v_lshrrev_b32 v4, 2, v1"); a("v_add_u32 v4, s34, v4"); a("v_and_b32 v5, 3, v1")
            a("v_lshlrev_b32 v5, 4, v5"); a("v_lshl_add_u32 v4, v4, 12, v5")
        a("s_lshl_b32 s72, s35, 6")
        for k in range(1, 4): a("s_add_u32 s%d, s72, %d" % (72 + k, 16 * k * LP))
        g.stamp(a, 5)
        a("s_barrier")
        g.stamp(a, 6)
        KV = g.acc(1, 0); Z = g.acc(1, 1); NUM = [g.acc(2, 0), RAW + 20]; DEN = [g.acc(2, 1), RAW + 36]
        for T in range(4): a("ds_read_b128 %s, v7 offset:%d" % (vr(Z + 4 * T, 4), T * 32))
        for T in range(4): a("ds_read_b128 %s, v6 offset:%d" % (vr(KV + 4 * T, 4), T * 1024))
        def phq(j, T): return vr(P + j * 8 + 4 * T, 4) if T < 2 else vr(g.acc(0, j) + 4 * (T - 2), 4)
        a("s_waitcnt lgkmcnt(%d)" % (0 if DBG["stamp"] else 4))
        for j in range(2):
            for T in range(4):
                a("v_mfma_f32_32x32x16_bf16 %s, %s, %s, %s" % (vr(DEN[j], 16), vr(Z + 4 * T, 4), phq(j, T), "0" if T == 0 else vr(DEN[j], 16)))
        a("s_waitcnt lgkmcnt(0)")
        for j in range(2):
            for T in range(4):
                a("v_mfma_f32_32x32x16_bf16 %s, %s, %s, %s" % (vr(NUM[j], 16), vr(KV + 4 * T, 4), phq(j, T), "0" if T == 0 else vr(NUM[j], 16)))
            if j == 0:
                for jj in range(2): a("v_add_f32 v%d, %s, v%d" % (8 + 2 * jj, hex(f32bits(1e-6)), DEN[jj]))
                for jj in range(2): a("v_rcp_f32 v%d, v%d" % (8 + 2 * jj, 8 + 2 * jj))
        for j in range(2):
            if j == 1: a("s_nop 2")
            for e in range(8):
                a("v_pk_mul_f32 %s, %s, %s op_sel_hi:[1,0]" % (vr(NUM[j] + 2 * e, 2), vr(NUM[j] + 2 * e, 2), vr(8 + 2 * j, 2)))
            for e in range(8):
                a("v_cvt_pk_bf16_f32 v%d, v%d, v%d" % (DEN[j] + e, NUM[j] + 2 * e, NUM[j] + 2 * e + 1))
            if CFG["OS"] == 1:
                for e in range(4): a("v_permlane16_swap_b32 v%d, v%d" % (DEN[j] + e, DEN[j] + 4 + e))
            else:
                for h in range(2): a("ds_write_b128 v2, %s offset:%d" % (vr(DEN[j] + 4 * h, 4), 2048 * j + 32 * h))
                for h in range(2): a("ds_read_b128 %s, v3 offset:%d" % (vr(DEN[j] + 8 + 4 * h, 4), 2048 * j + 1024 * h))
                if j == 0: continue
            for jj in ([j] if CFG["OS"] == 1 else [0, 1]):
                for h in range(2):
                    if CFG["OS"] != 1: a("s_waitcnt lgkmcnt(%d)" % (0 if DBG["stamp"] else [5, 4, 1, 0][2 * jj + h]))
                    a("buffer_store_dwordx4 %s, v4, s[28:31], s%d offen sc1" % (vr(DEN[jj] + 4 * h + (0 if CFG["OS"] == 1 else 8), 4), 72 + 2 * jj + h))
    def etile(a):
        a("v_and_b32 v3, 255, v0"); a("v_lshlrev_b32 v2, 7, v3")
        touch(a, P_WO, 8192, "s2", 2, 8, 60)
        touch(a, P_WIN, 28672, "s2", 2, 12, 61)
    g.etile = etile; g.etile_n = 2; g.etile_wait = False
    flag_rc(g, 0, 4, 5)
    def lepi(a):
        PL = 144; FLG = ZF + 512
        a("v_lshlrev_b32 v7, 4, v1")
        a("s_lshl_b32 s6, s4, 14")
        a("v_add_u32 v16, s6, v7")
        for k in range(1, 4): a("v_add_u32 v%d, %d, v16" % (16 + k, 4096 * k))
        a("v_and_b32 v10, 15, v1")
        a("v_lshlrev_b32 v21, 2, v10"); a("v_add_u32 v21, 16384, v21")
        a("s_lshl_b32 s6, s4, 9")
        a("v_add_u32 v22, s6, v7")
        a("v_add_u32 v24, 4096, v7")
        a("v_lshlrev_b32 v25, 3, v1"); a("v_add_u32 v25, 8192, v25"); a("v_add_u32 v23, 4096, v25")
        a("v_add_u32 v26, %d, v7" % KVF)
        a("v_lshlrev_b32 v27, 2, v1"); a("v_add_u32 v27, %d, v27" % ZF)
        a("s_lshl_b32 s32, s4, 2"); a("s_add_u32 s32, s32, %d" % (16384 + 128))
        a("v_mov_b32 v28, 0"); a("v_mov_b32 v29, %d" % FLG)
        a("ds_write_b32 v29, v28")
        a("s_setprio %d" % CFG["LPR"])
        a("s_waitcnt vmcnt(0) lgkmcnt(0)")
        a("s_barrier")
        g.stamp(a, 3)
        lz = a.newlabel("k2_lz"); lg = a.newlabel("k2_lg"); nr2 = a.newlabel("k2_nr2"); nr3 = a.newlabel("k2_nr3")
        a("s_cmp_eq_u32 s34, 1"); a("s_cbranch_scc1 %s" % lz)
        a("s_cmp_eq_u32 s34, 2"); a("s_cbranch_scc1 %s" % lg)
        a("s_cmp_eq_u32 s34, 3"); a("s_cbranch_scc1 %s" % nr2)
        a("s_sleep %d" % CFG["H1W"])
        pspin(a, "k2_h", [36, 37, 38, 39][:CFG["NP"]], lambda a, r: a("buffer_load_dword v%d, v21, s[20:23], 0 offen sc1" % r), CFG["PG"])
        a("ds_write_b32 v29, v29")
        g.stamp(a, 4)
        def hint2(a):
            a("s_mov_b64 exec, 1")
            a("buffer_store_dword v28, v28, s[20:23], s32 offen sc1")
            a("s_mov_b64 exec, -1")
        def r_issue(a):
            hx = 0
            for p in range(16):
                a("buffer_load_dwordx4 %s, v%d, s[16:19], 0 offen offset:%d sc1" % (vr(PL + 4 * p, 4), 16 + (p >> 2), (p & 3) * 1024))
            if CFG["H2S"] < 100:
                a("s_sleep %d" % CFG["H2S"])
                hint2(a); hx = 1
            for p in range(1, 16):
                a("s_waitcnt vmcnt(%d)" % (15 + hx - p))
                if p == 1 and CFG["H2S"] == 100: hint2(a); hx += 1
                for h in range(2): a("v_pk_add_f32 %s, %s, %s" % (vr(PL + 2 * h, 2), vr(PL + 2 * h, 2), vr(PL + 4 * p + 2 * h, 2)))
        def r_check(a):
            a("v_pk_add_f32 v[30:31], %s, %s" % (vr(PL, 2), vr(PL + 2, 2)))
            a("v_cvt_pk_bf16_f32 v32, v%d, v%d" % (PL, PL + 1)); a("v_cvt_pk_bf16_f32 v33, v%d, v%d" % (PL + 2, PL + 3))
            a("v_cmp_u_f32 vcc, v30, v31")
            a("v_mov_b32 v34, v32"); a("v_mov_b32 v35, v33")
        spin(a, "k2_r", r_issue, r_check, 0, 1, False)
        a("v_permlane32_swap_b32 v32, v34"); a("v_permlane32_swap_b32 v33, v35")
        a("s_mov_b32 exec_hi, 0")
        a("buffer_store_dwordx4 v[32:35], v22, s[20:23], 0 offen sc1")
        a("s_mov_b64 exec, -1")
        if CFG["H2S"] == 101: hint2(a)
        g.stamp(a, 5)
        a("s_branch %s" % nr2)
        a.label(lz)
        L = a.newlabel("k2_fl"); D = a.newlabel("k2_fd")
        a("s_mov_b32 s66, 0x1000000")
        a.label(L)
        a("s_sleep 2")
        a("ds_read_b32 v30, v29")
        a("s_waitcnt lgkmcnt(0)")
        a("v_cmp_eq_u32 vcc, 0, v30")
        a("s_sub_u32 s66, s66, 1")
        a("s_cbranch_scc1 %s" % D)
        a("s_cbranch_vccnz %s" % L)
        a.label(D)
        a("s_sleep %d" % CFG["ZW"])
        def z_issue(a):
            for p in range(16):
                a("buffer_load_dwordx2 %s, v%d, s[20:23], 0 offen offset:%d sc1" % (vr(PL + 2 * p, 2), 25 if p < 8 else 23, (p & 7) * 512))
            for p in range(1, 16):
                a("s_waitcnt vmcnt(%d)" % (15 - p))
                a("v_pk_add_f32 %s, %s, %s" % (vr(PL, 2), vr(PL, 2), vr(PL + 2 * p, 2)))
        spin(a, "k2_z", z_issue, lambda a: a("v_cmp_u_f32 vcc, v%d, v%d" % (PL, PL + 1)), 4, 2, False)
        a("v_cvt_pk_bf16_f32 v30, v%d, v%d" % (PL, PL + 1))
        a("ds_write_b32 v27, v30")
        a("s_waitcnt lgkmcnt(0)")
        g.stamp(a, 5)
        a("s_branch %s" % nr2)
        a.label(lg)
        a("s_sleep %d" % CFG["H2W"])
        pspin(a, "k2_h2", [40, 41, 42, 43][:CFG["NP"]], lambda a, r: a("buffer_load_dword v%d, v21, s[20:23], 0 offen offset:128 sc1" % r), CFG["PG"])
        g.stamp(a, 6)
        def g_issue(a):
            for i in range(8): a("buffer_load_dwordx4 %s, v%d, s[20:23], 0 offen offset:%d sc1" % (vr(PL + 4 * i, 4), 7 if i < 4 else 24, (i & 3) * 1024))
        def g_check(a):
            a("v_max3_u32 v30, v%d, v%d, v%d" % (PL + 1, PL + 3, PL + 5))
            a("v_max3_u32 v31, v%d, v%d, v%d" % (PL + 7, PL + 9, PL + 11))
            for k in range(2):
                a("v_max3_u32 v30, v30, v%d, v%d" % (PL + 13 + 8 * k, PL + 15 + 8 * k))
                a("v_max3_u32 v31, v31, v%d, v%d" % (PL + 17 + 8 * k, PL + 19 + 8 * k))
            a("v_max3_u32 v30, v30, v%d, v%d" % (PL + 29, PL + 31))
            a("v_max_u32 v30, v30, v31")
            a("v_cmp_eq_u32 vcc, -1, v30")
        spin(a, "k2_g", g_issue, g_check, 0, 2)
        for h in range(8): a("ds_write_b128 v26, %s offset:%d" % (vr(PL + 4 * h, 4), h * 1024))
        a("s_waitcnt lgkmcnt(0)")
        a.label(nr2)
        a("s_barrier")
    kn = g.emit(a, tilemap_16x16_r8c4, setup, cpro, lpro, epi, lepi, **ch)
    return g, lds

def rm_addr(a, vrow, vld, t):
    a("v_lshrrev_b32 v%d, 3, v1" % t)
    a("s_lshl_b32 s32, s3, 4")
    a("v_add_u32 v%d, s32, v%d" % (vrow, t))
    a("v_and_b32 v%d, 7, v1" % vld)
    a("v_lshlrev_b32 v%d, 1, v%d" % (vld, vld))
    a("v_xor_b32 v%d, v%d, v%d" % (vld, vld, t))
    a("v_lshlrev_b32 v%d, 4, v%d" % (vld, vld))
    a("v_lshl_add_u32 v%d, v%d, 8, v%d" % (vld, vrow, vld))
    a("v_xor_b32 v%d, 16, v%d" % (vld + 1, vld))

def stage32_addr(a, g, SA, t):
    a("v_and_b32 v%d, 31, v1" % t); a("v_add_u32 v%d, s34, v%d" % (t, t))
    a("v_lshrrev_b32 v%d, 5, v1" % SA); a("v_lshlrev_b32 v%d, 1, v%d" % (SA, SA))
    a("v_and_b32 v%d, 7, v1" % (SA + 1)); a("v_xor_b32 v%d, v%d, v%d" % (SA, SA, SA + 1))
    a("v_lshlrev_b32 v%d, 4, v%d" % (SA, SA)); a("v_lshl_add_u32 v%d, v%d, 8, v%d" % (SA, t, SA))
    if g.wgn == 2:
        a("s_lshl_b32 s6, s35, 7"); a("v_add_u32 v%d, s6, v%d" % (SA, SA))
    for k, x in enumerate((16, 64, 80)): a("v_xor_b32 v%d, %d, v%d" % (SA + 1 + k, x, SA))

def stage32(a, SA, tiles):
    a("s_nop 10")
    for A, off in tiles:
        for q in range(4):
            a("ds_write_b128 v%d, %s offset:%d" % (SA + q, vr(A + 4 * q, 4), off))

def compact8(a, dst, vals, vperm, sm):
    a("v_mov_b32 v%d, v%d" % (dst, vals[0]))
    for c in range(1, len(vals)):
        a("s_mov_b32 s%d, %s" % (sm, hex(0x01010101 << c))); a("s_mov_b32 s%d, s%d" % (sm + 1, sm))
        a("v_cndmask_b32 v%d, v%d, v%d, %s" % (dst, dst, vals[c], sr(sm, 2)))
    a("ds_bpermute_b32 v%d, v%d, v%d" % (dst, vperm, dst))

def k_res(a, name, K, xoff, wp, resp, resoff, gate_idx, outp, outoff, stats, S, shadow, **ch):
    g = Gemm2(name, 128, K, 32, 4, 1, LP, 2048, 256, S, [(8, [(0, 0)])])
    g.xskip = True
    RX = g.CFREE; GA = RX + 8; CB = GA + 8; VO2 = CB + 8; VO4 = VO2 + 1; VLD = VO2 + 2; VAT = VO2 + 4; VPM = VO2 + 5; VGT = VO2 + 6
    F = VO2 + 8; T = F + 16; SA = T + 16
    lds = g.LDS_MAIN + 1024 + 32768 + 2048
    def setup(a):
        xw_srds2(a, g, P_WS, xoff, wp, 0, K * 2048, 128, shadow * CFG["SH"])
        a("s_lshl_b32 s6, s4, 18"); a("s_lshl_b32 s7, s5, 7"); a("s_add_u32 s6, s6, s7")
        a("s_sub_u32 s7, %d, s6" % (2048 * 2048))
        if resoff:
            a("s_add_u32 s32, s6, %s" % hex(resoff)); srd(a, 16, resp, "s32", "s7")
        else:
            srd(a, 16, resp, "s6", "s7")
        if outoff:
            a("s_add_u32 s32, s6, %s" % hex(outoff)); srd(a, 20, outp, "s32", "s7")
        else:
            srd(a, 20, outp, "s6", "s7")
        if stats:
            s_lmap(a, 32, 5, 6, False)
            a("s_lshl_b32 s6, s4, 19"); a("s_add_u32 s32, s32, s6")
            a("s_add_u32 s32, s32, %s" % hex(WS_Y)); srd(a, 72, P_WS, "s32", 128 * LP)
            a("s_lshl_b32 s6, s4, 9"); a("s_add_u32 s6, s6, %s" % hex(WS_SUM2))
            srd(a, 28, P_WS, "s6", 8192 + 512)
        a("s_lshl_b32 s6, s5, 8"); a("s_add_u32 s6, s6, %d" % (WS_MODR + (gate_idx - 2) * 4096))
        srd(a, 24, P_WS, "s6", 8192 + 256)
        a("s_movk_i32 s96, 0x4000")
        a("s_mov_b32 s97, 0x8000")
        a("s_movk_i32 s98, 0x2000")
    g.pf = None
    def rm_loads(a):
        rm_addr(a, VO4, VLD, 10)
        a("v_and_b32 v11, 7, v1")
        a("v_lshlrev_b32 v12, 5, v11"); a("v_lshlrev_b32 v11, 4, v11")
        a("v_lshl_add_u32 v%d, v%d, 11, v11" % (VO2, VO4))
        a("v_lshl_add_u32 v%d, v%d, 12, v11" % (VO4, VO4))
        a("buffer_load_dwordx4 %s, v%d, s[16:19], 0 offen sc1" % (vr(RX, 4), VO2))
        a("buffer_load_dwordx4 %s, v%d, s[16:19], s96 offen sc1" % (vr(RX + 4, 4), VO2))
        a("v_add_u32 v%d, %d, v12" % (VGT, g.LDS_MAIN))
        if stats:
            a("v_and_b32 v11, 7, v1"); a("v_lshlrev_b32 v11, 5, v11"); a("v_lshl_add_u32 v%d, v10, 2, v11" % VPM)
            a("v_and_b32 v11, 15, v1"); a("v_bfe_u32 v10, v1, 4, 1")
            a("s_lshl_b32 s32, s3, 6")
            a("v_lshl_add_u32 v11, v11, 2, s32"); a("v_lshl_add_u32 v%d, v10, 13, v11" % VAT)
    def cpro(a):
        stage32_addr(a, g, SA, 10)
    g.cpost0 = rm_loads
    def lpro(a):
        ctouch(a, g, "k3" if stats else "k6", "k5" if stats else "end")
        if stats: all_prep(a, True)
    if stats:
        line_poll(g, 0, 16, 0); flag_rc(g, 1, 4, 5); g.pw = CFG["PW3"]; g.dyn = CFG["DY"] & 1; g.R = CFG["R3"]
    else:
        line_poll(g, 3, 14, 1); g.pw = CFG["PW6"]; g.dyn = CFG["DY"] & 8; g.R = CFG["R6"]
    g.npre = min(g.npre, CFG["NPRE"])
    UVW = 98304 + 1024; TB = UVW + 32768
    def uv_map(a):
        a("s_lshr_b32 s6, s2, 3")
        a("s_cmp_ge_u32 s6, 14"); a("s_cselect_b32 s7, 14, 0"); a("s_cselect_b32 s32, 1, 0")
        a("s_sub_u32 s7, s6, s7")
        a("s_and_b32 s33, s2, 1"); a("s_lshl_b32 s33, s33, 1"); a("s_add_u32 s32, s32, s33")
        a("s_cmp_ge_u32 s7, 7"); a("s_cselect_b32 s33, 21, 0"); a("s_add_u32 s33, s33, s7")
        a("s_bfe_u32 s6, s2, 0x20001"); a("s_mul_i32 s6, s6, 7"); a("s_add_u32 s33, s33, s6")
        a("s_cmp_lt_u32 s7, 14"); a("s_cselect_b32 s99, -1, 0")
        a("s_lshl_b32 s32, s32, 2"); a("s_add_u32 s32, s32, s3"); a("s_sub_u32 s32, s32, 4"); a("s_lshl_b32 s32, s32, 6")
    def uv_issue(a):
        uv_map(a)
        a("s_lshl_b32 s6, s32, 2"); a("s_add_u32 s6, s6, %d" % (WS_MODR + 4096))
        srd(a, 68, P_WS, "s6", 4096 + 256)
        a("s_mul_i32 s6, s32, 7168"); a("s_lshl_b32 s7, s33, 7"); a("s_add_u32 s6, s6, s7")
        a("s_and_b32 s7, s99, %d" % (64 * 7168))
        srd(a, 8, P_WIN, "s6", "s7")
        a("v_lshrrev_b32 v2, 3, v1"); a("v_and_b32 v3, 7, v1")
        a("v_bfe_u32 v4, v1, 4, 1"); a("v_lshlrev_b32 v4, 2, v4"); a("v_xor_b32 v3, v3, v4")
        a("v_mul_u32_u24 v2, 7168, v2"); a("v_lshl_add_u32 v2, v3, 4, v2")
        a("s_lshl_b32 s7, s3, 13"); a("s_add_u32 s7, s7, %d" % (UVW - 4 * 8192))
        a("s_mov_b32 s6, 0")
        for i in range(8):
            a("s_add_u32 m0, s7, %d" % (i * 1024))
            if i: a("s_add_u32 s6, s6, %d" % (8 * 7168))
            else: a("s_nop 0")
            a("buffer_load_dwordx4 v2, s[8:11], s6 offen lds")
        a("v_lshlrev_b32 v2, 2, v1")
        a("s_movk_i32 s6, 0x1000")
        a("buffer_load_dword v%d, v2, s[68:71], s6 offen sc1" % UM)
        a("buffer_load_dword v%d, v2, s[68:71], 0 offen sc1" % (UM + 1))
    def ptouch(a):
        a("v_mul_u32_u24 v60, 7168, v1")
        a("s_xor_b32 s6, s32, 512"); a("s_mul_i32 s6, s6, 7168"); a("s_lshl_b32 s7, s33, 7"); a("s_add_u32 s6, s6, s7")
        a("s_and_b32 s7, s99, %d" % (64 * 7168))
        srd(a, 68, P_WIN, "s6", "s7")
        a("buffer_load_dword v72, v60, s[68:71], 0 offen")
    def post_free(a, younger):
        sk = a.newlabel("k2_pf")
        a("s_cmp_lt_u32 s3, 4"); a("s_cbranch_scc1 %s" % sk)
        uv_map(a)
        if CFG["PT"] == 2: ptouch(a)
        uv_compute(a, younger)
        if CFG["PT"] == 3: ptouch(a)
        a.label(sk)
    if stats: g.post_free = post_free
    UM = 200
    def uv_compute(a, younger):
        AD = 76; AF = 88; BF = 120; D = 152; nt = (CFG["PT"] == 2) + younger
        a("s_lshl_b32 s6, s3, 9"); a("s_add_u32 s6, s6, %d" % (TB - 2048))
        a("v_lshl_add_u32 v2, v1, 1, s6")
        a("v_mov_b32 v3, 0")
        a("ds_write_b16 v2, v3 offset:256")
        a("v_and_b32 v4, 31, v1"); a("v_lshrrev_b32 v5, 5, v1"); a("v_lshl_add_u32 v6, v5, 4, s6")
        a("v_min_u32 v7, 2, v4"); a("v_lshl_add_u32 v%d, v7, 7, v6" % AD)
        a("v_subrev_u32 v7, 4, v4"); a("v_min_u32 v7, 2, v7"); a("v_lshl_add_u32 v%d, v7, 7, v6" % (AD + 1))
        a("v_bfe_u32 v10, v1, 2, 2"); a("v_lshl_add_u32 v10, v5, 3, v10")
        a("v_bfe_u32 v11, v1, 4, 1"); a("v_lshlrev_b32 v11, 5, v11")
        a("v_and_b32 v13, 1, v1"); a("v_lshl_add_u32 v11, v13, 4, v11")
        a("v_bfe_u32 v13, v1, 1, 1"); a("v_lshl_add_u32 v11, v13, 3, v11")
        a("v_bfe_u32 v13, v1, 3, 1"); a("v_lshl_add_u32 v11, v13, 6, v11")
        a("s_lshl_b32 s7, s3, 13"); a("s_add_u32 s7, s7, %d" % (UVW - 4 * 8192))
        a("v_lshl_add_u32 v11, v10, 7, v11"); a("v_add_u32 v%d, s7, v11" % (AD + 2))
        a("v_xor_b32 v%d, 64, v%d" % (AD + 3, AD + 2))
        a("v_and_b32 v10, 0x33, v1")
        a("v_bfe_u32 v11, v1, 2, 1"); a("v_lshl_add_u32 v10, v11, 3, v10")
        a("v_bfe_u32 v11, v1, 3, 1"); a("v_lshl_add_u32 v10, v11, 2, v10")
        a("v_lshlrev_b32 v10, 2, v10")
        a("s_lshl_b32 s6, s33, 8"); a("s_add_u32 s6, s6, %s" % hex(WS_UV))
        a("s_and_b32 s7, s99, %d" % (16384 + 256))
        srd(a, 68, P_WS, "s6", "s7")
        a("s_movk_i32 s6, 0x4000")
        a("s_waitcnt vmcnt(%d)" % nt)
        for s_ in range(2):
            for h in range(2):
                for q in range(2):
                    a("ds_read_b64_tr_b16 %s, v%d offset:%d" % (vr(BF + 8 * s_ + 4 * h + 2 * q, 2), AD + 2 + h, (16 * s_ + 4 * q) * 128))
        for w in range(2):
            b = UM + w
            if w == 0:
                bf16_round(a, b, b)
                a("v_add_f32 v%d, 1.0, v%d" % (b, b))
            a("v_cvt_pk_bf16_f32 v%d, v%d, v%d" % (b, b, b))
            a("ds_write_b16 v2, v%d offset:%d" % (b, 128 * w))
        a("s_waitcnt lgkmcnt(2)")
        for s_ in range(4):
            for h in range(2): a("ds_read_b128 %s, v%d offset:%d" % (vr(AF + 8 * s_ + 4 * h, 4), AD + h, 32 * s_))
        a("s_waitcnt lgkmcnt(6)")
        for s_ in range(2, 4):
            for h in range(2):
                for q in range(2):
                    a("ds_read_b64_tr_b16 %s, v%d offset:%d" % (vr(BF + 8 * s_ + 4 * h + 2 * q, 2), AD + 2 + h, (16 * s_ + 4 * q) * 128))
        for k in range(8):
            a("s_waitcnt lgkmcnt(%d)" % (8 if k < 4 else 14 - 2 * k))
            a("v_mfma_f32_32x32x16_bf16 %s, %s, %s, %s" % (vr(D, 16), vr(AF + 4 * k, 4), vr(BF + 4 * k, 4), "0" if k == 0 else vr(D, 16)))
        a("s_nop 10"); a("s_nop 6")
        a("buffer_atomic_add_f32 v%d, v10, s[68:71], 0 offen" % D)
        a("buffer_atomic_add_f32 v%d, v10, s[68:71], s6 offen" % (D + 1))
        g.stamp(a, 5)
    if stats: g.ltouch = [(CFG["S3"] - 1, lambda a: all_issue(a, 0))]
    def etile(a):
        if stats: all_check(a, 0)
        a("v_lshlrev_b32 v9, 2, v1")
        a("buffer_load_dword v40, v9, s[24:27], 0 offen sc1")
        if stats: a("buffer_load_dword v41, v9, s[24:27], s98 offen sc1")
        rm_loads(a)
    g.etile = etile; g.etile_n = 4 if stats else 3; g.etile_wait = False
    def lepi(a):
        a("v_add_u32 v9, %d, v9" % g.LDS_MAIN)
        if stats: uv_issue(a)
        a("s_waitcnt vmcnt(%d)" % (12 if stats else 2))
        bf16_round(a, 40, 40)
        a("ds_write_b32 v9, v40")
        if stats:
            bf16_round(a, 41, 41); a("v_add_f32 v41, 1.0, v41"); bf16_round(a, 41, 41)
            a("ds_write_b32 v9, v41 offset:256")
        a("s_waitcnt vmcnt(%d)" % (10 if stats else 0))
    def epi(a):
        stage32(a, SA, [(g.acc(0, 0), 0), (g.acc(1, 0), 128)])
        if CFG["EP"]: a("s_setprio 0")
        a("s_waitcnt vmcnt(0)")
    def common(a):
        a("s_waitcnt lgkmcnt(0)")
        g.stamp(a, 3)
        a("s_barrier")
        g.stamp(a, 4)
        for h in range(2): a("ds_read_b128 %s, v%d offset:%d" % (vr(GA + 4 * h, 4), VGT, 16 * h))
        for i in range(2):
            for h in range(2): a("ds_read_b128 %s, v%d offset:%d" % (vr(F + 8 * i + 4 * h, 4), VLD + h, 2048 * i))
        if stats:
            for h in range(2): a("ds_read_b128 %s, v%d offset:%d" % (vr(CB + 4 * h, 4), VGT, 256 + 16 * h))
        for e in range(8): unpack2(a, T + 2 * e, RX + e)
        for i in range(2):
            a("s_waitcnt lgkmcnt(%d)" % (2 - 2 * i + (2 if stats else 0)))
            for e in range(4):
                x = vr(F + 8 * i + 2 * e, 2)
                a("v_pk_fma_f32 %s, %s, %s, %s" % (x, x, vr(GA + 2 * e, 2), vr(T + 8 * i + 2 * e, 2)))
            for e in range(4):
                a("v_cvt_pk_bf16_f32 v%d, v%d, v%d" % (RX + 4 * i + e, F + 8 * i + 2 * e, F + 8 * i + 2 * e + 1))
            a("buffer_store_dwordx4 %s, v%d, s[20:23], %s offen%s" % (vr(RX + 4 * i, 4), VO2, "s96" if i else "0", " sc1" if stats else ""))
        if stats:
            for e in range(8): unpack2(a, F + 2 * e, RX + e)
            a("s_waitcnt lgkmcnt(0)")
            for i in range(2):
                for e in range(4):
                    a("v_pk_mul_f32 %s, %s, %s" % (vr(T + 8 * i + 2 * e, 2), vr(F + 8 * i + 2 * e, 2), vr(CB + 2 * e, 2)))
            for i in range(2):
                for e in range(4):
                    a("v_cvt_pk_bf16_f32 v%d, v%d, v%d" % (GA + 4 * i + e, T + 8 * i + 2 * e, T + 8 * i + 2 * e + 1))
                a("buffer_store_dwordx4 %s, v%d, s[72:75], %s offen sc1" % (vr(GA + 4 * i, 4), VO4, "s97" if i else "0"))
            for i in range(2):
                s_, q_ = vr(T + 4 * i, 2), vr(T + 4 * i + 2, 2)
                x = lambda e: vr(F + 8 * i + 2 * e, 2)
                a("v_pk_add_f32 %s, %s, %s" % (s_, x(0), x(1)))
                a("v_pk_mul_f32 %s, %s, %s" % (q_, x(0), x(0)))
                a("v_pk_fma_f32 %s, %s, %s, %s" % (q_, x(1), x(1), q_))
                for e in (2, 3):
                    a("v_pk_add_f32 %s, %s, %s" % (s_, s_, x(e)))
                    a("v_pk_fma_f32 %s, %s, %s, %s" % (q_, x(e), x(e), q_))
            for k in range(4): a("v_add_f32 v%d, v%d, v%d" % (T + 2 * k, T + 2 * k, T + 2 * k + 1))
            red8(a, [T, T + 2, T + 4, T + 6])
            compact8(a, T + 8, [T, T + 4, T + 2, T + 6], VPM, 66)
            a("s_mov_b32 exec_hi, 0")
            a("s_waitcnt lgkmcnt(0)")
            a("buffer_atomic_add_f32 v%d, v%d, s[28:31], 0 offen" % (T + 8, VAT))
    kn = g.emit(a, tilemap_16x16_r4c8, setup, cpro, lpro, epi, lepi, common, **ch)
    return g, lds

def k4(a, **ch):
    Z2 = 3584
    ZO = WS_Z2 - WS_Z1
    g = Gemm2("k4", 128, 1024, 16, 2, 2, LP, 7168, 256, CFG["S4"],
              [(8, [(0, "s72")]), (8, [(0, "s73")]), (8, [(0, "s74")]), (4, [(0, "s75")])])
    g.xskip = True
    UVT = g.LDS_MAIN
    RST = UVT + 2048
    lds = RST + 1024
    SA = g.CFREE
    def nib(v): return sum(x << (4 * i) for i, x in enumerate(v))
    def setup(a):
        xw_srds2(a, g, P_WS, WS_Y, P_WIN, 0, 1024 * 7168, 0)
        srd(a, 16, P_WS, WS_UV, 32768)
        srd(a, 20, P_WS, WS_SUM2, 16384)
        a("s_lshl_b32 s6, s4, 19")
        a("s_add_u32 s6, s6, %s" % hex(WS_Z1))
        srd(a, 24, P_WS, "s6", ZO + 128 * LP)
        a("s_lshl_b32 s6, s4, 14"); a("s_add_u32 s6, s6, %s" % hex(WS_XCH))
        srd(a, 28, P_WS, "s6", 16384)
        a("s_and_b32 s6, s5, 3"); a("s_lshl_b32 s7, s6, 2")
        a("s_lshr_b32 s32, s5, 2"); a("s_mul_i32 s32, s32, 896")
        for r, tab in ((72, [0, 4, 8, 10]), (73, [2, 0, 10, 12]), (74, [4, 2, 12, 8]), (75, [6, 6, 7, 7])):
            a("s_lshr_b32 s%d, %s, s7" % (r, hex(nib(tab))))
            a("s_and_b32 s%d, s%d, 15" % (r, r))
            a("s_lshl_b32 s%d, s%d, 6" % (r, r))
            a("s_add_u32 s%d, s%d, s32" % (r, r))
        a("s_add_u32 s72, s72, %d" % Z2)
        a("s_add_u32 s6, s6, 1"); a("s_and_b32 s33, s6, 2")
        a("s_cmp_eq_u32 s33, 0")
        a("s_cselect_b32 s6, %d, 0" % Z2); a("s_add_u32 s73, s73, s6")
        a("s_sub_u32 s6, %d, s6" % Z2); a("s_add_u32 s75, s75, s6")
        a("s_mov_b32 s98, s33")
    g.pf = None
    def cpro(a):
        a("v_and_b32 v10, 15, v1"); a("v_add_u32 v10, s34, v10")
        a("v_lshrrev_b32 v13, 4, v1"); a("v_and_b32 v14, 7, v1"); a("v_xor_b32 v13, v13, v14")
        a("s_lshl_b32 s6, s35, 2")
        a("v_xor_b32 v14, s6, v13"); a("v_bfe_u32 v15, v1, 3, 1"); a("v_xor_b32 v14, v14, v15")
        a("v_lshlrev_b32 v14, 4, v14"); a("v_lshl_add_u32 v%d, v10, 7, v14" % (SA + 2))
        a("v_add_u32 v%d, %d, v%d" % (SA + 2, 98304, SA + 2))
        a("s_lshl_b32 s6, s35, 7")
        a("v_lshl_add_u32 v13, v13, 4, s6"); a("v_lshl_add_u32 v%d, v10, 8, v13" % SA)
        a("v_xor_b32 v%d, 64, v%d" % (SA + 1, SA))
        a("v_add_u32 v%d, 0x10000, v%d" % (SA + 3, SA)); a("v_add_u32 v%d, 0x10000, v%d" % (SA + 4, SA + 1))
    def lpro(a):
        ctouch(a, g, "k4", "k6")
        all_prep(a, False)
        a("v_and_b32 v9, 255, v0")
        a("s_cmp_eq_u32 s34, 0")
        a("s_cselect_b32 s6, s72, s74"); a("s_cselect_b32 s32, s73, s75")
        a("v_mov_b32 v10, s6"); a("v_mov_b32 v11, s32")
        a("v_cmp_gt_u32 vcc, 32, v1")
        a("v_bfe_u32 v12, v9, 1, 4"); a("v_and_b32 v13, 1, v9")
        a("v_cndmask_b32 v10, v11, v10, vcc")
        a("v_lshlrev_b32 v10, 1, v10")
        a("v_lshl_add_u32 v10, v12, 4, v10")
        a("v_lshl_add_u32 v41, v13, 14, v10")
        a("v_and_b32 v42, 127, v9"); a("v_lshlrev_b32 v42, 2, v42")
        a("v_lshrrev_b32 v12, 5, v9"); a("v_lshlrev_b32 v12, 9, v12")
        a("v_and_b32 v11, 1, v9"); a("v_lshl_add_u32 v12, v11, 8, v12")
        a("v_bfe_u32 v11, v9, 1, 1"); a("v_lshl_add_u32 v12, v11, 7, v12")
        a("v_bfe_u32 v11, v9, 2, 3"); a("v_lshl_add_u32 v12, v11, 4, v12")
        a("v_add_u32 v43, %d, v12" % UVT)
        a("v_lshlrev_b32 v56, 1, v42"); a("v_add_u32 v56, %d, v56" % RST)
    def f3u(a):
        a("s_lshl_b32 s6, s2, 2"); a("s_add_u32 s6, s6, %d" % (2048 * 6))
        a("v_mov_b32 v40, 0")
        a("s_cmp_eq_u32 s3, 4"); a("s_cselect_b64 exec, 1, 0")
        a("buffer_store_dword v40, v40, s[68:71], s6 offen sc1")
        a("s_mov_b64 exec, -1")
    def hook_b(a):
        all_check(a, 0)
        a("s_lshl_b32 s6, s4, 9"); a("s_add_u32 s32, s6, 8192")
        a("buffer_load_dwordx4 v[48:51], v41, s[16:19], 0 offen sc1")
        a("buffer_load_dword v52, v42, s[20:23], s6 offen sc1")
        a("buffer_load_dword v53, v42, s[20:23], s32 offen sc1")
    g.ltouch = [(11, f3u), (CFG["HA"], lambda a: all_issue(a, 0)), (CFG["HA"] - 2, hook_b)]
    line_poll(g, 1, 16, 0); flag_rc(g, 2, 5, 4); g.pw = CFG["PW4"]; g.bst = False; g.dyn = CFG["DY"] & 2; g.R = CFG["R4"]
    g.npre = min(g.npre, CFG["NPRE"])
    def epi(a):
        a("s_nop 6")
        for i in range(7):
            for j in range(4):
                if i < 4: a("ds_write_b128 v%d, %s offset:%d" % (SA + (i & 1), vr(g.acc(i, j), 4), (i >> 1) * 32768 + j * 4096))
                elif i < 6: a("ds_write_b128 v%d, %s offset:%d" % (SA + 3 + (i & 1), vr(g.acc(i, j), 4), j * 4096))
                else: a("ds_write_b128 v%d, %s offset:%d" % (SA + 2, vr(g.acc(i, j), 4), j * 2048))
    def etile(a):
        a("v_and_b32 v2, 255, v0"); a("v_lshlrev_b32 v2, 7, v2")
        touch(a, P_WSP, 32768, "s2", 2, 8, 255)
        a("v_cmp_gt_u32 vcc, 112, v9")
        stats_from_sums(a, 52, 53, 54, 1024, 57)
        a("ds_write_b64 v56, v[54:55]")
        a("s_and_saveexec_b64 s[66:67], vcc")
        a("ds_write_b128 v43, v[48:51]")
        a("s_mov_b64 exec, s[66:67]")
        a("s_waitcnt lgkmcnt(0)")
    g.etile = etile; g.etile_n = 1; g.etile_wait = False
    lepi = None
    VLD = 2; VLH = 4; VUV = 6; VO = 7; VOH = 8; VXP = 9; VPM = 14; VXS = 15
    ST = 16; STH = 20; MK = 22; SM = 24; PL = 32; T = 48; UV = 64; ZK = 80; F = 112; PK = 176; VL2 = 222; VUH = 224
    def gelu(a, items, U):
        n = len(items)
        for k, (A, st) in enumerate(items):
            for e in range(4):
                a("v_pk_fma_f32 %s, %s, %s, %s op_sel:[0,1,0] op_sel_hi:[1,1,1]" % (vr(T + 8 * k + 2 * e, 2), vr(U + 2 * e, 2), vr(st, 2), vr(U + 8 + 2 * e, 2)))
        for k, (A, st) in enumerate(items):
            for e in range(4):
                x = vr(A + 2 * e, 2)
                a("v_pk_fma_f32 %s, %s, %s, %s op_sel_hi:[1,0,1]" % (x, x, vr(st, 2), vr(T + 8 * k + 2 * e, 2)))
        for k, (A, st) in enumerate(items):
            for e in range(4): a("v_pk_mul_f32 %s, %s, %s" % (vr(T + 8 * k + 2 * e, 2), vr(A + 2 * e, 2), vr(A + 2 * e, 2)))
        for e in range(4 * n):
            t = vr(T + 2 * e, 2); a("v_pk_fma_f32 %s, %s, s[70:71], v[10:11]" % (t, t))
        for k, (A, st) in enumerate(items):
            for e in range(4):
                t = vr(T + 8 * k + 2 * e, 2); a("v_pk_mul_f32 %s, %s, %s" % (t, t, vr(A + 2 * e, 2)))
        for e in range(8 * n): a("v_exp_f32 v%d, v%d" % (T + e, T + e))
        for e in range(4 * n): a("v_pk_add_f32 %s, %s, v[12:13]" % (vr(T + 2 * e, 2), vr(T + 2 * e, 2)))
        for e in range(8 * n): a("v_rcp_f32 v%d, v%d" % (T + e, T + e))
        for k, (A, st) in enumerate(items):
            for e in range(4):
                t = vr(T + 8 * k + 2 * e, 2); a("v_pk_mul_f32 %s, %s, %s" % (t, t, vr(A + 2 * e, 2)))
    def freg(gi): return F + 16 * gi
    def rd_group(a, gi):
        if gi < 3:
            for i in range(2):
                for h in range(2):
                    off = gi * 32768 + i * 2048
                    if gi < 2: a("ds_read_b128 %s, v%d offset:%d" % (vr(freg(gi) + 8 * i + 4 * h, 4), VLD + h, off))
                    else: a("ds_read_b128 %s, v%d offset:%d" % (vr(freg(gi) + 8 * i + 4 * h, 4), VL2 + h, off - 65536))
            return 4
        for h in range(2): a("ds_read_b128 %s, v%d" % (vr(freg(3) + 4 * h, 4), VLH + h))
        return 2
    def rd_uv(a, gi):
        for q in range(4): a("ds_read_b128 %s, v%d offset:%d" % (vr(UV + 4 * q, 4), VUV if gi < 3 else VUH, gi * 512 + q * 128))
    def items(gi): return [(freg(gi), ST), (freg(gi) + 8, ST + 2)] if gi < 3 else [(freg(3), STH)]
    def store(a, gi, src):
        if gi < 3:
            a("s_add_u32 s6, s%d, 0x8000" % (72 + gi))
            a("buffer_store_dwordx4 %s, v%d, s[24:27], s%d offen sc1" % (vr(src, 4), VO, 72 + gi))
            a("buffer_store_dwordx4 %s, v%d, s[24:27], s6 offen sc1" % (vr(src + 4, 4), VO))
        else:
            a("buffer_store_dwordx4 %s, v%d, s[24:27], s75 offen sc1" % (vr(src, 4), VOH))
    def poll(a):
        for k in range(4):
            a("buffer_load_dwordx2 %s, v%d, s[28:31], 0 offen offset:%d sc1" % (vr(PL + 2 * k, 2), VXP, (k & 1) * 1024 + (k >> 1) * 64))
    def variant(a, G2, G1):
        if CFG["EP"]: a("s_setprio 2")
        rd_uv(a, G2[0])
        rd_group(a, G2[0])
        n1 = rd_group(a, G2[1])
        a("s_waitcnt lgkmcnt(%d)" % n1)
        for x, gi in enumerate(G2):
            gelu(a, items(gi), UV)
            rd_uv(a, G2[1] if x == 0 else G1[0])
            if x == 1:
                for gj in G1: rd_group(a, gj)
            n = len(items(gi))
            for e in range(4 * n): a("v_cvt_pk_bf16_f32 v%d, v%d, v%d" % (PK + e, T + 2 * e, T + 2 * e + 1))
            Z = ZK + 16 * x
            for e in range(4 * n): unpack2(a, Z + 2 * e, PK + e)
            for k in range(n):
                if gi < 3: s_, q_ = vr(SM + 4 * k, 2), vr(SM + 4 * k + 2, 2)
                else: s_, q_ = vr(T, 2), vr(T + 2, 2)
                z = lambda e: vr(Z + 8 * k + 2 * e, 2)
                if x == 0 or gi == 3:
                    a("v_pk_add_f32 %s, %s, %s" % (s_, z(0), z(1)))
                    a("v_pk_mul_f32 %s, %s, %s" % (q_, z(0), z(0)))
                    a("v_pk_fma_f32 %s, %s, %s, %s" % (q_, z(1), z(1), q_))
                    r = (2, 3)
                else: r = range(4)
                for e in r:
                    a("v_pk_add_f32 %s, %s, %s" % (s_, s_, z(e)))
                    a("v_pk_fma_f32 %s, %s, %s, %s" % (q_, z(e), z(e), q_))
            if gi == 3:
                for k in range(2):
                    for c in range(2):
                        d = vr(SM + 4 * k + 2 * c, 2)
                        a("v_pk_fma_f32 %s, %s, %s, %s op_sel:[0,%d,0] op_sel_hi:[1,%d,1]" % (d, vr(T + 2 * c, 2), vr(MK, 2), d, k, k))
            if x == 0: a("s_waitcnt lgkmcnt(0)")
        for k in range(4): a("v_add_f32 v%d, v%d, v%d" % (SM + 2 * k, SM + 2 * k, SM + 2 * k + 1))
        red8(a, [SM, SM + 2, SM + 4, SM + 6])
        a("s_mov_b32 s66, 0x02020202"); a("s_mov_b32 s67, s66")
        a("v_cndmask_b32 v%d, v%d, v%d, s[66:67]" % (SM, SM, SM + 4))
        a("v_cndmask_b32 v%d, v%d, v%d, s[66:67]" % (SM + 1, SM + 2, SM + 6))
        a("ds_bpermute_b32 v%d, v%d, v%d" % (SM, VPM, SM))
        a("v_and_b32 v%d, -2, v%d" % (SM + 1, SM + 1))
        a("ds_bpermute_b32 v%d, v%d, v%d" % (SM + 1, VPM, SM + 1))
        a("s_mov_b64 exec, 0xffff")
        a("s_waitcnt lgkmcnt(0)")
        a("buffer_store_dwordx2 %s, v%d, s[28:31], s32 offen sc1" % (vr(SM, 2), VXS))
        a("s_mov_b64 exec, -1")
        if CFG["EP"]: a("s_setprio 0")
        g.stamp(a, 5)
        for x, gi in enumerate(G1):
            gelu(a, items(gi), UV)
            if x == 0: rd_uv(a, G1[1])
            n = len(items(gi))
            for e in range(4 * n): a("v_cvt_pk_bf16_f32 v%d, v%d, v%d" % (freg(gi) + e, T + 2 * e, T + 2 * e + 1))
            if x == 1: poll(a)
            store(a, gi, freg(gi))
            if x == 0: a("s_waitcnt lgkmcnt(0)")
        g.stamp(a, 6)
        L = a.newlabel("k4_poll"); D = a.newlabel("k4_pdone"); C = a.newlabel("k4_pchk")
        a("s_mov_b32 s66, 0x40000")
        a("s_waitcnt vmcnt(%d)" % len(items(G1[1])))
        a("s_branch %s" % C)
        a.label(L)
        poll(a)
        a("s_waitcnt vmcnt(0)")
        a.label(C)
        a("v_max_u32 v%d, v%d, v%d" % (T, PL + 1, PL + 3))
        a("v_max3_u32 v%d, v%d, v%d, v%d" % (T, T, PL + 5, PL + 7))
        a("v_cmp_eq_u32 vcc, -1, v%d" % T)
        a("s_sub_u32 s66, s66, 1")
        a("s_cbranch_scc1 %s" % D)
        a("s_cbranch_vccz %s" % D)
        a("s_sleep 1")
        a("s_branch %s" % L)
        a.label(D)
        for k in range(2): a("v_pk_add_f32 %s, %s, %s" % (vr(PL + 4 * k, 2), vr(PL + 4 * k, 2), vr(PL + 4 * k + 2, 2)))
        a("s_nop 0")
        red8(a, [PL, PL + 1, PL + 4, PL + 5])
        n_ = 1792
        for k in range(2): a("v_mul_f32 v%d, %s, v%d" % (PL + 4 * k, hex(f32bits(1.0 / n_)), PL + 4 * k))
        for k in range(2): a("v_mul_f32 v%d, %s, v%d" % (ST + 2 * k, hex(f32bits(1.0 / n_)), PL + 4 * k + 1))
        for k in range(2): a("v_fma_f32 v%d, -v%d, v%d, v%d" % (ST + 2 * k, PL + 4 * k, PL + 4 * k, ST + 2 * k))
        for k in range(2): a("v_max_f32 v%d, 0, v%d" % (ST + 2 * k, ST + 2 * k))
        for k in range(2): a("v_add_f32 v%d, %s, v%d" % (ST + 2 * k, hex(f32bits(1e-5)), ST + 2 * k))
        for k in range(2): a("v_rsq_f32 v%d, v%d" % (ST + 2 * k, ST + 2 * k))
        a("s_nop 0")
        for k in range(2): a("v_mul_f32 v%d, -v%d, v%d" % (ST + 2 * k + 1, PL + 4 * k, ST + 2 * k))
        if 3 in G2:
            for c in range(2): a("v_cndmask_b32 v%d, v%d, v%d, s[68:69]" % (STH + c, ST + c, ST + 2 + c))
        for x, gi in enumerate(G2):
            Z = ZK + 16 * x
            for k, (_, st) in enumerate(items(gi)):
                for e in range(4):
                    z = vr(Z + 8 * k + 2 * e, 2)
                    a("v_pk_fma_f32 %s, %s, %s, %s op_sel:[0,0,1] op_sel_hi:[1,0,1]" % (z, z, vr(st, 2), vr(st, 2)))
            for e in range(4 * len(items(gi))): a("v_cvt_pk_bf16_f32 v%d, v%d, v%d" % (T + 8 * x + e, Z + 2 * e, Z + 2 * e + 1))
            store(a, gi, T + 8 * x)
    def common(a):
        K1_ = 2.0 * math.sqrt(2.0 / math.pi) * LOG2E
        R = T
        rm_addr(a, R, VLD, R + 1)
        a("v_and_b32 v%d, 7, v1" % (R + 2)); a("v_bfe_u32 v%d, v1, 2, 1" % (R + 3)); a("v_and_b32 v%d, 3, v1" % (R + 4))
        a("v_add_u32 v%d, 0x10000, v%d" % (VL2, VLD)); a("v_add_u32 v%d, 0x10000, v%d" % (VL2 + 1, VLD + 1))
        a("v_lshlrev_b32 v%d, 4, v%d" % (VUV, R + 2))
        a("v_lshl_add_u32 v%d, v%d, 12, v%d" % (VO, R, VUV))
        a("v_add_u32 v%d, %d, v%d" % (VUV, UVT, VUV))
        a("v_lshl_add_u32 v%d, v%d, 3, v%d" % (R + 5, R + 3, R))
        a("v_lshlrev_b32 v%d, 4, v%d" % (VOH, R + 4))
        a("v_add_u32 v%d, %d, v%d" % (VUH, UVT, VOH))
        a("v_lshl_add_u32 v%d, v%d, 12, v%d" % (VOH, R + 5, VOH))
        a("v_lshlrev_b32 v%d, 1, v%d" % (VLH, R + 4)); a("v_xor_b32 v%d, v%d, v%d" % (VLH, VLH, R + 1)); a("v_xor_b32 v%d, v%d, v%d" % (VLH, VLH, R + 3))
        a("v_lshlrev_b32 v%d, 4, v%d" % (VLH, VLH)); a("v_lshl_add_u32 v%d, v%d, 7, v%d" % (VLH, R + 5, VLH))
        a("v_add_u32 v%d, %d, v%d" % (VLH, 98304, VLH)); a("v_xor_b32 v%d, 16, v%d" % (VLH + 1, VLH))
        a("v_lshlrev_b32 v%d, 3, v%d" % (R + 6, R))
        a("v_lshl_add_u32 v%d, v%d, 11, v%d" % (VXP, R + 2, R + 6))
        a("v_add_u32 v%d, %d, v%d" % (R + 6, RST, R + 6))
        a("ds_read_b64 %s, v%d" % (vr(ST, 2), R + 6)); a("ds_read_b64 %s, v%d offset:64" % (vr(ST + 2, 2), R + 6))
        a("v_lshlrev_b32 v%d, 5, v%d" % (VPM, R + 2)); a("v_lshl_add_u32 v%d, v%d, 2, v%d" % (VPM, R + 1, VPM))
        a("v_lshlrev_b32 v%d, 3, v1" % VXS)
        a("v_cvt_f32_u32 v%d, v%d" % (MK + 1, R + 3)); a("v_sub_f32 v%d, 1.0, v%d" % (MK, MK + 1))
        a("s_lshl_b32 s32, s5, 10"); a("s_lshl_b32 s6, s3, 7"); a("s_add_u32 s32, s32, s6")
        a("s_mov_b32 s68, 0xf0f0f0f0"); a("s_mov_b32 s69, s68")
        a("s_mov_b32 s70, %s" % hex(f32bits(-K1_ * 0.044715))); a("s_mov_b32 s71, s70")
        a("v_mov_b32 v10, %s" % hex(f32bits(-K1_))); a("v_mov_b32 v11, v10")
        a("v_mov_b32 v12, 1.0"); a("v_mov_b32 v13, 1.0")
        for r in range(72, 76):
            a("s_cmp_ge_u32 s%d, %d" % (r, Z2))
            a("s_cselect_b32 s7, %d, 0" % Z2); a("s_cselect_b32 s33, %d, 0" % ZO)
            a("s_sub_u32 s%d, s%d, s7" % (r, r))
            s_lmap(a, r, r, 6)
            a("s_add_u32 s%d, s%d, s33" % (r, r))
        a("s_waitcnt lgkmcnt(0)")
        for c in range(2): a("v_cndmask_b32 v%d, v%d, v%d, s[68:69]" % (STH + c, ST + c, ST + 2 + c))
        g.stamp(a, 3)
        a("s_barrier")
        g.stamp(a, 4)
        LB = a.newlabel("k4_tb"); LE = a.newlabel("k4_te")
        a("s_cmp_lg_u32 s98, 0")
        a("s_cbranch_scc1 %s" % LB)
        variant(a, [0, 1], [2, 3])
        a("s_branch %s" % LE)
        a.label(LB)
        variant(a, [0, 3], [1, 2])
        a.label(LE)
    kn = g.emit(a, tilemap_16x16_r8c4, setup, cpro, lpro, epi, lepi, common, **ch)
    return g, lds

def k5(a, **ch):
    g = Gemm2("k5", 128, 2048, 32, 2, 2, 4096, LP, 224, CFG["S5"], [(8, [(0, "s72")]), (8, [(0, "s73")])])
    Z1 = g.CFREE; BS = Z1 + 16; VO = BS + 4; VLD = VO + 2; SA = VLD + 2; F = SA + 4; T = F + 32
    def setup(a):
        xw_srds2(a, g, P_WSP, 0, P_WS, WS_Z2, 2048 * LP, 0)
        a("s_lshl_b32 s6, s4, 19")
        a("s_add_u32 s32, s6, %s" % hex(WS_Z1)); srd(a, 20, P_WS, "s32", 128 * LP)
        a("s_add_u32 s32, s6, %s" % hex(WS_U)); srd(a, 24, P_WS, "s32", 128 * LP)
        a("s_lshl_b32 s6, s4, 8")
        srd(a, 28, P_BSP, "s6", 256)
        a("s_lshl_b32 s7, s5, 1")
        s_lmap(a, 72, 7, 6, False)
        a("s_add_u32 s7, s7, 1")
        s_lmap(a, 73, 7, 6, False)
        a("s_add_u32 s74, s72, 0x8000"); a("s_add_u32 s75, s73, 0x8000")
    def rm_loads(a):
        rm_addr(a, VO, VLD, 10)
        a("v_lshlrev_b32 v12, 1, v%d" % VO)
        a("v_and_b32 v11, 7, v1"); a("v_lshlrev_b32 v11, 4, v11")
        a("v_lshl_add_u32 v%d, v%d, 12, v11" % (VO, VO))
        for i in range(2): a("buffer_load_ushort v%d, v12, s[28:31], 0 offen offset:%d" % (BS + 2 * i, 16 * i))
        for k in range(4): a("buffer_load_dwordx4 %s, v%d, s[20:23], s%d offen sc1" % (vr(Z1 + 4 * k, 4), VO, 72 + k))
    def cpro(a):
        stage32_addr(a, g, SA, 10)
    g.cpost0 = rm_loads
    g.pf = None
    def lpro(a):
        ctouch(a, g, "k5", "end")
    g.dep = 12
    def pprep(a, r):
        a("v_lshrrev_b32 v%d, 5, v1" % r); a("v_lshlrev_b32 v%d, 7, v%d" % (r, r)); a("v_bfe_u32 v%d, v1, 1, 4" % (r + 1))
        a("v_lshl_add_u32 v%d, v%d, 2, v%d" % (r, r + 1, r))
        a("s_mul_i32 s6, s5, 74"); a("s_add_u32 s6, s6, 37"); a("s_lshr_b32 s6, s6, 8"); a("s_lshl_b32 s6, s6, 9"); a("s_add_u32 s6, s6, 4096")
        a("v_add_u32 v%d, s6, v%d" % (r + 1, r))
        a("s_mul_i32 s6, s5, 74"); a("s_lshr_b32 s6, s6, 8"); a("s_lshl_b32 s6, s6, 9"); a("s_add_u32 s6, s6, 4096")
        a("v_add_u32 v%d, s6, v%d" % (r, r))
    def pissue(a, r):
        for k in range(4): a("buffer_load_dword v%d, v%d, s[68:71], 0 offen offset:%d sc1" % (r + 2 + k, r + (k >> 1), 256 * (k & 1)))
    def pmask(a, r, d):
        a("v_max3_u32 v%d, v%d, v%d, v%d" % (r + 2, r + 2, r + 3, r + 4)); a("v_max_u32 v%d, v%d, v%d" % (r + 2, r + 2, r + 5))
        a("v_cmp_ne_u32 vcc, -1, v%d" % (r + 2))
        a("s_and_b32 s%d, vcc_lo, vcc_hi" % d)
    def pmust(a):
        a("s_lshl_b32 s65, s4, 1"); a("s_bitcmp1_b32 s67, s65"); a("s_cselect_b32 s6, s6, 0")
    g.fl = dict(prep=pprep, issue=pissue, mask=pmask, full=0xffffffff, must=pmust); g.psl = CFG["PS"]; g.pw = CFG["PW5"]
    g.dyn = CFG["DY"] & 4; g.R = CFG["R5"]
    flag_rc(g, 3, 4, 5)
    g.npre = min(g.npre, CFG["NPRE"])
    g.etile = rm_loads; g.etile_n = 6; g.etile_wait = False
    def epi(a):
        stage32(a, SA, [(g.acc(i, j), i * 32768 + j * 8192) for i in range(2) for j in range(2)])
        if CFG["EP"]: a("s_setprio 0")
    def common(a):
        a("s_waitcnt vmcnt(0)")
        for i in range(2): a("v_lshlrev_b32 v%d, 16, v%d" % (BS + 2 * i, BS + 2 * i))
        a("s_waitcnt lgkmcnt(0)")
        g.stamp(a, 3)
        a("s_barrier")
        g.stamp(a, 4)
        for k in range(4):
            for h in range(2): a("ds_read_b128 %s, v%d offset:%d" % (vr(F + 8 * k + 4 * h, 4), VLD + h, (k & 1) * 32768 + (k >> 1) * 2048))
        for k in range(4):
            t = T + 8 * (k & 1)
            for e in range(4): unpack2(a, t + 2 * e, Z1 + 4 * k + e)
            a("s_waitcnt lgkmcnt(%d)" % (6 - 2 * k))
            if DBG["stamp"]: a("s_waitcnt lgkmcnt(0)")
            for e in range(4):
                x = vr(F + 8 * k + 2 * e, 2)
                a("v_pk_add_f32 %s, %s, %s op_sel_hi:[1,0]" % (x, x, vr(BS + 2 * (k >> 1), 2)))
            for e in range(4):
                x = vr(F + 8 * k + 2 * e, 2)
                a("v_pk_mul_f32 %s, %s, %s" % (x, x, vr(t + 2 * e, 2)))
            for e in range(4):
                a("v_cvt_pk_bf16_f32 v%d, v%d, v%d" % (Z1 + 4 * k + e, F + 8 * k + 2 * e, F + 8 * k + 2 * e + 1))
            a("buffer_store_dwordx4 %s, v%d, s[24:27], s%d offen sc1" % (vr(Z1 + 4 * k, 4), VO, 72 + k))
    def extra(a, chained, nxt):
        if chained:
            a("s_waitcnt vmcnt(0)")
            a("s_barrier")
            g.flag_store(a)
        a("s_sub_u32 s4, s2, 224")
        a("v_lshlrev_b32 v2, 7, v0")
        a("v_add_u32 v3, 0x10000, v2")
        touch(a, P_WOUT, 114688, "s4", 2, 8, 4)
        a("buffer_load_dword v5, v3, s[8:11], 0 offen")
        a("s_lshl_b32 s100, s4, 2"); a("s_add_u32 s100, s100, %d" % (2048 * 4))
        a("s_waitcnt vmcnt(0)")
        a("s_branch %s" % nxt)
    g.extra = extra
    kn = g.emit(a, tilemap_16x14, setup, cpro, lpro, epi, None, common, **ch)
    return g, g.LDS_MAIN

ORDER = ["k0", "k1", "k2", "k3", "k4", "k5", "k6"]
def build(path, order=None):
    a = Asm()
    ks = {}
    def small(fn, name):
        m = len(a.lines)
        r = fn(a)
        if DBG["stamp"]:
            body = a.lines[m:]; del a.lines[m:]
            st = Stamper(name)
            armed = False
            for k, l in enumerate(body):
                t = l.strip()
                if t.startswith("s_load_dwordx4 s[60:63]"): armed = True
                if t == "s_endpgm" and not body[k - 1].endswith(":"):
                    a("s_mov_b64 exec, -1"); st.stamp_out(a)
                if t.endswith(":") and "_end" in t:
                    a("s_mov_b64 exec, -1"); st.stamp_out(a); a("s_endpgm")
                a.lines.append(l)
                if armed and t == "s_waitcnt lgkmcnt(0)":
                    st.stamp(a, 0); armed = False; a("v_mov_b32 v254, 0")
            r = (r[0], 256) + r[2:]
        return r
    ks["k0"] = small(k0, "k0")
    if CFG["ST01"]:
        a.lines = [l + " sc1" if ("buffer_store_dwordx" in l and "sc1" not in l) else l for l in a.lines]
    phases = [("k2", k2),
              ("k3", lambda a, **ch: k_res(a, "k3", 1024, WS_O, P_WO, P_X, 0, 2, P_WS, WS_X1, True, CFG["S3"], WS_SO, **ch)),
              ("k4", k4), ("k5", k5),
              ("k6", lambda a, **ch: k_res(a, "k6", 1792, WS_U, P_WOUT, P_WS, WS_X1, 5, P_OUT, 0, False, CFG["S6"], WS_SW, **ch))]
    a.lines.append(".p2align 8")
    prev = p1(a)
    order = ["k0", "k1"]
    ks["k1"] = ("k1_kernel", 256, 256, 512, 163840)
    for i, (nm, fn) in enumerate(phases):
        last = i == 4
        a.lines.append(".p2align 3")
        a.label("L_code_" + nm)
        prev, lds = fn(a, prev=prev, last=last, nxt=None if last else "L_phase_" + phases[i + 1][0])
        assert lds <= 163840
    a.label("L_code_end")
    a("s_endpgm")
    ref = open("cdna_kernels/%s.s.ref" % NAME).read().split("\n")
    head = [l for l in ref if l.startswith(";") and "@launch" not in l and "Override" not in l and "grid=ceil" not in l]
    head = head[:15]
    out = list(head)
    for k in order:
        kn, vg, grid, blk, lds = ks[k]
        out.append("; @launch kernel=%s grid=(%d,1,1) block=(%d,1,1) lds=%d" % (kn, grid, blk, lds))
    out.append('.amdgcn_target "amdgcn-amd-amdhsa--gfx950"')
    out.append(".text")
    out += a.lines
    out.append('.section .rodata,"a"')
    for k, (kn, vg, grid, blk, lds) in ks.items():
        out.append(kernel_desc(kn, vg, 102))
    open(path, "w").write("\n".join(out) + "\n")

if __name__ == "__main__":
    build(sys.argv[1] if len(sys.argv) > 1 else "cdna_kernels/%s.s" % NAME)
```

```python
from gen import *

STAMP_OFF = 0x4000000
KIDX = dict(k0=6, k1=0, k2=1, k3=2, k4=3, k5=4, k6=5)

class Stamper:
    def __init__(self, name): self.name = name; self.post_free = None; self.lwait = False

class Gemm2:
    def __init__(self, name, BM, K, mf, wgm, wgn, ldx, ldw, ntiles, S, groups):
        self.name, self.BM, self.K, self.mf = name, BM, K, mf
        self.wgm, self.wgn, self.ldx, self.ldw, self.ntiles, self.S = wgm, wgn, ldx, ldw, ntiles, S
        self.groups = groups
        self.xskip = False
        self.etile_wait = True
        self.cpost0 = None
        self.cmid = None
        self.ltouch = []
        self.nk = K // 64
        self.XI = BM * 128
        self.goff = []
        o = self.XI
        for nch, _ in groups:
            self.goff.append(o); o += 64 * nch * 16
        self.STG = o
        assert self.STG % 4096 == 0
        self.P = self.STG // 4096
        self.LDS_MAIN = S * self.STG
        self.WM = BM // wgm
        self.NT = self.WM // mf
        self.NS = 4 if mf == 32 else 2
        self.accn = 16 if mf == 32 else 4
        full = [g for g, (n, _) in enumerate(groups) if n == 8]
        half = [g for g, (n, _) in enumerate(groups) if n == 4]
        self.wt = []
        if mf == 32:
            if wgn == 2:
                self.nwa = 1
                for g in full: self.wt.append((0, self.goff[g], 128))
            else:
                self.nwa = 2
                for g in full:
                    for h in range(2): self.wt.append((h, self.goff[g], 128))
            assert not half
        else:
            assert wgn == 2
            self.nwa = 2 + len(half)
            for g in full:
                for o in range(2): self.wt.append((o, self.goff[g], 128))
            for g in half: self.wt.append((2, self.goff[g], 64))
        self.MT = len(self.wt)
        self.VX = 2
        self.VW = self.VX + self.NS
        assert self.VW + self.nwa <= 9
        self.FR = 16
        self.nfr = (self.NT + self.MT) * 4
        self.ACC = self.FR + 2 * self.nfr
        self.nacc = self.NT * self.MT * self.accn
        self.CFREE = self.ACC + self.nacc
        self.prio = 2
        self.pf = None
        self.etile = None
        self.cpro0 = None
        self.extra = None
        self.PFD = 255
        self.etile_n = 0
        self.dep = 8
        self.npre = S - 1
        self.poll = None
        self.flagoff = None
        self.pw = 0
        self.lwait = True
        self.cpre0 = None
        self.dyn = False
        self.R = 8
        self.fl = None
        self.post_free = None
        self.trickle = None
        self.psl = 1
        self.bst = True

    def acc(self, i, j): return self.ACC + (i * self.NT + j) * self.accn
    def xfrag(self, s, j): return self.FR + s * self.nfr + j * 4
    def wfrag(self, s, i): return self.FR + s * self.nfr + (self.NT + i) * 4

    def reads(self, sub, fs):
        xs, ws = [], []
        for j in range(self.NT):
            xs.append("ds_read_b128 %s, v%d offset:%d" % (vr(self.xfrag(fs, j), 4), self.VX + sub, j * self.mf * 128))
        kr = 16 if self.mf == 32 else 32
        for i, (ar, imm, pitch) in enumerate(self.wt):
            for q in range(2):
                ws.append("ds_read_b64_tr_b16 %s, v%d offset:%d" % (vr(self.wfrag(fs, i) + 2 * q, 2), self.VW + ar,
                                                                    imm + (kr * sub + 4 * q) * pitch))
        return ws[0:2] + xs + ws[2:]

    def mfmas(self, fs):
        op = "v_mfma_f32_32x32x16_bf16" if self.mf == 32 else "v_mfma_f32_16x16x32_bf16"
        out = []
        for i in range(self.MT):
            for j in range(self.NT):
                A = self.acc(i, j)
                out.append("%s %s, %s, %s, %s" % (op, vr(A, self.accn), vr(self.wfrag(fs, i), 4),
                                                  vr(self.xfrag(fs, j), 4), vr(A, self.accn)))
        return out

    def compute_addr(self, a):
        mf = self.mf
        if self.wgn == 1:
            a("s_mul_i32 s34, s3, %d" % self.WM); a("s_mov_b32 s35, 0")
        else:
            a("s_lshr_b32 s34, s3, 1"); a("s_mul_i32 s34, s34, %d" % self.WM)
            a("s_and_b32 s35, s3, 1")
        sh = 5 if mf == 32 else 4
        X = self.VX
        a("v_and_b32 v10, %d, v1" % (mf - 1))
        a("v_bfe_u32 v11, v1, 1, 3")
        a("v_lshrrev_b32 v12, %d, v1" % sh)
        a("v_xor_b32 v11, v11, v12")
        a("v_add_u32 v10, s34, v10")
        a("v_lshlrev_b32 v10, 7, v10")
        a("v_lshl_add_u32 v%d, v11, 4, v10" % X)
        for s in range(1, self.NS):
            a("v_xor_b32 v%d, %d, v%d" % (X + s, s * (32 if mf == 32 else 64), X))
        W = self.VW
        a("v_bfe_u32 v10, v1, 2, 2")
        a("v_lshl_add_u32 v10, v12, 3, v10")
        if mf == 32:
            a("v_bfe_u32 v11, v1, 4, 1"); a("v_lshlrev_b32 v11, 5, v11")
            a("v_and_b32 v13, 1, v1"); a("v_lshl_add_u32 v11, v13, 4, v11")
            a("v_bfe_u32 v13, v1, 1, 1"); a("v_lshl_add_u32 v11, v13, 3, v11")
            a("v_bfe_u32 v13, v1, 3, 1"); a("v_lshl_add_u32 v11, v13, 6, v11")
            a("v_lshl_add_u32 v%d, v10, 7, v11" % W)
            if self.wgn == 2:
                a("s_lshl_b32 s6, s35, 6")
                a("v_xor_b32 v%d, s6, v%d" % (W, W))
            else:
                a("v_xor_b32 v%d, 64, v%d" % (W + 1, W))
        else:
            a("v_and_b32 v11, 3, v1"); a("v_lshlrev_b32 v11, 3, v11")
            a("v_bfe_u32 v13, v1, 4, 1")
            if self.nwa == 3:
                a("v_xor_b32 v14, s35, v13"); a("v_lshl_add_u32 v14, v14, 5, v11")
                a("v_lshl_add_u32 v%d, v10, 6, v14" % (W + 2))
            a("v_xor_b32 v13, s35, v13"); a("v_lshl_add_u32 v11, v13, 6, v11")
            a("v_bfe_u32 v13, v1, 3, 1"); a("v_lshl_add_u32 v11, v13, 5, v11")
            a("v_lshl_add_u32 v%d, v10, 7, v11" % W)
            a("v_xor_b32 v%d, 32, v%d" % (W + 1, W))

    def interleave(self, a, mf, rd, first_after=None, tail=()):
        if DBG["nomfma"]: mf = ["s_nop 0"] * len(mf)
        if DBG["noread"]: rd = []
        rd = list(rd) + list(tail)
        n = len(mf)
        per = 2 if self.mf == 32 else 1
        per = max(per, -(-len(rd) // max(1, n - 1)))
        ri = 0
        for t, m in enumerate(mf):
            a(m)
            if t == 0 and first_after:
                for x in first_after: a(x)
            for _ in range(per):
                if ri < len(rd):
                    a(rd[ri]); ri += 1
        while ri < len(rd):
            a(rd[ri]); ri += 1

    def slot_next(self, a):
        a("s_add_u32 s64, s64, %d" % self.STG)
        a("s_cmp_eq_u32 s64, %d" % (self.S * self.STG))
        a("s_cselect_b32 s65, %s, s67" % (hex((-(self.S - 1) * self.STG) & 0xffffffff)))
        a("s_cselect_b32 s64, 0, s64")

    def zero_acc(self, a):
        for r in range(self.nacc):
            a("v_mov_b32 v%d, 0" % (self.ACC + r))

    def compute_main(self, a):
        a("s_mov_b32 s64, 0")
        a("s_mov_b32 s67, %d" % self.STG)
        a("s_mov_b32 s6, %d" % self.nk)
        a("s_barrier")
        self.stamp(a, 1)
        for x in self.reads(0, 0): a(x)
        if self.cpost0: self.cpost0(a)
        if self.cmid: a("s_mov_b32 s97, %d" % self.cmid[0])
        L = a.newlabel(self.name + "_cl")
        a.lines.append(".p2align 4")
        a.label(L)
        self.slot_next(a)
        for sub in range(self.NS):
            fs = sub & 1
            a("s_waitcnt lgkmcnt(0)")
            if sub < self.NS - 1:
                tail = ["v_add_u32 v%d, s65, v%d" % (self.VX + sub + 1, self.VX + sub + 1)]
                if sub == 0:
                    tail.append("v_add_u32 v%d, s65, v%d" % (self.VX, self.VX))
                    if self.pf and self.pf["D"]:
                        tail += ["buffer_load_dword v%d, v15, s[68:71], s96 offen" % self.PFD, "s_add_u32 s96, s96, s97"]
                if sub == self.NS - 2:
                    tail += ["v_add_u32 v%d, s65, v%d" % (self.VW + w, self.VW + w) for w in range(self.nwa)]
                self.interleave(a, self.mfmas(fs), self.reads(sub + 1, fs ^ 1), tail=tail)
            else:
                self.interleave(a, self.mfmas(fs), self.reads(0, fs ^ 1), first_after=["s_sub_u32 s6, s6, 1", "s_barrier"])
        a("s_cmp_lg_u32 s6, %s" % ("s97" if self.cmid else "0"))
        a("s_cbranch_scc1 %s" % L)
        if self.cmid:
            X = a.newlabel(self.name + "_cx")
            a("s_cmp_eq_u32 s6, 0")
            a("s_cbranch_scc1 %s" % X)
            self.cmid[1](a)
            a("s_mov_b32 s97, 0")
            a("s_branch %s" % L)
            a.label(X)
        a("s_waitcnt lgkmcnt(0)")

    def loader_setup(self, a):
        self.pieces = []
        a("s_sub_u32 s34, s3, 4")
        a("v_and_b32 v1, 63, v0")
        a("v_lshrrev_b32 v2, 3, v1")
        a("v_and_b32 v3, 7, v1")
        a("s_lshl_b32 s6, s34, 3")
        a("v_add_u32 v2, s6, v2")
        r = 16
        a("v_bfe_u32 v4, v2, 1, 3")
        a("v_xor_b32 v4, v4, v3")
        a("s_mov_b32 s6, %d" % self.ldx)
        a("v_mul_lo_u32 v5, s6, v2")
        for i in range(self.BM // 32):
            if i == 0: a("v_lshl_add_u32 v%d, v4, 4, v5" % r)
            else: a("v_add_u32 v%d, %d, v%d" % (r, 32 * self.ldx, r - 1))
            self.pieces.append((r, 8, 7)); r += 1
        if self.mf == 32:
            a("v_bfe_u32 v4, v2, 1, 1"); a("v_lshlrev_b32 v4, 2, v4")
        else:
            a("v_bfe_u32 v4, v2, 1, 1"); a("v_lshlrev_b32 v4, 1, v4")
            a("v_bfe_u32 v6, v2, 3, 1"); a("v_lshl_add_u32 v4, v6, 2, v4")
        a("v_xor_b32 v4, v4, v3")
        a("s_mov_b32 s6, %d" % self.ldw)
        a("v_mul_lo_u32 v5, s6, v2")
        a("v_lshl_add_u32 v5, v4, 4, v5")
        def chunkmap(dst, base, ch, cm):
            a("v_add_u32 v%d, %s, v%d" % (dst, cm[0][1], base))
            for fc, bo in cm[1:]:
                adj = bo - 16 * fc
                a("v_add_u32 v7, %d, v%d" % (adj & 0xffffffff, base))
                a("v_cmp_le_u32 vcc, %d, v%d" % (fc, ch))
                a("s_nop 1")
                a("v_cndmask_b32 v%d, v%d, v7, vcc" % (dst, dst))
        for nch, cm in self.groups:
            if nch == 8:
                chunkmap(r, 5, 4, cm)
                a("v_add_u32 v%d, %d, v%d" % (r + 1, 32 * self.ldw, r))
                self.pieces.append((r, 12, 33)); self.pieces.append((r + 1, 12, 33)); r += 2
            else:
                a("v_lshrrev_b32 v2, 2, v1"); a("s_lshl_b32 s35, s34, 4"); a("v_add_u32 v2, s35, v2")
                a("v_and_b32 v3, 3, v1")
                a("v_bfe_u32 v6, v2, 3, 1"); a("v_lshlrev_b32 v6, 1, v6"); a("v_xor_b32 v6, v6, v3")
                a("v_mul_lo_u32 v8, s6, v2"); a("v_lshl_add_u32 v8, v6, 4, v8")
                chunkmap(r, 8, 6, cm)
                self.pieces.append((r, 12, 33)); r += 1
        assert len(self.pieces) == self.P
        self.LFREE = r
        a("s_lshl_b32 s64, s34, 10")
        a("s_add_u32 s65, s64, %d" % (self.S * self.STG))
        a("s_mov_b32 s7, 0")
        a("s_mov_b32 s33, 0")

    def xlike_voffs(self, a, r, pitch, n, extra=()):
        a("v_lshrrev_b32 v2, 3, v1"); a("v_and_b32 v3, 7, v1")
        a("s_lshl_b32 s6, s34, 3"); a("v_add_u32 v2, s6, v2")
        a("v_bfe_u32 v4, v2, 1, 3"); a("v_xor_b32 v4, v4, v3")
        a("s_mov_b32 s6, %d" % pitch); a("v_mul_lo_u32 v5, s6, v2")
        a("v_lshl_add_u32 v%d, v4, 4, v5" % r)
        for i in range(1, n): a("v_add_u32 v%d, %d, v%d" % (r + i, 32 * pitch * i, r))
        for x, off in enumerate(extra):
            for i in range(n): a("v_add_u32 v%d, %d, v%d" % (r + n * (x + 1) + i, off, r + i))

    def dma(self, a, i, vo, srd_, so="0"):
        a("s_add_u32 m0, s64, %d" % (i * 4096))
        a("s_nop 0")
        a("buffer_load_dwordx4 v%d, %s, %s offen lds" % (vo, sr(srd_, 4), so))

    def issue_stage(self, a, first=False):
        if not (DBG["noload"] and not first):
            for i, (vo, srd_, so) in enumerate(self.pieces):
                a("s_add_u32 m0, s64, %d" % (i * 4096))
                a("s_nop 0")
                a("buffer_load_dwordx4 v%d, %s, s%d offen %slds" % (vo, sr(srd_, 4), so, "sc1 " if srd_ == self.dep else ""))
        if self.dyn:
            l1 = a.newlabel(self.name + "_lt"); b1 = a.newlabel(self.name + "_ltb")
            l2 = a.newlabel(self.name + "_pp"); b2 = a.newlabel(self.name + "_ppb")
            a("s_cmp_eq_u32 s99, 0"); a("s_cbranch_scc1 %s" % l1)
            a.label(b1)
            self.select(a, 7, 33)
            a("s_bcnt1_i32_b32 s6, s99"); a("s_cmp_eq_u32 s6, %d" % (self.S - 2)); a("s_cbranch_scc1 %s" % l2)
            a.label(b2)
            OOL.append((l1, b1, lambda a: self.late(a, b1))); OOL.append((l2, b2, lambda a: self.prepoll(a, b2)))
        else:
            a("s_add_u32 s7, s7, 128")
            if self.xskip:
                a("s_and_b32 s6, s7, 0x380"); a("s_cmp_eq_u32 s6, 0x180"); a("s_cselect_b32 s6, 128, 0"); a("s_add_u32 s7, s7, s6")
            a("s_add_u32 s33, s33, %d" % (64 * self.ldw))
        a("s_add_u32 s64, s64, %d" % self.STG)
        a("s_cmp_eq_u32 s64, s65")
        a("s_cselect_b32 s6, %d, 0" % (self.S * self.STG))
        a("s_sub_u32 s64, s64, s6")

    def select(self, a, sx, sw):
        a("s_ff1_i32_b32 s6, s99")
        a("s_bitset0_b32 s99, s6")
        a("s_mul_i32 s%d, s6, %d" % (sw, 64 * self.ldw))
        if self.xskip: s_lmap(a, sx, 6, sx, False)
        else: a("s_lshl_b32 s%d, s6, 7" % sx)

    def prepoll(self, a, back):
        a("s_cmp_eq_u32 s101, 0"); a("s_cbranch_scc1 %s" % back)
        self.fl["issue"](a, 30)

    def late(self, a, back):
        a("s_mov_b32 s99, s101"); a("s_mov_b32 s101, 0")
        a("s_cmp_eq_u32 s99, 0"); a("s_cbranch_scc1 %s" % back)
        a("s_waitcnt vmcnt(%d)" % ((self.S - 1) * self.P))
        L = a.newlabel(self.name + "_ls")
        a("s_mov_b32 s35, %d" % SPB)
        a.label(L)
        self.fl["mask"](a, 30, 6)
        a("s_cmp_eq_u32 s6, %s" % hex(self.fl["full"])); a("s_cbranch_scc1 %s" % back)
        a("s_sub_u32 s35, s35, 1"); a("s_cbranch_scc1 %s" % back)
        a("s_sleep 2")
        self.fl["issue"](a, 30)
        a("s_waitcnt vmcnt(0)")
        a("s_branch %s" % L)

    def loader_first(self, a):
        for st in range(2):
            self.issue_stage(a, True)
        self.q = [0] * self.P + [1] * self.P

    def issue_pre(self, a, st, sel, so_=None):
        if so_ is None:
            so_ = 6
            a("s_mov_b32 s6, %d" % ((lmap(st) if self.xskip else st) * 128 if sel == 8 else st * 64 * self.ldw))
        for i, (vo, srd_, so) in enumerate(self.pieces):
            if srd_ != sel: continue
            a("s_add_u32 m0, s64, %d" % (st * self.STG + i * 4096))
            a("s_nop 0")
            a("buffer_load_dwordx4 v%d, %s, s%d offen %slds" % (vo, sr(srd_, 4), so_, "sc1 " if srd_ == self.dep else ""))
            self.q.append(st)

    def pre_done(self, a):
        n = self.npre
        if self.dyn: self.select(a, 7, 33)
        else:
            a("s_mov_b32 s7, %d" % ((lmap(n) if self.xskip else n) * 128))
            a("s_mov_b32 s33, %d" % (n * 64 * self.ldw))
        a("s_add_u32 s64, s64, %d" % (n * self.STG))

    def loader_main(self, a):
        S, P, nk = self.S, self.P, self.nk
        assert (S - 1) * P + self.etile_n <= 63
        q = self.q
        Pe = P + (1 if self.trickle else 0)
        issued = max(x for x in q if x < 99) + 1
        j = 0
        self.stamp(a, 1)
        def cnt(j): return len(q) - 1 - max(i for i, x in enumerate(q) if x <= j)
        while True:
            a("s_waitcnt vmcnt(%d)" % cnt(j))
            if j == 0: self.stamp(a, 2)
            a("s_barrier")
            n = 0
            while n < 2 and issued <= j + S - 1:
                self.issue_stage(a); q += [issued] * P; issued += 1; n += 1
                if self.trickle:
                    self.trickle(a); q.append(99)
            j += 1
            if issued == j + S - 1 and all(cnt(t) >= (issued - 1 - t) * Pe for t in range(j, issued)): break
        cnt = nk - issued
        assert cnt >= 1
        a("s_mov_b32 s66, %d" % cnt)
        L = a.newlabel(self.name + "_ll")
        a.lines.append(".p2align 4")
        a.label(L)
        a("s_waitcnt vmcnt(%d)" % ((S - 2) * Pe))
        a("s_barrier")
        self.issue_stage(a)
        if self.trickle: self.trickle(a)
        for sg, fn in self.ltouch:
            lo = a.newlabel(self.name + "_t"); lb = a.newlabel(self.name + "_tb")
            assert 1 <= sg <= cnt
            a("s_cmp_eq_u32 s66, %d" % sg)
            a("s_cbranch_scc1 %s" % lo)
            a.label(lb)
            OOL.append((lo, lb, fn))
        a("s_sub_u32 s66, s66, 1")
        a("s_cmp_lg_u32 s66, 0")
        a("s_cbranch_scc1 %s" % L)
        j += cnt
        extra = 0
        while j < nk:
            a("s_waitcnt vmcnt(%d)" % ((nk - 1 - j) * P + extra))
            a("s_barrier")
            if self.etile and not extra:
                self.etile(a); extra = self.etile_n
            j += 1
        if extra and self.etile_wait: a("s_waitcnt vmcnt(0)")
        a("s_barrier")

    def pf_setup(self, a):
        pf = self.pf
        R, C, T, D = pf["R"], pf["C"], pf["T"], pf["D"]
        lr = R.bit_length() - 1
        nx = -(-self.BM // C)
        nr = 64 // R
        lnr = nr.bit_length() - 1
        a("s_lshr_b32 s6, s2, 3")
        a("s_lshr_b32 s7, s6, %d" % lr)
        a("s_and_b32 s6, s6, %d" % (R - 1))
        a("s_mul_i32 s7, s7, %d" % nx)
        a("v_add_u32 v10, s7, v1")
        a("s_mov_b32 s7, %d" % self.ldx)
        a("v_mul_lo_u32 v10, s7, v10")
        a("v_bfrev_b32 v12, 1")
        a("v_cmp_gt_u32 vcc, %d, v1" % nx)
        a("s_lshl_b32 s6, s6, %d" % lnr)
        a("v_and_b32 v11, %d, v1" % (nr - 1))
        a("v_cndmask_b32 v10, v12, v10, vcc")
        a("v_add_u32 v11, s6, v11")
        a("s_mov_b32 s7, %d" % self.ldw)
        a("v_mul_lo_u32 v11, s7, v11")
        a("v_add_u32 v13, %d, v11" % T[0])
        for t in range(1, len(T) + 1):
            if t * nr >= 64: break
            if t < len(T): a("v_add_u32 v14, %d, v11" % T[t])
            a("v_cmp_le_u32 vcc, %d, v1" % (t * nr))
            a("s_nop 1")
            a("v_cndmask_b32 v13, v13, v%d, vcc" % (14 if t < len(T) else 12))
        a("s_movk_i32 s97, 128")
        a("s_cmp_eq_u32 s3, 0")
        a("s_cselect_b64 s[68:69], s[8:9], s[12:13]")
        a("s_cselect_b64 s[70:71], s[10:11], s[14:15]")
        a("s_cselect_b32 s97, s97, %d" % (64 * self.ldw))
        a("s_cselect_b64 vcc, -1, 0")
        a("s_cmp_ge_u32 s3, 2")
        a("s_cselect_b32 s70, 0, s70")
        a("v_cndmask_b32 v15, v13, v10, vcc")
        a("s_mul_i32 s96, s97, %d" % pf["first"])
        for d in range(pf["first"], D):
            self.pf_issue(a)

    def pf_issue(self, a):
        a("buffer_load_dword v%d, v15, s[68:71], s96 offen" % self.PFD)
        a("s_add_u32 s96, s96, s97")

    def stamp(self, a, i):
        if DBG["stamp"]:
            a("s_memtime s[%d:%d]" % (80 + 2 * i, 81 + 2 * i))
            if i == 0:
                a("s_memrealtime s[76:77]")
                for j in range(1, 8): a("s_mov_b64 s[%d:%d], 0" % (80 + 2 * j, 81 + 2 * j))

    def stamp_save(self, a):
        if DBG["stamp"]:
            self.stamp(a, 7)
            a("s_memrealtime s[78:79]")
            a("s_waitcnt lgkmcnt(0)")
            for i in range(10):
                a("v_writelane_b32 v254, s%d, %d" % (76 + 2 * i, 10 * (KIDX[self.name] % 6) + i))

    def stamp_out(self, a):
        if DBG["stamp"]:
            a("s_waitcnt vmcnt(0)")
            self.stamp_save(a)
            a("s_lshl_b32 s6, s2, 3"); a("s_add_u32 s6, s6, s3"); a("s_lshl_b32 s6, s6, 8")
            a("s_add_u32 s6, s6, %s" % hex(STAMP_OFF + KIDX[self.name] * 0x80000))
            srd(a, 8, P_WS, "s6", 256)
            a("v_and_b32 v1, 63, v0"); a("v_lshlrev_b32 v1, 2, v1")
            a("buffer_store_dword v254, v1, s[8:11], 0 offen")

    def flag_store(self, a):
        srd(a, 68, P_WS, WS_FL, FL_BYTES)
        a("v_mov_b32 v10, 0")
        a("s_cmp_eq_u32 s3, 0"); a("s_cselect_b64 exec, 1, 0")
        a("buffer_store_dword v10, v10, s[68:71], s100 offen sc1")
        a("s_mov_b64 exec, -1")

    def emit(self, a, tilemap, setup, cpro, lpro, epi, lepi=None, common=None, prev=None, last=True, nxt=None):
        kn = self.name + "_kernel"
        ldr = a.newlabel(self.name + "_ldr")
        xl = a.newlabel(self.name + "_x")
        self.q = []
        if prev is None: self.dyn = False
        if prev is None:
            kernel_head(a, kn)
            CH["end"] = a.newlabel(self.name + "_end")
            del OOL[:]
            a("s_cmp_ge_u32 s2, 256")
            a("s_cbranch_scc1 %s" % CH["end"])
            load_kernargs(a)
            a("v_lshrrev_b32 v1, 6, v0")
            tilemap(a)
            a("v_readfirstlane_b32 s3, v1")
            a("s_waitcnt lgkmcnt(0)")
            if DBG["stamp"]: a("v_mov_b32 v254, 0")
        else:
            a.label("L_phase_" + self.name)
            a("s_mov_b64 exec, -1")
            prev.stamp_save(a)
            tilemap(a)
        end = CH["end"]
        self.stamp(a, 0)
        if self.extra:
            a("s_cmp_ge_u32 s2, %d" % self.ntiles)
            a("s_cbranch_scc1 %s" % xl)
        setup(a)
        a("s_cmp_ge_u32 s3, 4")
        a("s_cbranch_scc1 %s" % ldr)
        if self.prio: a("s_setprio %d" % self.prio)
        a("v_and_b32 v1, 63, v0")
        self.compute_addr(a)
        if prev is None:
            cpro(a)
            self.zero_acc(a)
        else:
            cpro(a)
            self.fl["prep"](a, 240)
            self.zero_acc(a)
            a("s_waitcnt vmcnt(0)")
            a("s_barrier")
            self.flag_store(a)
            if self.bst: self.stamp(a, 5)
            np_ = a.newlabel(self.name + "_np")
            a("s_cmp_lg_u32 s3, 1")
            a("s_cbranch_scc1 %s" % np_)
            if self.pw: a("s_sleep %d" % self.pw)
            L = a.newlabel(self.name + "_dl"); D = a.newlabel(self.name + "_dd")
            a("s_mov_b32 s66, %d" % SPB)
            a.label(L)
            self.fl["issue"](a, 240)
            a("s_waitcnt vmcnt(0)")
            self.fl["mask"](a, 240, 67)
            a("s_sub_u32 s66, s66, 1"); a("s_cselect_b32 s67, %s, s67" % hex(self.fl["full"]))
            a("s_bcnt1_i32_b32 s6, s67")
            if self.fl.get("must"): self.fl["must"](a)
            a("s_cmp_ge_u32 s6, %d" % (self.R if self.dyn else bin(self.fl["full"]).count("1")))
            a("s_cbranch_scc1 %s" % D)
            if self.psl: a("s_sleep %d" % self.psl)
            a("s_branch %s" % L)
            a.label(D)
            if self.dyn:
                a("v_mov_b32 v240, s67"); a("v_mov_b32 v241, %d" % MASKW)
                a("ds_write_b32 v241, v240")
                a("s_waitcnt lgkmcnt(0)")
            a.label(np_)
            a("s_barrier")
            if self.bst: self.stamp(a, 6)
        if self.flagoff: self.flagoff(a)
        if self.cpre0: self.cpre0(a)
        self.compute_main(a)
        self.stamp(a, 2)
        epi(a)
        cl = a.newlabel(self.name + "_com")
        a("s_branch %s" % cl)
        a.label(ldr)
        self.loader_setup(a)
        if prev is None:
            self.loader_first(a)
        else:
            a("s_setprio 0")
            if prev.lwait: a("s_waitcnt vmcnt(0)")
            a("s_barrier")
            for st in range(self.npre): self.issue_pre(a, st, 20 - self.dep)
            if prev.post_free: prev.post_free(a, len(self.q))
            if self.dyn:
                n = self.npre
                self.fl["prep"](a, 30)
                for r in range(32, 36): a("v_mov_b32 v%d, -1" % r)
                a("v_mov_b32 v36, %d" % MASKW)
                a("s_barrier")
                a("ds_read_b32 v36, v36")
                a("s_waitcnt lgkmcnt(0)")
                a("v_readfirstlane_b32 s99, v36")
                fast = a.newlabel(self.name + "_fast"); done = a.newlabel(self.name + "_pdone"); slow = a.newlabel(self.name + "_slow")
                a("s_andn2_b32 s101, %s, s99" % hex(self.fl["full"]))
                a("s_and_b32 s6, s101, %d" % ((1 << n) - 1))
                a("s_cbranch_scc1 %s" % slow)
                for st in range(n): self.issue_pre(a, st, self.dep)
                a("s_andn2_b32 s99, s99, %d" % ((1 << n) - 1))
                a.label(done)
                def slowf(a):
                    q = self.q; self.q = []
                    X, W = [7, 32, 35], [33, 66, 67]
                    for st in range(n): self.select(a, X[st], W[st])
                    for sel in (20 - self.dep, self.dep):
                        for st in range(n): self.issue_pre(a, st, sel, (X if sel == 8 else W)[st])
                    self.q = q
                OOL.append((slow, done, slowf))
            else:
                a("s_barrier")
                for st in range(self.npre): self.issue_pre(a, st, self.dep)
            self.pre_done(a)
        if self.flagoff: self.flagoff(a)
        lpro(a)
        self.loader_main(a)
        if lepi: lepi(a)
        a.label(cl)
        if common: common(a)
        if self.extra:
            OOL.append((xl, None, lambda a: self.extra(a, prev is not None, nxt if not last else end)))
        if last:
            a("s_mov_b64 exec, -1")
            if self.post_free: self.post_free(a, 0)
            if self.flagoff:
                a("s_waitcnt vmcnt(0)")
                a("s_barrier")
                self.flag_store(a)
            self.stamp_out(a)
            a.label(end)
            a("s_endpgm")
            for lo, lb, fn in OOL:
                a.label(lo)
                fn(a)
                if lb: a("s_branch %s" % lb)
        return kn


OOL = []
CH = {}
WS_FL = 0xC0000
FL_BYTES = 16384
SPB = 0x40000
MASKW = 163832

def spin(a, name, issue, check, sleep=1, slot=None, wait=True):
    L = a.newlabel(name + "_l"); D = a.newlabel(name + "_d")
    a("s_mov_b32 s66, %d" % SPB)
    a.label(L)
    issue(a)
    if wait: a("s_waitcnt vmcnt(0)")
    check(a)
    a("s_sub_u32 s66, s66, 1")
    a("s_cbranch_scc1 %s" % D)
    a("s_cbranch_vccz %s" % D)
    if sleep: a("s_sleep %d" % sleep)
    a("s_branch %s" % L)
    a.label(D)
    if slot and DBG["stamp"]:
        a("s_waitcnt lgkmcnt(0)")
        a("s_sub_u32 s66, 0x40000, s66")
        a("s_add_u32 s%d, s80, s66" % (80 + 2 * slot)); a("s_addc_u32 s%d, s81, 0" % (81 + 2 * slot))


def xw_srds2(a, g, xp, xoff, wp, woff, wtotal, colbytes, shadow=0):
    ldx = g.ldx
    a("s_mul_i32 s6, s4, %d" % (g.BM * ldx))
    if xoff: a("s_add_u32 s6, s6, %s" % hex(xoff))
    srd(a, 8, xp, "s6", g.BM * ldx)
    a("s_mul_i32 s6, s5, %d" % colbytes)
    a("s_sub_u32 s7, %s, s6" % hex(wtotal))
    if woff: a("s_add_u32 s6, s6, %s" % hex(woff))
    if shadow:
        a("s_and_b32 s14, s5, 7"); a("s_cmp_eq_u32 s14, 3")
        a("s_cselect_b64 s[12:13], %s, %s" % (sr(ptr(P_WS), 2), sr(ptr(wp), 2)))
        a("s_cselect_b32 s14, %s, 0" % hex(shadow + 128))
        a("s_add_u32 s6, s6, s14")
        a("s_add_u32 s12, s12, s6"); a("s_addc_u32 s13, s13, 0")
        a("s_mov_b32 s14, s7"); a("s_mov_b32 s15, 0x00020000")
    else:
        srd(a, 12, wp, "s6", "s7")

def shadow_voff(a, vd, vt, tmp):
    a("v_lshrrev_b32 v%d, 3, v%d" % (vd, vt)); a("v_and_b32 v%d, 7, v%d" % (tmp, vt))
    a("v_lshlrev_b32 v%d, 10, v%d" % (vd, vd)); a("v_lshl_add_u32 v%d, v%d, 4, v%d" % (vd, tmp, vd))
    a("v_add_u32 v%d, 384, v%d" % (vd, vd))

def shadow_srd(a, sd, shadow, slice_bytes, wg):
    a("s_mul_i32 s6, %s, %d" % (wg, slice_bytes))
    a("s_add_u32 s6, s6, %s" % hex(shadow + 128))
    srd(a, sd, P_WS, "s6", slice_bytes)


def touch(a, p, slice_bytes, wg, vtid, sd, vd, off=0):
    a("s_mul_i32 s6, %s, %d" % (wg, slice_bytes))
    if off: a("s_add_u32 s6, s6, %d" % off)
    srd(a, sd, p, "s6", slice_bytes)
    a("buffer_load_dword v%d, v%d, %s, 0 offen" % (vd, vtid, sr(sd, 4)))

Stamper.stamp = Gemm2.stamp
Stamper.stamp_out = Gemm2.stamp_out
Stamper.stamp_save = Gemm2.stamp_save


def lmap(j):
    return j + (j + 4) // 7

def s_lmap(a, dst, src, tmp, bytes_in=True):
    if bytes_in:
        a("s_lshr_b32 s%d, s%d, 7" % (tmp, src)); a("s_add_u32 s%d, s%d, 4" % (tmp, tmp))
    else:
        a("s_add_u32 s%d, s%d, 4" % (tmp, src))
    a("s_mul_i32 s%d, s%d, 37" % (tmp, tmp)); a("s_lshr_b32 s%d, s%d, 8" % (tmp, tmp))
    if bytes_in:
        a("s_lshl_b32 s%d, s%d, 7" % (tmp, tmp)); a("s_add_u32 s%d, s%d, s%d" % (dst, src, tmp))
    else:
        a("s_add_u32 s%d, s%d, s%d" % (dst, src, tmp)); a("s_lshl_b32 s%d, s%d, 7" % (dst, dst))

def red8(a, xs):
    for m in ("quad_perm:[1,0,3,2]", "quad_perm:[2,3,0,1]", "row_half_mirror"):
        if len(xs) < 3: a("s_nop 1")
        for x in xs:
            a("v_add_f32_dpp v%d, v%d, v%d %s row_mask:0xf bank_mask:0xf" % (x, x, x, m))


def code_touch(a, start, end, sd, voff, vd, back=False):
    lp = a.newlabel("pc")
    a("s_getpc_b64 %s" % sr(sd, 2))
    a.label(lp)
    if back:
        a("s_sub_u32 s%d, s%d, %s-%s" % (sd, sd, lp, start))
        a("s_subb_u32 s%d, s%d, 0" % (sd + 1, sd + 1))
    else:
        a("s_add_u32 s%d, s%d, %s-%s" % (sd, sd, start, lp))
        a("s_addc_u32 s%d, s%d, 0" % (sd + 1, sd + 1))
    a("s_mov_b32 s%d, %s-%s" % (sd + 2, end, start))
    a("s_mov_b32 s%d, 0x00020000" % (sd + 3))
    a("buffer_load_dword v%d, v%d, %s, 0 offen" % (vd, voff, sr(sd, 4)))
```

```python
from gen3 import *
import gen3
from kernels import bf16_round, multi_swap_red, multi_dpp_red, stats_from_sums
import kernels as K1

WS_UV = 0x10000
WS_XCH = 0x80000
WS_H1 = 0x3000000
WS_Y = 0x3800000
LP = 4096
CFG = dict(S2=4, S3=4, S4=3, S5=4, S6=4, D=0, F=1, PF=1, ST=0, CT=1, SH=1, ET=1, HP=4, IK=0, IF=1, LPR=3, PG=10, H2S=100, H2W=44, H1W=16, NP=1, ZW=4, ACK=0, SPB=0x40000,
           FU=0b1111, OS=1, EP=1, UT=1, PT=2, TK=0, DY=31, R3=8, R4=8, R5=16, R6=14, PW3=0, PW4=0, PW5=0, PW6=0, PS=1, ST01=0, HA=4, MD=1, R2=8, PW2=0, CT0=1, T0=0, T0P=0, TW=1, NT=35, XI=2, XM=10, W2=1, W1=1, TWS=0, SHK=1, NPRE=9)

def ctouch(a, g, start, end):
    if CFG["CT"]:
        a("v_and_b32 v2, 255, v0"); a("v_lshlrev_b32 v2, 7, v2")
        code_touch(a, "L_code_" + start, "L_code_" + end, 68, 2, 3, True)
        g.q.append(99)
    srd(a, 68, P_WS, WS_FL, FL_BYTES)

def line_poll(g, ph, nflag, sh):
    def prep(a, r):
        a("v_lshrrev_b32 v%d, %d, v1" % (r, sh)); a("v_min_u32 v%d, %d, v%d" % (r, nflag - 1, r))
        a("s_lshl_b32 s6, s4, 7"); a("s_add_u32 s6, s6, %d" % (2048 * ph))
        a("v_lshl_add_u32 v%d, v%d, 2, s6" % (r, r))
    full = (1 << (nflag << sh)) - 1
    def mask(a, r, d):
        a("v_cmp_ne_u32 vcc, -1, v%d" % (r + 2))
        a("s_and_b32 s%d, vcc_lo, %s" % (d, hex(full)))
    g.fl = dict(prep=prep, issue=lambda a, r: a("buffer_load_dword v%d, v%d, s[68:71], 0 offen sc1" % (r + 2, r)), mask=mask, full=full)
    g.psl = CFG["PS"]

def all_prep(a, lines):
    if lines:
        a("v_lshrrev_b32 v38, 2, v1"); a("v_lshlrev_b32 v38, 7, v38"); a("v_and_b32 v39, 3, v1"); a("v_lshl_add_u32 v38, v39, 4, v38")
    else:
        a("v_lshlrev_b32 v38, 4, v1"); a("v_add_u32 v38, %d, v38" % (2048 * 6))
def all_issue(a, off): a("buffer_load_dwordx4 v[44:47], v38, s[68:71], 0 offen offset:%d sc1" % off)
def all_check(a, off):
    def chk(a):
        a("v_max3_u32 v44, v44, v45, v46"); a("v_max_u32 v44, v44, v47")
        a("v_cmp_eq_u32 vcc, -1, v44")
    ok = a.newlabel("fok")
    chk(a)
    a("s_cbranch_vccz %s" % ok)
    a("s_mov_b32 s32, s66")
    spin(a, "fl", lambda a: all_issue(a, off), chk, 4)
    a("s_mov_b32 s66, s32")
    a.label(ok)

def flag_rc(g, ph, line, ent):
    def f(a):
        a("s_lshl_b32 s100, s%d, 7" % line); a("s_lshl_b32 s6, s%d, 2" % ent)
        a("s_add_u32 s100, s100, s6"); a("s_add_u32 s100, s100, %d" % (2048 * ph))
    g.flagoff = f


WS_MP1 = 0x20000
WS_MODR = 0x18000
XK_SB = 16 * 1024
WS_XK = 0x100000
WS_XR = WS_XK + 256 * XK_SB
XR_CB = 8192 + 8192 + 256
XK_INIT = XK_SB + (16 * XR_CB + 255) // 256 // 16 * 16 + 16
WS_SQ = 0x5000000
WS_SO = 0x5800000
WS_SW = 0x5C00000

def xk_init(a, sd, vm1, v16):
    a("s_mul_i32 s6, s2, %d" % XK_INIT); a("s_add_u32 s6, s6, %s" % hex(WS_XK))
    srd(a, sd, P_WS, "s6", XK_INIT)
    for k in range(3):
        a("s_mov_b32 s6, %d" % (8192 * k))
        a("buffer_store_dwordx4 %s, v%d, %s, s6 offen%s" % (vr(vm1, 4), v16, sr(sd, 4), ["", " sc1", " nt", " sc0 sc1"][CFG["IF"]]))

def sum8(a, b):
    a("v_add_f32 v%d, v%d, v%d" % (b, b, b + 1)); a("v_add_f32 v%d, v%d, v%d" % (b + 2, b + 2, b + 3))
    a("v_add_f32 v%d, v%d, v%d" % (b + 4, b + 4, b + 5)); a("v_add_f32 v%d, v%d, v%d" % (b + 6, b + 6, b + 7))
    a("v_add_f32 v%d, v%d, v%d" % (b, b, b + 2)); a("v_add_f32 v%d, v%d, v%d" % (b + 4, b + 4, b + 6))
    a("v_add_f32 v%d, v%d, v%d" % (b, b, b + 4))

class ModTile:
    def __init__(self, n, base, wsrd, csrd, sbase):
        self.n = n; self.C = base; self.E = base + n; self.W = (base + 2 * n + 3) // 4 * 4
        self.T = self.W + 4 * n; self.AC = self.T + 8; self.vo = self.AC + 8; self.end = self.vo + 2
        self.wsrd, self.csrd, self.sb = wsrd, csrd, sbase
    def issue(self, a, s_row0, s_colb):
        a("v_lshrrev_b32 v%d, 3, v0" % self.vo)
        a("v_add_u32 v%d, %s, v%d" % (self.vo, s_row0, self.vo))
        a("s_movk_i32 s6, 0x3000")
        a("v_mul_lo_u32 v%d, s6, v%d" % (self.vo + 1, self.vo))
        a("v_lshlrev_b32 v%d, 1, v%d" % (self.vo, self.vo))
        a("v_and_b32 v%d, 7, v0" % self.T)
        a("v_lshl_add_u32 v%d, v%d, 4, v%d" % (self.vo + 1, self.T, self.vo + 1))
        for i in range(self.n):
            a("buffer_load_ushort v%d, v%d, %s, 0 offen offset:%d" % (self.C + i, self.vo, sr(self.csrd, 4), 128 * i))
        for i in range(self.n):
            a("s_add_u32 s%d, %s, %d" % (self.sb + i, s_colb, i * 64 * 12288))
            a("buffer_load_dwordx4 %s, v%d, %s, s%d offen%s" % (vr(self.W + 4 * i, 4), self.vo + 1, sr(self.wsrd, 4), self.sb + i, " nt" if CFG["NT"] & 1 else ""))
        return 2 * self.n
    def compute(self, a, younger, lds):
        n, C, E = self.n, self.C, self.E
        a("s_mov_b32 s6, %s" % hex(f32bits(-LOG2E)))
        a("s_waitcnt vmcnt(%d)" % (n + younger))
        for i in range(n): a("v_lshlrev_b32 v%d, 16, v%d" % (C + i, C + i))
        for i in range(n): a("v_mul_f32 v%d, s6, v%d" % (E + i, C + i))
        for i in range(n): a("v_exp_f32 v%d, v%d" % (E + i, E + i))
        a("s_nop 0")
        for i in range(n): a("v_add_f32 v%d, 1.0, v%d" % (E + i, E + i))
        for i in range(n): a("v_rcp_f32 v%d, v%d" % (E + i, E + i))
        a("s_nop 0")
        for i in range(n): a("v_mul_f32 v%d, v%d, v%d" % (C + i, C + i, E + i))
        for i in range(n): a("v_cvt_pk_bf16_f32 v%d, v%d, v%d" % (C + i, C + i, C + i))
        for i in range(n): a("v_lshlrev_b32 v%d, 16, v%d" % (C + i, C + i))
        for i in range(n):
            a("s_waitcnt vmcnt(%d)" % (n - 1 - i + younger))
            for d in range(4): unpack2(a, self.T + 2 * d, self.W + 4 * i + d)
            for e in range(8):
                if i == 0: a("v_mul_f32 v%d, v%d, v%d" % (self.AC + e, C, self.T + e))
                else: a("v_fmac_f32 v%d, v%d, v%d" % (self.AC + e, C + i, self.T + e))
        xs = list(range(self.AC, self.AC + 8)); ts = list(range(self.T, self.T + 8))
        multi_dpp_red(a, xs, [8])
        multi_swap_red(a, "v_add_f32", 16, xs, ts)
        multi_swap_red(a, "v_add_f32", 32, xs, ts)
        a("s_lshl_b32 s6, s3, 8"); a("s_add_u32 s6, s6, %d" % lds)
        a("v_and_b32 v%d, 7, v0" % self.vo)
        a("v_lshl_add_u32 v%d, v%d, 5, s6" % (self.vo, self.vo))
        a("s_mov_b64 exec, 0xff")
        a("ds_write_b128 v%d, %s" % (self.vo, vr(self.AC, 4)))
        a("ds_write_b128 v%d, %s offset:16" % (self.vo, vr(self.AC + 4, 4)))
        a("s_mov_b64 exec, -1")
    def finish(self, a, lds, osrd, s_off):
        a("v_lshlrev_b32 v%d, 2, v2" % self.vo)
        for w in range(8): a("ds_read_b32 v%d, v%d offset:%d" % (self.T + w, self.vo, lds + 256 * w))
        a("s_waitcnt lgkmcnt(0)")
        sum8(a, self.T)
        a("buffer_store_dword v%d, v%d, %s, %s offen" % (self.T, self.vo, sr(osrd, 4), s_off))

def k0(a):
    kn = "k0_kernel"
    kernel_head(a, kn)
    end = a.newlabel("k0_end")
    a("s_cmp_ge_u32 s2, 256")
    a("s_cbranch_scc1 %s" % end)
    load_kernargs(a)
    a("v_lshrrev_b32 v1, 6, v0")
    a("v_and_b32 v2, 63, v0")
    a("v_readfirstlane_b32 s3, v1")
    a("s_and_b32 s4, s2, 31"); a("s_lshl_b32 s4, s4, 7")
    a("s_lshr_b32 s5, s2, 5"); a("s_lshl_b32 s5, s5, 7")
    a("v_lshlrev_b32 v3, 4, v2")
    a("s_lshl_b32 s7, s2, 3"); a("s_add_u32 s7, s7, s3")
    a("s_lshl_b32 s32, s7, 11")
    a("s_waitcnt lgkmcnt(0)")
    srd(a, 8, P_WMOD, 0, 1024 * 6144 * 2)
    srd(a, 12, P_C, 0, 2048)
    srd(a, 16, P_X, 0, 2048 * 2048)
    mt = ModTile(2, 72, 8, 12, 20)
    mt.issue(a, "s5", "s4")
    xnt = " nt" if CFG["NT"] & 4 else ""
    a("buffer_load_dwordx4 v[8:11], v3, s[16:19], s32 offen" + xnt)
    a("buffer_load_dwordx4 v[12:15], v3, s[16:19], s32 offen offset:1024" + xnt)
    y = 2
    shadow_voff(a, 32, 0, 33)
    for k, (pp, sz) in enumerate(((P_WQKV, 24576), (P_WO, 8192), (P_WOUT, 14336))):
        a("s_mul_i32 s6, s2, %d" % sz); srd(a, 24, pp, "s6", sz)
        a("buffer_load_dwordx4 %s, v32, s[24:27], 0 offen%s" % (vr(36 + 4 * k, 4), " nt" if CFG["NT"] & 32 else "")); y += 1
    if CFG["T0P"] == 2:
        a("v_lshlrev_b32 v4, 7, v0")
        touch(a, P_WQKV, 24576, "s2", 4, 24, 5); y += 1
    if CFG["CT0"]:
        a("v_lshlrev_b32 v4, 7, v0")
        code_touch(a, "k1_kernel", "L_code_k4", 24, 4, 7); y += 1
    a("s_lshl_b32 s6, s2, 10"); a("s_add_u32 s6, s6, %s" % hex(WS_XCH))
    srd(a, 28, P_WS, "s6", 1024)
    a("v_lshlrev_b32 v4, 4, v0")
    for e in range(4): a("v_mov_b32 v%d, -1" % (64 + e))
    a("buffer_store_dwordx4 v[64:67], v4, s[28:31], 0 offen")
    if CFG["XI"] == 1:
        xk_init(a, 28, 64, 4)
        y += 3
    if CFG["XI"] == 2:
        assert 16 * XR_CB == 256 * 1040
        a("s_mul_i32 s6, s2, 1040"); a("s_add_u32 s6, s6, %s" % hex(WS_XR))
        srd(a, 28, P_WS, "s6", 1040)
        a("buffer_store_dwordx4 v[64:67], v4, s[28:31], 0 offen"); y += 1
    a("s_lshl_b32 s6, s2, 6"); a("s_add_u32 s6, s6, %s" % hex(WS_FL))
    srd(a, 28, P_WS, "s6", 64)
    a("buffer_store_dwordx4 v[64:67], v4, s[28:31], 0 offen"); y += 1
    a("s_lshl_b32 s6, s2, 8"); a("s_add_u32 s6, s6, %s" % hex(WS_SUM2))
    srd(a, 64, P_WS, "s6", 256)
    for e in range(4): a("v_mov_b32 v%d, 0" % (68 + e))
    a("buffer_store_dwordx4 v[68:71], v4, s[64:67], 0 offen")
    y += 2
    srd(a, 68, P_WS, WS_MP1, 65536)
    srd(a, 72, P_WS, WS_ST1, 16384)
    mt.compute(a, y, 0)
    a("s_waitcnt lgkmcnt(0)")
    a("s_barrier")
    nf = a.newlabel("k0_nf")
    a("s_cmp_lg_u32 s3, 0")
    a("s_cbranch_scc1 %s" % nf)
    a("s_lshl_b32 s5, s5, 6"); a("s_lshl_b32 s4, s4, 1"); a("s_add_u32 s4, s4, s5")
    mt.finish(a, 0, 68, "s4")
    a.label(nf)
    def t0(a):
        n = 0
        if CFG["T0"] & 1:
            a("v_lshlrev_b32 v4, 7, v0")
            touch(a, P_WQKV, 24576, "s2", 4, 24, 5); n += 1
        if CFG["T0"] & 2:
            a("s_lshr_b32 s6, s2, 6"); a("s_mul_i32 s6, s6, %d" % (256 * 12288)); a("s_and_b32 s33, s2, 63"); a("s_lshl_b32 s33, s33, 7")
            a("s_add_u32 s6, s6, s33"); a("s_add_u32 s6, s6, 4096")
            srd(a, 24, P_WMOD, "s6", 255 * 12288 + 128)
            a("v_subrev_u32 v4, 256, v0"); a("v_mul_u32_u24 v4, 0x3000, v4")
            a("buffer_load_dword v7, v4, s[24:27], 0 offen"); n += 1
        return n
    t0n = 0
    if CFG["T0P"] == 1: t0n = t0(a)
    a("s_waitcnt vmcnt(%d)" % (y - 2 + t0n))
    U = 16
    for d in range(8): unpack2(a, U + 2 * d, 8 + d)
    a("v_pk_add_f32 v[64:65], %s, %s" % (vr(U, 2), vr(U + 2, 2)))
    a("v_pk_add_f32 v[66:67], %s, %s" % (vr(U + 4, 2), vr(U + 6, 2)))
    a("v_pk_add_f32 v[68:69], %s, %s" % (vr(U + 8, 2), vr(U + 10, 2)))
    a("v_pk_add_f32 v[70:71], %s, %s" % (vr(U + 12, 2), vr(U + 14, 2)))
    a("v_pk_add_f32 v[64:65], v[64:65], v[66:67]")
    a("v_pk_add_f32 v[68:69], v[68:69], v[70:71]")
    a("v_pk_add_f32 v[64:65], v[64:65], v[68:69]")
    a("v_add_f32 v64, v64, v65")
    multi_dpp_red(a, [64], [1, 2, 4, 8])
    multi_swap_red(a, "v_add_f32", 16, [64], [65])
    multi_swap_red(a, "v_add_f32", 32, [64], [65])
    a("s_mov_b32 s6, %s" % hex(f32bits(1.0 / 1024)))
    a("v_mul_f32 v64, s6, v64")
    for k in range(8):
        b = U + 2 * k
        a("v_pk_add_f32 %s, %s, v[64:65] op_sel_hi:[1,0] neg_lo:[0,1] neg_hi:[0,1]" % (vr(b, 2), vr(b, 2)))
    a("v_pk_mul_f32 v[66:67], %s, %s" % (vr(U, 2), vr(U, 2)))
    a("v_pk_mul_f32 v[68:69], %s, %s" % (vr(U + 2, 2), vr(U + 2, 2)))
    for k in range(2, 8):
        t = 66 + 2 * (k & 1)
        a("v_pk_fma_f32 %s, %s, %s, %s" % (vr(t, 2), vr(U + 2 * k, 2), vr(U + 2 * k, 2), vr(t, 2)))
    a("v_pk_add_f32 v[66:67], v[66:67], v[68:69]")
    a("v_add_f32 v66, v66, v67")
    multi_dpp_red(a, [66], [1, 2, 4, 8])
    multi_swap_red(a, "v_add_f32", 16, [66], [67])
    multi_swap_red(a, "v_add_f32", 32, [66], [67])
    a("v_mov_b32 v6, %s" % hex(f32bits(1e-5)))
    a("v_fma_f32 v66, v66, s6, v6")
    a("v_rsq_f32 v66, v66")
    a("s_lshl_b32 s7, s7, 3")
    a("v_mov_b32 v6, 0")
    a("v_mul_f32 v67, -v64, v66")
    a("s_mov_b64 exec, 1")
    a("buffer_store_dwordx2 v[66:67], v6, s[72:75], s7 offen")
    a("s_mov_b64 exec, -1")
    for k, (sh, sz) in enumerate(((WS_SQ, 24576), (WS_SO, 8192), (WS_SW, 14336))): shadow_srd(a, 8 + 4 * k, sh, sz, "s2")
    a("s_waitcnt vmcnt(%d)" % (4 + [0, 3, 1][CFG["XI"]] + t0n))
    for k in range(3 * CFG["SHK"]): a("buffer_store_dwordx4 %s, v32, %s, 0 offen" % (vr(36 + 4 * k, 4), sr(8 + 4 * k, 4)))
    if CFG["T0P"] == 0: t0(a)
    a.label(end)
    a("s_endpgm")
    return kn, mt.end, 256, 512, 2048

def p1(a):
    kernel_head(a, "k1_kernel")
    CH["end"] = a.newlabel("k1_end")
    del OOL[:]
    st = Stamper("k1")
    TB1 = 162816
    a("s_cmp_ge_u32 s2, 256")
    a("s_cbranch_scc1 %s" % CH["end"])
    load_kernargs(a)
    a("v_lshrrev_b32 v1, 6, v0")
    a("v_and_b32 v2, 63, v0")
    a("v_readfirstlane_b32 s3, v1")
    a("s_and_b32 s4, s2, 1"); a("s_lshl_b32 s4, s4, 3"); a("s_bfe_u32 s5, s2, 0x30001"); a("s_add_u32 s4, s4, s5")
    a("s_lshr_b32 s5, s2, 4")
    a("v_lshrrev_b32 v3, 3, v0")
    a("v_and_b32 v4, 7, v0")
    a("v_lshlrev_b32 v5, 11, v3"); a("v_lshl_add_u32 v5, v4, 4, v5")
    a("v_lshlrev_b32 v6, 3, v3")
    a("v_lshlrev_b32 v7, 2, v2"); a("v_lshl_add_u32 v7, v1, 12, v7")
    a("s_lshl_b32 s6, s4, 18"); a("s_lshl_b32 s7, s5, 7"); a("s_add_u32 s32, s6, s7")
    a("s_lshl_b32 s33, s5, 8"); a("s_add_u32 s33, s33, %s" % hex(WS_MP1))
    a("s_lshl_b32 s34, s4, 10"); a("s_add_u32 s34, s34, %s" % hex(WS_ST1))
    a("s_lshl_b32 s100, s4, 7"); a("s_lshl_b32 s6, s5, 2"); a("s_add_u32 s100, s100, s6"); a("s_add_u32 s100, s100, %d" % (2048 * 5))
    ldr = a.newlabel("k1_ldr")
    a("s_cmp_ge_u32 s3, 4")
    a("s_waitcnt lgkmcnt(0)")
    if DBG["stamp"]: a("v_mov_b32 v254, 0")
    st.stamp(a, 0)
    a("s_cbranch_scc1 %s" % ldr)
    srd(a, 16, P_WS, "s33", 65536)
    srd(a, 8, P_X, "s32", 128 * 2048)
    srd(a, 12, P_WS, "s34", 1024)
    nc = a.newlabel("k1_nc")
    a("s_cmp_ge_u32 s3, 2")
    a("s_cbranch_scc1 %s" % nc)
    for p in range(8):
        a("s_mov_b32 s%d, %d" % (64 + p, p * 8192))
        a("buffer_load_dword v%d, v7, s[16:19], s%d offen" % (32 + p, 64 + p))
    a.label(nc)
    for i in range(4):
        a("s_mov_b32 s6, %d" % (32 * 2048 * i))
        a("buffer_load_dwordx4 %s, v5, s[8:11], s6 offen" % vr(80 + 4 * i, 4))
    for i in range(4): a("buffer_load_dwordx2 %s, v6, s[12:15], 0 offen offset:%d" % (vr(16 + 2 * i, 2), 256 * i))
    s_lmap(a, 32, 5, 6, False)
    a("s_lshl_b32 s6, s4, 19"); a("s_add_u32 s32, s32, s6")
    a("s_add_u32 s32, s32, %s" % hex(WS_H1))
    srd(a, 28, P_WS, "s32", 128 * LP)
    a("v_lshlrev_b32 v3, 12, v3"); a("v_lshl_add_u32 v3, v4, 4, v3")
    nc2 = a.newlabel("k1_nc2")
    a("s_cmp_ge_u32 s3, 2")
    a("s_cbranch_scc1 %s" % nc2)
    a("s_waitcnt vmcnt(8)")
    sum8(a, 32)
    bf16_round(a, 32, 32)
    a("s_cmp_eq_u32 s3, 1"); a("s_cselect_b32 s6, 1.0, 0")
    a("v_add_f32 v32, s6, v32")
    bf16_round(a, 32, 32)
    a("v_lshlrev_b32 v7, 2, v0"); a("v_add_u32 v7, %d, v7" % TB1)
    a("ds_write_b32 v7, v32")
    a("s_waitcnt lgkmcnt(0)")
    a.label(nc2)
    a("v_lshlrev_b32 v7, 5, v4"); a("v_add_u32 v7, %d, v7" % TB1)
    SA = 32; CA = 40; U = 48
    a("s_waitcnt vmcnt(0)")
    for d in range(16): unpack2(a, U + 2 * d if d < 8 else 96 + 2 * (d - 8), 80 + d)
    ur = lambda d: U + 2 * d if d < 8 else 96 + 2 * (d - 8)
    for d in range(16):
        t = vr(ur(d), 2); sx = vr(16 + 2 * (d >> 2), 2)
        a("v_pk_fma_f32 %s, %s, %s, %s op_sel:[0,0,1] op_sel_hi:[1,0,1]" % (t, t, sx, sx))
    a("s_barrier")
    st.stamp(a, 1)
    a("ds_read_b128 %s, v7" % vr(SA, 4)); a("ds_read_b128 %s, v7 offset:16" % vr(SA + 4, 4))
    a("ds_read_b128 %s, v7 offset:256" % vr(CA, 4)); a("ds_read_b128 %s, v7 offset:272" % vr(CA + 4, 4))
    a("s_waitcnt lgkmcnt(0)")
    for i in range(4):
        for d in range(4 * i, 4 * i + 4):
            t = vr(ur(d), 2)
            a("v_pk_fma_f32 %s, %s, %s, %s" % (t, t, vr(CA + 2 * (d & 3), 2), vr(SA + 2 * (d & 3), 2)))
        for d in range(4 * i, 4 * i + 4): a("v_cvt_pk_bf16_f32 v%d, v%d, v%d" % (80 + d, ur(d), ur(d) + 1))
        a("s_mov_b32 s6, %d" % (32 * LP * i))
        a("buffer_store_dwordx4 %s, v3, s[28:31], s6 offen sc1" % vr(80 + 4 * i, 4))
    a("s_branch L_phase_k2")
    a.label(ldr)
    a("v_and_b32 v4, 255, v0"); a("v_lshlrev_b32 v4, 7, v4")
    if CFG["TW"] == 2: a("s_barrier")
    if CFG["TWS"]: a("s_sleep %d" % CFG["TWS"])
    if CFG["NT"] & 8:
        a("s_lshr_b32 s6, s2, 3"); a("s_mul_i32 s6, s6, %d" % (32 * 6144)); a("s_bfe_u32 s7, s2, 0x20001"); a("s_lshl_b32 s7, s7, 9"); a("s_add_u32 s6, s6, s7")
        srd(a, 24, P_WQKV, "s6", 31 * 6144 + 4096 + 512)
        a("v_bfe_u32 v4, v0, 2, 5"); a("v_mul_u32_u24 v4, 6144, v4"); a("v_and_b32 v5, 3, v0"); a("v_lshl_add_u32 v4, v5, 7, v4")
        a("v_bfe_u32 v5, v0, 7, 1"); a("v_lshl_add_u32 v4, v5, 11, v4")
        a("buffer_load_dword v250, v4, s[24:27], 0 offen nt")
        sk = a.newlabel("k1_t2")
        a("s_cmp_ge_u32 s3, 6"); a("s_cbranch_scc1 %s" % sk)
        a("s_movk_i32 s6, 0x1000")
        a("buffer_load_dword v251, v4, s[24:27], s6 offen nt")
        a.label(sk)
    elif CFG["TW"]: touch(a, P_WQKV, 24576, "s2", 4, 24, 250)
    if CFG["TW"] != 2: a("s_barrier")
    return st

def pspin(a, name, regs, issue, gap, slot=None):
    L = a.newlabel(name + "_l"); D = a.newlabel(name + "_d")
    n = len(regs)
    a("s_mov_b32 s66, %d" % CFG["SPB"])
    for k, r in enumerate(regs):
        issue(a, r)
        if k < n - 1: a("s_sleep %d" % gap)
    a.label(L)
    for k, r in enumerate(regs):
        a("s_waitcnt vmcnt(%d)" % (n - 1))
        a("v_cmp_eq_u32 vcc, -1, v%d" % r)
        a("s_sub_u32 s66, s66, 1")
        a("s_cbranch_scc1 %s" % D)
        a("s_cbranch_vccz %s" % D)
        issue(a, r)
    a("s_branch %s" % L)
    a.label(D)
    if slot and DBG["stamp"]:
        a("s_waitcnt lgkmcnt(0)")
        a("s_sub_u32 s66, 0x40000, s66")
        a("s_add_u32 s%d, s80, s66" % (80 + 2 * slot)); a("s_addc_u32 s%d, s81, 0" % (81 + 2 * slot))

def k2(a, **ch):
    g = Gemm2("k2", 128, 1024, 32, 2, 2, LP, 6144, 256, CFG["S2"],
              [(8, [(0, 0)]), (8, [(0, 2048)]), (8, [(0, 4096)])])
    lds = max(g.LDS_MAIN, 81920)
    g.xskip = True
    WF = g.CFREE
    TR = WF + 8
    RAW = WF + 12
    VIM = 2 * 24576; KVF = 65536; ZF = KVF + 8192
    g.pf = None
    def setup(a):
        xw_srds2(a, g, P_WS, WS_H1, P_WQKV, 0, 1024 * 6144, 128, WS_SQ * CFG["SH"])
        a("s_lshl_b32 s6, s5, 12")
        srd(a, 24, P_WPHI, "s6", 4096)
        a("s_mul_i32 s6, s5, %d" % (16 * XK_SB)); a("s_add_u32 s6, s6, %s" % hex(WS_XK))
        srd(a, 16, P_WS, "s6", 16 * XK_SB)
        a("s_mul_i32 s6, s5, %d" % XR_CB); a("s_add_u32 s6, s6, %s" % hex(WS_XR))
        srd(a, 20, P_WS, "s6", XR_CB)
    def cpro(a):
        s_lmap(a, 32, 5, 6, False)
        a("s_lshl_b32 s6, s4, 19"); a("s_add_u32 s32, s32, s6")
        a("s_add_u32 s32, s32, %s" % hex(WS_O)); srd(a, 28, P_WS, "s32", 128 * LP)
        a("v_bfe_u32 v10, v1, 2, 2")
        a("v_lshrrev_b32 v13, 5, v1")
        a("v_lshl_add_u32 v10, v13, 3, v10")
        a("v_bfe_u32 v11, v1, 4, 1"); a("v_lshlrev_b32 v11, 5, v11")
        a("v_and_b32 v12, 1, v1"); a("v_lshl_add_u32 v11, v12, 4, v11")
        a("v_bfe_u32 v12, v1, 1, 1"); a("v_lshl_add_u32 v11, v12, 3, v11")
        a("s_lshr_b32 s33, s3, 1")
        a("s_lshl_b32 s6, s35, 13"); a("s_add_u32 s6, s6, %d" % VIM)
        a("v_lshl_add_u32 v%d, v10, 6, v11" % TR); a("v_add_u32 v%d, s6, v%d" % (TR, TR))
        a("s_mul_i32 s6, s35, 24576"); a("s_lshl_b32 s7, s33, 6"); a("s_add_u32 s6, s6, s7")
        a("v_mul_u32_u24 v10, 192, v10"); a("v_add3_u32 v%d, v10, v11, s6" % (TR + 1))
        a("v_and_b32 v10, 31, v1"); a("v_lshlrev_b32 v10, 4, v10")
        a("v_lshl_add_u32 v%d, v13, 14, v10" % (TR + 2))
        a("s_lshl_b32 s6, s35, 1"); a("s_add_u32 s6, s6, s33")
        a("s_lshl_b32 s7, s6, 16"); a("s_lshl_b32 s32, s4, 10"); a("s_add_u32 s72, s7, s32")
        a("s_add_u32 s73, s72, %d" % (2 * XK_SB))
        a("s_lshl_b32 s6, s6, 7"); a("s_lshl_b32 s7, s4, 9"); a("s_add_u32 s74, s6, s7"); a("s_add_u32 s74, s74, 8192")
        a("v_and_b32 v10, 0x13, v1")
        a("v_bfe_u32 v11, v1, 2, 1"); a("v_lshl_add_u32 v10, v11, 3, v10")
        a("v_bfe_u32 v11, v1, 3, 1"); a("v_lshl_add_u32 v10, v11, 2, v10")
        a("v_lshlrev_b32 v%d, 2, v10" % (TR + 3))
        a("s_lshl_b32 s96, s4, 2"); a("s_add_u32 s96, s96, 16384")
        a("s_cmp_eq_u32 s3, 0"); a("s_cselect_b64 s[98:99], 1, 0")
        a("v_mov_b32 v14, 0")
    def lpro(a):
        ctouch(a, g, "k2", "k4")
    MW = RAW + 20; MC = 216; ME = 224; MT_ = 232; MA = 240
    def cpost0(a):
        a("v_and_b32 v10, 0x13, v1")
        a("v_bfe_u32 v11, v1, 2, 1"); a("v_lshl_add_u32 v10, v11, 3, v10")
        a("v_bfe_u32 v11, v1, 3, 1"); a("v_lshl_add_u32 v10, v11, 2, v10")
        a("v_lshlrev_b32 v10, 1, v10")
        a("v_lshrrev_b32 v11, 5, v1"); a("v_lshl_add_u32 v10, v11, 9, v10")
        a("s_lshl_b32 s32, s35, 11")
        for t in range(2):
            for e in range(8):
                a("buffer_load_ushort v%d, v10, s[24:27], s32 offen offset:%d" % (RAW + 8 * t + e, (16 * t + e) * 64))
        if CFG["MD"] == 1: mt_issue(a)
        if CFG["XI"] == 2 and not CFG["XM"]: xk_own(a)
    def xk_own(a):
        for e in range(4): a("v_mov_b32 v%d, -1" % (MA + e))
        for q in range(4):
            a("buffer_store_dwordx4 %s, v%d, s[16:19], s%d offen offset:%d sc1" % (vr(MA, 4), TR + 2, 72 + (q >> 1), (q & 1) * 512))
    def cmid(a):
        if CFG["MD"] == 2: mt_issue(a)
        xk_own(a)
        if CFG["W1"] == 2:
            a("s_lshl_b32 s32, s2, 13"); srd(a, 68, P_WO, "s32", 8192)
            a("v_lshlrev_b32 v10, 7, v0"); a("buffer_load_dword v250, v10, s[68:71], 0 offen")
    if CFG["XI"] == 2 and CFG["XM"]: g.cmid = (CFG["XM"], cmid)
    g.cpost0 = cpost0
    def mt_issue(a, sd=68):
        a("s_lshr_b32 s32, s2, 6"); a("s_lshl_b32 s32, s32, 2"); a("s_add_u32 s32, s32, s3"); a("s_lshl_b32 s32, s32, 6")
        a("s_lshl_b32 s66, s32, 1")
        srd(a, sd, P_C, "s66", 128)
        a("v_lshrrev_b32 v10, 3, v1"); a("v_lshlrev_b32 v11, 1, v10")
        for i in range(8): a("buffer_load_ushort v%d, v11, %s, 0 offen offset:%d" % (MC + i, sr(sd, 4), 16 * i))
        a("s_mul_i32 s32, s32, 12288"); a("s_and_b32 s66, s2, 63"); a("s_lshl_b32 s66, s66, 7")
        a("s_add_u32 s32, s32, s66"); a("s_add_u32 s32, s32, 4096")
        srd(a, sd, P_WMOD, "s32", 64 * 12288 - 4096 - 63 * 128)
        a("v_mul_u32_u24 v10, 0x3000, v10"); a("v_and_b32 v11, 7, v1"); a("v_lshl_add_u32 v10, v11, 4, v10")
        for i in range(8):
            a("s_mov_b32 s32, %d" % (8 * 12288 * i))
            a("buffer_load_dwordx4 %s, v10, %s, s32 offen%s" % (vr(MW + 4 * i, 4), sr(sd, 4), " nt" if CFG["NT"] & 2 else ""))
    if CFG["MD"] == 0: g.cpre0 = mt_issue
    def mt_compute(a):
        n, C, E = 8, MC, ME
        a("s_mov_b32 s6, %s" % hex(f32bits(-LOG2E)))
        for i in range(n): a("v_lshlrev_b32 v%d, 16, v%d" % (C + i, C + i))
        for i in range(n): a("v_mul_f32 v%d, s6, v%d" % (E + i, C + i))
        for i in range(n): a("v_exp_f32 v%d, v%d" % (E + i, E + i))
        for i in range(n): a("v_add_f32 v%d, 1.0, v%d" % (E + i, E + i))
        for i in range(n): a("v_rcp_f32 v%d, v%d" % (E + i, E + i))
        for i in range(n): a("v_mul_f32 v%d, v%d, v%d" % (C + i, C + i, E + i))
        for i in range(n): a("v_cvt_pk_bf16_f32 v%d, v%d, v%d" % (C + i, C + i, C + i))
        for i in range(n): a("v_lshlrev_b32 v%d, 16, v%d" % (C + i, C + i))
        for i in range(n):
            t = MT_ if i & 1 else ME
            for d in range(4): unpack2(a, t + 2 * d, MW + 4 * i + d)
            for e in range(8):
                if i == 0: a("v_mul_f32 v%d, v%d, v%d" % (MA + e, C, t + e))
                else: a("v_fmac_f32 v%d, v%d, v%d" % (MA + e, C + i, t + e))
        xs = list(range(MA, MA + 8)); ts = list(range(MT_, MT_ + 8))
        multi_dpp_red(a, xs, [8])
        multi_swap_red(a, "v_add_f32", 16, xs, ts)
        multi_swap_red(a, "v_add_f32", 32, xs, ts)
        for e in range(1, 8):
            a("s_mov_b32 s32, %s" % hex((0xff << (8 * e)) & 0xffffffff)); a("s_mov_b32 s33, %s" % hex((0xff << (8 * e)) >> 32))
            a("v_cndmask_b32 v%d, v%d, v%d, s[32:33]" % (MA, MA, MA + e))
        a("s_and_b32 s6, s2, 63"); a("s_lshl_b32 s6, s6, 8"); a("s_add_u32 s6, s6, %d" % WS_MODR)
        srd(a, 68, P_WS, "s6", 256)
        a("v_and_b32 v%d, 7, v1" % MT_); a("v_lshrrev_b32 v%d, 3, v1" % (MT_ + 1))
        a("v_lshlrev_b32 v%d, 2, v%d" % (MT_ + 1, MT_ + 1)); a("v_lshl_add_u32 v%d, v%d, 5, v%d" % (MT_, MT_, MT_ + 1))
        a("buffer_atomic_add_f32 v%d, v%d, s[68:71], 0 offen" % (MA, MT_))
    line_poll(g, 5, 16, 0); g.pw = CFG["PW2"]; g.dyn = CFG["DY"] & 16; g.R = CFG["R2"]; g.bst = False; g.lwait = False
    def hint(a):
        a("s_mov_b64 exec, s[98:99]")
        a("buffer_store_dword v14, v14, s[20:23], s96 offen sc1")
        a("s_mov_b64 exec, -1")
    def kvphase(a):
        KV = g.acc(1, 0); Z = g.acc(1, 1); FA = g.acc(2, 0); ON = RAW
        for half in range(2):
            for t in range(4):
                T = half * 4 + t
                for q in range(2):
                    a("ds_read_b64_tr_b16 %s, v%d offset:%d" % (vr(FA + 8 * t + 2 * q, 2), TR + 1, (16 * T + 4 * q) * 192))
                    a("ds_read_b64_tr_b16 %s, v%d offset:%d" % (vr(FA + 8 * t + 4 + 2 * q, 2), TR, (16 * T + 4 * q) * 64))
            if half == 0:
                for e in range(4): a("v_mov_b32 v%d, 0x3f803f80" % (ON + e))
            if half + 2 == CFG["HP"]: hint(a)
            if DBG["stamp"] and half == 0: a("s_waitcnt lgkmcnt(0)")
            for t in range(4):
                a("s_waitcnt lgkmcnt(%d)" % (12 - 4 * t))
                first = half == 0 and t == 0
                a("v_mfma_f32_32x32x16_bf16 %s, %s, %s, %s" % (vr(KV, 16), vr(FA + 8 * t, 4), vr(FA + 8 * t + 4, 4), "0" if first else vr(KV, 16)))
                a("v_mfma_f32_32x32x16_bf16 %s, %s, %s, %s" % (vr(Z, 16), vr(ON, 4), vr(FA + 8 * t, 4), "0" if first else vr(Z, 16)))
        if CFG["HP"] == 4: hint(a)
        a("s_nop 10")
        for q in range(4):
            a("buffer_store_dwordx4 %s, v%d, s[16:19], s%d offen offset:%d sc1" % (vr(KV + 4 * q, 4), TR + 2, 72 + (q >> 1), (q & 1) * 512))
        a("s_mov_b32 exec_hi, 0")
        a("buffer_store_dword v%d, v%d, s[20:23], s74 offen sc1" % (Z, TR + 3))
        a("s_mov_b64 exec, -1")
        if CFG["ACK"] & 1: a("s_waitcnt vmcnt(0)")
        if CFG["HP"] == 5: hint(a)
    def epi(a):
        P = g.FR
        a("s_waitcnt vmcnt(0)")
        for e in range(8):
            a("v_lshl_or_b32 v%d, v%d, 16, v%d" % (WF + e, RAW + 1 + 2 * e, RAW + 2 * e))
        if CFG["MD"] == 3: mt_issue(a, 24)
        a("s_mov_b32 s70, %s" % hex(f32bits(LOG2E))); a("s_mov_b32 s71, s70")
        a("v_and_b32 v4, 31, v1"); a("v_add_u32 v4, s34, v4")
        a("v_lshrrev_b32 v5, 5, v1"); a("v_lshlrev_b32 v5, 4, v5")
        a("s_mul_i32 s32, s35, 24576"); a("s_lshl_b32 s33, s35, 13"); a("s_add_u32 s33, s33, %d" % VIM)
        a("v_mul_u32_u24 v6, 192, v4"); a("v_add3_u32 v6, v6, v5, s32")
        a("v_lshl_add_u32 v7, v4, 6, v5"); a("v_add_u32 v7, s33, v7")
        for i in range(2):
            for j in range(2):
                for e in range(8):
                    A = g.acc(i, j)
                    a("v_cvt_pk_bf16_f32 v%d, v%d, v%d" % (P + (i * 2 + j) * 8 + e, A + 2 * e, A + 2 * e + 1))
        for i in (1, 0):
            for j in range(2):
                A = g.acc(i, j); pk = P + (i * 2 + j) * 8
                a("v_mfma_f32_32x32x16_bf16 %s, %s, %s, 0" % (vr(A, 16), vr(WF, 4), vr(pk, 4)))
                a("v_mfma_f32_32x32x16_bf16 %s, %s, %s, %s" % (vr(A, 16), vr(WF + 4, 4), vr(pk + 4, 4), vr(A, 16)))
        for j in range(2):
            A = g.acc(2, j)
            for e in range(8):
                a("v_cvt_pk_bf16_f32 v%d, v%d, v%d" % (P + 32 + e, A + 2 * e, A + 2 * e + 1))
            for t in range(2):
                a("ds_write_b128 v7, %s offset:%d" % (vr(P + 32 + 4 * t, 4), j * 32 * 64 + t * 32))
            if j == 0: a("s_nop 1")
        EN = g.acc(2, 0)
        for i in (1, 0):
            for j in range(2):
                A = g.acc(i, j); pk = P + (i * 2 + j) * 8
                a("v_max3_f32 v10, v%d, v%d, v%d" % (A, A + 1, A + 2))
                a("v_min3_f32 v12, v%d, v%d, v%d" % (A, A + 1, A + 2))
                for e in range(3, 15, 2):
                    a("v_max3_f32 v10, v10, v%d, v%d" % (A + e, A + e + 1))
                    a("v_min3_f32 v12, v12, v%d, v%d" % (A + e, A + e + 1))
                a("v_max_f32 v10, v10, v%d" % (A + 15))
                a("v_min_f32 v12, v12, v%d" % (A + 15))
                a("v_mov_b32 v11, v10"); a("v_mov_b32 v13, v12")
                a("s_nop 1")
                a("v_permlane32_swap_b32 v10, v11"); a("v_permlane32_swap_b32 v12, v13")
                a("v_max_f32 v10, v10, v11"); a("v_min_f32 v12, v12, v13")
                a("v_mul_f32 v10, s70, v10"); a("v_mul_f32 v12, s70, v12")
                for e in range(8):
                    a("v_pk_fma_f32 %s, %s, s[70:71], v[12:13] op_sel_hi:[1,1,0] neg_lo:[0,1,0] neg_hi:[0,1,0]" % (vr(EN + 2 * e, 2), vr(A + 2 * e, 2)))
                    a("v_pk_fma_f32 %s, %s, s[70:71], v[10:11] op_sel_hi:[1,1,0] neg_lo:[0,0,1] neg_hi:[0,0,1]" % (vr(A + 2 * e, 2), vr(A + 2 * e, 2)))
                for e in range(16):
                    a("v_exp_f32 v%d, v%d" % (A + e, A + e))
                    a("v_exp_f32 v%d, v%d" % (EN + e, EN + e))
                a("v_pk_add_f32 v[10:11], %s, %s" % (vr(A, 2), vr(A + 2, 2)))
                a("v_pk_add_f32 v[12:13], %s, %s" % (vr(EN, 2), vr(EN + 2, 2)))
                for e in range(2, 8):
                    a("v_pk_add_f32 v[10:11], v[10:11], %s" % vr(A + 2 * e, 2))
                    a("v_pk_add_f32 v[12:13], v[12:13], %s" % vr(EN + 2 * e, 2))
                a("v_add_f32 v10, v10, v11"); a("v_add_f32 v12, v12, v13")
                a("v_mov_b32 v11, v10"); a("v_mov_b32 v13, v12")
                a("s_nop 1")
                a("v_permlane32_swap_b32 v10, v11"); a("v_permlane32_swap_b32 v12, v13")
                a("v_add_f32 v10, v10, v11"); a("v_add_f32 v12, v12, v13")
                a("v_rcp_f32 v10, v10"); a("v_rcp_f32 v12, v12")
                a("s_nop 0")
                if i == 1 and j == 1 and CFG["HP"] == 0: hint(a)
                for e in range(8):
                    a("v_pk_mul_f32 %s, %s, v[10:11] op_sel_hi:[1,0]" % (vr(A + 2 * e, 2), vr(A + 2 * e, 2)))
                    a("v_pk_mul_f32 %s, %s, v[12:13] op_sel_hi:[1,0]" % (vr(EN + 2 * e, 2), vr(EN + 2 * e, 2)))
                for e in range(8):
                    a("v_cvt_pk_bf16_f32 v%d, v%d, v%d" % (pk + e, A + 2 * e, A + 2 * e + 1))
                for e in range(8):
                    a("v_cvt_pk_bf16_f32 v%d, v%d, v%d" % (A + e, EN + 2 * e, EN + 2 * e + 1))
                if i == 1:
                    for q in range(4):
                        src = vr(pk + 4 * q, 4) if q < 2 else vr(A + 4 * (q - 2), 4)
                        a("ds_write_b128 v6, %s offset:%d" % (src, j * 32 * 192 + q * 32))
                if i == 1 and j == 1:
                    if CFG["HP"] == 1: hint(a)
                    g.stamp(a, 3)
                    a("s_waitcnt lgkmcnt(0)")
                    a("s_barrier")
                    kvphase(a)
                    if CFG["MD"] == 4: mt_issue(a, 24)
                    g.stamp(a, 4)
        if CFG["MD"] >= 3: a("s_waitcnt vmcnt(0)")
        mt_compute(a)
        a("s_lshl_b32 s6, s35, 12"); a("s_add_u32 s6, s6, %d" % KVF)
        a("v_lshl_add_u32 v6, v1, 4, s6")
        a("s_lshl_b32 s6, s35, 7"); a("s_add_u32 s6, s6, %d" % ZF)
        a("v_add_u32 v7, s6, v5")
        if CFG["OS"] == 1:
            a("v_and_b32 v4, 15, v1"); a("v_add_u32 v4, s34, v4"); a("v_bfe_u32 v3, v1, 4, 1")
            a("v_lshl_add_u32 v3, v3, 5, v5"); a("v_lshl_add_u32 v4, v4, 12, v3")
        else:
            a("s_lshl_b32 s6, s3, 12")
            a("v_and_b32 v2, 31, v1"); a("v_lshl_add_u32 v2, v2, 6, v5"); a("v_add_u32 v2, s6, v2")
            a("v_lshl_add_u32 v3, v1, 4, s6")
            a("v_lshrrev_b32 v4, 2, v1"); a("v_add_u32 v4, s34, v4"); a("v_and_b32 v5, 3, v1")
            a("v_lshlrev_b32 v5, 4, v5"); a("v_lshl_add_u32 v4, v4, 12, v5")
        a("s_lshl_b32 s72, s35, 6")
        for k in range(1, 4): a("s_add_u32 s%d, s72, %d" % (72 + k, 16 * k * LP))
        g.stamp(a, 5)
        a("s_barrier")
        g.stamp(a, 6)
        KV = g.acc(1, 0); Z = g.acc(1, 1); NUM = [g.acc(2, 0), RAW + 20]; DEN = [g.acc(2, 1), RAW + 36]
        for T in range(4): a("ds_read_b128 %s, v7 offset:%d" % (vr(Z + 4 * T, 4), T * 32))
        for T in range(4): a("ds_read_b128 %s, v6 offset:%d" % (vr(KV + 4 * T, 4), T * 1024))
        def phq(j, T): return vr(P + j * 8 + 4 * T, 4) if T < 2 else vr(g.acc(0, j) + 4 * (T - 2), 4)
        a("s_waitcnt lgkmcnt(%d)" % (0 if DBG["stamp"] else 4))
        for j in range(2):
            for T in range(4):
                a("v_mfma_f32_32x32x16_bf16 %s, %s, %s, %s" % (vr(DEN[j], 16), vr(Z + 4 * T, 4), phq(j, T), "0" if T == 0 else vr(DEN[j], 16)))
        a("s_waitcnt lgkmcnt(0)")
        for j in range(2):
            for T in range(4):
                a("v_mfma_f32_32x32x16_bf16 %s, %s, %s, %s" % (vr(NUM[j], 16), vr(KV + 4 * T, 4), phq(j, T), "0" if T == 0 else vr(NUM[j], 16)))
            if j == 0:
                for jj in range(2): a("v_add_f32 v%d, %s, v%d" % (8 + 2 * jj, hex(f32bits(1e-6)), DEN[jj]))
                for jj in range(2): a("v_rcp_f32 v%d, v%d" % (8 + 2 * jj, 8 + 2 * jj))
        for j in range(2):
            if j == 1: a("s_nop 2")
            for e in range(8):
                a("v_pk_mul_f32 %s, %s, %s op_sel_hi:[1,0]" % (vr(NUM[j] + 2 * e, 2), vr(NUM[j] + 2 * e, 2), vr(8 + 2 * j, 2)))
            for e in range(8):
                a("v_cvt_pk_bf16_f32 v%d, v%d, v%d" % (DEN[j] + e, NUM[j] + 2 * e, NUM[j] + 2 * e + 1))
            if CFG["OS"] == 1:
                for e in range(4): a("v_permlane16_swap_b32 v%d, v%d" % (DEN[j] + e, DEN[j] + 4 + e))
            else:
                for h in range(2): a("ds_write_b128 v2, %s offset:%d" % (vr(DEN[j] + 4 * h, 4), 2048 * j + 32 * h))
                for h in range(2): a("ds_read_b128 %s, v3 offset:%d" % (vr(DEN[j] + 8 + 4 * h, 4), 2048 * j + 1024 * h))
                if j == 0: continue
            for jj in ([j] if CFG["OS"] == 1 else [0, 1]):
                for h in range(2):
                    if CFG["OS"] != 1: a("s_waitcnt lgkmcnt(%d)" % (0 if DBG["stamp"] else [5, 4, 1, 0][2 * jj + h]))
                    a("buffer_store_dwordx4 %s, v4, s[28:31], s%d offen sc1" % (vr(DEN[jj] + 4 * h + (0 if CFG["OS"] == 1 else 8), 4), 72 + 2 * jj + h))
    def etile(a):
        a("v_and_b32 v3, 255, v0"); a("v_lshlrev_b32 v2, 7, v3")
        if CFG["W1"] == 1: touch(a, P_WO, 8192, "s2", 2, 8, 60)
        if CFG["W2"] == 1: touch(a, P_WIN, 28672, "s2", 2, 12, 61)
    g.etile = etile; g.etile_n = (CFG["W1"] == 1) + (CFG["W2"] == 1); g.etile_wait = False
    flag_rc(g, 0, 4, 5)
    def lepi(a):
        PL = 144; FLG = ZF + 512
        a("v_lshlrev_b32 v7, 4, v1")
        a("s_lshl_b32 s6, s4, 14")
        a("v_add_u32 v16, s6, v7")
        for k in range(1, 4): a("v_add_u32 v%d, %d, v16" % (16 + k, 4096 * k))
        a("v_and_b32 v10, 15, v1")
        a("v_lshlrev_b32 v21, 2, v10"); a("v_add_u32 v21, 16384, v21")
        a("s_lshl_b32 s6, s4, 9")
        a("v_add_u32 v22, s6, v7")
        a("v_add_u32 v24, 4096, v7")
        a("v_lshlrev_b32 v25, 3, v1"); a("v_add_u32 v25, 8192, v25"); a("v_add_u32 v23, 4096, v25")
        a("v_add_u32 v26, %d, v7" % KVF)
        a("v_lshlrev_b32 v27, 2, v1"); a("v_add_u32 v27, %d, v27" % ZF)
        a("s_lshl_b32 s32, s4, 2"); a("s_add_u32 s32, s32, %d" % (16384 + 128))
        a("v_mov_b32 v28, 0"); a("v_mov_b32 v29, %d" % FLG)
        a("ds_write_b32 v29, v28")
        a("s_setprio %d" % CFG["LPR"])
        a("s_waitcnt vmcnt(0) lgkmcnt(0)")
        a("s_barrier")
        g.stamp(a, 3)
        lz = a.newlabel("k2_lz"); lg = a.newlabel("k2_lg"); nr2 = a.newlabel("k2_nr2"); nr3 = a.newlabel("k2_nr3")
        a("s_cmp_eq_u32 s34, 1"); a("s_cbranch_scc1 %s" % lz)
        a("s_cmp_eq_u32 s34, 2"); a("s_cbranch_scc1 %s" % lg)
        a("s_cmp_eq_u32 s34, 3"); a("s_cbranch_scc1 %s" % nr2)
        a("s_sleep %d" % CFG["H1W"])
        pspin(a, "k2_h", [36, 37, 38, 39][:CFG["NP"]], lambda a, r: a("buffer_load_dword v%d, v21, s[20:23], 0 offen sc1" % r), CFG["PG"])
        a("ds_write_b32 v29, v29")
        g.stamp(a, 4)
        def hint2(a):
            a("s_mov_b64 exec, 1")
            a("buffer_store_dword v28, v28, s[20:23], s32 offen sc1")
            a("s_mov_b64 exec, -1")
        def r_issue(a):
            hx = 0
            for p in range(16):
                a("buffer_load_dwordx4 %s, v%d, s[16:19], 0 offen offset:%d sc1" % (vr(PL + 4 * p, 4), 16 + (p >> 2), (p & 3) * 1024))
            if CFG["H2S"] < 100:
                a("s_sleep %d" % CFG["H2S"])
                hint2(a); hx = 1
            for p in range(1, 16):
                a("s_waitcnt vmcnt(%d)" % (15 + hx - p))
                if p == 1 and CFG["H2S"] == 100: hint2(a); hx += 1
                for h in range(2): a("v_pk_add_f32 %s, %s, %s" % (vr(PL + 2 * h, 2), vr(PL + 2 * h, 2), vr(PL + 4 * p + 2 * h, 2)))
        def r_check(a):
            a("v_pk_add_f32 v[30:31], %s, %s" % (vr(PL, 2), vr(PL + 2, 2)))
            a("v_cvt_pk_bf16_f32 v32, v%d, v%d" % (PL, PL + 1)); a("v_cvt_pk_bf16_f32 v33, v%d, v%d" % (PL + 2, PL + 3))
            a("v_cmp_u_f32 vcc, v30, v31")
            a("v_mov_b32 v34, v32"); a("v_mov_b32 v35, v33")
        spin(a, "k2_r", r_issue, r_check, 0, 1, False)
        a("v_permlane32_swap_b32 v32, v34"); a("v_permlane32_swap_b32 v33, v35")
        a("s_mov_b32 exec_hi, 0")
        a("buffer_store_dwordx4 v[32:35], v22, s[20:23], 0 offen sc1")
        a("s_mov_b64 exec, -1")
        if CFG["H2S"] == 101: hint2(a)
        g.stamp(a, 5)
        a("s_branch %s" % nr2)
        a.label(lz)
        L = a.newlabel("k2_fl"); D = a.newlabel("k2_fd")
        a("s_mov_b32 s66, 0x1000000")
        a.label(L)
        a("s_sleep 2")
        a("ds_read_b32 v30, v29")
        a("s_waitcnt lgkmcnt(0)")
        a("v_cmp_eq_u32 vcc, 0, v30")
        a("s_sub_u32 s66, s66, 1")
        a("s_cbranch_scc1 %s" % D)
        a("s_cbranch_vccnz %s" % L)
        a.label(D)
        a("s_sleep %d" % CFG["ZW"])
        def z_issue(a):
            for p in range(16):
                a("buffer_load_dwordx2 %s, v%d, s[20:23], 0 offen offset:%d sc1" % (vr(PL + 2 * p, 2), 25 if p < 8 else 23, (p & 7) * 512))
            for p in range(1, 16):
                a("s_waitcnt vmcnt(%d)" % (15 - p))
                a("v_pk_add_f32 %s, %s, %s" % (vr(PL, 2), vr(PL, 2), vr(PL + 2 * p, 2)))
        spin(a, "k2_z", z_issue, lambda a: a("v_cmp_u_f32 vcc, v%d, v%d" % (PL, PL + 1)), 4, 2, False)
        a("v_cvt_pk_bf16_f32 v30, v%d, v%d" % (PL, PL + 1))
        a("ds_write_b32 v27, v30")
        a("s_waitcnt lgkmcnt(0)")
        g.stamp(a, 5)
        a("s_branch %s" % nr2)
        a.label(lg)
        a("s_sleep %d" % CFG["H2W"])
        pspin(a, "k2_h2", [40, 41, 42, 43][:CFG["NP"]], lambda a, r: a("buffer_load_dword v%d, v21, s[20:23], 0 offen offset:128 sc1" % r), CFG["PG"])
        g.stamp(a, 6)
        def g_issue(a):
            for i in range(8): a("buffer_load_dwordx4 %s, v%d, s[20:23], 0 offen offset:%d sc1" % (vr(PL + 4 * i, 4), 7 if i < 4 else 24, (i & 3) * 1024))
        def g_check(a):
            a("v_max3_u32 v30, v%d, v%d, v%d" % (PL + 1, PL + 3, PL + 5))
            a("v_max3_u32 v31, v%d, v%d, v%d" % (PL + 7, PL + 9, PL + 11))
            for k in range(2):
                a("v_max3_u32 v30, v30, v%d, v%d" % (PL + 13 + 8 * k, PL + 15 + 8 * k))
                a("v_max3_u32 v31, v31, v%d, v%d" % (PL + 17 + 8 * k, PL + 19 + 8 * k))
            a("v_max3_u32 v30, v30, v%d, v%d" % (PL + 29, PL + 31))
            a("v_max_u32 v30, v30, v31")
            a("v_cmp_eq_u32 vcc, -1, v30")
        spin(a, "k2_g", g_issue, g_check, 0, 2)
        for h in range(8): a("ds_write_b128 v26, %s offset:%d" % (vr(PL + 4 * h, 4), h * 1024))
        a("s_waitcnt lgkmcnt(0)")
        a.label(nr2)
        a("s_barrier")
    kn = g.emit(a, tilemap_16x16_r8c4, setup, cpro, lpro, epi, lepi, **ch)
    return g, lds

def rm_addr(a, vrow, vld, t):
    a("v_lshrrev_b32 v%d, 3, v1" % t)
    a("s_lshl_b32 s32, s3, 4")
    a("v_add_u32 v%d, s32, v%d" % (vrow, t))
    a("v_and_b32 v%d, 7, v1" % vld)
    a("v_lshlrev_b32 v%d, 1, v%d" % (vld, vld))
    a("v_xor_b32 v%d, v%d, v%d" % (vld, vld, t))
    a("v_lshlrev_b32 v%d, 4, v%d" % (vld, vld))
    a("v_lshl_add_u32 v%d, v%d, 8, v%d" % (vld, vrow, vld))
    a("v_xor_b32 v%d, 16, v%d" % (vld + 1, vld))

def stage32_addr(a, g, SA, t):
    a("v_and_b32 v%d, 31, v1" % t); a("v_add_u32 v%d, s34, v%d" % (t, t))
    a("v_lshrrev_b32 v%d, 5, v1" % SA); a("v_lshlrev_b32 v%d, 1, v%d" % (SA, SA))
    a("v_and_b32 v%d, 7, v1" % (SA + 1)); a("v_xor_b32 v%d, v%d, v%d" % (SA, SA, SA + 1))
    a("v_lshlrev_b32 v%d, 4, v%d" % (SA, SA)); a("v_lshl_add_u32 v%d, v%d, 8, v%d" % (SA, t, SA))
    if g.wgn == 2:
        a("s_lshl_b32 s6, s35, 7"); a("v_add_u32 v%d, s6, v%d" % (SA, SA))
    for k, x in enumerate((16, 64, 80)): a("v_xor_b32 v%d, %d, v%d" % (SA + 1 + k, x, SA))

def stage32(a, SA, tiles):
    a("s_nop 10")
    for A, off in tiles:
        for q in range(4):
            a("ds_write_b128 v%d, %s offset:%d" % (SA + q, vr(A + 4 * q, 4), off))

def compact8(a, dst, vals, vperm, sm):
    a("v_mov_b32 v%d, v%d" % (dst, vals[0]))
    for c in range(1, len(vals)):
        a("s_mov_b32 s%d, %s" % (sm, hex(0x01010101 << c))); a("s_mov_b32 s%d, s%d" % (sm + 1, sm))
        a("v_cndmask_b32 v%d, v%d, v%d, %s" % (dst, dst, vals[c], sr(sm, 2)))
    a("ds_bpermute_b32 v%d, v%d, v%d" % (dst, vperm, dst))

def k_res(a, name, K, xoff, wp, resp, resoff, gate_idx, outp, outoff, stats, S, shadow, **ch):
    g = Gemm2(name, 128, K, 32, 4, 1, LP, 2048, 256, S, [(8, [(0, 0)])])
    g.xskip = True
    RX = g.CFREE; GA = RX + 8; CB = GA + 8; VO2 = CB + 8; VO4 = VO2 + 1; VLD = VO2 + 2; VAT = VO2 + 4; VPM = VO2 + 5; VGT = VO2 + 6
    F = VO2 + 8; T = F + 16; SA = T + 16
    lds = g.LDS_MAIN + 1024 + 32768 + 2048
    def setup(a):
        xw_srds2(a, g, P_WS, xoff, wp, 0, K * 2048, 128, shadow * CFG["SH"])
        a("s_lshl_b32 s6, s4, 18"); a("s_lshl_b32 s7, s5, 7"); a("s_add_u32 s6, s6, s7")
        a("s_sub_u32 s7, %d, s6" % (2048 * 2048))
        if resoff:
            a("s_add_u32 s32, s6, %s" % hex(resoff)); srd(a, 16, resp, "s32", "s7")
        else:
            srd(a, 16, resp, "s6", "s7")
        if outoff:
            a("s_add_u32 s32, s6, %s" % hex(outoff)); srd(a, 20, outp, "s32", "s7")
        else:
            srd(a, 20, outp, "s6", "s7")
        if stats:
            s_lmap(a, 32, 5, 6, False)
            a("s_lshl_b32 s6, s4, 19"); a("s_add_u32 s32, s32, s6")
            a("s_add_u32 s32, s32, %s" % hex(WS_Y)); srd(a, 72, P_WS, "s32", 128 * LP)
            a("s_lshl_b32 s6, s4, 9"); a("s_add_u32 s6, s6, %s" % hex(WS_SUM2))
            srd(a, 28, P_WS, "s6", 8192 + 512)
        a("s_lshl_b32 s6, s5, 8"); a("s_add_u32 s6, s6, %d" % (WS_MODR + (gate_idx - 2) * 4096))
        srd(a, 24, P_WS, "s6", 8192 + 256)
        a("s_movk_i32 s96, 0x4000")
        a("s_mov_b32 s97, 0x8000")
        a("s_movk_i32 s98, 0x2000")
    g.pf = None
    def rm_loads(a):
        rm_addr(a, VO4, VLD, 10)
        a("v_and_b32 v11, 7, v1")
        a("v_lshlrev_b32 v12, 5, v11"); a("v_lshlrev_b32 v11, 4, v11")
        a("v_lshl_add_u32 v%d, v%d, 11, v11" % (VO2, VO4))
        a("v_lshl_add_u32 v%d, v%d, 12, v11" % (VO4, VO4))
        a("buffer_load_dwordx4 %s, v%d, s[16:19], 0 offen sc1" % (vr(RX, 4), VO2))
        a("buffer_load_dwordx4 %s, v%d, s[16:19], s96 offen sc1" % (vr(RX + 4, 4), VO2))
        a("v_add_u32 v%d, %d, v12" % (VGT, g.LDS_MAIN))
        if stats:
            a("v_and_b32 v11, 7, v1"); a("v_lshlrev_b32 v11, 5, v11"); a("v_lshl_add_u32 v%d, v10, 2, v11" % VPM)
            a("v_and_b32 v11, 15, v1"); a("v_bfe_u32 v10, v1, 4, 1")
            a("s_lshl_b32 s32, s3, 6")
            a("v_lshl_add_u32 v11, v11, 2, s32"); a("v_lshl_add_u32 v%d, v10, 13, v11" % VAT)
    def cpro(a):
        stage32_addr(a, g, SA, 10)
    def cpost0(a):
        rm_loads(a)
        if stats and CFG["W2"] == 2:
            a("s_mul_i32 s32, s2, 28672"); srd(a, 68, P_WIN, "s32", 28672)
            a("v_lshlrev_b32 v10, 7, v0"); a("buffer_load_dword v250, v10, s[68:71], 0 offen")
    g.cpost0 = cpost0
    def lpro(a):
        ctouch(a, g, "k3" if stats else "k6", "k5" if stats else "end")
        if stats: all_prep(a, True)
    if stats:
        line_poll(g, 0, 16, 0); flag_rc(g, 1, 4, 5); g.pw = CFG["PW3"]; g.dyn = CFG["DY"] & 1; g.R = CFG["R3"]
    else:
        line_poll(g, 3, 14, 1); g.pw = CFG["PW6"]; g.dyn = CFG["DY"] & 8; g.R = CFG["R6"]
    g.npre = min(g.npre, CFG["NPRE"])
    UVW = 98304 + 1024; TB = UVW + 32768
    def uv_map(a):
        a("s_lshr_b32 s6, s2, 3")
        a("s_cmp_ge_u32 s6, 14"); a("s_cselect_b32 s7, 14, 0"); a("s_cselect_b32 s32, 1, 0")
        a("s_sub_u32 s7, s6, s7")
        a("s_and_b32 s33, s2, 1"); a("s_lshl_b32 s33, s33, 1"); a("s_add_u32 s32, s32, s33")
        a("s_cmp_ge_u32 s7, 7"); a("s_cselect_b32 s33, 21, 0"); a("s_add_u32 s33, s33, s7")
        a("s_bfe_u32 s6, s2, 0x20001"); a("s_mul_i32 s6, s6, 7"); a("s_add_u32 s33, s33, s6")
        a("s_cmp_lt_u32 s7, 14"); a("s_cselect_b32 s99, -1, 0")
        a("s_lshl_b32 s32, s32, 2"); a("s_add_u32 s32, s32, s3"); a("s_sub_u32 s32, s32, 4"); a("s_lshl_b32 s32, s32, 6")
    def uv_issue(a):
        uv_map(a)
        a("s_lshl_b32 s6, s32, 2"); a("s_add_u32 s6, s6, %d" % (WS_MODR + 4096))
        srd(a, 68, P_WS, "s6", 4096 + 256)
        a("s_mul_i32 s6, s32, 7168"); a("s_lshl_b32 s7, s33, 7"); a("s_add_u32 s6, s6, s7")
        a("s_and_b32 s7, s99, %d" % (64 * 7168))
        srd(a, 8, P_WIN, "s6", "s7")
        a("v_lshrrev_b32 v2, 3, v1"); a("v_and_b32 v3, 7, v1")
        a("v_bfe_u32 v4, v1, 4, 1"); a("v_lshlrev_b32 v4, 2, v4"); a("v_xor_b32 v3, v3, v4")
        a("v_mul_u32_u24 v2, 7168, v2"); a("v_lshl_add_u32 v2, v3, 4, v2")
        a("s_lshl_b32 s7, s3, 13"); a("s_add_u32 s7, s7, %d" % (UVW - 4 * 8192))
        a("s_mov_b32 s6, 0")
        for i in range(8):
            a("s_add_u32 m0, s7, %d" % (i * 1024))
            if i: a("s_add_u32 s6, s6, %d" % (8 * 7168))
            else: a("s_nop 0")
            a("buffer_load_dwordx4 v2, s[8:11], s6 offen lds")
        a("v_lshlrev_b32 v2, 2, v1")
        a("s_movk_i32 s6, 0x1000")
        a("buffer_load_dword v%d, v2, s[68:71], s6 offen sc1" % UM)
        a("buffer_load_dword v%d, v2, s[68:71], 0 offen sc1" % (UM + 1))
    def ptouch(a):
        a("v_mul_u32_u24 v60, 7168, v1")
        a("s_xor_b32 s6, s32, 512"); a("s_mul_i32 s6, s6, 7168"); a("s_lshl_b32 s7, s33, 7"); a("s_add_u32 s6, s6, s7")
        a("s_and_b32 s7, s99, %d" % (64 * 7168))
        srd(a, 68, P_WIN, "s6", "s7")
        a("buffer_load_dword v72, v60, s[68:71], 0 offen")
    def post_free(a, younger):
        sk = a.newlabel("k2_pf")
        a("s_cmp_lt_u32 s3, 4"); a("s_cbranch_scc1 %s" % sk)
        uv_map(a)
        if CFG["PT"] == 2: ptouch(a)
        uv_compute(a, younger)
        if CFG["PT"] == 3: ptouch(a)
        a.label(sk)
    if stats: g.post_free = post_free
    UM = 200
    def uv_compute(a, younger):
        AD = 76; AF = 88; BF = 120; D = 152; nt = (CFG["PT"] == 2) + younger
        a("s_lshl_b32 s6, s3, 9"); a("s_add_u32 s6, s6, %d" % (TB - 2048))
        a("v_lshl_add_u32 v2, v1, 1, s6")
        a("v_mov_b32 v3, 0")
        a("ds_write_b16 v2, v3 offset:256")
        a("v_and_b32 v4, 31, v1"); a("v_lshrrev_b32 v5, 5, v1"); a("v_lshl_add_u32 v6, v5, 4, s6")
        a("v_min_u32 v7, 2, v4"); a("v_lshl_add_u32 v%d, v7, 7, v6" % AD)
        a("v_subrev_u32 v7, 4, v4"); a("v_min_u32 v7, 2, v7"); a("v_lshl_add_u32 v%d, v7, 7, v6" % (AD + 1))
        a("v_bfe_u32 v10, v1, 2, 2"); a("v_lshl_add_u32 v10, v5, 3, v10")
        a("v_bfe_u32 v11, v1, 4, 1"); a("v_lshlrev_b32 v11, 5, v11")
        a("v_and_b32 v13, 1, v1"); a("v_lshl_add_u32 v11, v13, 4, v11")
        a("v_bfe_u32 v13, v1, 1, 1"); a("v_lshl_add_u32 v11, v13, 3, v11")
        a("v_bfe_u32 v13, v1, 3, 1"); a("v_lshl_add_u32 v11, v13, 6, v11")
        a("s_lshl_b32 s7, s3, 13"); a("s_add_u32 s7, s7, %d" % (UVW - 4 * 8192))
        a("v_lshl_add_u32 v11, v10, 7, v11"); a("v_add_u32 v%d, s7, v11" % (AD + 2))
        a("v_xor_b32 v%d, 64, v%d" % (AD + 3, AD + 2))
        a("v_and_b32 v10, 0x33, v1")
        a("v_bfe_u32 v11, v1, 2, 1"); a("v_lshl_add_u32 v10, v11, 3, v10")
        a("v_bfe_u32 v11, v1, 3, 1"); a("v_lshl_add_u32 v10, v11, 2, v10")
        a("v_lshlrev_b32 v10, 2, v10")
        a("s_lshl_b32 s6, s33, 8"); a("s_add_u32 s6, s6, %s" % hex(WS_UV))
        a("s_and_b32 s7, s99, %d" % (16384 + 256))
        srd(a, 68, P_WS, "s6", "s7")
        a("s_movk_i32 s6, 0x4000")
        a("s_waitcnt vmcnt(%d)" % nt)
        for s_ in range(2):
            for h in range(2):
                for q in range(2):
                    a("ds_read_b64_tr_b16 %s, v%d offset:%d" % (vr(BF + 8 * s_ + 4 * h + 2 * q, 2), AD + 2 + h, (16 * s_ + 4 * q) * 128))
        for w in range(2):
            b = UM + w
            if w == 0:
                bf16_round(a, b, b)
                a("v_add_f32 v%d, 1.0, v%d" % (b, b))
            a("v_cvt_pk_bf16_f32 v%d, v%d, v%d" % (b, b, b))
            a("ds_write_b16 v2, v%d offset:%d" % (b, 128 * w))
        a("s_waitcnt lgkmcnt(2)")
        for s_ in range(4):
            for h in range(2): a("ds_read_b128 %s, v%d offset:%d" % (vr(AF + 8 * s_ + 4 * h, 4), AD + h, 32 * s_))
        a("s_waitcnt lgkmcnt(6)")
        for s_ in range(2, 4):
            for h in range(2):
                for q in range(2):
                    a("ds_read_b64_tr_b16 %s, v%d offset:%d" % (vr(BF + 8 * s_ + 4 * h + 2 * q, 2), AD + 2 + h, (16 * s_ + 4 * q) * 128))
        for k in range(8):
            a("s_waitcnt lgkmcnt(%d)" % (8 if k < 4 else 14 - 2 * k))
            a("v_mfma_f32_32x32x16_bf16 %s, %s, %s, %s" % (vr(D, 16), vr(AF + 4 * k, 4), vr(BF + 4 * k, 4), "0" if k == 0 else vr(D, 16)))
        a("s_nop 10"); a("s_nop 6")
        a("buffer_atomic_add_f32 v%d, v10, s[68:71], 0 offen" % D)
        a("buffer_atomic_add_f32 v%d, v10, s[68:71], s6 offen" % (D + 1))
        g.stamp(a, 5)
    if stats: g.ltouch = [(CFG["S3"] - 1, lambda a: all_issue(a, 0))]
    def etile(a):
        if stats: all_check(a, 0)
        a("v_lshlrev_b32 v9, 2, v1")
        a("buffer_load_dword v40, v9, s[24:27], 0 offen sc1")
        if stats: a("buffer_load_dword v41, v9, s[24:27], s98 offen sc1")
        rm_loads(a)
    g.etile = etile; g.etile_n = 4 if stats else 3; g.etile_wait = False
    def lepi(a):
        a("v_add_u32 v9, %d, v9" % g.LDS_MAIN)
        if stats: uv_issue(a)
        a("s_waitcnt vmcnt(%d)" % (12 if stats else 2))
        bf16_round(a, 40, 40)
        a("ds_write_b32 v9, v40")
        if stats:
            bf16_round(a, 41, 41); a("v_add_f32 v41, 1.0, v41"); bf16_round(a, 41, 41)
            a("ds_write_b32 v9, v41 offset:256")
        a("s_waitcnt vmcnt(%d)" % (10 if stats else 0))
    def epi(a):
        stage32(a, SA, [(g.acc(0, 0), 0), (g.acc(1, 0), 128)])
        if CFG["EP"]: a("s_setprio 0")
        a("s_waitcnt vmcnt(0)")
    def common(a):
        a("s_waitcnt lgkmcnt(0)")
        g.stamp(a, 3)
        a("s_barrier")
        g.stamp(a, 4)
        for h in range(2): a("ds_read_b128 %s, v%d offset:%d" % (vr(GA + 4 * h, 4), VGT, 16 * h))
        for i in range(2):
            for h in range(2): a("ds_read_b128 %s, v%d offset:%d" % (vr(F + 8 * i + 4 * h, 4), VLD + h, 2048 * i))
        if stats:
            for h in range(2): a("ds_read_b128 %s, v%d offset:%d" % (vr(CB + 4 * h, 4), VGT, 256 + 16 * h))
        for e in range(8): unpack2(a, T + 2 * e, RX + e)
        for i in range(2):
            a("s_waitcnt lgkmcnt(%d)" % (2 - 2 * i + (2 if stats else 0)))
            for e in range(4):
                x = vr(F + 8 * i + 2 * e, 2)
                a("v_pk_fma_f32 %s, %s, %s, %s" % (x, x, vr(GA + 2 * e, 2), vr(T + 8 * i + 2 * e, 2)))
            for e in range(4):
                a("v_cvt_pk_bf16_f32 v%d, v%d, v%d" % (RX + 4 * i + e, F + 8 * i + 2 * e, F + 8 * i + 2 * e + 1))
            a("buffer_store_dwordx4 %s, v%d, s[20:23], %s offen%s" % (vr(RX + 4 * i, 4), VO2, "s96" if i else "0", " sc1" if stats else (" nt" if CFG["NT"] & 16 else "")))
        if stats:
            for e in range(8): unpack2(a, F + 2 * e, RX + e)
            a("s_waitcnt lgkmcnt(0)")
            for i in range(2):
                for e in range(4):
                    a("v_pk_mul_f32 %s, %s, %s" % (vr(T + 8 * i + 2 * e, 2), vr(F + 8 * i + 2 * e, 2), vr(CB + 2 * e, 2)))
            for i in range(2):
                for e in range(4):
                    a("v_cvt_pk_bf16_f32 v%d, v%d, v%d" % (GA + 4 * i + e, T + 8 * i + 2 * e, T + 8 * i + 2 * e + 1))
                a("buffer_store_dwordx4 %s, v%d, s[72:75], %s offen sc1" % (vr(GA + 4 * i, 4), VO4, "s97" if i else "0"))
            for i in range(2):
                s_, q_ = vr(T + 4 * i, 2), vr(T + 4 * i + 2, 2)
                x = lambda e: vr(F + 8 * i + 2 * e, 2)
                a("v_pk_add_f32 %s, %s, %s" % (s_, x(0), x(1)))
                a("v_pk_mul_f32 %s, %s, %s" % (q_, x(0), x(0)))
                a("v_pk_fma_f32 %s, %s, %s, %s" % (q_, x(1), x(1), q_))
                for e in (2, 3):
                    a("v_pk_add_f32 %s, %s, %s" % (s_, s_, x(e)))
                    a("v_pk_fma_f32 %s, %s, %s, %s" % (q_, x(e), x(e), q_))
            for k in range(4): a("v_add_f32 v%d, v%d, v%d" % (T + 2 * k, T + 2 * k, T + 2 * k + 1))
            red8(a, [T, T + 2, T + 4, T + 6])
            compact8(a, T + 8, [T, T + 4, T + 2, T + 6], VPM, 66)
            a("s_mov_b32 exec_hi, 0")
            a("s_waitcnt lgkmcnt(0)")
            a("buffer_atomic_add_f32 v%d, v%d, s[28:31], 0 offen" % (T + 8, VAT))
    kn = g.emit(a, tilemap_16x16_r4c8, setup, cpro, lpro, epi, lepi, common, **ch)
    return g, lds

def k4(a, **ch):
    Z2 = 3584
    ZO = WS_Z2 - WS_Z1
    g = Gemm2("k4", 128, 1024, 16, 2, 2, LP, 7168, 256, CFG["S4"],
              [(8, [(0, "s72")]), (8, [(0, "s73")]), (8, [(0, "s74")]), (4, [(0, "s75")])])
    g.xskip = True
    UVT = g.LDS_MAIN
    RST = UVT + 2048
    lds = RST + 1024
    SA = g.CFREE
    def nib(v): return sum(x << (4 * i) for i, x in enumerate(v))
    def setup(a):
        xw_srds2(a, g, P_WS, WS_Y, P_WIN, 0, 1024 * 7168, 0)
        srd(a, 16, P_WS, WS_UV, 32768)
        srd(a, 20, P_WS, WS_SUM2, 16384)
        a("s_lshl_b32 s6, s4, 19")
        a("s_add_u32 s6, s6, %s" % hex(WS_Z1))
        srd(a, 24, P_WS, "s6", ZO + 128 * LP)
        a("s_lshl_b32 s6, s4, 14"); a("s_add_u32 s6, s6, %s" % hex(WS_XCH))
        srd(a, 28, P_WS, "s6", 16384)
        a("s_and_b32 s6, s5, 3"); a("s_lshl_b32 s7, s6, 2")
        a("s_lshr_b32 s32, s5, 2"); a("s_mul_i32 s32, s32, 896")
        for r, tab in ((72, [0, 4, 8, 10]), (73, [2, 0, 10, 12]), (74, [4, 2, 12, 8]), (75, [6, 6, 7, 7])):
            a("s_lshr_b32 s%d, %s, s7" % (r, hex(nib(tab))))
            a("s_and_b32 s%d, s%d, 15" % (r, r))
            a("s_lshl_b32 s%d, s%d, 6" % (r, r))
            a("s_add_u32 s%d, s%d, s32" % (r, r))
        a("s_add_u32 s72, s72, %d" % Z2)
        a("s_add_u32 s6, s6, 1"); a("s_and_b32 s33, s6, 2")
        a("s_cmp_eq_u32 s33, 0")
        a("s_cselect_b32 s6, %d, 0" % Z2); a("s_add_u32 s73, s73, s6")
        a("s_sub_u32 s6, %d, s6" % Z2); a("s_add_u32 s75, s75, s6")
        a("s_mov_b32 s98, s33")
    g.pf = None
    def cpro(a):
        a("v_and_b32 v10, 15, v1"); a("v_add_u32 v10, s34, v10")
        a("v_lshrrev_b32 v13, 4, v1"); a("v_and_b32 v14, 7, v1"); a("v_xor_b32 v13, v13, v14")
        a("s_lshl_b32 s6, s35, 2")
        a("v_xor_b32 v14, s6, v13"); a("v_bfe_u32 v15, v1, 3, 1"); a("v_xor_b32 v14, v14, v15")
        a("v_lshlrev_b32 v14, 4, v14"); a("v_lshl_add_u32 v%d, v10, 7, v14" % (SA + 2))
        a("v_add_u32 v%d, %d, v%d" % (SA + 2, 98304, SA + 2))
        a("s_lshl_b32 s6, s35, 7")
        a("v_lshl_add_u32 v13, v13, 4, s6"); a("v_lshl_add_u32 v%d, v10, 8, v13" % SA)
        a("v_xor_b32 v%d, 64, v%d" % (SA + 1, SA))
        a("v_add_u32 v%d, 0x10000, v%d" % (SA + 3, SA)); a("v_add_u32 v%d, 0x10000, v%d" % (SA + 4, SA + 1))
    def lpro(a):
        ctouch(a, g, "k4", "k6")
        all_prep(a, False)
        a("v_and_b32 v9, 255, v0")
        a("s_cmp_eq_u32 s34, 0")
        a("s_cselect_b32 s6, s72, s74"); a("s_cselect_b32 s32, s73, s75")
        a("v_mov_b32 v10, s6"); a("v_mov_b32 v11, s32")
        a("v_cmp_gt_u32 vcc, 32, v1")
        a("v_bfe_u32 v12, v9, 1, 4"); a("v_and_b32 v13, 1, v9")
        a("v_cndmask_b32 v10, v11, v10, vcc")
        a("v_lshlrev_b32 v10, 1, v10")
        a("v_lshl_add_u32 v10, v12, 4, v10")
        a("v_lshl_add_u32 v41, v13, 14, v10")
        a("v_and_b32 v42, 127, v9"); a("v_lshlrev_b32 v42, 2, v42")
        a("v_lshrrev_b32 v12, 5, v9"); a("v_lshlrev_b32 v12, 9, v12")
        a("v_and_b32 v11, 1, v9"); a("v_lshl_add_u32 v12, v11, 8, v12")
        a("v_bfe_u32 v11, v9, 1, 1"); a("v_lshl_add_u32 v12, v11, 7, v12")
        a("v_bfe_u32 v11, v9, 2, 3"); a("v_lshl_add_u32 v12, v11, 4, v12")
        a("v_add_u32 v43, %d, v12" % UVT)
        a("v_lshlrev_b32 v56, 1, v42"); a("v_add_u32 v56, %d, v56" % RST)
    def f3u(a):
        a("s_lshl_b32 s6, s2, 2"); a("s_add_u32 s6, s6, %d" % (2048 * 6))
        a("v_mov_b32 v40, 0")
        a("s_cmp_eq_u32 s3, 4"); a("s_cselect_b64 exec, 1, 0")
        a("buffer_store_dword v40, v40, s[68:71], s6 offen sc1")
        a("s_mov_b64 exec, -1")
    def hook_b(a):
        all_check(a, 0)
        a("s_lshl_b32 s6, s4, 9"); a("s_add_u32 s32, s6, 8192")
        a("buffer_load_dwordx4 v[48:51], v41, s[16:19], 0 offen sc1")
        a("buffer_load_dword v52, v42, s[20:23], s6 offen sc1")
        a("buffer_load_dword v53, v42, s[20:23], s32 offen sc1")
    g.ltouch = [(11, f3u), (CFG["HA"], lambda a: all_issue(a, 0)), (CFG["HA"] - 2, hook_b)]
    line_poll(g, 1, 16, 0); flag_rc(g, 2, 5, 4); g.pw = CFG["PW4"]; g.bst = False; g.dyn = CFG["DY"] & 2; g.R = CFG["R4"]
    g.npre = min(g.npre, CFG["NPRE"])
    def epi(a):
        a("s_nop 6")
        for i in range(7):
            for j in range(4):
                if i < 4: a("ds_write_b128 v%d, %s offset:%d" % (SA + (i & 1), vr(g.acc(i, j), 4), (i >> 1) * 32768 + j * 4096))
                elif i < 6: a("ds_write_b128 v%d, %s offset:%d" % (SA + 3 + (i & 1), vr(g.acc(i, j), 4), j * 4096))
                else: a("ds_write_b128 v%d, %s offset:%d" % (SA + 2, vr(g.acc(i, j), 4), j * 2048))
    def etile(a):
        a("v_and_b32 v2, 255, v0"); a("v_lshlrev_b32 v2, 7, v2")
        touch(a, P_WSP, 32768, "s2", 2, 8, 255)
        a("v_cmp_gt_u32 vcc, 112, v9")
        stats_from_sums(a, 52, 53, 54, 1024, 57)
        a("ds_write_b64 v56, v[54:55]")
        a("s_and_saveexec_b64 s[66:67], vcc")
        a("ds_write_b128 v43, v[48:51]")
        a("s_mov_b64 exec, s[66:67]")
        a("s_waitcnt lgkmcnt(0)")
    g.etile = etile; g.etile_n = 1; g.etile_wait = False
    lepi = None
    VLD = 2; VLH = 4; VUV = 6; VO = 7; VOH = 8; VXP = 9; VPM = 14; VXS = 15
    ST = 16; STH = 20; MK = 22; SM = 24; PL = 32; T = 48; UV = 64; ZK = 80; F = 112; PK = 176; VL2 = 222; VUH = 224
    def gelu(a, items, U):
        n = len(items)
        for k, (A, st) in enumerate(items):
            for e in range(4):
                a("v_pk_fma_f32 %s, %s, %s, %s op_sel:[0,1,0] op_sel_hi:[1,1,1]" % (vr(T + 8 * k + 2 * e, 2), vr(U + 2 * e, 2), vr(st, 2), vr(U + 8 + 2 * e, 2)))
        for k, (A, st) in enumerate(items):
            for e in range(4):
                x = vr(A + 2 * e, 2)
                a("v_pk_fma_f32 %s, %s, %s, %s op_sel_hi:[1,0,1]" % (x, x, vr(st, 2), vr(T + 8 * k + 2 * e, 2)))
        for k, (A, st) in enumerate(items):
            for e in range(4): a("v_pk_mul_f32 %s, %s, %s" % (vr(T + 8 * k + 2 * e, 2), vr(A + 2 * e, 2), vr(A + 2 * e, 2)))
        for e in range(4 * n):
            t = vr(T + 2 * e, 2); a("v_pk_fma_f32 %s, %s, s[70:71], v[10:11]" % (t, t))
        for k, (A, st) in enumerate(items):
            for e in range(4):
                t = vr(T + 8 * k + 2 * e, 2); a("v_pk_mul_f32 %s, %s, %s" % (t, t, vr(A + 2 * e, 2)))
        for e in range(8 * n): a("v_exp_f32 v%d, v%d" % (T + e, T + e))
        for e in range(4 * n): a("v_pk_add_f32 %s, %s, v[12:13]" % (vr(T + 2 * e, 2), vr(T + 2 * e, 2)))
        for e in range(8 * n): a("v_rcp_f32 v%d, v%d" % (T + e, T + e))
        for k, (A, st) in enumerate(items):
            for e in range(4):
                t = vr(T + 8 * k + 2 * e, 2); a("v_pk_mul_f32 %s, %s, %s" % (t, t, vr(A + 2 * e, 2)))
    def freg(gi): return F + 16 * gi
    def rd_group(a, gi):
        if gi < 3:
            for i in range(2):
                for h in range(2):
                    off = gi * 32768 + i * 2048
                    if gi < 2: a("ds_read_b128 %s, v%d offset:%d" % (vr(freg(gi) + 8 * i + 4 * h, 4), VLD + h, off))
                    else: a("ds_read_b128 %s, v%d offset:%d" % (vr(freg(gi) + 8 * i + 4 * h, 4), VL2 + h, off - 65536))
            return 4
        for h in range(2): a("ds_read_b128 %s, v%d" % (vr(freg(3) + 4 * h, 4), VLH + h))
        return 2
    def rd_uv(a, gi):
        for q in range(4): a("ds_read_b128 %s, v%d offset:%d" % (vr(UV + 4 * q, 4), VUV if gi < 3 else VUH, gi * 512 + q * 128))
    def items(gi): return [(freg(gi), ST), (freg(gi) + 8, ST + 2)] if gi < 3 else [(freg(3), STH)]
    def store(a, gi, src):
        if gi < 3:
            a("s_add_u32 s6, s%d, 0x8000" % (72 + gi))
            a("buffer_store_dwordx4 %s, v%d, s[24:27], s%d offen sc1" % (vr(src, 4), VO, 72 + gi))
            a("buffer_store_dwordx4 %s, v%d, s[24:27], s6 offen sc1" % (vr(src + 4, 4), VO))
        else:
            a("buffer_store_dwordx4 %s, v%d, s[24:27], s75 offen sc1" % (vr(src, 4), VOH))
    def poll(a):
        for k in range(4):
            a("buffer_load_dwordx2 %s, v%d, s[28:31], 0 offen offset:%d sc1" % (vr(PL + 2 * k, 2), VXP, (k & 1) * 1024 + (k >> 1) * 64))
    def variant(a, G2, G1):
        if CFG["EP"]: a("s_setprio 2")
        rd_uv(a, G2[0])
        rd_group(a, G2[0])
        n1 = rd_group(a, G2[1])
        a("s_waitcnt lgkmcnt(%d)" % n1)
        for x, gi in enumerate(G2):
            gelu(a, items(gi), UV)
            rd_uv(a, G2[1] if x == 0 else G1[0])
            if x == 1:
                for gj in G1: rd_group(a, gj)
            n = len(items(gi))
            for e in range(4 * n): a("v_cvt_pk_bf16_f32 v%d, v%d, v%d" % (PK + e, T + 2 * e, T + 2 * e + 1))
            Z = ZK + 16 * x
            for e in range(4 * n): unpack2(a, Z + 2 * e, PK + e)
            for k in range(n):
                if gi < 3: s_, q_ = vr(SM + 4 * k, 2), vr(SM + 4 * k + 2, 2)
                else: s_, q_ = vr(T, 2), vr(T + 2, 2)
                z = lambda e: vr(Z + 8 * k + 2 * e, 2)
                if x == 0 or gi == 3:
                    a("v_pk_add_f32 %s, %s, %s" % (s_, z(0), z(1)))
                    a("v_pk_mul_f32 %s, %s, %s" % (q_, z(0), z(0)))
                    a("v_pk_fma_f32 %s, %s, %s, %s" % (q_, z(1), z(1), q_))
                    r = (2, 3)
                else: r = range(4)
                for e in r:
                    a("v_pk_add_f32 %s, %s, %s" % (s_, s_, z(e)))
                    a("v_pk_fma_f32 %s, %s, %s, %s" % (q_, z(e), z(e), q_))
            if gi == 3:
                for k in range(2):
                    for c in range(2):
                        d = vr(SM + 4 * k + 2 * c, 2)
                        a("v_pk_fma_f32 %s, %s, %s, %s op_sel:[0,%d,0] op_sel_hi:[1,%d,1]" % (d, vr(T + 2 * c, 2), vr(MK, 2), d, k, k))
            if x == 0: a("s_waitcnt lgkmcnt(0)")
        for k in range(4): a("v_add_f32 v%d, v%d, v%d" % (SM + 2 * k, SM + 2 * k, SM + 2 * k + 1))
        red8(a, [SM, SM + 2, SM + 4, SM + 6])
        a("s_mov_b32 s66, 0x02020202"); a("s_mov_b32 s67, s66")
        a("v_cndmask_b32 v%d, v%d, v%d, s[66:67]" % (SM, SM, SM + 4))
        a("v_cndmask_b32 v%d, v%d, v%d, s[66:67]" % (SM + 1, SM + 2, SM + 6))
        a("ds_bpermute_b32 v%d, v%d, v%d" % (SM, VPM, SM))
        a("v_and_b32 v%d, -2, v%d" % (SM + 1, SM + 1))
        a("ds_bpermute_b32 v%d, v%d, v%d" % (SM + 1, VPM, SM + 1))
        a("s_mov_b64 exec, 0xffff")
        a("s_waitcnt lgkmcnt(0)")
        a("buffer_store_dwordx2 %s, v%d, s[28:31], s32 offen sc1" % (vr(SM, 2), VXS))
        a("s_mov_b64 exec, -1")
        if CFG["EP"]: a("s_setprio 0")
        g.stamp(a, 5)
        for x, gi in enumerate(G1):
            gelu(a, items(gi), UV)
            if x == 0: rd_uv(a, G1[1])
            n = len(items(gi))
            for e in range(4 * n): a("v_cvt_pk_bf16_f32 v%d, v%d, v%d" % (freg(gi) + e, T + 2 * e, T + 2 * e + 1))
            if x == 1: poll(a)
            store(a, gi, freg(gi))
            if x == 0: a("s_waitcnt lgkmcnt(0)")
        g.stamp(a, 6)
        L = a.newlabel("k4_poll"); D = a.newlabel("k4_pdone"); C = a.newlabel("k4_pchk")
        a("s_mov_b32 s66, 0x40000")
        a("s_waitcnt vmcnt(%d)" % len(items(G1[1])))
        a("s_branch %s" % C)
        a.label(L)
        poll(a)
        a("s_waitcnt vmcnt(0)")
        a.label(C)
        a("v_max_u32 v%d, v%d, v%d" % (T, PL + 1, PL + 3))
        a("v_max3_u32 v%d, v%d, v%d, v%d" % (T, T, PL + 5, PL + 7))
        a("v_cmp_eq_u32 vcc, -1, v%d" % T)
        a("s_sub_u32 s66, s66, 1")
        a("s_cbranch_scc1 %s" % D)
        a("s_cbranch_vccz %s" % D)
        a("s_sleep 1")
        a("s_branch %s" % L)
        a.label(D)
        for k in range(2): a("v_pk_add_f32 %s, %s, %s" % (vr(PL + 4 * k, 2), vr(PL + 4 * k, 2), vr(PL + 4 * k + 2, 2)))
        a("s_nop 0")
        red8(a, [PL, PL + 1, PL + 4, PL + 5])
        n_ = 1792
        for k in range(2): a("v_mul_f32 v%d, %s, v%d" % (PL + 4 * k, hex(f32bits(1.0 / n_)), PL + 4 * k))
        for k in range(2): a("v_mul_f32 v%d, %s, v%d" % (ST + 2 * k, hex(f32bits(1.0 / n_)), PL + 4 * k + 1))
        for k in range(2): a("v_fma_f32 v%d, -v%d, v%d, v%d" % (ST + 2 * k, PL + 4 * k, PL + 4 * k, ST + 2 * k))
        for k in range(2): a("v_max_f32 v%d, 0, v%d" % (ST + 2 * k, ST + 2 * k))
        for k in range(2): a("v_add_f32 v%d, %s, v%d" % (ST + 2 * k, hex(f32bits(1e-5)), ST + 2 * k))
        for k in range(2): a("v_rsq_f32 v%d, v%d" % (ST + 2 * k, ST + 2 * k))
        a("s_nop 0")
        for k in range(2): a("v_mul_f32 v%d, -v%d, v%d" % (ST + 2 * k + 1, PL + 4 * k, ST + 2 * k))
        if 3 in G2:
            for c in range(2): a("v_cndmask_b32 v%d, v%d, v%d, s[68:69]" % (STH + c, ST + c, ST + 2 + c))
        for x, gi in enumerate(G2):
            Z = ZK + 16 * x
            for k, (_, st) in enumerate(items(gi)):
                for e in range(4):
                    z = vr(Z + 8 * k + 2 * e, 2)
                    a("v_pk_fma_f32 %s, %s, %s, %s op_sel:[0,0,1] op_sel_hi:[1,0,1]" % (z, z, vr(st, 2), vr(st, 2)))
            for e in range(4 * len(items(gi))): a("v_cvt_pk_bf16_f32 v%d, v%d, v%d" % (T + 8 * x + e, Z + 2 * e, Z + 2 * e + 1))
            store(a, gi, T + 8 * x)
    def common(a):
        K1_ = 2.0 * math.sqrt(2.0 / math.pi) * LOG2E
        R = T
        rm_addr(a, R, VLD, R + 1)
        a("v_and_b32 v%d, 7, v1" % (R + 2)); a("v_bfe_u32 v%d, v1, 2, 1" % (R + 3)); a("v_and_b32 v%d, 3, v1" % (R + 4))
        a("v_add_u32 v%d, 0x10000, v%d" % (VL2, VLD)); a("v_add_u32 v%d, 0x10000, v%d" % (VL2 + 1, VLD + 1))
        a("v_lshlrev_b32 v%d, 4, v%d" % (VUV, R + 2))
        a("v_lshl_add_u32 v%d, v%d, 12, v%d" % (VO, R, VUV))
        a("v_add_u32 v%d, %d, v%d" % (VUV, UVT, VUV))
        a("v_lshl_add_u32 v%d, v%d, 3, v%d" % (R + 5, R + 3, R))
        a("v_lshlrev_b32 v%d, 4, v%d" % (VOH, R + 4))
        a("v_add_u32 v%d, %d, v%d" % (VUH, UVT, VOH))
        a("v_lshl_add_u32 v%d, v%d, 12, v%d" % (VOH, R + 5, VOH))
        a("v_lshlrev_b32 v%d, 1, v%d" % (VLH, R + 4)); a("v_xor_b32 v%d, v%d, v%d" % (VLH, VLH, R + 1)); a("v_xor_b32 v%d, v%d, v%d" % (VLH, VLH, R + 3))
        a("v_lshlrev_b32 v%d, 4, v%d" % (VLH, VLH)); a("v_lshl_add_u32 v%d, v%d, 7, v%d" % (VLH, R + 5, VLH))
        a("v_add_u32 v%d, %d, v%d" % (VLH, 98304, VLH)); a("v_xor_b32 v%d, 16, v%d" % (VLH + 1, VLH))
        a("v_lshlrev_b32 v%d, 3, v%d" % (R + 6, R))
        a("v_lshl_add_u32 v%d, v%d, 11, v%d" % (VXP, R + 2, R + 6))
        a("v_add_u32 v%d, %d, v%d" % (R + 6, RST, R + 6))
        a("ds_read_b64 %s, v%d" % (vr(ST, 2), R + 6)); a("ds_read_b64 %s, v%d offset:64" % (vr(ST + 2, 2), R + 6))
        a("v_lshlrev_b32 v%d, 5, v%d" % (VPM, R + 2)); a("v_lshl_add_u32 v%d, v%d, 2, v%d" % (VPM, R + 1, VPM))
        a("v_lshlrev_b32 v%d, 3, v1" % VXS)
        a("v_cvt_f32_u32 v%d, v%d" % (MK + 1, R + 3)); a("v_sub_f32 v%d, 1.0, v%d" % (MK, MK + 1))
        a("s_lshl_b32 s32, s5, 10"); a("s_lshl_b32 s6, s3, 7"); a("s_add_u32 s32, s32, s6")
        a("s_mov_b32 s68, 0xf0f0f0f0"); a("s_mov_b32 s69, s68")
        a("s_mov_b32 s70, %s" % hex(f32bits(-K1_ * 0.044715))); a("s_mov_b32 s71, s70")
        a("v_mov_b32 v10, %s" % hex(f32bits(-K1_))); a("v_mov_b32 v11, v10")
        a("v_mov_b32 v12, 1.0"); a("v_mov_b32 v13, 1.0")
        for r in range(72, 76):
            a("s_cmp_ge_u32 s%d, %d" % (r, Z2))
            a("s_cselect_b32 s7, %d, 0" % Z2); a("s_cselect_b32 s33, %d, 0" % ZO)
            a("s_sub_u32 s%d, s%d, s7" % (r, r))
            s_lmap(a, r, r, 6)
            a("s_add_u32 s%d, s%d, s33" % (r, r))
        a("s_waitcnt lgkmcnt(0)")
        for c in range(2): a("v_cndmask_b32 v%d, v%d, v%d, s[68:69]" % (STH + c, ST + c, ST + 2 + c))
        g.stamp(a, 3)
        a("s_barrier")
        g.stamp(a, 4)
        LB = a.newlabel("k4_tb"); LE = a.newlabel("k4_te")
        a("s_cmp_lg_u32 s98, 0")
        a("s_cbranch_scc1 %s" % LB)
        variant(a, [0, 1], [2, 3])
        a("s_branch %s" % LE)
        a.label(LB)
        variant(a, [0, 3], [1, 2])
        a.label(LE)
    kn = g.emit(a, tilemap_16x16_r8c4, setup, cpro, lpro, epi, lepi, common, **ch)
    return g, lds

def k5(a, **ch):
    g = Gemm2("k5", 128, 2048, 32, 2, 2, 4096, LP, 224, CFG["S5"], [(8, [(0, "s72")]), (8, [(0, "s73")])])
    Z1 = g.CFREE; BS = Z1 + 16; VO = BS + 4; VLD = VO + 2; SA = VLD + 2; F = SA + 4; T = F + 32
    def setup(a):
        xw_srds2(a, g, P_WSP, 0, P_WS, WS_Z2, 2048 * LP, 0)
        a("s_lshl_b32 s6, s4, 19")
        a("s_add_u32 s32, s6, %s" % hex(WS_Z1)); srd(a, 20, P_WS, "s32", 128 * LP)
        a("s_add_u32 s32, s6, %s" % hex(WS_U)); srd(a, 24, P_WS, "s32", 128 * LP)
        a("s_lshl_b32 s6, s4, 8")
        srd(a, 28, P_BSP, "s6", 256)
        a("s_lshl_b32 s7, s5, 1")
        s_lmap(a, 72, 7, 6, False)
        a("s_add_u32 s7, s7, 1")
        s_lmap(a, 73, 7, 6, False)
        a("s_add_u32 s74, s72, 0x8000"); a("s_add_u32 s75, s73, 0x8000")
    def rm_loads(a):
        rm_addr(a, VO, VLD, 10)
        a("v_lshlrev_b32 v12, 1, v%d" % VO)
        a("v_and_b32 v11, 7, v1"); a("v_lshlrev_b32 v11, 4, v11")
        a("v_lshl_add_u32 v%d, v%d, 12, v11" % (VO, VO))
        for i in range(2): a("buffer_load_ushort v%d, v12, s[28:31], 0 offen offset:%d" % (BS + 2 * i, 16 * i))
        for k in range(4): a("buffer_load_dwordx4 %s, v%d, s[20:23], s%d offen sc1" % (vr(Z1 + 4 * k, 4), VO, 72 + k))
    def cpro(a):
        stage32_addr(a, g, SA, 10)
    g.cpost0 = rm_loads
    g.pf = None
    def lpro(a):
        ctouch(a, g, "k5", "end")
    g.dep = 12
    def pprep(a, r):
        a("v_lshrrev_b32 v%d, 5, v1" % r); a("v_lshlrev_b32 v%d, 7, v%d" % (r, r)); a("v_bfe_u32 v%d, v1, 1, 4" % (r + 1))
        a("v_lshl_add_u32 v%d, v%d, 2, v%d" % (r, r + 1, r))
        a("s_mul_i32 s6, s5, 74"); a("s_add_u32 s6, s6, 37"); a("s_lshr_b32 s6, s6, 8"); a("s_lshl_b32 s6, s6, 9"); a("s_add_u32 s6, s6, 4096")
        a("v_add_u32 v%d, s6, v%d" % (r + 1, r))
        a("s_mul_i32 s6, s5, 74"); a("s_lshr_b32 s6, s6, 8"); a("s_lshl_b32 s6, s6, 9"); a("s_add_u32 s6, s6, 4096")
        a("v_add_u32 v%d, s6, v%d" % (r, r))
    def pissue(a, r):
        for k in range(4): a("buffer_load_dword v%d, v%d, s[68:71], 0 offen offset:%d sc1" % (r + 2 + k, r + (k >> 1), 256 * (k & 1)))
    def pmask(a, r, d):
        a("v_max3_u32 v%d, v%d, v%d, v%d" % (r + 2, r + 2, r + 3, r + 4)); a("v_max_u32 v%d, v%d, v%d" % (r + 2, r + 2, r + 5))
        a("v_cmp_ne_u32 vcc, -1, v%d" % (r + 2))
        a("s_and_b32 s%d, vcc_lo, vcc_hi" % d)
    def pmust(a):
        a("s_lshl_b32 s65, s4, 1"); a("s_bitcmp1_b32 s67, s65"); a("s_cselect_b32 s6, s6, 0")
    g.fl = dict(prep=pprep, issue=pissue, mask=pmask, full=0xffffffff, must=pmust); g.psl = CFG["PS"]; g.pw = CFG["PW5"]
    g.dyn = CFG["DY"] & 4; g.R = CFG["R5"]
    flag_rc(g, 3, 4, 5)
    g.npre = min(g.npre, CFG["NPRE"])
    g.etile = rm_loads; g.etile_n = 6; g.etile_wait = False
    def epi(a):
        stage32(a, SA, [(g.acc(i, j), i * 32768 + j * 8192) for i in range(2) for j in range(2)])
        if CFG["EP"]: a("s_setprio 0")
    def common(a):
        a("s_waitcnt vmcnt(0)")
        for i in range(2): a("v_lshlrev_b32 v%d, 16, v%d" % (BS + 2 * i, BS + 2 * i))
        a("s_waitcnt lgkmcnt(0)")
        g.stamp(a, 3)
        a("s_barrier")
        g.stamp(a, 4)
        for k in range(4):
            for h in range(2): a("ds_read_b128 %s, v%d offset:%d" % (vr(F + 8 * k + 4 * h, 4), VLD + h, (k & 1) * 32768 + (k >> 1) * 2048))
        for k in range(4):
            t = T + 8 * (k & 1)
            for e in range(4): unpack2(a, t + 2 * e, Z1 + 4 * k + e)
            a("s_waitcnt lgkmcnt(%d)" % (6 - 2 * k))
            if DBG["stamp"]: a("s_waitcnt lgkmcnt(0)")
            for e in range(4):
                x = vr(F + 8 * k + 2 * e, 2)
                a("v_pk_add_f32 %s, %s, %s op_sel_hi:[1,0]" % (x, x, vr(BS + 2 * (k >> 1), 2)))
            for e in range(4):
                x = vr(F + 8 * k + 2 * e, 2)
                a("v_pk_mul_f32 %s, %s, %s" % (x, x, vr(t + 2 * e, 2)))
            for e in range(4):
                a("v_cvt_pk_bf16_f32 v%d, v%d, v%d" % (Z1 + 4 * k + e, F + 8 * k + 2 * e, F + 8 * k + 2 * e + 1))
            a("buffer_store_dwordx4 %s, v%d, s[24:27], s%d offen sc1" % (vr(Z1 + 4 * k, 4), VO, 72 + k))
    def extra(a, chained, nxt):
        if chained:
            a("s_waitcnt vmcnt(0)")
            a("s_barrier")
            g.flag_store(a)
        a("s_sub_u32 s4, s2, 224")
        a("v_lshlrev_b32 v2, 7, v0")
        a("v_add_u32 v3, 0x10000, v2")
        touch(a, P_WOUT, 114688, "s4", 2, 8, 4)
        a("buffer_load_dword v5, v3, s[8:11], 0 offen")
        a("s_lshl_b32 s100, s4, 2"); a("s_add_u32 s100, s100, %d" % (2048 * 4))
        a("s_waitcnt vmcnt(0)")
        a("s_branch %s" % nxt)
    g.extra = extra
    kn = g.emit(a, tilemap_16x14, setup, cpro, lpro, epi, None, common, **ch)
    return g, g.LDS_MAIN

ORDER = ["k0", "k1", "k2", "k3", "k4", "k5", "k6"]
def build(path, order=None):
    a = Asm()
    ks = {}
    def small(fn, name):
        m = len(a.lines)
        r = fn(a)
        if DBG["stamp"]:
            body = a.lines[m:]; del a.lines[m:]
            st = Stamper(name)
            armed = False
            for k, l in enumerate(body):
                t = l.strip()
                if t.startswith("s_load_dwordx4 s[60:63]"): armed = True
                if t == "s_endpgm" and not body[k - 1].endswith(":"):
                    a("s_mov_b64 exec, -1"); st.stamp_out(a)
                if t.endswith(":") and "_end" in t:
                    a("s_mov_b64 exec, -1"); st.stamp_out(a); a("s_endpgm")
                a.lines.append(l)
                if armed and t == "s_waitcnt lgkmcnt(0)":
                    st.stamp(a, 0); armed = False; a("v_mov_b32 v254, 0")
            r = (r[0], 256) + r[2:]
        return r
    ks["k0"] = small(k0, "k0")
    if CFG["ST01"]:
        a.lines = [l + " sc1" if ("buffer_store_dwordx" in l and "sc1" not in l) else l for l in a.lines]
    phases = [("k2", k2),
              ("k3", lambda a, **ch: k_res(a, "k3", 1024, WS_O, P_WO, P_X, 0, 2, P_WS, WS_X1, True, CFG["S3"], WS_SO, **ch)),
              ("k4", k4), ("k5", k5),
              ("k6", lambda a, **ch: k_res(a, "k6", 1792, WS_U, P_WOUT, P_WS, WS_X1, 5, P_OUT, 0, False, CFG["S6"], WS_SW, **ch))]
    a.lines.append(".p2align 8")
    prev = p1(a)
    order = ["k0", "k1"]
    ks["k1"] = ("k1_kernel", 256, 256, 512, 163840)
    for i, (nm, fn) in enumerate(phases):
        last = i == 4
        a.lines.append(".p2align 3")
        a.label("L_code_" + nm)
        prev, lds = fn(a, prev=prev, last=last, nxt=None if last else "L_phase_" + phases[i + 1][0])
        assert lds <= 163840
    a.label("L_code_end")
    a("s_endpgm")
    ref = open("cdna_kernels/%s.s.ref" % NAME).read().split("\n")
    head = [l for l in ref if l.startswith(";") and "@launch" not in l and "Override" not in l and "grid=ceil" not in l]
    head = head[:15]
    out = list(head)
    for k in order:
        kn, vg, grid, blk, lds = ks[k]
        out.append("; @launch kernel=%s grid=(%d,1,1) block=(%d,1,1) lds=%d" % (kn, grid, blk, lds))
    out.append('.amdgcn_target "amdgcn-amd-amdhsa--gfx950"')
    out.append(".text")
    out += a.lines
    out.append('.section .rodata,"a"')
    for k, (kn, vg, grid, blk, lds) in ks.items():
        out.append(kernel_desc(kn, vg, 102))
    open(path, "w").write("\n".join(out) + "\n")

if __name__ == "__main__":
    build(sys.argv[1] if len(sys.argv) > 1 else "cdna_kernels/%s.s" % NAME)
```

```python
from gen import *

STAMP_OFF = 0x4000000
KIDX = dict(k0=6, k1=0, k2=1, k3=2, k4=3, k5=4, k6=5)

class Stamper:
    def __init__(self, name): self.name = name; self.post_free = None; self.lwait = False

class Gemm2:
    def __init__(self, name, BM, K, mf, wgm, wgn, ldx, ldw, ntiles, S, groups):
        self.name, self.BM, self.K, self.mf = name, BM, K, mf
        self.wgm, self.wgn, self.ldx, self.ldw, self.ntiles, self.S = wgm, wgn, ldx, ldw, ntiles, S
        self.groups = groups
        self.xskip = False
        self.etile_wait = True
        self.cpost0 = None
        self.cmid = None
        self.ltouch = []
        self.nk = K // 64
        self.XI = BM * 128
        self.goff = []
        o = self.XI
        for nch, _ in groups:
            self.goff.append(o); o += 64 * nch * 16
        self.STG = o
        assert self.STG % 4096 == 0
        self.P = self.STG // 4096
        self.LDS_MAIN = S * self.STG
        self.WM = BM // wgm
        self.NT = self.WM // mf
        self.NS = 4 if mf == 32 else 2
        self.accn = 16 if mf == 32 else 4
        full = [g for g, (n, _) in enumerate(groups) if n == 8]
        half = [g for g, (n, _) in enumerate(groups) if n == 4]
        self.wt = []
        if mf == 32:
            if wgn == 2:
                self.nwa = 1
                for g in full: self.wt.append((0, self.goff[g], 128))
            else:
                self.nwa = 2
                for g in full:
                    for h in range(2): self.wt.append((h, self.goff[g], 128))
            assert not half
        else:
            assert wgn == 2
            self.nwa = 2 + len(half)
            for g in full:
                for o in range(2): self.wt.append((o, self.goff[g], 128))
            for g in half: self.wt.append((2, self.goff[g], 64))
        self.MT = len(self.wt)
        self.VX = 2
        self.VW = self.VX + self.NS
        assert self.VW + self.nwa <= 9
        self.FR = 16
        self.nfr = (self.NT + self.MT) * 4
        self.ACC = self.FR + 2 * self.nfr
        self.nacc = self.NT * self.MT * self.accn
        self.CFREE = self.ACC + self.nacc
        self.prio = 2
        self.pf = None
        self.etile = None
        self.cpro0 = None
        self.extra = None
        self.PFD = 255
        self.etile_n = 0
        self.dep = 8
        self.npre = S - 1
        self.poll = None
        self.flagoff = None
        self.pw = 0
        self.lwait = True
        self.cpre0 = None
        self.lpre = None
        self.fprev = None
        self.dyn = False
        self.R = 8
        self.fl = None
        self.post_free = None
        self.trickle = None
        self.psl = 1
        self.bst = True

    def acc(self, i, j): return self.ACC + (i * self.NT + j) * self.accn
    def xfrag(self, s, j): return self.FR + s * self.nfr + j * 4
    def wfrag(self, s, i): return self.FR + s * self.nfr + (self.NT + i) * 4

    def reads(self, sub, fs):
        xs, ws = [], []
        for j in range(self.NT):
            xs.append("ds_read_b128 %s, v%d offset:%d" % (vr(self.xfrag(fs, j), 4), self.VX + sub, j * self.mf * 128))
        kr = 16 if self.mf == 32 else 32
        for i, (ar, imm, pitch) in enumerate(self.wt):
            for q in range(2):
                ws.append("ds_read_b64_tr_b16 %s, v%d offset:%d" % (vr(self.wfrag(fs, i) + 2 * q, 2), self.VW + ar,
                                                                    imm + (kr * sub + 4 * q) * pitch))
        return ws[0:2] + xs + ws[2:]

    def mfmas(self, fs):
        op = "v_mfma_f32_32x32x16_bf16" if self.mf == 32 else "v_mfma_f32_16x16x32_bf16"
        out = []
        for i in range(self.MT):
            for j in range(self.NT):
                A = self.acc(i, j)
                out.append("%s %s, %s, %s, %s" % (op, vr(A, self.accn), vr(self.wfrag(fs, i), 4),
                                                  vr(self.xfrag(fs, j), 4), vr(A, self.accn)))
        return out

    def compute_addr(self, a):
        mf = self.mf
        if self.wgn == 1:
            a("s_mul_i32 s34, s3, %d" % self.WM); a("s_mov_b32 s35, 0")
        else:
            a("s_lshr_b32 s34, s3, 1"); a("s_mul_i32 s34, s34, %d" % self.WM)
            a("s_and_b32 s35, s3, 1")
        sh = 5 if mf == 32 else 4
        X = self.VX
        a("v_and_b32 v10, %d, v1" % (mf - 1))
        a("v_bfe_u32 v11, v1, 1, 3")
        a("v_lshrrev_b32 v12, %d, v1" % sh)
        a("v_xor_b32 v11, v11, v12")
        a("v_add_u32 v10, s34, v10")
        a("v_lshlrev_b32 v10, 7, v10")
        a("v_lshl_add_u32 v%d, v11, 4, v10" % X)
        for s in range(1, self.NS):
            a("v_xor_b32 v%d, %d, v%d" % (X + s, s * (32 if mf == 32 else 64), X))
        W = self.VW
        a("v_bfe_u32 v10, v1, 2, 2")
        a("v_lshl_add_u32 v10, v12, 3, v10")
        if mf == 32:
            a("v_bfe_u32 v11, v1, 4, 1"); a("v_lshlrev_b32 v11, 5, v11")
            a("v_and_b32 v13, 1, v1"); a("v_lshl_add_u32 v11, v13, 4, v11")
            a("v_bfe_u32 v13, v1, 1, 1"); a("v_lshl_add_u32 v11, v13, 3, v11")
            a("v_bfe_u32 v13, v1, 3, 1"); a("v_lshl_add_u32 v11, v13, 6, v11")
            a("v_lshl_add_u32 v%d, v10, 7, v11" % W)
            if self.wgn == 2:
                a("s_lshl_b32 s6, s35, 6")
                a("v_xor_b32 v%d, s6, v%d" % (W, W))
            else:
                a("v_xor_b32 v%d, 64, v%d" % (W + 1, W))
        else:
            a("v_and_b32 v11, 3, v1"); a("v_lshlrev_b32 v11, 3, v11")
            a("v_bfe_u32 v13, v1, 4, 1")
            if self.nwa == 3:
                a("v_xor_b32 v14, s35, v13"); a("v_lshl_add_u32 v14, v14, 5, v11")
                a("v_lshl_add_u32 v%d, v10, 6, v14" % (W + 2))
            a("v_xor_b32 v13, s35, v13"); a("v_lshl_add_u32 v11, v13, 6, v11")
            a("v_bfe_u32 v13, v1, 3, 1"); a("v_lshl_add_u32 v11, v13, 5, v11")
            a("v_lshl_add_u32 v%d, v10, 7, v11" % W)
            a("v_xor_b32 v%d, 32, v%d" % (W + 1, W))

    def interleave(self, a, mf, rd, first_after=None, tail=()):
        if DBG["nomfma"]: mf = ["s_nop 0"] * len(mf)
        if DBG["noread"]: rd = []
        rd = list(rd) + list(tail)
        n = len(mf)
        per = 2 if self.mf == 32 else 1
        per = max(per, -(-len(rd) // max(1, n - 1)))
        ri = 0
        for t, m in enumerate(mf):
            a(m)
            if t == 0 and first_after:
                for x in first_after: a(x)
            for _ in range(per):
                if ri < len(rd):
                    a(rd[ri]); ri += 1
        while ri < len(rd):
            a(rd[ri]); ri += 1

    def slot_next(self, a):
        a("s_add_u32 s64, s64, %d" % self.STG)
        a("s_cmp_eq_u32 s64, %d" % (self.S * self.STG))
        a("s_cselect_b32 s65, %s, s67" % (hex((-(self.S - 1) * self.STG) & 0xffffffff)))
        a("s_cselect_b32 s64, 0, s64")

    def zero_acc(self, a):
        for r in range(self.nacc):
            a("v_mov_b32 v%d, 0" % (self.ACC + r))

    def compute_main(self, a):
        a("s_mov_b32 s64, 0")
        a("s_mov_b32 s67, %d" % self.STG)
        a("s_mov_b32 s6, %d" % self.nk)
        a("s_barrier")
        self.stamp(a, 1)
        for x in self.reads(0, 0): a(x)
        if self.cpost0: self.cpost0(a)
        if self.cmid: a("s_mov_b32 s97, %d" % self.cmid[0])
        L = a.newlabel(self.name + "_cl")
        a.lines.append(".p2align 4")
        a.label(L)
        self.slot_next(a)
        for sub in range(self.NS):
            fs = sub & 1
            a("s_waitcnt lgkmcnt(0)")
            if sub < self.NS - 1:
                tail = ["v_add_u32 v%d, s65, v%d" % (self.VX + sub + 1, self.VX + sub + 1)]
                if sub == 0:
                    tail.append("v_add_u32 v%d, s65, v%d" % (self.VX, self.VX))
                    if self.pf and self.pf["D"]:
                        tail += ["buffer_load_dword v%d, v15, s[68:71], s96 offen" % self.PFD, "s_add_u32 s96, s96, s97"]
                if sub == self.NS - 2:
                    tail += ["v_add_u32 v%d, s65, v%d" % (self.VW + w, self.VW + w) for w in range(self.nwa)]
                self.interleave(a, self.mfmas(fs), self.reads(sub + 1, fs ^ 1), tail=tail)
            else:
                self.interleave(a, self.mfmas(fs), self.reads(0, fs ^ 1), first_after=["s_sub_u32 s6, s6, 1", "s_barrier"])
        a("s_cmp_lg_u32 s6, %s" % ("s97" if self.cmid else "0"))
        a("s_cbranch_scc1 %s" % L)
        if self.cmid:
            X = a.newlabel(self.name + "_cx")
            a("s_cmp_eq_u32 s6, 0")
            a("s_cbranch_scc1 %s" % X)
            self.cmid[1](a)
            a("s_mov_b32 s97, 0")
            a("s_branch %s" % L)
            a.label(X)
        a("s_waitcnt lgkmcnt(0)")

    def loader_setup(self, a):
        self.pieces = []
        a("s_sub_u32 s34, s3, 4")
        a("v_and_b32 v1, 63, v0")
        a("v_lshrrev_b32 v2, 3, v1")
        a("v_and_b32 v3, 7, v1")
        a("s_lshl_b32 s6, s34, 3")
        a("v_add_u32 v2, s6, v2")
        r = 16
        a("v_bfe_u32 v4, v2, 1, 3")
        a("v_xor_b32 v4, v4, v3")
        a("s_mov_b32 s6, %d" % self.ldx)
        a("v_mul_lo_u32 v5, s6, v2")
        for i in range(self.BM // 32):
            if i == 0: a("v_lshl_add_u32 v%d, v4, 4, v5" % r)
            else: a("v_add_u32 v%d, %d, v%d" % (r, 32 * self.ldx, r - 1))
            self.pieces.append((r, 8, 7)); r += 1
        if self.mf == 32:
            a("v_bfe_u32 v4, v2, 1, 1"); a("v_lshlrev_b32 v4, 2, v4")
        else:
            a("v_bfe_u32 v4, v2, 1, 1"); a("v_lshlrev_b32 v4, 1, v4")
            a("v_bfe_u32 v6, v2, 3, 1"); a("v_lshl_add_u32 v4, v6, 2, v4")
        a("v_xor_b32 v4, v4, v3")
        a("s_mov_b32 s6, %d" % self.ldw)
        a("v_mul_lo_u32 v5, s6, v2")
        a("v_lshl_add_u32 v5, v4, 4, v5")
        def chunkmap(dst, base, ch, cm):
            a("v_add_u32 v%d, %s, v%d" % (dst, cm[0][1], base))
            for fc, bo in cm[1:]:
                adj = bo - 16 * fc
                a("v_add_u32 v7, %d, v%d" % (adj & 0xffffffff, base))
                a("v_cmp_le_u32 vcc, %d, v%d" % (fc, ch))
                a("s_nop 1")
                a("v_cndmask_b32 v%d, v%d, v7, vcc" % (dst, dst))
        for nch, cm in self.groups:
            if nch == 8:
                chunkmap(r, 5, 4, cm)
                a("v_add_u32 v%d, %d, v%d" % (r + 1, 32 * self.ldw, r))
                self.pieces.append((r, 12, 33)); self.pieces.append((r + 1, 12, 33)); r += 2
            else:
                a("v_lshrrev_b32 v2, 2, v1"); a("s_lshl_b32 s35, s34, 4"); a("v_add_u32 v2, s35, v2")
                a("v_and_b32 v3, 3, v1")
                a("v_bfe_u32 v6, v2, 3, 1"); a("v_lshlrev_b32 v6, 1, v6"); a("v_xor_b32 v6, v6, v3")
                a("v_mul_lo_u32 v8, s6, v2"); a("v_lshl_add_u32 v8, v6, 4, v8")
                chunkmap(r, 8, 6, cm)
                self.pieces.append((r, 12, 33)); r += 1
        assert len(self.pieces) == self.P
        self.LFREE = r
        a("s_lshl_b32 s64, s34, 10")
        a("s_add_u32 s65, s64, %d" % (self.S * self.STG))
        a("s_mov_b32 s7, 0")
        a("s_mov_b32 s33, 0")

    def xlike_voffs(self, a, r, pitch, n, extra=()):
        a("v_lshrrev_b32 v2, 3, v1"); a("v_and_b32 v3, 7, v1")
        a("s_lshl_b32 s6, s34, 3"); a("v_add_u32 v2, s6, v2")
        a("v_bfe_u32 v4, v2, 1, 3"); a("v_xor_b32 v4, v4, v3")
        a("s_mov_b32 s6, %d" % pitch); a("v_mul_lo_u32 v5, s6, v2")
        a("v_lshl_add_u32 v%d, v4, 4, v5" % r)
        for i in range(1, n): a("v_add_u32 v%d, %d, v%d" % (r + i, 32 * pitch * i, r))
        for x, off in enumerate(extra):
            for i in range(n): a("v_add_u32 v%d, %d, v%d" % (r + n * (x + 1) + i, off, r + i))

    def dma(self, a, i, vo, srd_, so="0"):
        a("s_add_u32 m0, s64, %d" % (i * 4096))
        a("s_nop 0")
        a("buffer_load_dwordx4 v%d, %s, %s offen lds" % (vo, sr(srd_, 4), so))

    def issue_stage(self, a, first=False):
        if not (DBG["noload"] and not first):
            for i, (vo, srd_, so) in enumerate(self.pieces):
                a("s_add_u32 m0, s64, %d" % (i * 4096))
                a("s_nop 0")
                a("buffer_load_dwordx4 v%d, %s, s%d offen %slds" % (vo, sr(srd_, 4), so, "sc1 " if srd_ == self.dep else ""))
        if self.dyn:
            l1 = a.newlabel(self.name + "_lt"); b1 = a.newlabel(self.name + "_ltb")
            l2 = a.newlabel(self.name + "_pp"); b2 = a.newlabel(self.name + "_ppb")
            a("s_cmp_eq_u32 s99, 0"); a("s_cbranch_scc1 %s" % l1)
            a.label(b1)
            self.select(a, 7, 33)
            a("s_bcnt1_i32_b32 s6, s99"); a("s_cmp_eq_u32 s6, %d" % (self.S - 2)); a("s_cbranch_scc1 %s" % l2)
            a.label(b2)
            OOL.append((l1, b1, lambda a: self.late(a, b1))); OOL.append((l2, b2, lambda a: self.prepoll(a, b2)))
        else:
            a("s_add_u32 s7, s7, 128")
            if self.xskip:
                a("s_and_b32 s6, s7, 0x380"); a("s_cmp_eq_u32 s6, 0x180"); a("s_cselect_b32 s6, 128, 0"); a("s_add_u32 s7, s7, s6")
            a("s_add_u32 s33, s33, %d" % (64 * self.ldw))
        a("s_add_u32 s64, s64, %d" % self.STG)
        a("s_cmp_eq_u32 s64, s65")
        a("s_cselect_b32 s6, %d, 0" % (self.S * self.STG))
        a("s_sub_u32 s64, s64, s6")

    def select(self, a, sx, sw):
        a("s_ff1_i32_b32 s6, s99")
        a("s_bitset0_b32 s99, s6")
        a("s_mul_i32 s%d, s6, %d" % (sw, 64 * self.ldw))
        if self.xskip: s_lmap(a, sx, 6, sx, False)
        else: a("s_lshl_b32 s%d, s6, 7" % sx)

    def prepoll(self, a, back):
        a("s_cmp_eq_u32 s101, 0"); a("s_cbranch_scc1 %s" % back)
        self.fl["issue"](a, 30)

    def late(self, a, back):
        a("s_mov_b32 s99, s101"); a("s_mov_b32 s101, 0")
        a("s_cmp_eq_u32 s99, 0"); a("s_cbranch_scc1 %s" % back)
        a("s_waitcnt vmcnt(%d)" % ((self.S - 1) * self.P))
        L = a.newlabel(self.name + "_ls")
        a("s_mov_b32 s35, %d" % SPB)
        a.label(L)
        self.fl["mask"](a, 30, 6)
        a("s_cmp_eq_u32 s6, %s" % hex(self.fl["full"])); a("s_cbranch_scc1 %s" % back)
        a("s_sub_u32 s35, s35, 1"); a("s_cbranch_scc1 %s" % back)
        a("s_sleep 2")
        self.fl["issue"](a, 30)
        a("s_waitcnt vmcnt(0)")
        a("s_branch %s" % L)

    def loader_first(self, a):
        for st in range(2):
            self.issue_stage(a, True)
        self.q = [0] * self.P + [1] * self.P

    def issue_pre(self, a, st, sel, so_=None):
        if so_ is None:
            so_ = 6
            a("s_mov_b32 s6, %d" % ((lmap(st) if self.xskip else st) * 128 if sel == 8 else st * 64 * self.ldw))
        for i, (vo, srd_, so) in enumerate(self.pieces):
            if srd_ != sel: continue
            a("s_add_u32 m0, s64, %d" % (st * self.STG + i * 4096))
            a("s_nop 0")
            a("buffer_load_dwordx4 v%d, %s, s%d offen %slds" % (vo, sr(srd_, 4), so_, "sc1 " if srd_ == self.dep else ""))
            self.q.append(st)

    def pre_done(self, a):
        n = self.npre
        if self.dyn: self.select(a, 7, 33)
        else:
            a("s_mov_b32 s7, %d" % ((lmap(n) if self.xskip else n) * 128))
            a("s_mov_b32 s33, %d" % (n * 64 * self.ldw))
        a("s_add_u32 s64, s64, %d" % (n * self.STG))

    def loader_main(self, a):
        S, P, nk = self.S, self.P, self.nk
        assert (S - 1) * P + self.etile_n <= 63
        q = self.q
        Pe = P + (1 if self.trickle else 0)
        issued = max(x for x in q if x < 99) + 1
        j = 0
        self.stamp(a, 1)
        def cnt(j): return len(q) - 1 - max(i for i, x in enumerate(q) if x <= j)
        while True:
            a("s_waitcnt vmcnt(%d)" % cnt(j))
            if j == 0: self.stamp(a, 2)
            a("s_barrier")
            n = 0
            while n < 2 and issued <= j + S - 1:
                self.issue_stage(a); q += [issued] * P; issued += 1; n += 1
                if self.trickle:
                    self.trickle(a); q.append(99)
            j += 1
            if issued == j + S - 1 and all(cnt(t) >= (issued - 1 - t) * Pe for t in range(j, issued)): break
        cnt = nk - issued
        assert cnt >= 1
        a("s_mov_b32 s66, %d" % cnt)
        L = a.newlabel(self.name + "_ll")
        a.lines.append(".p2align 4")
        a.label(L)
        a("s_waitcnt vmcnt(%d)" % ((S - 2) * Pe))
        a("s_barrier")
        self.issue_stage(a)
        if self.trickle: self.trickle(a)
        for sg, fn in self.ltouch:
            lo = a.newlabel(self.name + "_t"); lb = a.newlabel(self.name + "_tb")
            assert 1 <= sg <= cnt
            a("s_cmp_eq_u32 s66, %d" % sg)
            a("s_cbranch_scc1 %s" % lo)
            a.label(lb)
            OOL.append((lo, lb, fn))
        a("s_sub_u32 s66, s66, 1")
        a("s_cmp_lg_u32 s66, 0")
        a("s_cbranch_scc1 %s" % L)
        j += cnt
        extra = 0
        while j < nk:
            a("s_waitcnt vmcnt(%d)" % ((nk - 1 - j) * P + extra))
            a("s_barrier")
            if self.etile and not extra:
                self.etile(a); extra = self.etile_n
            j += 1
        if extra and self.etile_wait: a("s_waitcnt vmcnt(0)")
        a("s_barrier")

    def pf_setup(self, a):
        pf = self.pf
        R, C, T, D = pf["R"], pf["C"], pf["T"], pf["D"]
        lr = R.bit_length() - 1
        nx = -(-self.BM // C)
        nr = 64 // R
        lnr = nr.bit_length() - 1
        a("s_lshr_b32 s6, s2, 3")
        a("s_lshr_b32 s7, s6, %d" % lr)
        a("s_and_b32 s6, s6, %d" % (R - 1))
        a("s_mul_i32 s7, s7, %d" % nx)
        a("v_add_u32 v10, s7, v1")
        a("s_mov_b32 s7, %d" % self.ldx)
        a("v_mul_lo_u32 v10, s7, v10")
        a("v_bfrev_b32 v12, 1")
        a("v_cmp_gt_u32 vcc, %d, v1" % nx)
        a("s_lshl_b32 s6, s6, %d" % lnr)
        a("v_and_b32 v11, %d, v1" % (nr - 1))
        a("v_cndmask_b32 v10, v12, v10, vcc")
        a("v_add_u32 v11, s6, v11")
        a("s_mov_b32 s7, %d" % self.ldw)
        a("v_mul_lo_u32 v11, s7, v11")
        a("v_add_u32 v13, %d, v11" % T[0])
        for t in range(1, len(T) + 1):
            if t * nr >= 64: break
            if t < len(T): a("v_add_u32 v14, %d, v11" % T[t])
            a("v_cmp_le_u32 vcc, %d, v1" % (t * nr))
            a("s_nop 1")
            a("v_cndmask_b32 v13, v13, v%d, vcc" % (14 if t < len(T) else 12))
        a("s_movk_i32 s97, 128")
        a("s_cmp_eq_u32 s3, 0")
        a("s_cselect_b64 s[68:69], s[8:9], s[12:13]")
        a("s_cselect_b64 s[70:71], s[10:11], s[14:15]")
        a("s_cselect_b32 s97, s97, %d" % (64 * self.ldw))
        a("s_cselect_b64 vcc, -1, 0")
        a("s_cmp_ge_u32 s3, 2")
        a("s_cselect_b32 s70, 0, s70")
        a("v_cndmask_b32 v15, v13, v10, vcc")
        a("s_mul_i32 s96, s97, %d" % pf["first"])
        for d in range(pf["first"], D):
            self.pf_issue(a)

    def pf_issue(self, a):
        a("buffer_load_dword v%d, v15, s[68:71], s96 offen" % self.PFD)
        a("s_add_u32 s96, s96, s97")

    def stamp(self, a, i):
        if DBG["stamp"]:
            a("s_memtime s[%d:%d]" % (80 + 2 * i, 81 + 2 * i))
            if i == 0:
                a("s_memrealtime s[76:77]")
                for j in range(1, 8): a("s_mov_b64 s[%d:%d], 0" % (80 + 2 * j, 81 + 2 * j))

    def stamp_save(self, a):
        if DBG["stamp"]:
            self.stamp(a, 7)
            a("s_memrealtime s[78:79]")
            a("s_waitcnt lgkmcnt(0)")
            for i in range(10):
                a("v_writelane_b32 v254, s%d, %d" % (76 + 2 * i, 10 * (KIDX[self.name] % 6) + i))

    def stamp_out(self, a):
        if DBG["stamp"]:
            a("s_waitcnt vmcnt(0)")
            self.stamp_save(a)
            a("s_lshl_b32 s6, s2, 3"); a("s_add_u32 s6, s6, s3"); a("s_lshl_b32 s6, s6, 8")
            a("s_add_u32 s6, s6, %s" % hex(STAMP_OFF + KIDX[self.name] * 0x80000))
            srd(a, 8, P_WS, "s6", 256)
            a("v_and_b32 v1, 63, v0"); a("v_lshlrev_b32 v1, 2, v1")
            a("buffer_store_dword v254, v1, s[8:11], 0 offen")

    def flag_store(self, a):
        srd(a, 68, P_WS, WS_FL, FL_BYTES)
        a("v_mov_b32 v10, 0")
        a("s_cmp_eq_u32 s3, 0"); a("s_cselect_b64 exec, 1, 0")
        a("buffer_store_dword v%d, v10, s[68:71], s100 offen sc1" % (self.fprev or 10))
        a("s_mov_b64 exec, -1")

    def emit(self, a, tilemap, setup, cpro, lpro, epi, lepi=None, common=None, prev=None, last=True, nxt=None):
        kn = self.name + "_kernel"
        ldr = a.newlabel(self.name + "_ldr")
        xl = a.newlabel(self.name + "_x")
        self.q = []
        if prev is None: self.dyn = False
        if prev is None:
            kernel_head(a, kn)
            CH["end"] = a.newlabel(self.name + "_end")
            del OOL[:]
            a("s_cmp_ge_u32 s2, 256")
            a("s_cbranch_scc1 %s" % CH["end"])
            load_kernargs(a)
            a("v_lshrrev_b32 v1, 6, v0")
            tilemap(a)
            a("v_readfirstlane_b32 s3, v1")
            a("s_waitcnt lgkmcnt(0)")
            if DBG["stamp"]: a("v_mov_b32 v254, 0")
        else:
            a.label("L_phase_" + self.name)
            a("s_mov_b64 exec, -1")
            prev.stamp_save(a)
            tilemap(a)
        end = CH["end"]
        self.stamp(a, 0)
        if self.extra:
            a("s_cmp_ge_u32 s2, %d" % self.ntiles)
            a("s_cbranch_scc1 %s" % xl)
        setup(a)
        a("s_cmp_ge_u32 s3, 4")
        a("s_cbranch_scc1 %s" % ldr)
        if self.prio: a("s_setprio %d" % self.prio)
        a("v_and_b32 v1, 63, v0")
        self.compute_addr(a)
        if prev is None:
            cpro(a)
            self.zero_acc(a)
        else:
            cpro(a)
            self.fl["prep"](a, 240)
            self.zero_acc(a)
            a("s_waitcnt vmcnt(0)")
            a("s_barrier")
            self.flag_store(a)
            if self.bst: self.stamp(a, 5)
            np_ = a.newlabel(self.name + "_np")
            a("s_cmp_lg_u32 s3, 1")
            a("s_cbranch_scc1 %s" % np_)
            if self.pw: a("s_sleep %d" % self.pw)
            L = a.newlabel(self.name + "_dl"); D = a.newlabel(self.name + "_dd")
            a("s_mov_b32 s66, %d" % SPB)
            a.label(L)
            self.fl["issue"](a, 240)
            a("s_waitcnt vmcnt(0)")
            self.fl["mask"](a, 240, 67)
            a("s_sub_u32 s66, s66, 1"); a("s_cselect_b32 s67, %s, s67" % hex(self.fl["full"]))
            a("s_bcnt1_i32_b32 s6, s67")
            if self.fl.get("must"): self.fl["must"](a)
            a("s_cmp_ge_u32 s6, %d" % (self.R if self.dyn else bin(self.fl["full"]).count("1")))
            a("s_cbranch_scc1 %s" % D)
            if self.psl: a("s_sleep %d" % self.psl)
            a("s_branch %s" % L)
            a.label(D)
            if self.dyn:
                a("v_mov_b32 v240, s67"); a("v_mov_b32 v241, %d" % MASKW)
                a("ds_write_b32 v241, v240")
                a("s_waitcnt lgkmcnt(0)")
            a.label(np_)
            a("s_barrier")
            if self.bst: self.stamp(a, 6)
        if self.flagoff: self.flagoff(a)
        if self.cpre0: self.cpre0(a)
        self.compute_main(a)
        self.stamp(a, 2)
        epi(a)
        cl = a.newlabel(self.name + "_com")
        a("s_branch %s" % cl)
        a.label(ldr)
        self.loader_setup(a)
        if prev is None:
            self.loader_first(a)
        else:
            a("s_setprio 0")
            if prev.lwait: a("s_waitcnt vmcnt(0)")
            if self.lpre: self.lpre(a)
            a("s_barrier")
            for st in range(self.npre): self.issue_pre(a, st, 20 - self.dep)
            if prev.post_free: prev.post_free(a, len(self.q))
            if self.dyn:
                n = self.npre
                self.fl["prep"](a, 30)
                for r in range(32, 36): a("v_mov_b32 v%d, -1" % r)
                a("v_mov_b32 v36, %d" % MASKW)
                a("s_barrier")
                a("ds_read_b32 v36, v36")
                a("s_waitcnt lgkmcnt(0)")
                a("v_readfirstlane_b32 s99, v36")
                fast = a.newlabel(self.name + "_fast"); done = a.newlabel(self.name + "_pdone"); slow = a.newlabel(self.name + "_slow")
                a("s_andn2_b32 s101, %s, s99" % hex(self.fl["full"]))
                a("s_and_b32 s6, s101, %d" % ((1 << n) - 1))
                a("s_cbranch_scc1 %s" % slow)
                for st in range(n): self.issue_pre(a, st, self.dep)
                a("s_andn2_b32 s99, s99, %d" % ((1 << n) - 1))
                a.label(done)
                def slowf(a):
                    q = self.q; self.q = []
                    X, W = [7, 32, 35], [33, 66, 67]
                    for st in range(n): self.select(a, X[st], W[st])
                    for sel in (20 - self.dep, self.dep):
                        for st in range(n): self.issue_pre(a, st, sel, (X if sel == 8 else W)[st])
                    self.q = q
                OOL.append((slow, done, slowf))
            else:
                a("s_barrier")
                for st in range(self.npre): self.issue_pre(a, st, self.dep)
            self.pre_done(a)
        if self.flagoff: self.flagoff(a)
        lpro(a)
        self.loader_main(a)
        if lepi: lepi(a)
        a.label(cl)
        if common: common(a)
        if self.extra:
            OOL.append((xl, None, lambda a: self.extra(a, prev is not None, nxt if not last else end)))
        if last:
            a("s_mov_b64 exec, -1")
            if self.post_free: self.post_free(a, 0)
            if self.flagoff:
                a("s_waitcnt vmcnt(0)")
                a("s_barrier")
                self.flag_store(a)
            self.stamp_out(a)
            a.label(end)
            a("s_endpgm")
            for lo, lb, fn in OOL:
                a.label(lo)
                fn(a)
                if lb: a("s_branch %s" % lb)
        return kn


OOL = []
CH = {}
WS_FL = 0xC0000
FL_BYTES = 0x6000
SPB = 0x40000
MASKW = 163832

def spin(a, name, issue, check, sleep=1, slot=None, wait=True):
    L = a.newlabel(name + "_l"); D = a.newlabel(name + "_d")
    a("s_mov_b32 s66, %d" % SPB)
    a.label(L)
    issue(a)
    if wait: a("s_waitcnt vmcnt(0)")
    check(a)
    a("s_sub_u32 s66, s66, 1")
    a("s_cbranch_scc1 %s" % D)
    a("s_cbranch_vccz %s" % D)
    if sleep: a("s_sleep %d" % sleep)
    a("s_branch %s" % L)
    a.label(D)
    if slot and DBG["stamp"]:
        a("s_waitcnt lgkmcnt(0)")
        a("s_sub_u32 s66, 0x40000, s66")
        a("s_add_u32 s%d, s80, s66" % (80 + 2 * slot)); a("s_addc_u32 s%d, s81, 0" % (81 + 2 * slot))


def xw_srds2(a, g, xp, xoff, wp, woff, wtotal, colbytes, shadow=0):
    ldx = g.ldx
    a("s_mul_i32 s6, s4, %d" % (g.BM * ldx))
    if xoff: a("s_add_u32 s6, s6, %s" % hex(xoff))
    srd(a, 8, xp, "s6", g.BM * ldx)
    a("s_mul_i32 s6, s5, %d" % colbytes)
    a("s_sub_u32 s7, %s, s6" % hex(wtotal))
    if woff: a("s_add_u32 s6, s6, %s" % hex(woff))
    if shadow:
        a("s_and_b32 s14, s5, 7"); a("s_cmp_eq_u32 s14, 3")
        a("s_cselect_b64 s[12:13], %s, %s" % (sr(ptr(P_WS), 2), sr(ptr(wp), 2)))
        a("s_cselect_b32 s14, %s, 0" % hex(shadow + 128))
        a("s_add_u32 s6, s6, s14")
        a("s_add_u32 s12, s12, s6"); a("s_addc_u32 s13, s13, 0")
        a("s_mov_b32 s14, s7"); a("s_mov_b32 s15, 0x00020000")
    else:
        srd(a, 12, wp, "s6", "s7")

def shadow_voff(a, vd, vt, tmp):
    a("v_lshrrev_b32 v%d, 3, v%d" % (vd, vt)); a("v_and_b32 v%d, 7, v%d" % (tmp, vt))
    a("v_lshlrev_b32 v%d, 10, v%d" % (vd, vd)); a("v_lshl_add_u32 v%d, v%d, 4, v%d" % (vd, tmp, vd))
    a("v_add_u32 v%d, 384, v%d" % (vd, vd))

def shadow_srd(a, sd, shadow, slice_bytes, wg):
    a("s_mul_i32 s6, %s, %d" % (wg, slice_bytes))
    a("s_add_u32 s6, s6, %s" % hex(shadow + 128))
    srd(a, sd, P_WS, "s6", slice_bytes)


def touch(a, p, slice_bytes, wg, vtid, sd, vd, off=0):
    a("s_mul_i32 s6, %s, %d" % (wg, slice_bytes))
    if off: a("s_add_u32 s6, s6, %d" % off)
    srd(a, sd, p, "s6", slice_bytes)
    a("buffer_load_dword v%d, v%d, %s, 0 offen" % (vd, vtid, sr(sd, 4)))

Stamper.stamp = Gemm2.stamp
Stamper.stamp_out = Gemm2.stamp_out
Stamper.stamp_save = Gemm2.stamp_save


def lmap(j):
    return j + (j + 4) // 7

def s_lmap(a, dst, src, tmp, bytes_in=True):
    if bytes_in:
        a("s_lshr_b32 s%d, s%d, 7" % (tmp, src)); a("s_add_u32 s%d, s%d, 4" % (tmp, tmp))
    else:
        a("s_add_u32 s%d, s%d, 4" % (tmp, src))
    a("s_mul_i32 s%d, s%d, 37" % (tmp, tmp)); a("s_lshr_b32 s%d, s%d, 8" % (tmp, tmp))
    if bytes_in:
        a("s_lshl_b32 s%d, s%d, 7" % (tmp, tmp)); a("s_add_u32 s%d, s%d, s%d" % (dst, src, tmp))
    else:
        a("s_add_u32 s%d, s%d, s%d" % (dst, src, tmp)); a("s_lshl_b32 s%d, s%d, 7" % (dst, dst))

def red8(a, xs):
    for m in ("quad_perm:[1,0,3,2]", "quad_perm:[2,3,0,1]", "row_half_mirror"):
        if len(xs) < 3: a("s_nop 1")
        for x in xs:
            a("v_add_f32_dpp v%d, v%d, v%d %s row_mask:0xf bank_mask:0xf" % (x, x, x, m))


def code_touch(a, start, end, sd, voff, vd, back=False):
    lp = a.newlabel("pc")
    a("s_getpc_b64 %s" % sr(sd, 2))
    a.label(lp)
    if back:
        a("s_sub_u32 s%d, s%d, %s-%s" % (sd, sd, lp, start))
        a("s_subb_u32 s%d, s%d, 0" % (sd + 1, sd + 1))
    else:
        a("s_add_u32 s%d, s%d, %s-%s" % (sd, sd, start, lp))
        a("s_addc_u32 s%d, s%d, 0" % (sd + 1, sd + 1))
    a("s_mov_b32 s%d, %s-%s" % (sd + 2, end, start))
    a("s_mov_b32 s%d, 0x00020000" % (sd + 3))
    a("buffer_load_dword v%d, v%d, %s, 0 offen" % (vd, voff, sr(sd, 4)))
```

```python
from gen3 import *
import gen3
from kernels import bf16_round, multi_swap_red, multi_dpp_red, stats_from_sums
import kernels as K1

WS_UV = 0x10000
WS_XCH = 0x80000
WS_H1 = 0x3000000
WS_Y = 0x3800000
KN = NAME + '_kernel'
LP = 4096
CFG = dict(S2=4, S3=4, S4=3, S5=4, S6=4, D=0, F=1, PF=1, ST=0, CT=1, SH=1, ET=1, HP=4, IK=0, IF=1, LPR=3, PG=10, H2S=100, H2W=44, H1W=16, NP=1, ZW=4, ACK=0, SPB=0x40000,
           FU=0b1111, OS=1, EP=1, UT=1, PT=2, TK=0, DY=31, R3=8, R4=8, R5=16, R6=14, PW3=0, PW4=0, PW5=0, PW6=0, PS=1, ST01=0, HA=4, MD=2, R2=8, PW2=0, CT0=1, T0=0, T0P=0, TW=3, NT=35, XI=2, XM=8, PA=16, PB=8, W2=1, W1=1, TWS=0, SHK=1, NPRE=9)

def ctouch(a, g, start, end):
    if CFG["CT"]:
        a("v_and_b32 v2, 255, v0"); a("v_lshlrev_b32 v2, 7, v2")
        code_touch(a, "L_code_" + start, "L_code_" + end, 68, 2, 3, True)
        g.q.append(99)
    srd(a, 68, P_WS, WS_FL, FL_BYTES)

def line_poll(g, ph, nflag, sh, tag=False):
    def prep(a, r):
        a("v_lshrrev_b32 v%d, %d, v1" % (r, sh)); a("v_min_u32 v%d, %d, v%d" % (r, nflag - 1, r))
        a("s_lshl_b32 s6, s4, 7"); a("s_add_u32 s6, s6, %d" % (2048 * ph))
        a("v_lshl_add_u32 v%d, v%d, 2, s6" % (r, r))
    full = (1 << (nflag << sh)) - 1
    def mask(a, r, d):
        a(("v_cmp_eq_u32 vcc, v253, v%d" if tag else "v_cmp_ne_u32 vcc, -1, v%d") % (r + 2))
        a("s_and_b32 s%d, vcc_lo, %s" % (d, hex(full)))
    g.fl = dict(prep=prep, issue=lambda a, r: a("buffer_load_dword v%d, v%d, s[68:71], 0 offen sc1" % (r + 2, r)), mask=mask, full=full)
    g.psl = CFG["PS"]

def all_prep(a, lines):
    if lines:
        a("v_lshrrev_b32 v38, 2, v1"); a("v_lshlrev_b32 v38, 7, v38"); a("v_and_b32 v39, 3, v1"); a("v_lshl_add_u32 v38, v39, 4, v38")
    else:
        a("v_lshlrev_b32 v38, 4, v1"); a("v_add_u32 v38, %d, v38" % (2048 * 6))
def all_issue(a, off): a("buffer_load_dwordx4 v[44:47], v38, s[68:71], 0 offen offset:%d sc1" % off)
def all_check(a, off):
    def chk(a):
        a("v_max3_u32 v44, v44, v45, v46"); a("v_max_u32 v44, v44, v47")
        a("v_cmp_eq_u32 vcc, -1, v44")
    ok = a.newlabel("fok")
    chk(a)
    a("s_cbranch_vccz %s" % ok)
    a("s_mov_b32 s32, s66")
    spin(a, "fl", lambda a: all_issue(a, off), chk, 4)
    a("s_mov_b32 s66, s32")
    a.label(ok)

def flag_rc(g, ph, line, ent):
    def f(a):
        a("s_lshl_b32 s100, s%d, 7" % line); a("s_lshl_b32 s6, s%d, 2" % ent)
        a("s_add_u32 s100, s100, s6"); a("s_add_u32 s100, s100, %d" % (2048 * ph))
    g.flagoff = f


WS_MP1 = 0x20000
WS_MODR = 0x18000
XK_SB = 16 * 1024
WS_XK = 0x100000
WS_XR = WS_XK + 256 * XK_SB
XR_CB = 8192 + 8192 + 256
XK_INIT = XK_SB + (16 * XR_CB + 255) // 256 // 16 * 16 + 16
WS_SQ = 0x5000000
WS_SO = 0x5800000
WS_SW = 0x5C00000

def xk_init(a, sd, vm1, v16):
    a("s_mul_i32 s6, s2, %d" % XK_INIT); a("s_add_u32 s6, s6, %s" % hex(WS_XK))
    srd(a, sd, P_WS, "s6", XK_INIT)
    for k in range(3):
        a("s_mov_b32 s6, %d" % (8192 * k))
        a("buffer_store_dwordx4 %s, v%d, %s, s6 offen%s" % (vr(vm1, 4), v16, sr(sd, 4), ["", " sc1", " nt", " sc0 sc1"][CFG["IF"]]))

def sum8(a, b):
    a("v_add_f32 v%d, v%d, v%d" % (b, b, b + 1)); a("v_add_f32 v%d, v%d, v%d" % (b + 2, b + 2, b + 3))
    a("v_add_f32 v%d, v%d, v%d" % (b + 4, b + 4, b + 5)); a("v_add_f32 v%d, v%d, v%d" % (b + 6, b + 6, b + 7))
    a("v_add_f32 v%d, v%d, v%d" % (b, b, b + 2)); a("v_add_f32 v%d, v%d, v%d" % (b + 4, b + 4, b + 6))
    a("v_add_f32 v%d, v%d, v%d" % (b, b, b + 4))

class ModTile:
    def __init__(self, n, base, wsrd, csrd, sbase):
        self.n = n; self.C = base; self.E = base + n; self.W = (base + 2 * n + 3) // 4 * 4
        self.T = self.W + 4 * n; self.AC = self.T + 8; self.vo = self.AC + 8; self.end = self.vo + 2
        self.wsrd, self.csrd, self.sb = wsrd, csrd, sbase
    def issue(self, a, s_row0, s_colb):
        a("v_lshrrev_b32 v%d, 3, v0" % self.vo)
        a("v_add_u32 v%d, %s, v%d" % (self.vo, s_row0, self.vo))
        a("s_movk_i32 s6, 0x3000")
        a("v_mul_lo_u32 v%d, s6, v%d" % (self.vo + 1, self.vo))
        a("v_lshlrev_b32 v%d, 1, v%d" % (self.vo, self.vo))
        a("v_and_b32 v%d, 7, v0" % self.T)
        a("v_lshl_add_u32 v%d, v%d, 4, v%d" % (self.vo + 1, self.T, self.vo + 1))
        for i in range(self.n):
            a("buffer_load_ushort v%d, v%d, %s, 0 offen offset:%d" % (self.C + i, self.vo, sr(self.csrd, 4), 128 * i))
        for i in range(self.n):
            a("s_add_u32 s%d, %s, %d" % (self.sb + i, s_colb, i * 64 * 12288))
            a("buffer_load_dwordx4 %s, v%d, %s, s%d offen%s" % (vr(self.W + 4 * i, 4), self.vo + 1, sr(self.wsrd, 4), self.sb + i, " nt" if CFG["NT"] & 1 else ""))
        return 2 * self.n
    def compute(self, a, younger, lds):
        n, C, E = self.n, self.C, self.E
        a("s_mov_b32 s6, %s" % hex(f32bits(-LOG2E)))
        a("s_waitcnt vmcnt(%d)" % (n + younger))
        for i in range(n): a("v_lshlrev_b32 v%d, 16, v%d" % (C + i, C + i))
        for i in range(n): a("v_mul_f32 v%d, s6, v%d" % (E + i, C + i))
        for i in range(n): a("v_exp_f32 v%d, v%d" % (E + i, E + i))
        a("s_nop 0")
        for i in range(n): a("v_add_f32 v%d, 1.0, v%d" % (E + i, E + i))
        for i in range(n): a("v_rcp_f32 v%d, v%d" % (E + i, E + i))
        a("s_nop 0")
        for i in range(n): a("v_mul_f32 v%d, v%d, v%d" % (C + i, C + i, E + i))
        for i in range(n): a("v_cvt_pk_bf16_f32 v%d, v%d, v%d" % (C + i, C + i, C + i))
        for i in range(n): a("v_lshlrev_b32 v%d, 16, v%d" % (C + i, C + i))
        for i in range(n):
            a("s_waitcnt vmcnt(%d)" % (n - 1 - i + younger))
            for d in range(4): unpack2(a, self.T + 2 * d, self.W + 4 * i + d)
            for e in range(8):
                if i == 0: a("v_mul_f32 v%d, v%d, v%d" % (self.AC + e, C, self.T + e))
                else: a("v_fmac_f32 v%d, v%d, v%d" % (self.AC + e, C + i, self.T + e))
        xs = list(range(self.AC, self.AC + 8)); ts = list(range(self.T, self.T + 8))
        multi_dpp_red(a, xs, [8])
        multi_swap_red(a, "v_add_f32", 16, xs, ts)
        multi_swap_red(a, "v_add_f32", 32, xs, ts)
        a("s_lshl_b32 s6, s3, 8"); a("s_add_u32 s6, s6, %d" % lds)
        a("v_and_b32 v%d, 7, v0" % self.vo)
        a("v_lshl_add_u32 v%d, v%d, 5, s6" % (self.vo, self.vo))
        a("s_mov_b64 exec, 0xff")
        a("ds_write_b128 v%d, %s" % (self.vo, vr(self.AC, 4)))
        a("ds_write_b128 v%d, %s offset:16" % (self.vo, vr(self.AC + 4, 4)))
        a("s_mov_b64 exec, -1")
    def finish(self, a, lds, osrd, s_off, fl=""):
        a("v_lshlrev_b32 v%d, 2, v2" % self.vo)
        for w in range(8): a("ds_read_b32 v%d, v%d offset:%d" % (self.T + w, self.vo, lds + 256 * w))
        a("s_waitcnt lgkmcnt(0)")
        sum8(a, self.T)
        a("buffer_store_dword v%d, v%d, %s, %s offen%s" % (self.T, self.vo, sr(osrd, 4), s_off, fl))

VE = 253
F_AR, F_AC, F_1, F_A2 = 8 * 2048, 9 * 2048, 10 * 2048, 11 * 2048
WS_EP = WS_FL + 0x8000
def p1(a):
    kernel_head(a, KN)
    CH["end"] = a.newlabel("k1_end")
    del OOL[:]
    st = Stamper("k1")
    a("s_cmp_ge_u32 s2, 256")
    a("s_cbranch_scc1 %s" % CH["end"])
    load_kernargs(a)
    a("v_lshrrev_b32 v1, 6, v0")
    a("v_and_b32 v2, 63, v0")
    a("v_readfirstlane_b32 s3, v1")
    tilemap_16x16_r8c4(a)
    a("v_lshlrev_b32 v3, 4, v2")
    a("s_lshl_b32 s7, s4, 4"); a("s_add_u32 s7, s7, s5"); a("s_lshl_b32 s7, s7, 3")
    a("s_add_u32 s32, s7, s3"); a("s_lshl_b32 s32, s32, 11")
    a("s_and_b32 s34, s4, 1"); a("s_lshl_b32 s34, s34, 4"); a("s_add_u32 s34, s34, s5"); a("s_lshl_b32 s34, s34, 7")
    a("s_lshr_b32 s35, s4, 1"); a("s_lshl_b32 s35, s35, 7")
    a("v_lshlrev_b32 v4, 4, v0")
    for e in range(4): a("v_mov_b32 v%d, -1" % (64 + e))
    for e in range(4): a("v_mov_b32 v%d, 0" % (68 + e))
    a("s_waitcnt lgkmcnt(0)")
    if DBG["stamp"]: a("v_mov_b32 v254, 0")
    st.stamp(a, 0)
    a("s_load_dword s33, %s, %s" % (sr(ptr(P_WS), 2), hex(WS_EP)))
    srd(a, 16, P_X, 0, 2048 * 2048)
    a("buffer_load_dwordx4 v[8:11], v3, s[16:19], s32 offen")
    a("buffer_load_dwordx4 v[12:15], v3, s[16:19], s32 offen offset:1024")
    for off, sz, v in ((WS_XCH, 1024, 64), (WS_XR, 1040, 64), (WS_FL, 64, 64), (WS_SUM2, 256, 68)):
        a("s_mul_i32 s6, s2, %d" % sz); a("s_add_u32 s6, s6, %s" % hex(off))
        srd(a, 28, P_WS, "s6", sz)
        a("buffer_store_dwordx4 %s, v4, s[28:31], 0 offen sc1" % vr(v, 4))
    srd(a, 8, P_WMOD, 0, 1024 * 6144 * 2)
    srd(a, 12, P_C, 0, 2048)
    mt = ModTile(2, 72, 8, 12, 20)
    mt.issue(a, "s35", "s34")
    y = 0
    XT = 112; SHV = 144
    a("v_lshrrev_b32 v5, 3, v0"); a("v_and_b32 v7, 7, v0")
    a("v_lshlrev_b32 v6, 3, v5")
    a("v_lshlrev_b32 v33, 12, v5"); a("v_lshl_add_u32 v33, v7, 4, v33")
    a("v_lshlrev_b32 v5, 11, v5"); a("v_lshl_add_u32 v5, v7, 4, v5")
    a("s_lshl_b32 s6, s4, 18"); a("s_lshl_b32 s32, s5, 7"); a("s_add_u32 s32, s32, s6")
    a("s_cmp_lt_u32 s3, 4"); a("s_cselect_b32 s6, %d, 0" % (128 * 2048 - 15 * 128))
    srd(a, 8, P_X, "s32", "s6")
    for i in range(4):
        a("s_mov_b32 s6, %d" % (32 * 2048 * i))
        a("buffer_load_dwordx4 %s, v5, s[8:11], s6 offen" % vr(XT + 4 * i, 4)); y += 1
    shadow_voff(a, 32, 2, 34)
    SHL = ((P_WQKV, WS_SQ, 24576, 3), (P_WO, WS_SO, 8192, 1), (P_WOUT, WS_SW, 14336, 2))
    k = 0
    for pp, sh, sz, n in SHL:
        a("s_cmp_eq_u32 s3, 4"); a("s_cselect_b32 s32, %d, 0" % sz)
        a("s_mul_i32 s6, s2, %d" % sz); srd(a, 24, pp, "s6", "s32")
        for i in range(n):
            a("s_movk_i32 s6, %d" % (8192 * i))
            a("buffer_load_dwordx4 %s, v32, s[24:27], s6 offen nt" % vr(SHV + 4 * k, 4)); y += 1; k += 1
    yt = 0
    if CFG["TW"] == 3:
        a("v_subrev_u32 v39, 320, v0"); a("v_lshlrev_b32 v39, 7, v39")
        touch(a, P_WQKV, 24576, "s2", 39, 24, 250); y += 1; yt += 1
        if CFG["CT0"]: code_touch(a, "L_code_k2", "L_code_k4", 24, 39, 251); y += 1; yt += 1
    srd(a, 68, P_WS, WS_MP1, 65536)
    a("s_lshl_b32 s6, s7, 3"); a("s_add_u32 s6, s6, %s" % hex(WS_ST1))
    srd(a, 72, P_WS, "s6", 64)
    a("s_waitcnt vmcnt(%d)" % (y + 8))
    U = 16
    for d in range(8): unpack2(a, U + 2 * d, 8 + d)
    a("v_pk_add_f32 v[64:65], %s, %s" % (vr(U, 2), vr(U + 2, 2)))
    a("v_pk_add_f32 v[66:67], %s, %s" % (vr(U + 4, 2), vr(U + 6, 2)))
    a("v_pk_add_f32 v[68:69], %s, %s" % (vr(U + 8, 2), vr(U + 10, 2)))
    a("v_pk_add_f32 v[70:71], %s, %s" % (vr(U + 12, 2), vr(U + 14, 2)))
    a("v_pk_add_f32 v[64:65], v[64:65], v[66:67]")
    a("v_pk_add_f32 v[68:69], v[68:69], v[70:71]")
    a("v_pk_add_f32 v[64:65], v[64:65], v[68:69]")
    a("v_add_f32 v64, v64, v65")
    multi_dpp_red(a, [64], [1, 2, 4, 8])
    multi_swap_red(a, "v_add_f32", 16, [64], [65])
    multi_swap_red(a, "v_add_f32", 32, [64], [65])
    a("s_mov_b32 s6, %s" % hex(f32bits(1.0 / 1024)))
    a("v_mul_f32 v64, s6, v64")
    for k in range(8):
        b = U + 2 * k
        a("v_pk_add_f32 %s, %s, v[64:65] op_sel_hi:[1,0] neg_lo:[0,1] neg_hi:[0,1]" % (vr(b, 2), vr(b, 2)))
    a("v_pk_mul_f32 v[66:67], %s, %s" % (vr(U, 2), vr(U, 2)))
    a("v_pk_mul_f32 v[68:69], %s, %s" % (vr(U + 2, 2), vr(U + 2, 2)))
    for k in range(2, 8):
        t = 66 + 2 * (k & 1)
        a("v_pk_fma_f32 %s, %s, %s, %s" % (vr(t, 2), vr(U + 2 * k, 2), vr(U + 2 * k, 2), vr(t, 2)))
    a("v_pk_add_f32 v[66:67], v[66:67], v[68:69]")
    a("v_add_f32 v66, v66, v67")
    multi_dpp_red(a, [66], [1, 2, 4, 8])
    multi_swap_red(a, "v_add_f32", 16, [66], [67])
    multi_swap_red(a, "v_add_f32", 32, [66], [67])
    a("v_mov_b32 v68, %s" % hex(f32bits(1e-5)))
    a("v_fma_f32 v66, v66, s6, v68")
    a("v_rsq_f32 v66, v66")
    a("s_lshl_b32 s6, s3, 3"); a("s_add_u32 s6, s6, 2048")
    a("v_mov_b32 v68, s6")
    a("v_mul_f32 v67, -v64, v66")
    a("ds_write_b64 v68, v[66:67]")
    mt.compute(a, y, 0)
    a("s_waitcnt lgkmcnt(0)")
    a("s_mul_i32 s33, s33, 0x9E3779B1"); a("s_add_u32 s33, s33, 0x7F4A7C15"); a("s_and_b32 s33, s33, -2")
    a("v_mov_b32 v%d, s33" % VE)
    srd(a, 24, P_WS, WS_FL, FL_BYTES)
    a("s_barrier")
    st.stamp(a, 1)
    ldr = a.newlabel("k1_ldr"); nf = a.newlabel("k1_nf")
    a("s_cmp_ge_u32 s3, 4")
    a("s_cbranch_scc1 %s" % ldr)
    a("s_cmp_lg_u32 s3, 0")
    a("s_cbranch_scc1 %s" % nf)
    a("v_lshlrev_b32 v34, 2, v2")
    a("ds_read_b32 v35, v34 offset:2048")
    a("s_lshl_b32 s35, s35, 6"); a("s_lshl_b32 s34, s34, 1"); a("s_add_u32 s34, s34, s35")
    mt.finish(a, 0, 68, "s34", " sc1")
    a("buffer_store_dword v35, v34, s[72:75], 0 offen sc1")
    a("s_lshl_b32 s6, s4, 7"); a("s_lshl_b32 s32, s5, 2"); a("s_add_u32 s32, s32, s6"); a("s_add_u32 s32, s32, %d" % F_AR)
    a("s_lshl_b32 s6, s5, 7"); a("s_lshl_b32 s33, s4, 2"); a("s_add_u32 s33, s33, s6"); a("s_add_u32 s33, s33, %d" % F_AC)
    a("v_mov_b32 v34, s32"); a("v_writelane_b32 v34, s33, 1")
    a("s_mov_b64 exec, 3")
    a("s_waitcnt vmcnt(0)")
    a("buffer_store_dword v%d, v34, s[24:27], 0 offen sc1" % VE)
    a("s_mov_b64 exec, -1")
    a.label(nf)
    a("s_lshl_b32 s6, s4, 7"); a("s_add_u32 s6, s6, %d" % F_AR)
    a("s_lshl_b32 s32, s5, 7"); a("s_add_u32 s32, s32, %d" % (F_AC - 64))
    a("v_and_b32 v34, 31, v2"); a("v_mov_b32 v35, s6"); a("v_mov_b32 v36, s32")
    a("v_cmp_gt_u32 vcc, 16, v34")
    a("s_lshl_b32 s33, s5, 8"); a("s_add_u32 s33, s33, %s" % hex(WS_MP1))
    a("v_cndmask_b32 v35, v36, v35, vcc")
    a("v_lshl_add_u32 v34, v34, 2, v35")
    srd(a, 16, P_WS, "s33", 65536)
    a("s_lshl_b32 s34, s4, 10"); a("s_add_u32 s34, s34, %s" % hex(WS_ST1))
    srd(a, 12, P_WS, "s34", 1024)
    s_lmap(a, 32, 5, 6, False)
    a("s_lshl_b32 s6, s4, 19"); a("s_add_u32 s32, s32, s6")
    a("s_add_u32 s32, s32, %s" % hex(WS_H1))
    srd(a, 28, P_WS, "s32", 128 * LP)
    a("s_lshl_b32 s100, s4, 7"); a("s_lshl_b32 s6, s5, 2"); a("s_add_u32 s100, s100, s6"); a("s_add_u32 s100, s100, %d" % F_1)
    for p in range(8): a("s_mov_b32 s%d, %d" % (68 + p, p * 8192))
    a("v_lshlrev_b32 v3, 2, v2")
    a("s_lshl_b32 s6, s3, 9"); a("s_add_u32 s6, s6, 4096")
    a("v_add_u32 v4, s6, v3"); a("v_lshl_add_u32 v7, v7, 5, s6")
    ur = lambda d: 48 + 2 * d if d < 8 else 128 + 2 * (d - 8)
    a("s_waitcnt vmcnt(%d)" % (6 + yt))
    for d in range(16): unpack2(a, ur(d), XT + d)
    npl = a.newlabel("k1_np")
    a("s_cmp_lg_u32 s3, 1"); a("s_cbranch_scc1 %s" % npl)
    if CFG["PA"]: a("s_sleep %d" % CFG["PA"])
    spin(a, "k1_a", lambda a: a("buffer_load_dword v35, v34, s[24:27], 0 offen sc1"), lambda a: a("v_cmp_ne_u32 vcc, v35, v%d" % VE), CFG["PS"], 4)
    a.label(npl)
    a("s_barrier")
    st.stamp(a, 2)
    for w in range(2):
        for p in range(8): a("buffer_load_dword v%d, v3, s[16:19], s%d offen offset:%d sc1" % (72 + 8 * w + p, 68 + p, 0) if w == 0 else
                             "buffer_load_dword v%d, v39, s[16:19], s%d offen sc1" % (72 + 8 * w + p, 68 + p))
        if w == 0: a("v_add_u32 v39, 4096, v3")
    for i in range(4): a("buffer_load_dwordx2 %s, v6, s[12:15], 0 offen offset:%d sc1" % (vr(16 + 2 * i, 2), 256 * i))
    SA = 88; CA = 96
    a("s_waitcnt vmcnt(12)")
    sum8(a, 72); bf16_round(a, 72, 72)
    a("ds_write_b32 v4, v72")
    a("s_waitcnt vmcnt(4)")
    sum8(a, 80); bf16_round(a, 80, 80); a("v_add_f32 v80, 1.0, v80"); bf16_round(a, 80, 80)
    a("ds_write_b32 v4, v80 offset:256")
    a("ds_read_b128 %s, v7" % vr(SA, 4)); a("ds_read_b128 %s, v7 offset:16" % vr(SA + 4, 4))
    a("ds_read_b128 %s, v7 offset:256" % vr(CA, 4)); a("ds_read_b128 %s, v7 offset:272" % vr(CA + 4, 4))
    a("s_waitcnt vmcnt(0)")
    for d in range(16):
        t = vr(ur(d), 2); sx = vr(16 + 2 * (d >> 2), 2)
        a("v_pk_fma_f32 %s, %s, %s, %s op_sel:[0,0,1] op_sel_hi:[1,0,1]" % (t, t, sx, sx))
    a("s_waitcnt lgkmcnt(0)")
    st.stamp(a, 3)
    for i in range(4):
        for d in range(4 * i, 4 * i + 4):
            t = vr(ur(d), 2)
            a("v_pk_fma_f32 %s, %s, %s, %s" % (t, t, vr(CA + 2 * (d & 3), 2), vr(SA + 2 * (d & 3), 2)))
        for d in range(4 * i, 4 * i + 4): a("v_cvt_pk_bf16_f32 v%d, v%d, v%d" % (XT + d, ur(d), ur(d) + 1))
        a("s_mov_b32 s6, %d" % (32 * LP * i))
        a("buffer_store_dwordx4 %s, v33, s[28:31], s6 offen sc1" % vr(XT + 4 * i, 4))
    a("s_branch L_phase_k2")
    a.label(ldr)
    l4 = a.newlabel("k1_l4")
    a("s_cmp_eq_u32 s3, 4")
    a("s_cbranch_scc1 %s" % l4)
    if CFG["TW"] != 3:
        a("v_subrev_u32 v4, 320, v0"); a("v_lshlrev_b32 v4, 7, v4")
        if CFG["TWS"] and CFG["TW"] == 1: a("s_sleep %d" % CFG["TWS"])
        if CFG["TW"] == 1: touch(a, P_WQKV, 24576, "s2", 4, 8, 250)
        if CFG["CT0"]: code_touch(a, "L_code_k2", "L_code_k4", 8, 4, 251)
    a("s_barrier")
    if CFG["TW"] == 4:
        a("v_subrev_u32 v4, 320, v0"); a("v_lshlrev_b32 v4, 7, v4")
        if CFG["TWS"]: a("s_sleep %d" % CFG["TWS"])
        touch(a, P_WQKV, 24576, "s2", 4, 8, 250)
    a("s_branch L_phase_k2")
    a.label(l4)
    k = 0
    a("s_waitcnt vmcnt(0)")
    for pp, sh, sz, n in SHL:
        shadow_srd(a, 8, sh, sz, "s2")
        for i in range(n):
            a("s_movk_i32 s6, %d" % (8192 * i))
            a("buffer_store_dwordx4 %s, v32, s[8:11], s6 offen sc1" % vr(SHV + 4 * k, 4)); k += 1
    a("s_lshl_b32 s6, s2, 2"); a("s_add_u32 s6, s6, %d" % F_A2)
    a("v_mov_b32 v34, 0")
    a("s_mov_b64 exec, 1")
    a("s_waitcnt vmcnt(0)")
    a("buffer_store_dword v%d, v34, s[24:27], s6 offen sc1" % VE)
    a("s_barrier")
    return st

def pspin(a, name, regs, issue, gap, slot=None):
    L = a.newlabel(name + "_l"); D = a.newlabel(name + "_d")
    n = len(regs)
    a("s_mov_b32 s66, %d" % CFG["SPB"])
    for k, r in enumerate(regs):
        issue(a, r)
        if k < n - 1: a("s_sleep %d" % gap)
    a.label(L)
    for k, r in enumerate(regs):
        a("s_waitcnt vmcnt(%d)" % (n - 1))
        a("v_cmp_eq_u32 vcc, -1, v%d" % r)
        a("s_sub_u32 s66, s66, 1")
        a("s_cbranch_scc1 %s" % D)
        a("s_cbranch_vccz %s" % D)
        issue(a, r)
    a("s_branch %s" % L)
    a.label(D)
    if slot and DBG["stamp"]:
        a("s_waitcnt lgkmcnt(0)")
        a("s_sub_u32 s66, 0x40000, s66")
        a("s_add_u32 s%d, s80, s66" % (80 + 2 * slot)); a("s_addc_u32 s%d, s81, 0" % (81 + 2 * slot))

def k2(a, **ch):
    g = Gemm2("k2", 128, 1024, 32, 2, 2, LP, 6144, 256, CFG["S2"],
              [(8, [(0, 0)]), (8, [(0, 2048)]), (8, [(0, 4096)])])
    lds = max(g.LDS_MAIN, 81920)
    g.xskip = True
    WF = g.CFREE
    TR = WF + 8
    RAW = WF + 12
    VIM = 2 * 24576; KVF = 65536; ZF = KVF + 8192
    g.pf = None
    def setup(a):
        xw_srds2(a, g, P_WS, WS_H1, P_WQKV, 0, 1024 * 6144, 128, WS_SQ * CFG["SH"])
        a("s_lshl_b32 s6, s5, 12")
        srd(a, 24, P_WPHI, "s6", 4096)
        a("s_mul_i32 s6, s5, %d" % (16 * XK_SB)); a("s_add_u32 s6, s6, %s" % hex(WS_XK))
        srd(a, 16, P_WS, "s6", 16 * XK_SB)
        a("s_mul_i32 s6, s5, %d" % XR_CB); a("s_add_u32 s6, s6, %s" % hex(WS_XR))
        srd(a, 20, P_WS, "s6", XR_CB)
    def cpro(a):
        s_lmap(a, 32, 5, 6, False)
        a("s_lshl_b32 s6, s4, 19"); a("s_add_u32 s32, s32, s6")
        a("s_add_u32 s32, s32, %s" % hex(WS_O)); srd(a, 28, P_WS, "s32", 128 * LP)
        a("v_bfe_u32 v10, v1, 2, 2")
        a("v_lshrrev_b32 v13, 5, v1")
        a("v_lshl_add_u32 v10, v13, 3, v10")
        a("v_bfe_u32 v11, v1, 4, 1"); a("v_lshlrev_b32 v11, 5, v11")
        a("v_and_b32 v12, 1, v1"); a("v_lshl_add_u32 v11, v12, 4, v11")
        a("v_bfe_u32 v12, v1, 1, 1"); a("v_lshl_add_u32 v11, v12, 3, v11")
        a("s_lshr_b32 s33, s3, 1")
        a("s_lshl_b32 s6, s35, 13"); a("s_add_u32 s6, s6, %d" % VIM)
        a("v_lshl_add_u32 v%d, v10, 6, v11" % TR); a("v_add_u32 v%d, s6, v%d" % (TR, TR))
        a("s_mul_i32 s6, s35, 24576"); a("s_lshl_b32 s7, s33, 6"); a("s_add_u32 s6, s6, s7")
        a("v_mul_u32_u24 v10, 192, v10"); a("v_add3_u32 v%d, v10, v11, s6" % (TR + 1))
        a("v_and_b32 v10, 31, v1"); a("v_lshlrev_b32 v10, 4, v10")
        a("v_lshl_add_u32 v%d, v13, 14, v10" % (TR + 2))
        a("s_lshl_b32 s6, s35, 1"); a("s_add_u32 s6, s6, s33")
        a("s_lshl_b32 s7, s6, 16"); a("s_lshl_b32 s32, s4, 10"); a("s_add_u32 s72, s7, s32")
        a("s_add_u32 s73, s72, %d" % (2 * XK_SB))
        a("s_lshl_b32 s6, s6, 7"); a("s_lshl_b32 s7, s4, 9"); a("s_add_u32 s74, s6, s7"); a("s_add_u32 s74, s74, 8192")
        a("v_and_b32 v10, 0x13, v1")
        a("v_bfe_u32 v11, v1, 2, 1"); a("v_lshl_add_u32 v10, v11, 3, v10")
        a("v_bfe_u32 v11, v1, 3, 1"); a("v_lshl_add_u32 v10, v11, 2, v10")
        a("v_lshlrev_b32 v%d, 2, v10" % (TR + 3))
        a("s_lshl_b32 s96, s4, 2"); a("s_add_u32 s96, s96, 16384")
        a("s_cmp_eq_u32 s3, 0"); a("s_cselect_b64 s[98:99], 1, 0")
        a("v_mov_b32 v14, 0")
    def lpro(a):
        ctouch(a, g, "k2", "k4")
    MW = RAW + 20; MC = 216; ME = 224; MT_ = 232; MA = 240
    def cpost0(a):
        a("v_and_b32 v10, 0x13, v1")
        a("v_bfe_u32 v11, v1, 2, 1"); a("v_lshl_add_u32 v10, v11, 3, v10")
        a("v_bfe_u32 v11, v1, 3, 1"); a("v_lshl_add_u32 v10, v11, 2, v10")
        a("v_lshlrev_b32 v10, 1, v10")
        a("v_lshrrev_b32 v11, 5, v1"); a("v_lshl_add_u32 v10, v11, 9, v10")
        a("s_lshl_b32 s32, s35, 11")
        for t in range(2):
            for e in range(8):
                a("buffer_load_ushort v%d, v10, s[24:27], s32 offen offset:%d" % (RAW + 8 * t + e, (16 * t + e) * 64))
        if CFG["MD"] == 1: mt_issue(a)
        if CFG["XI"] == 2 and not CFG["XM"]: xk_own(a)
    def xk_own(a):
        for e in range(4): a("v_mov_b32 v%d, -1" % (MA + e))
        for q in range(4):
            a("buffer_store_dwordx4 %s, v%d, s[16:19], s%d offen offset:%d sc1" % (vr(MA, 4), TR + 2, 72 + (q >> 1), (q & 1) * 512))
    def cmid(a):
        if CFG["MD"] == 2: mt_issue(a)
        xk_own(a)
        if CFG["W1"] == 2:
            a("s_lshl_b32 s32, s2, 13"); srd(a, 68, P_WO, "s32", 8192)
            a("v_lshlrev_b32 v10, 7, v0"); a("buffer_load_dword v250, v10, s[68:71], 0 offen")
    if CFG["XI"] == 2 and CFG["XM"]: g.cmid = (CFG["XM"], cmid)
    g.cpost0 = cpost0
    def mt_issue(a, sd=68):
        a("s_lshr_b32 s32, s2, 6"); a("s_lshl_b32 s32, s32, 2"); a("s_add_u32 s32, s32, s3"); a("s_lshl_b32 s32, s32, 6")
        a("s_lshl_b32 s66, s32, 1")
        srd(a, sd, P_C, "s66", 128)
        a("v_lshrrev_b32 v10, 3, v1"); a("v_lshlrev_b32 v11, 1, v10")
        for i in range(8): a("buffer_load_ushort v%d, v11, %s, 0 offen offset:%d" % (MC + i, sr(sd, 4), 16 * i))
        a("s_mul_i32 s32, s32, 12288"); a("s_and_b32 s66, s2, 63"); a("s_lshl_b32 s66, s66, 7")
        a("s_add_u32 s32, s32, s66"); a("s_add_u32 s32, s32, 4096")
        srd(a, sd, P_WMOD, "s32", 64 * 12288 - 4096 - 63 * 128)
        a("v_mul_u32_u24 v10, 0x3000, v10"); a("v_and_b32 v11, 7, v1"); a("v_lshl_add_u32 v10, v11, 4, v10")
        for i in range(8):
            a("s_mov_b32 s32, %d" % (8 * 12288 * i))
            a("buffer_load_dwordx4 %s, v10, %s, s32 offen%s" % (vr(MW + 4 * i, 4), sr(sd, 4), " nt" if CFG["NT"] & 2 else ""))
    if CFG["MD"] == 0: g.cpre0 = mt_issue
    def mt_compute(a):
        n, C, E = 8, MC, ME
        a("s_mov_b32 s6, %s" % hex(f32bits(-LOG2E)))
        for i in range(n): a("v_lshlrev_b32 v%d, 16, v%d" % (C + i, C + i))
        for i in range(n): a("v_mul_f32 v%d, s6, v%d" % (E + i, C + i))
        for i in range(n): a("v_exp_f32 v%d, v%d" % (E + i, E + i))
        for i in range(n): a("v_add_f32 v%d, 1.0, v%d" % (E + i, E + i))
        for i in range(n): a("v_rcp_f32 v%d, v%d" % (E + i, E + i))
        for i in range(n): a("v_mul_f32 v%d, v%d, v%d" % (C + i, C + i, E + i))
        for i in range(n): a("v_cvt_pk_bf16_f32 v%d, v%d, v%d" % (C + i, C + i, C + i))
        for i in range(n): a("v_lshlrev_b32 v%d, 16, v%d" % (C + i, C + i))
        for i in range(n):
            t = MT_ if i & 1 else ME
            for d in range(4): unpack2(a, t + 2 * d, MW + 4 * i + d)
            for e in range(8):
                if i == 0: a("v_mul_f32 v%d, v%d, v%d" % (MA + e, C, t + e))
                else: a("v_fmac_f32 v%d, v%d, v%d" % (MA + e, C + i, t + e))
        xs = list(range(MA, MA + 8)); ts = list(range(MT_, MT_ + 8))
        multi_dpp_red(a, xs, [8])
        multi_swap_red(a, "v_add_f32", 16, xs, ts)
        multi_swap_red(a, "v_add_f32", 32, xs, ts)
        for e in range(1, 8):
            a("s_mov_b32 s32, %s" % hex((0xff << (8 * e)) & 0xffffffff)); a("s_mov_b32 s33, %s" % hex((0xff << (8 * e)) >> 32))
            a("v_cndmask_b32 v%d, v%d, v%d, s[32:33]" % (MA, MA, MA + e))
        a("s_and_b32 s6, s2, 63"); a("s_lshl_b32 s6, s6, 8"); a("s_add_u32 s6, s6, %d" % WS_MODR)
        srd(a, 68, P_WS, "s6", 256)
        a("v_and_b32 v%d, 7, v1" % MT_); a("v_lshrrev_b32 v%d, 3, v1" % (MT_ + 1))
        a("v_lshlrev_b32 v%d, 2, v%d" % (MT_ + 1, MT_ + 1)); a("v_lshl_add_u32 v%d, v%d, 5, v%d" % (MT_, MT_, MT_ + 1))
        a("buffer_atomic_add_f32 v%d, v%d, s[68:71], 0 offen" % (MA, MT_))
    def lpre(a):
        sk = a.newlabel("k2_a2")
        a("s_cmp_lg_u32 s3, 4"); a("s_cbranch_scc1 %s" % sk)
        srd(a, 68, P_WS, WS_FL + F_A2, 1024)
        a("v_lshlrev_b32 v38, 4, v1")
        def chk(a):
            for e in range(4): a("v_xor_b32 v%d, v%d, v%d" % (44 + e, 44 + e, VE))
            a("v_or3_b32 v44, v44, v45, v46"); a("v_or_b32 v44, v44, v47")
            a("v_cmp_ne_u32 vcc, 0, v44")
        if CFG["PB"]: a("s_sleep %d" % CFG["PB"])
        spin(a, "k2_a", lambda a: all_issue(a, 0), chk, 8)
        a.label(sk)
    g.lpre = lpre; g.fprev = VE
    line_poll(g, 10, 16, 0, True); g.pw = CFG["PW2"]; g.dyn = CFG["DY"] & 16; g.R = CFG["R2"]; g.bst = False; g.lwait = False
    def hint(a):
        a("s_mov_b64 exec, s[98:99]")
        a("buffer_store_dword v14, v14, s[20:23], s96 offen sc1")
        a("s_mov_b64 exec, -1")
    def kvphase(a):
        KV = g.acc(1, 0); Z = g.acc(1, 1); FA = g.acc(2, 0); ON = RAW
        for half in range(2):
            for t in range(4):
                T = half * 4 + t
                for q in range(2):
                    a("ds_read_b64_tr_b16 %s, v%d offset:%d" % (vr(FA + 8 * t + 2 * q, 2), TR + 1, (16 * T + 4 * q) * 192))
                    a("ds_read_b64_tr_b16 %s, v%d offset:%d" % (vr(FA + 8 * t + 4 + 2 * q, 2), TR, (16 * T + 4 * q) * 64))
            if half == 0:
                for e in range(4): a("v_mov_b32 v%d, 0x3f803f80" % (ON + e))
            if half + 2 == CFG["HP"]: hint(a)
            if DBG["stamp"] and half == 0: a("s_waitcnt lgkmcnt(0)")
            for t in range(4):
                a("s_waitcnt lgkmcnt(%d)" % (12 - 4 * t))
                first = half == 0 and t == 0
                a("v_mfma_f32_32x32x16_bf16 %s, %s, %s, %s" % (vr(KV, 16), vr(FA + 8 * t, 4), vr(FA + 8 * t + 4, 4), "0" if first else vr(KV, 16)))
                a("v_mfma_f32_32x32x16_bf16 %s, %s, %s, %s" % (vr(Z, 16), vr(ON, 4), vr(FA + 8 * t, 4), "0" if first else vr(Z, 16)))
        if CFG["HP"] == 4: hint(a)
        a("s_nop 10")
        for q in range(4):
            a("buffer_store_dwordx4 %s, v%d, s[16:19], s%d offen offset:%d sc1" % (vr(KV + 4 * q, 4), TR + 2, 72 + (q >> 1), (q & 1) * 512))
        a("s_mov_b32 exec_hi, 0")
        a("buffer_store_dword v%d, v%d, s[20:23], s74 offen sc1" % (Z, TR + 3))
        a("s_mov_b64 exec, -1")
        if CFG["ACK"] & 1: a("s_waitcnt vmcnt(0)")
        if CFG["HP"] == 5: hint(a)
    def epi(a):
        P = g.FR
        a("s_waitcnt vmcnt(0)")
        for e in range(8):
            a("v_lshl_or_b32 v%d, v%d, 16, v%d" % (WF + e, RAW + 1 + 2 * e, RAW + 2 * e))
        if CFG["MD"] == 3: mt_issue(a, 24)
        a("s_mov_b32 s70, %s" % hex(f32bits(LOG2E))); a("s_mov_b32 s71, s70")
        a("v_and_b32 v4, 31, v1"); a("v_add_u32 v4, s34, v4")
        a("v_lshrrev_b32 v5, 5, v1"); a("v_lshlrev_b32 v5, 4, v5")
        a("s_mul_i32 s32, s35, 24576"); a("s_lshl_b32 s33, s35, 13"); a("s_add_u32 s33, s33, %d" % VIM)
        a("v_mul_u32_u24 v6, 192, v4"); a("v_add3_u32 v6, v6, v5, s32")
        a("v_lshl_add_u32 v7, v4, 6, v5"); a("v_add_u32 v7, s33, v7")
        for i in range(2):
            for j in range(2):
                for e in range(8):
                    A = g.acc(i, j)
                    a("v_cvt_pk_bf16_f32 v%d, v%d, v%d" % (P + (i * 2 + j) * 8 + e, A + 2 * e, A + 2 * e + 1))
        for i in (1, 0):
            for j in range(2):
                A = g.acc(i, j); pk = P + (i * 2 + j) * 8
                a("v_mfma_f32_32x32x16_bf16 %s, %s, %s, 0" % (vr(A, 16), vr(WF, 4), vr(pk, 4)))
                a("v_mfma_f32_32x32x16_bf16 %s, %s, %s, %s" % (vr(A, 16), vr(WF + 4, 4), vr(pk + 4, 4), vr(A, 16)))
        for j in range(2):
            A = g.acc(2, j)
            for e in range(8):
                a("v_cvt_pk_bf16_f32 v%d, v%d, v%d" % (P + 32 + e, A + 2 * e, A + 2 * e + 1))
            for t in range(2):
                a("ds_write_b128 v7, %s offset:%d" % (vr(P + 32 + 4 * t, 4), j * 32 * 64 + t * 32))
            if j == 0: a("s_nop 1")
        EN = g.acc(2, 0)
        for i in (1, 0):
            for j in range(2):
                A = g.acc(i, j); pk = P + (i * 2 + j) * 8
                a("v_max3_f32 v10, v%d, v%d, v%d" % (A, A + 1, A + 2))
                a("v_min3_f32 v12, v%d, v%d, v%d" % (A, A + 1, A + 2))
                for e in range(3, 15, 2):
                    a("v_max3_f32 v10, v10, v%d, v%d" % (A + e, A + e + 1))
                    a("v_min3_f32 v12, v12, v%d, v%d" % (A + e, A + e + 1))
                a("v_max_f32 v10, v10, v%d" % (A + 15))
                a("v_min_f32 v12, v12, v%d" % (A + 15))
                a("v_mov_b32 v11, v10"); a("v_mov_b32 v13, v12")
                a("s_nop 1")
                a("v_permlane32_swap_b32 v10, v11"); a("v_permlane32_swap_b32 v12, v13")
                a("v_max_f32 v10, v10, v11"); a("v_min_f32 v12, v12, v13")
                a("v_mul_f32 v10, s70, v10"); a("v_mul_f32 v12, s70, v12")
                for e in range(8):
                    a("v_pk_fma_f32 %s, %s, s[70:71], v[12:13] op_sel_hi:[1,1,0] neg_lo:[0,1,0] neg_hi:[0,1,0]" % (vr(EN + 2 * e, 2), vr(A + 2 * e, 2)))
                    a("v_pk_fma_f32 %s, %s, s[70:71], v[10:11] op_sel_hi:[1,1,0] neg_lo:[0,0,1] neg_hi:[0,0,1]" % (vr(A + 2 * e, 2), vr(A + 2 * e, 2)))
                for e in range(16):
                    a("v_exp_f32 v%d, v%d" % (A + e, A + e))
                    a("v_exp_f32 v%d, v%d" % (EN + e, EN + e))
                a("v_pk_add_f32 v[10:11], %s, %s" % (vr(A, 2), vr(A + 2, 2)))
                a("v_pk_add_f32 v[12:13], %s, %s" % (vr(EN, 2), vr(EN + 2, 2)))
                for e in range(2, 8):
                    a("v_pk_add_f32 v[10:11], v[10:11], %s" % vr(A + 2 * e, 2))
                    a("v_pk_add_f32 v[12:13], v[12:13], %s" % vr(EN + 2 * e, 2))
                a("v_add_f32 v10, v10, v11"); a("v_add_f32 v12, v12, v13")
                a("v_mov_b32 v11, v10"); a("v_mov_b32 v13, v12")
                a("s_nop 1")
                a("v_permlane32_swap_b32 v10, v11"); a("v_permlane32_swap_b32 v12, v13")
                a("v_add_f32 v10, v10, v11"); a("v_add_f32 v12, v12, v13")
                a("v_rcp_f32 v10, v10"); a("v_rcp_f32 v12, v12")
                a("s_nop 0")
                if i == 1 and j == 1 and CFG["HP"] == 0: hint(a)
                for e in range(8):
                    a("v_pk_mul_f32 %s, %s, v[10:11] op_sel_hi:[1,0]" % (vr(A + 2 * e, 2), vr(A + 2 * e, 2)))
                    a("v_pk_mul_f32 %s, %s, v[12:13] op_sel_hi:[1,0]" % (vr(EN + 2 * e, 2), vr(EN + 2 * e, 2)))
                for e in range(8):
                    a("v_cvt_pk_bf16_f32 v%d, v%d, v%d" % (pk + e, A + 2 * e, A + 2 * e + 1))
                for e in range(8):
                    a("v_cvt_pk_bf16_f32 v%d, v%d, v%d" % (A + e, EN + 2 * e, EN + 2 * e + 1))
                if i == 1:
                    for q in range(4):
                        src = vr(pk + 4 * q, 4) if q < 2 else vr(A + 4 * (q - 2), 4)
                        a("ds_write_b128 v6, %s offset:%d" % (src, j * 32 * 192 + q * 32))
                if i == 1 and j == 1:
                    if CFG["HP"] == 1: hint(a)
                    g.stamp(a, 3)
                    a("s_waitcnt lgkmcnt(0)")
                    a("s_barrier")
                    kvphase(a)
                    if CFG["MD"] == 4: mt_issue(a, 24)
                    g.stamp(a, 4)
        if CFG["MD"] >= 3: a("s_waitcnt vmcnt(0)")
        mt_compute(a)
        a("s_lshl_b32 s6, s35, 12"); a("s_add_u32 s6, s6, %d" % KVF)
        a("v_lshl_add_u32 v6, v1, 4, s6")
        a("s_lshl_b32 s6, s35, 7"); a("s_add_u32 s6, s6, %d" % ZF)
        a("v_add_u32 v7, s6, v5")
        if CFG["OS"] == 1:
            a("v_and_b32 v4, 15, v1"); a("v_add_u32 v4, s34, v4"); a("v_bfe_u32 v3, v1, 4, 1")
            a("v_lshl_add_u32 v3, v3, 5, v5"); a("v_lshl_add_u32 v4, v4, 12, v3")
        else:
            a("s_lshl_b32 s6, s3, 12")
            a("v_and_b32 v2, 31, v1"); a("v_lshl_add_u32 v2, v2, 6, v5"); a("v_add_u32 v2, s6, v2")
            a("v_lshl_add_u32 v3, v1, 4, s6")
            a("v_lshrrev_b32 v4, 2, v1"); a("v_add_u32 v4, s34, v4"); a("v_and_b32 v5, 3, v1")
            a("v_lshlrev_b32 v5, 4, v5"); a("v_lshl_add_u32 v4, v4, 12, v5")
        a("s_lshl_b32 s72, s35, 6")
        for k in range(1, 4): a("s_add_u32 s%d, s72, %d" % (72 + k, 16 * k * LP))
        g.stamp(a, 5)
        a("s_barrier")
        g.stamp(a, 6)
        KV = g.acc(1, 0); Z = g.acc(1, 1); NUM = [g.acc(2, 0), RAW + 20]; DEN = [g.acc(2, 1), RAW + 36]
        for T in range(4): a("ds_read_b128 %s, v7 offset:%d" % (vr(Z + 4 * T, 4), T * 32))
        for T in range(4): a("ds_read_b128 %s, v6 offset:%d" % (vr(KV + 4 * T, 4), T * 1024))
        def phq(j, T): return vr(P + j * 8 + 4 * T, 4) if T < 2 else vr(g.acc(0, j) + 4 * (T - 2), 4)
        a("s_waitcnt lgkmcnt(%d)" % (0 if DBG["stamp"] else 4))
        for j in range(2):
            for T in range(4):
                a("v_mfma_f32_32x32x16_bf16 %s, %s, %s, %s" % (vr(DEN[j], 16), vr(Z + 4 * T, 4), phq(j, T), "0" if T == 0 else vr(DEN[j], 16)))
        a("s_waitcnt lgkmcnt(0)")
        for j in range(2):
            for T in range(4):
                a("v_mfma_f32_32x32x16_bf16 %s, %s, %s, %s" % (vr(NUM[j], 16), vr(KV + 4 * T, 4), phq(j, T), "0" if T == 0 else vr(NUM[j], 16)))
            if j == 0:
                for jj in range(2): a("v_add_f32 v%d, %s, v%d" % (8 + 2 * jj, hex(f32bits(1e-6)), DEN[jj]))
                for jj in range(2): a("v_rcp_f32 v%d, v%d" % (8 + 2 * jj, 8 + 2 * jj))
        for j in range(2):
            if j == 1: a("s_nop 2")
            for e in range(8):
                a("v_pk_mul_f32 %s, %s, %s op_sel_hi:[1,0]" % (vr(NUM[j] + 2 * e, 2), vr(NUM[j] + 2 * e, 2), vr(8 + 2 * j, 2)))
            for e in range(8):
                a("v_cvt_pk_bf16_f32 v%d, v%d, v%d" % (DEN[j] + e, NUM[j] + 2 * e, NUM[j] + 2 * e + 1))
            if CFG["OS"] == 1:
                for e in range(4): a("v_permlane16_swap_b32 v%d, v%d" % (DEN[j] + e, DEN[j] + 4 + e))
            else:
                for h in range(2): a("ds_write_b128 v2, %s offset:%d" % (vr(DEN[j] + 4 * h, 4), 2048 * j + 32 * h))
                for h in range(2): a("ds_read_b128 %s, v3 offset:%d" % (vr(DEN[j] + 8 + 4 * h, 4), 2048 * j + 1024 * h))
                if j == 0: continue
            for jj in ([j] if CFG["OS"] == 1 else [0, 1]):
                for h in range(2):
                    if CFG["OS"] != 1: a("s_waitcnt lgkmcnt(%d)" % (0 if DBG["stamp"] else [5, 4, 1, 0][2 * jj + h]))
                    a("buffer_store_dwordx4 %s, v4, s[28:31], s%d offen sc1" % (vr(DEN[jj] + 4 * h + (0 if CFG["OS"] == 1 else 8), 4), 72 + 2 * jj + h))
    def etile(a):
        a("v_and_b32 v3, 255, v0"); a("v_lshlrev_b32 v2, 7, v3")
        if CFG["W1"] == 1: touch(a, P_WO, 8192, "s2", 2, 8, 60)
        if CFG["W2"] == 1: touch(a, P_WIN, 28672, "s2", 2, 12, 61)
    g.etile = etile; g.etile_n = (CFG["W1"] == 1) + (CFG["W2"] == 1); g.etile_wait = False
    flag_rc(g, 0, 4, 5)
    def lepi(a):
        PL = 144; FLG = ZF + 512
        a("v_lshlrev_b32 v7, 4, v1")
        a("s_lshl_b32 s6, s4, 14")
        a("v_add_u32 v16, s6, v7")
        for k in range(1, 4): a("v_add_u32 v%d, %d, v16" % (16 + k, 4096 * k))
        a("v_and_b32 v10, 15, v1")
        a("v_lshlrev_b32 v21, 2, v10"); a("v_add_u32 v21, 16384, v21")
        a("s_lshl_b32 s6, s4, 9")
        a("v_add_u32 v22, s6, v7")
        a("v_add_u32 v24, 4096, v7")
        a("v_lshlrev_b32 v25, 3, v1"); a("v_add_u32 v25, 8192, v25"); a("v_add_u32 v23, 4096, v25")
        a("v_add_u32 v26, %d, v7" % KVF)
        a("v_lshlrev_b32 v27, 2, v1"); a("v_add_u32 v27, %d, v27" % ZF)
        a("s_lshl_b32 s32, s4, 2"); a("s_add_u32 s32, s32, %d" % (16384 + 128))
        a("v_mov_b32 v28, 0"); a("v_mov_b32 v29, %d" % FLG)
        a("ds_write_b32 v29, v28")
        a("s_setprio %d" % CFG["LPR"])
        a("s_waitcnt vmcnt(0) lgkmcnt(0)")
        a("s_barrier")
        g.stamp(a, 3)
        lz = a.newlabel("k2_lz"); lg = a.newlabel("k2_lg"); nr2 = a.newlabel("k2_nr2"); nr3 = a.newlabel("k2_nr3")
        a("s_cmp_eq_u32 s34, 1"); a("s_cbranch_scc1 %s" % lz)
        a("s_cmp_eq_u32 s34, 2"); a("s_cbranch_scc1 %s" % lg)
        a("s_cmp_eq_u32 s34, 3"); a("s_cbranch_scc1 %s" % nr2)
        a("s_sleep %d" % CFG["H1W"])
        pspin(a, "k2_h", [36, 37, 38, 39][:CFG["NP"]], lambda a, r: a("buffer_load_dword v%d, v21, s[20:23], 0 offen sc1" % r), CFG["PG"])
        a("ds_write_b32 v29, v29")
        g.stamp(a, 4)
        def hint2(a):
            a("s_mov_b64 exec, 1")
            a("buffer_store_dword v28, v28, s[20:23], s32 offen sc1")
            a("s_mov_b64 exec, -1")
        def r_issue(a):
            hx = 0
            for p in range(16):
                a("buffer_load_dwordx4 %s, v%d, s[16:19], 0 offen offset:%d sc1" % (vr(PL + 4 * p, 4), 16 + (p >> 2), (p & 3) * 1024))
            if CFG["H2S"] < 100:
                a("s_sleep %d" % CFG["H2S"])
                hint2(a); hx = 1
            for p in range(1, 16):
                a("s_waitcnt vmcnt(%d)" % (15 + hx - p))
                if p == 1 and CFG["H2S"] == 100: hint2(a); hx += 1
                for h in range(2): a("v_pk_add_f32 %s, %s, %s" % (vr(PL + 2 * h, 2), vr(PL + 2 * h, 2), vr(PL + 4 * p + 2 * h, 2)))
        def r_check(a):
            a("v_pk_add_f32 v[30:31], %s, %s" % (vr(PL, 2), vr(PL + 2, 2)))
            a("v_cvt_pk_bf16_f32 v32, v%d, v%d" % (PL, PL + 1)); a("v_cvt_pk_bf16_f32 v33, v%d, v%d" % (PL + 2, PL + 3))
            a("v_cmp_u_f32 vcc, v30, v31")
            a("v_mov_b32 v34, v32"); a("v_mov_b32 v35, v33")
        spin(a, "k2_r", r_issue, r_check, 0, 1, False)
        a("v_permlane32_swap_b32 v32, v34"); a("v_permlane32_swap_b32 v33, v35")
        a("s_mov_b32 exec_hi, 0")
        a("buffer_store_dwordx4 v[32:35], v22, s[20:23], 0 offen sc1")
        a("s_mov_b64 exec, -1")
        if CFG["H2S"] == 101: hint2(a)
        g.stamp(a, 5)
        a("s_branch %s" % nr2)
        a.label(lz)
        L = a.newlabel("k2_fl"); D = a.newlabel("k2_fd")
        a("s_mov_b32 s66, 0x1000000")
        a.label(L)
        a("s_sleep 2")
        a("ds_read_b32 v30, v29")
        a("s_waitcnt lgkmcnt(0)")
        a("v_cmp_eq_u32 vcc, 0, v30")
        a("s_sub_u32 s66, s66, 1")
        a("s_cbranch_scc1 %s" % D)
        a("s_cbranch_vccnz %s" % L)
        a.label(D)
        a("s_sleep %d" % CFG["ZW"])
        def z_issue(a):
            for p in range(16):
                a("buffer_load_dwordx2 %s, v%d, s[20:23], 0 offen offset:%d sc1" % (vr(PL + 2 * p, 2), 25 if p < 8 else 23, (p & 7) * 512))
            for p in range(1, 16):
                a("s_waitcnt vmcnt(%d)" % (15 - p))
                a("v_pk_add_f32 %s, %s, %s" % (vr(PL, 2), vr(PL, 2), vr(PL + 2 * p, 2)))
        spin(a, "k2_z", z_issue, lambda a: a("v_cmp_u_f32 vcc, v%d, v%d" % (PL, PL + 1)), 4, 2, False)
        a("v_cvt_pk_bf16_f32 v30, v%d, v%d" % (PL, PL + 1))
        a("ds_write_b32 v27, v30")
        a("s_waitcnt lgkmcnt(0)")
        g.stamp(a, 5)
        a("s_branch %s" % nr2)
        a.label(lg)
        a("s_sleep %d" % CFG["H2W"])
        pspin(a, "k2_h2", [40, 41, 42, 43][:CFG["NP"]], lambda a, r: a("buffer_load_dword v%d, v21, s[20:23], 0 offen offset:128 sc1" % r), CFG["PG"])
        g.stamp(a, 6)
        def g_issue(a):
            for i in range(8): a("buffer_load_dwordx4 %s, v%d, s[20:23], 0 offen offset:%d sc1" % (vr(PL + 4 * i, 4), 7 if i < 4 else 24, (i & 3) * 1024))
        def g_check(a):
            a("v_max3_u32 v30, v%d, v%d, v%d" % (PL + 1, PL + 3, PL + 5))
            a("v_max3_u32 v31, v%d, v%d, v%d" % (PL + 7, PL + 9, PL + 11))
            for k in range(2):
                a("v_max3_u32 v30, v30, v%d, v%d" % (PL + 13 + 8 * k, PL + 15 + 8 * k))
                a("v_max3_u32 v31, v31, v%d, v%d" % (PL + 17 + 8 * k, PL + 19 + 8 * k))
            a("v_max3_u32 v30, v30, v%d, v%d" % (PL + 29, PL + 31))
            a("v_max_u32 v30, v30, v31")
            a("v_cmp_eq_u32 vcc, -1, v30")
        spin(a, "k2_g", g_issue, g_check, 0, 2)
        for h in range(8): a("ds_write_b128 v26, %s offset:%d" % (vr(PL + 4 * h, 4), h * 1024))
        a("s_waitcnt lgkmcnt(0)")
        a.label(nr2)
        a("s_barrier")
    kn = g.emit(a, tilemap_16x16_r8c4, setup, cpro, lpro, epi, lepi, **ch)
    return g, lds

def rm_addr(a, vrow, vld, t):
    a("v_lshrrev_b32 v%d, 3, v1" % t)
    a("s_lshl_b32 s32, s3, 4")
    a("v_add_u32 v%d, s32, v%d" % (vrow, t))
    a("v_and_b32 v%d, 7, v1" % vld)
    a("v_lshlrev_b32 v%d, 1, v%d" % (vld, vld))
    a("v_xor_b32 v%d, v%d, v%d" % (vld, vld, t))
    a("v_lshlrev_b32 v%d, 4, v%d" % (vld, vld))
    a("v_lshl_add_u32 v%d, v%d, 8, v%d" % (vld, vrow, vld))
    a("v_xor_b32 v%d, 16, v%d" % (vld + 1, vld))

def stage32_addr(a, g, SA, t):
    a("v_and_b32 v%d, 31, v1" % t); a("v_add_u32 v%d, s34, v%d" % (t, t))
    a("v_lshrrev_b32 v%d, 5, v1" % SA); a("v_lshlrev_b32 v%d, 1, v%d" % (SA, SA))
    a("v_and_b32 v%d, 7, v1" % (SA + 1)); a("v_xor_b32 v%d, v%d, v%d" % (SA, SA, SA + 1))
    a("v_lshlrev_b32 v%d, 4, v%d" % (SA, SA)); a("v_lshl_add_u32 v%d, v%d, 8, v%d" % (SA, t, SA))
    if g.wgn == 2:
        a("s_lshl_b32 s6, s35, 7"); a("v_add_u32 v%d, s6, v%d" % (SA, SA))
    for k, x in enumerate((16, 64, 80)): a("v_xor_b32 v%d, %d, v%d" % (SA + 1 + k, x, SA))

def stage32(a, SA, tiles):
    a("s_nop 10")
    for A, off in tiles:
        for q in range(4):
            a("ds_write_b128 v%d, %s offset:%d" % (SA + q, vr(A + 4 * q, 4), off))

def compact8(a, dst, vals, vperm, sm):
    a("v_mov_b32 v%d, v%d" % (dst, vals[0]))
    for c in range(1, len(vals)):
        a("s_mov_b32 s%d, %s" % (sm, hex(0x01010101 << c))); a("s_mov_b32 s%d, s%d" % (sm + 1, sm))
        a("v_cndmask_b32 v%d, v%d, v%d, %s" % (dst, dst, vals[c], sr(sm, 2)))
    a("ds_bpermute_b32 v%d, v%d, v%d" % (dst, vperm, dst))

def k_res(a, name, K, xoff, wp, resp, resoff, gate_idx, outp, outoff, stats, S, shadow, **ch):
    g = Gemm2(name, 128, K, 32, 4, 1, LP, 2048, 256, S, [(8, [(0, 0)])])
    g.xskip = True
    RX = g.CFREE; GA = RX + 8; CB = GA + 8; VO2 = CB + 8; VO4 = VO2 + 1; VLD = VO2 + 2; VAT = VO2 + 4; VPM = VO2 + 5; VGT = VO2 + 6
    F = VO2 + 8; T = F + 16; SA = T + 16
    lds = g.LDS_MAIN + 1024 + 32768 + 2048
    def setup(a):
        xw_srds2(a, g, P_WS, xoff, wp, 0, K * 2048, 128, shadow * CFG["SH"])
        a("s_lshl_b32 s6, s4, 18"); a("s_lshl_b32 s7, s5, 7"); a("s_add_u32 s6, s6, s7")
        a("s_sub_u32 s7, %d, s6" % (2048 * 2048))
        if resoff:
            a("s_add_u32 s32, s6, %s" % hex(resoff)); srd(a, 16, resp, "s32", "s7")
        else:
            srd(a, 16, resp, "s6", "s7")
        if outoff:
            a("s_add_u32 s32, s6, %s" % hex(outoff)); srd(a, 20, outp, "s32", "s7")
        else:
            srd(a, 20, outp, "s6", "s7")
        if stats:
            s_lmap(a, 32, 5, 6, False)
            a("s_lshl_b32 s6, s4, 19"); a("s_add_u32 s32, s32, s6")
            a("s_add_u32 s32, s32, %s" % hex(WS_Y)); srd(a, 72, P_WS, "s32", 128 * LP)
            a("s_lshl_b32 s6, s4, 9"); a("s_add_u32 s6, s6, %s" % hex(WS_SUM2))
            srd(a, 28, P_WS, "s6", 8192 + 512)
        a("s_lshl_b32 s6, s5, 8"); a("s_add_u32 s6, s6, %d" % (WS_MODR + (gate_idx - 2) * 4096))
        srd(a, 24, P_WS, "s6", 8192 + 256)
        a("s_movk_i32 s96, 0x4000")
        a("s_mov_b32 s97, 0x8000")
        a("s_movk_i32 s98, 0x2000")
    g.pf = None
    def rm_loads(a):
        rm_addr(a, VO4, VLD, 10)
        a("v_and_b32 v11, 7, v1")
        a("v_lshlrev_b32 v12, 5, v11"); a("v_lshlrev_b32 v11, 4, v11")
        a("v_lshl_add_u32 v%d, v%d, 11, v11" % (VO2, VO4))
        a("v_lshl_add_u32 v%d, v%d, 12, v11" % (VO4, VO4))
        a("buffer_load_dwordx4 %s, v%d, s[16:19], 0 offen sc1" % (vr(RX, 4), VO2))
        a("buffer_load_dwordx4 %s, v%d, s[16:19], s96 offen sc1" % (vr(RX + 4, 4), VO2))
        a("v_add_u32 v%d, %d, v12" % (VGT, g.LDS_MAIN))
        if stats:
            a("v_and_b32 v11, 7, v1"); a("v_lshlrev_b32 v11, 5, v11"); a("v_lshl_add_u32 v%d, v10, 2, v11" % VPM)
            a("v_and_b32 v11, 15, v1"); a("v_bfe_u32 v10, v1, 4, 1")
            a("s_lshl_b32 s32, s3, 6")
            a("v_lshl_add_u32 v11, v11, 2, s32"); a("v_lshl_add_u32 v%d, v10, 13, v11" % VAT)
    def cpro(a):
        stage32_addr(a, g, SA, 10)
    def cpost0(a):
        rm_loads(a)
        if stats and CFG["W2"] == 2:
            a("s_mul_i32 s32, s2, 28672"); srd(a, 68, P_WIN, "s32", 28672)
            a("v_lshlrev_b32 v10, 7, v0"); a("buffer_load_dword v250, v10, s[68:71], 0 offen")
    g.cpost0 = cpost0
    def lpro(a):
        ctouch(a, g, "k3" if stats else "k6", "k5" if stats else "end")
        if stats: all_prep(a, True)
    if stats:
        line_poll(g, 0, 16, 0); flag_rc(g, 1, 4, 5); g.pw = CFG["PW3"]; g.dyn = CFG["DY"] & 1; g.R = CFG["R3"]
    else:
        line_poll(g, 3, 14, 1); g.pw = CFG["PW6"]; g.dyn = CFG["DY"] & 8; g.R = CFG["R6"]
    g.npre = min(g.npre, CFG["NPRE"])
    UVW = 98304 + 1024; TB = UVW + 32768
    def uv_map(a):
        a("s_lshr_b32 s6, s2, 3")
        a("s_cmp_ge_u32 s6, 14"); a("s_cselect_b32 s7, 14, 0"); a("s_cselect_b32 s32, 1, 0")
        a("s_sub_u32 s7, s6, s7")
        a("s_and_b32 s33, s2, 1"); a("s_lshl_b32 s33, s33, 1"); a("s_add_u32 s32, s32, s33")
        a("s_cmp_ge_u32 s7, 7"); a("s_cselect_b32 s33, 21, 0"); a("s_add_u32 s33, s33, s7")
        a("s_bfe_u32 s6, s2, 0x20001"); a("s_mul_i32 s6, s6, 7"); a("s_add_u32 s33, s33, s6")
        a("s_cmp_lt_u32 s7, 14"); a("s_cselect_b32 s99, -1, 0")
        a("s_lshl_b32 s32, s32, 2"); a("s_add_u32 s32, s32, s3"); a("s_sub_u32 s32, s32, 4"); a("s_lshl_b32 s32, s32, 6")
    def uv_issue(a):
        uv_map(a)
        a("s_lshl_b32 s6, s32, 2"); a("s_add_u32 s6, s6, %d" % (WS_MODR + 4096))
        srd(a, 68, P_WS, "s6", 4096 + 256)
        a("s_mul_i32 s6, s32, 7168"); a("s_lshl_b32 s7, s33, 7"); a("s_add_u32 s6, s6, s7")
        a("s_and_b32 s7, s99, %d" % (64 * 7168))
        srd(a, 8, P_WIN, "s6", "s7")
        a("v_lshrrev_b32 v2, 3, v1"); a("v_and_b32 v3, 7, v1")
        a("v_bfe_u32 v4, v1, 4, 1"); a("v_lshlrev_b32 v4, 2, v4"); a("v_xor_b32 v3, v3, v4")
        a("v_mul_u32_u24 v2, 7168, v2"); a("v_lshl_add_u32 v2, v3, 4, v2")
        a("s_lshl_b32 s7, s3, 13"); a("s_add_u32 s7, s7, %d" % (UVW - 4 * 8192))
        a("s_mov_b32 s6, 0")
        for i in range(8):
            a("s_add_u32 m0, s7, %d" % (i * 1024))
            if i: a("s_add_u32 s6, s6, %d" % (8 * 7168))
            else: a("s_nop 0")
            a("buffer_load_dwordx4 v2, s[8:11], s6 offen lds")
        a("v_lshlrev_b32 v2, 2, v1")
        a("s_movk_i32 s6, 0x1000")
        a("buffer_load_dword v%d, v2, s[68:71], s6 offen sc1" % UM)
        a("buffer_load_dword v%d, v2, s[68:71], 0 offen sc1" % (UM + 1))
    def ptouch(a):
        a("v_mul_u32_u24 v60, 7168, v1")
        a("s_xor_b32 s6, s32, 512"); a("s_mul_i32 s6, s6, 7168"); a("s_lshl_b32 s7, s33, 7"); a("s_add_u32 s6, s6, s7")
        a("s_and_b32 s7, s99, %d" % (64 * 7168))
        srd(a, 68, P_WIN, "s6", "s7")
        a("buffer_load_dword v72, v60, s[68:71], 0 offen")
    def post_free(a, younger):
        sk = a.newlabel("k2_pf")
        a("s_cmp_lt_u32 s3, 4"); a("s_cbranch_scc1 %s" % sk)
        uv_map(a)
        if CFG["PT"] == 2: ptouch(a)
        uv_compute(a, younger)
        if CFG["PT"] == 3: ptouch(a)
        a.label(sk)
    if stats: g.post_free = post_free
    UM = 200
    def uv_compute(a, younger):
        AD = 76; AF = 88; BF = 120; D = 152; nt = (CFG["PT"] == 2) + younger
        a("s_lshl_b32 s6, s3, 9"); a("s_add_u32 s6, s6, %d" % (TB - 2048))
        a("v_lshl_add_u32 v2, v1, 1, s6")
        a("v_mov_b32 v3, 0")
        a("ds_write_b16 v2, v3 offset:256")
        a("v_and_b32 v4, 31, v1"); a("v_lshrrev_b32 v5, 5, v1"); a("v_lshl_add_u32 v6, v5, 4, s6")
        a("v_min_u32 v7, 2, v4"); a("v_lshl_add_u32 v%d, v7, 7, v6" % AD)
        a("v_subrev_u32 v7, 4, v4"); a("v_min_u32 v7, 2, v7"); a("v_lshl_add_u32 v%d, v7, 7, v6" % (AD + 1))
        a("v_bfe_u32 v10, v1, 2, 2"); a("v_lshl_add_u32 v10, v5, 3, v10")
        a("v_bfe_u32 v11, v1, 4, 1"); a("v_lshlrev_b32 v11, 5, v11")
        a("v_and_b32 v13, 1, v1"); a("v_lshl_add_u32 v11, v13, 4, v11")
        a("v_bfe_u32 v13, v1, 1, 1"); a("v_lshl_add_u32 v11, v13, 3, v11")
        a("v_bfe_u32 v13, v1, 3, 1"); a("v_lshl_add_u32 v11, v13, 6, v11")
        a("s_lshl_b32 s7, s3, 13"); a("s_add_u32 s7, s7, %d" % (UVW - 4 * 8192))
        a("v_lshl_add_u32 v11, v10, 7, v11"); a("v_add_u32 v%d, s7, v11" % (AD + 2))
        a("v_xor_b32 v%d, 64, v%d" % (AD + 3, AD + 2))
        a("v_and_b32 v10, 0x33, v1")
        a("v_bfe_u32 v11, v1, 2, 1"); a("v_lshl_add_u32 v10, v11, 3, v10")
        a("v_bfe_u32 v11, v1, 3, 1"); a("v_lshl_add_u32 v10, v11, 2, v10")
        a("v_lshlrev_b32 v10, 2, v10")
        a("s_lshl_b32 s6, s33, 8"); a("s_add_u32 s6, s6, %s" % hex(WS_UV))
        a("s_and_b32 s7, s99, %d" % (16384 + 256))
        srd(a, 68, P_WS, "s6", "s7")
        a("s_movk_i32 s6, 0x4000")
        a("s_waitcnt vmcnt(%d)" % nt)
        for s_ in range(2):
            for h in range(2):
                for q in range(2):
                    a("ds_read_b64_tr_b16 %s, v%d offset:%d" % (vr(BF + 8 * s_ + 4 * h + 2 * q, 2), AD + 2 + h, (16 * s_ + 4 * q) * 128))
        for w in range(2):
            b = UM + w
            if w == 0:
                bf16_round(a, b, b)
                a("v_add_f32 v%d, 1.0, v%d" % (b, b))
            a("v_cvt_pk_bf16_f32 v%d, v%d, v%d" % (b, b, b))
            a("ds_write_b16 v2, v%d offset:%d" % (b, 128 * w))
        a("s_waitcnt lgkmcnt(2)")
        for s_ in range(4):
            for h in range(2): a("ds_read_b128 %s, v%d offset:%d" % (vr(AF + 8 * s_ + 4 * h, 4), AD + h, 32 * s_))
        a("s_waitcnt lgkmcnt(6)")
        for s_ in range(2, 4):
            for h in range(2):
                for q in range(2):
                    a("ds_read_b64_tr_b16 %s, v%d offset:%d" % (vr(BF + 8 * s_ + 4 * h + 2 * q, 2), AD + 2 + h, (16 * s_ + 4 * q) * 128))
        for k in range(8):
            a("s_waitcnt lgkmcnt(%d)" % (8 if k < 4 else 14 - 2 * k))
            a("v_mfma_f32_32x32x16_bf16 %s, %s, %s, %s" % (vr(D, 16), vr(AF + 4 * k, 4), vr(BF + 4 * k, 4), "0" if k == 0 else vr(D, 16)))
        a("s_nop 10"); a("s_nop 6")
        a("buffer_atomic_add_f32 v%d, v10, s[68:71], 0 offen" % D)
        a("buffer_atomic_add_f32 v%d, v10, s[68:71], s6 offen" % (D + 1))
        g.stamp(a, 5)
    if stats: g.ltouch = [(CFG["S3"] - 1, lambda a: all_issue(a, 0))]
    def etile(a):
        if stats: all_check(a, 0)
        a("v_lshlrev_b32 v9, 2, v1")
        a("buffer_load_dword v40, v9, s[24:27], 0 offen sc1")
        if stats: a("buffer_load_dword v41, v9, s[24:27], s98 offen sc1")
        rm_loads(a)
    g.etile = etile; g.etile_n = 4 if stats else 3; g.etile_wait = False
    def lepi(a):
        a("v_add_u32 v9, %d, v9" % g.LDS_MAIN)
        if stats: uv_issue(a)
        a("s_waitcnt vmcnt(%d)" % (12 if stats else 2))
        bf16_round(a, 40, 40)
        a("ds_write_b32 v9, v40")
        if stats:
            bf16_round(a, 41, 41); a("v_add_f32 v41, 1.0, v41"); bf16_round(a, 41, 41)
            a("ds_write_b32 v9, v41 offset:256")
        a("s_waitcnt vmcnt(%d)" % (10 if stats else 0))
        if not stats:
            a("s_load_dword s6, %s, %s" % (sr(ptr(P_WS), 2), hex(WS_EP)))
            srd(a, 68, P_WS, WS_EP, 4)
            a("s_lshl_b32 s7, s2, 3"); a("s_add_u32 s7, s7, s3"); a("v_mov_b32 v41, 0")
            a("s_waitcnt lgkmcnt(0)")
            a("s_add_u32 s6, s6, 1"); a("v_mov_b32 v40, s6")
            a("s_cmp_eq_u32 s7, 4"); a("s_cselect_b64 exec, 1, 0")
            a("buffer_store_dword v40, v41, s[68:71], 0 offen sc1")
            a("s_mov_b64 exec, -1")
    def epi(a):
        stage32(a, SA, [(g.acc(0, 0), 0), (g.acc(1, 0), 128)])
        if CFG["EP"]: a("s_setprio 0")
        a("s_waitcnt vmcnt(0)")
    def common(a):
        a("s_waitcnt lgkmcnt(0)")
        g.stamp(a, 3)
        a("s_barrier")
        g.stamp(a, 4)
        for h in range(2): a("ds_read_b128 %s, v%d offset:%d" % (vr(GA + 4 * h, 4), VGT, 16 * h))
        for i in range(2):
            for h in range(2): a("ds_read_b128 %s, v%d offset:%d" % (vr(F + 8 * i + 4 * h, 4), VLD + h, 2048 * i))
        if stats:
            for h in range(2): a("ds_read_b128 %s, v%d offset:%d" % (vr(CB + 4 * h, 4), VGT, 256 + 16 * h))
        for e in range(8): unpack2(a, T + 2 * e, RX + e)
        for i in range(2):
            a("s_waitcnt lgkmcnt(%d)" % (2 - 2 * i + (2 if stats else 0)))
            for e in range(4):
                x = vr(F + 8 * i + 2 * e, 2)
                a("v_pk_fma_f32 %s, %s, %s, %s" % (x, x, vr(GA + 2 * e, 2), vr(T + 8 * i + 2 * e, 2)))
            for e in range(4):
                a("v_cvt_pk_bf16_f32 v%d, v%d, v%d" % (RX + 4 * i + e, F + 8 * i + 2 * e, F + 8 * i + 2 * e + 1))
            a("buffer_store_dwordx4 %s, v%d, s[20:23], %s offen%s" % (vr(RX + 4 * i, 4), VO2, "s96" if i else "0", " sc1" if stats else (" nt" if CFG["NT"] & 16 else "")))
        if stats:
            for e in range(8): unpack2(a, F + 2 * e, RX + e)
            a("s_waitcnt lgkmcnt(0)")
            for i in range(2):
                for e in range(4):
                    a("v_pk_mul_f32 %s, %s, %s" % (vr(T + 8 * i + 2 * e, 2), vr(F + 8 * i + 2 * e, 2), vr(CB + 2 * e, 2)))
            for i in range(2):
                for e in range(4):
                    a("v_cvt_pk_bf16_f32 v%d, v%d, v%d" % (GA + 4 * i + e, T + 8 * i + 2 * e, T + 8 * i + 2 * e + 1))
                a("buffer_store_dwordx4 %s, v%d, s[72:75], %s offen sc1" % (vr(GA + 4 * i, 4), VO4, "s97" if i else "0"))
            for i in range(2):
                s_, q_ = vr(T + 4 * i, 2), vr(T + 4 * i + 2, 2)
                x = lambda e: vr(F + 8 * i + 2 * e, 2)
                a("v_pk_add_f32 %s, %s, %s" % (s_, x(0), x(1)))
                a("v_pk_mul_f32 %s, %s, %s" % (q_, x(0), x(0)))
                a("v_pk_fma_f32 %s, %s, %s, %s" % (q_, x(1), x(1), q_))
                for e in (2, 3):
                    a("v_pk_add_f32 %s, %s, %s" % (s_, s_, x(e)))
                    a("v_pk_fma_f32 %s, %s, %s, %s" % (q_, x(e), x(e), q_))
            for k in range(4): a("v_add_f32 v%d, v%d, v%d" % (T + 2 * k, T + 2 * k, T + 2 * k + 1))
            red8(a, [T, T + 2, T + 4, T + 6])
            compact8(a, T + 8, [T, T + 4, T + 2, T + 6], VPM, 66)
            a("s_mov_b32 exec_hi, 0")
            a("s_waitcnt lgkmcnt(0)")
            a("buffer_atomic_add_f32 v%d, v%d, s[28:31], 0 offen" % (T + 8, VAT))
    kn = g.emit(a, tilemap_16x16_r4c8, setup, cpro, lpro, epi, lepi, common, **ch)
    return g, lds

def k4(a, **ch):
    Z2 = 3584
    ZO = WS_Z2 - WS_Z1
    g = Gemm2("k4", 128, 1024, 16, 2, 2, LP, 7168, 256, CFG["S4"],
              [(8, [(0, "s72")]), (8, [(0, "s73")]), (8, [(0, "s74")]), (4, [(0, "s75")])])
    g.xskip = True
    UVT = g.LDS_MAIN
    RST = UVT + 2048
    lds = RST + 1024
    SA = g.CFREE
    def nib(v): return sum(x << (4 * i) for i, x in enumerate(v))
    def setup(a):
        xw_srds2(a, g, P_WS, WS_Y, P_WIN, 0, 1024 * 7168, 0)
        srd(a, 16, P_WS, WS_UV, 32768)
        srd(a, 20, P_WS, WS_SUM2, 16384)
        a("s_lshl_b32 s6, s4, 19")
        a("s_add_u32 s6, s6, %s" % hex(WS_Z1))
        srd(a, 24, P_WS, "s6", ZO + 128 * LP)
        a("s_lshl_b32 s6, s4, 14"); a("s_add_u32 s6, s6, %s" % hex(WS_XCH))
        srd(a, 28, P_WS, "s6", 16384)
        a("s_and_b32 s6, s5, 3"); a("s_lshl_b32 s7, s6, 2")
        a("s_lshr_b32 s32, s5, 2"); a("s_mul_i32 s32, s32, 896")
        for r, tab in ((72, [0, 4, 8, 10]), (73, [2, 0, 10, 12]), (74, [4, 2, 12, 8]), (75, [6, 6, 7, 7])):
            a("s_lshr_b32 s%d, %s, s7" % (r, hex(nib(tab))))
            a("s_and_b32 s%d, s%d, 15" % (r, r))
            a("s_lshl_b32 s%d, s%d, 6" % (r, r))
            a("s_add_u32 s%d, s%d, s32" % (r, r))
        a("s_add_u32 s72, s72, %d" % Z2)
        a("s_add_u32 s6, s6, 1"); a("s_and_b32 s33, s6, 2")
        a("s_cmp_eq_u32 s33, 0")
        a("s_cselect_b32 s6, %d, 0" % Z2); a("s_add_u32 s73, s73, s6")
        a("s_sub_u32 s6, %d, s6" % Z2); a("s_add_u32 s75, s75, s6")
        a("s_mov_b32 s98, s33")
    g.pf = None
    def cpro(a):
        a("v_and_b32 v10, 15, v1"); a("v_add_u32 v10, s34, v10")
        a("v_lshrrev_b32 v13, 4, v1"); a("v_and_b32 v14, 7, v1"); a("v_xor_b32 v13, v13, v14")
        a("s_lshl_b32 s6, s35, 2")
        a("v_xor_b32 v14, s6, v13"); a("v_bfe_u32 v15, v1, 3, 1"); a("v_xor_b32 v14, v14, v15")
        a("v_lshlrev_b32 v14, 4, v14"); a("v_lshl_add_u32 v%d, v10, 7, v14" % (SA + 2))
        a("v_add_u32 v%d, %d, v%d" % (SA + 2, 98304, SA + 2))
        a("s_lshl_b32 s6, s35, 7")
        a("v_lshl_add_u32 v13, v13, 4, s6"); a("v_lshl_add_u32 v%d, v10, 8, v13" % SA)
        a("v_xor_b32 v%d, 64, v%d" % (SA + 1, SA))
        a("v_add_u32 v%d, 0x10000, v%d" % (SA + 3, SA)); a("v_add_u32 v%d, 0x10000, v%d" % (SA + 4, SA + 1))
    def lpro(a):
        ctouch(a, g, "k4", "k6")
        all_prep(a, False)
        a("v_and_b32 v9, 255, v0")
        a("s_cmp_eq_u32 s34, 0")
        a("s_cselect_b32 s6, s72, s74"); a("s_cselect_b32 s32, s73, s75")
        a("v_mov_b32 v10, s6"); a("v_mov_b32 v11, s32")
        a("v_cmp_gt_u32 vcc, 32, v1")
        a("v_bfe_u32 v12, v9, 1, 4"); a("v_and_b32 v13, 1, v9")
        a("v_cndmask_b32 v10, v11, v10, vcc")
        a("v_lshlrev_b32 v10, 1, v10")
        a("v_lshl_add_u32 v10, v12, 4, v10")
        a("v_lshl_add_u32 v41, v13, 14, v10")
        a("v_and_b32 v42, 127, v9"); a("v_lshlrev_b32 v42, 2, v42")
        a("v_lshrrev_b32 v12, 5, v9"); a("v_lshlrev_b32 v12, 9, v12")
        a("v_and_b32 v11, 1, v9"); a("v_lshl_add_u32 v12, v11, 8, v12")
        a("v_bfe_u32 v11, v9, 1, 1"); a("v_lshl_add_u32 v12, v11, 7, v12")
        a("v_bfe_u32 v11, v9, 2, 3"); a("v_lshl_add_u32 v12, v11, 4, v12")
        a("v_add_u32 v43, %d, v12" % UVT)
        a("v_lshlrev_b32 v56, 1, v42"); a("v_add_u32 v56, %d, v56" % RST)
    def f3u(a):
        a("s_lshl_b32 s6, s2, 2"); a("s_add_u32 s6, s6, %d" % (2048 * 6))
        a("v_mov_b32 v40, 0")
        a("s_cmp_eq_u32 s3, 4"); a("s_cselect_b64 exec, 1, 0")
        a("buffer_store_dword v40, v40, s[68:71], s6 offen sc1")
        a("s_mov_b64 exec, -1")
    def hook_b(a):
        all_check(a, 0)
        a("s_lshl_b32 s6, s4, 9"); a("s_add_u32 s32, s6, 8192")
        a("buffer_load_dwordx4 v[48:51], v41, s[16:19], 0 offen sc1")
        a("buffer_load_dword v52, v42, s[20:23], s6 offen sc1")
        a("buffer_load_dword v53, v42, s[20:23], s32 offen sc1")
    g.ltouch = [(11, f3u), (CFG["HA"], lambda a: all_issue(a, 0)), (CFG["HA"] - 2, hook_b)]
    line_poll(g, 1, 16, 0); flag_rc(g, 2, 5, 4); g.pw = CFG["PW4"]; g.bst = False; g.dyn = CFG["DY"] & 2; g.R = CFG["R4"]
    g.npre = min(g.npre, CFG["NPRE"])
    def epi(a):
        a("s_nop 6")
        for i in range(7):
            for j in range(4):
                if i < 4: a("ds_write_b128 v%d, %s offset:%d" % (SA + (i & 1), vr(g.acc(i, j), 4), (i >> 1) * 32768 + j * 4096))
                elif i < 6: a("ds_write_b128 v%d, %s offset:%d" % (SA + 3 + (i & 1), vr(g.acc(i, j), 4), j * 4096))
                else: a("ds_write_b128 v%d, %s offset:%d" % (SA + 2, vr(g.acc(i, j), 4), j * 2048))
    def etile(a):
        a("v_and_b32 v2, 255, v0"); a("v_lshlrev_b32 v2, 7, v2")
        touch(a, P_WSP, 32768, "s2", 2, 8, 255)
        a("v_cmp_gt_u32 vcc, 112, v9")
        stats_from_sums(a, 52, 53, 54, 1024, 57)
        a("ds_write_b64 v56, v[54:55]")
        a("s_and_saveexec_b64 s[66:67], vcc")
        a("ds_write_b128 v43, v[48:51]")
        a("s_mov_b64 exec, s[66:67]")
        a("s_waitcnt lgkmcnt(0)")
    g.etile = etile; g.etile_n = 1; g.etile_wait = False
    lepi = None
    VLD = 2; VLH = 4; VUV = 6; VO = 7; VOH = 8; VXP = 9; VPM = 14; VXS = 15
    ST = 16; STH = 20; MK = 22; SM = 24; PL = 32; T = 48; UV = 64; ZK = 80; F = 112; PK = 176; VL2 = 222; VUH = 224
    def gelu(a, items, U):
        n = len(items)
        for k, (A, st) in enumerate(items):
            for e in range(4):
                a("v_pk_fma_f32 %s, %s, %s, %s op_sel:[0,1,0] op_sel_hi:[1,1,1]" % (vr(T + 8 * k + 2 * e, 2), vr(U + 2 * e, 2), vr(st, 2), vr(U + 8 + 2 * e, 2)))
        for k, (A, st) in enumerate(items):
            for e in range(4):
                x = vr(A + 2 * e, 2)
                a("v_pk_fma_f32 %s, %s, %s, %s op_sel_hi:[1,0,1]" % (x, x, vr(st, 2), vr(T + 8 * k + 2 * e, 2)))
        for k, (A, st) in enumerate(items):
            for e in range(4): a("v_pk_mul_f32 %s, %s, %s" % (vr(T + 8 * k + 2 * e, 2), vr(A + 2 * e, 2), vr(A + 2 * e, 2)))
        for e in range(4 * n):
            t = vr(T + 2 * e, 2); a("v_pk_fma_f32 %s, %s, s[70:71], v[10:11]" % (t, t))
        for k, (A, st) in enumerate(items):
            for e in range(4):
                t = vr(T + 8 * k + 2 * e, 2); a("v_pk_mul_f32 %s, %s, %s" % (t, t, vr(A + 2 * e, 2)))
        for e in range(8 * n): a("v_exp_f32 v%d, v%d" % (T + e, T + e))
        for e in range(4 * n): a("v_pk_add_f32 %s, %s, v[12:13]" % (vr(T + 2 * e, 2), vr(T + 2 * e, 2)))
        for e in range(8 * n): a("v_rcp_f32 v%d, v%d" % (T + e, T + e))
        for k, (A, st) in enumerate(items):
            for e in range(4):
                t = vr(T + 8 * k + 2 * e, 2); a("v_pk_mul_f32 %s, %s, %s" % (t, t, vr(A + 2 * e, 2)))
    def freg(gi): return F + 16 * gi
    def rd_group(a, gi):
        if gi < 3:
            for i in range(2):
                for h in range(2):
                    off = gi * 32768 + i * 2048
                    if gi < 2: a("ds_read_b128 %s, v%d offset:%d" % (vr(freg(gi) + 8 * i + 4 * h, 4), VLD + h, off))
                    else: a("ds_read_b128 %s, v%d offset:%d" % (vr(freg(gi) + 8 * i + 4 * h, 4), VL2 + h, off - 65536))
            return 4
        for h in range(2): a("ds_read_b128 %s, v%d" % (vr(freg(3) + 4 * h, 4), VLH + h))
        return 2
    def rd_uv(a, gi):
        for q in range(4): a("ds_read_b128 %s, v%d offset:%d" % (vr(UV + 4 * q, 4), VUV if gi < 3 else VUH, gi * 512 + q * 128))
    def items(gi): return [(freg(gi), ST), (freg(gi) + 8, ST + 2)] if gi < 3 else [(freg(3), STH)]
    def store(a, gi, src):
        if gi < 3:
            a("s_add_u32 s6, s%d, 0x8000" % (72 + gi))
            a("buffer_store_dwordx4 %s, v%d, s[24:27], s%d offen sc1" % (vr(src, 4), VO, 72 + gi))
            a("buffer_store_dwordx4 %s, v%d, s[24:27], s6 offen sc1" % (vr(src + 4, 4), VO))
        else:
            a("buffer_store_dwordx4 %s, v%d, s[24:27], s75 offen sc1" % (vr(src, 4), VOH))
    def poll(a):
        for k in range(4):
            a("buffer_load_dwordx2 %s, v%d, s[28:31], 0 offen offset:%d sc1" % (vr(PL + 2 * k, 2), VXP, (k & 1) * 1024 + (k >> 1) * 64))
    def variant(a, G2, G1):
        if CFG["EP"]: a("s_setprio 2")
        rd_uv(a, G2[0])
        rd_group(a, G2[0])
        n1 = rd_group(a, G2[1])
        a("s_waitcnt lgkmcnt(%d)" % n1)
        for x, gi in enumerate(G2):
            gelu(a, items(gi), UV)
            rd_uv(a, G2[1] if x == 0 else G1[0])
            if x == 1:
                for gj in G1: rd_group(a, gj)
            n = len(items(gi))
            for e in range(4 * n): a("v_cvt_pk_bf16_f32 v%d, v%d, v%d" % (PK + e, T + 2 * e, T + 2 * e + 1))
            Z = ZK + 16 * x
            for e in range(4 * n): unpack2(a, Z + 2 * e, PK + e)
            for k in range(n):
                if gi < 3: s_, q_ = vr(SM + 4 * k, 2), vr(SM + 4 * k + 2, 2)
                else: s_, q_ = vr(T, 2), vr(T + 2, 2)
                z = lambda e: vr(Z + 8 * k + 2 * e, 2)
                if x == 0 or gi == 3:
                    a("v_pk_add_f32 %s, %s, %s" % (s_, z(0), z(1)))
                    a("v_pk_mul_f32 %s, %s, %s" % (q_, z(0), z(0)))
                    a("v_pk_fma_f32 %s, %s, %s, %s" % (q_, z(1), z(1), q_))
                    r = (2, 3)
                else: r = range(4)
                for e in r:
                    a("v_pk_add_f32 %s, %s, %s" % (s_, s_, z(e)))
                    a("v_pk_fma_f32 %s, %s, %s, %s" % (q_, z(e), z(e), q_))
            if gi == 3:
                for k in range(2):
                    for c in range(2):
                        d = vr(SM + 4 * k + 2 * c, 2)
                        a("v_pk_fma_f32 %s, %s, %s, %s op_sel:[0,%d,0] op_sel_hi:[1,%d,1]" % (d, vr(T + 2 * c, 2), vr(MK, 2), d, k, k))
            if x == 0: a("s_waitcnt lgkmcnt(0)")
        for k in range(4): a("v_add_f32 v%d, v%d, v%d" % (SM + 2 * k, SM + 2 * k, SM + 2 * k + 1))
        red8(a, [SM, SM + 2, SM + 4, SM + 6])
        a("s_mov_b32 s66, 0x02020202"); a("s_mov_b32 s67, s66")
        a("v_cndmask_b32 v%d, v%d, v%d, s[66:67]" % (SM, SM, SM + 4))
        a("v_cndmask_b32 v%d, v%d, v%d, s[66:67]" % (SM + 1, SM + 2, SM + 6))
        a("ds_bpermute_b32 v%d, v%d, v%d" % (SM, VPM, SM))
        a("v_and_b32 v%d, -2, v%d" % (SM + 1, SM + 1))
        a("ds_bpermute_b32 v%d, v%d, v%d" % (SM + 1, VPM, SM + 1))
        a("s_mov_b64 exec, 0xffff")
        a("s_waitcnt lgkmcnt(0)")
        a("buffer_store_dwordx2 %s, v%d, s[28:31], s32 offen sc1" % (vr(SM, 2), VXS))
        a("s_mov_b64 exec, -1")
        if CFG["EP"]: a("s_setprio 0")
        g.stamp(a, 5)
        for x, gi in enumerate(G1):
            gelu(a, items(gi), UV)
            if x == 0: rd_uv(a, G1[1])
            n = len(items(gi))
            for e in range(4 * n): a("v_cvt_pk_bf16_f32 v%d, v%d, v%d" % (freg(gi) + e, T + 2 * e, T + 2 * e + 1))
            if x == 1: poll(a)
            store(a, gi, freg(gi))
            if x == 0: a("s_waitcnt lgkmcnt(0)")
        g.stamp(a, 6)
        L = a.newlabel("k4_poll"); D = a.newlabel("k4_pdone"); C = a.newlabel("k4_pchk")
        a("s_mov_b32 s66, 0x40000")
        a("s_waitcnt vmcnt(%d)" % len(items(G1[1])))
        a("s_branch %s" % C)
        a.label(L)
        poll(a)
        a("s_waitcnt vmcnt(0)")
        a.label(C)
        a("v_max_u32 v%d, v%d, v%d" % (T, PL + 1, PL + 3))
        a("v_max3_u32 v%d, v%d, v%d, v%d" % (T, T, PL + 5, PL + 7))
        a("v_cmp_eq_u32 vcc, -1, v%d" % T)
        a("s_sub_u32 s66, s66, 1")
        a("s_cbranch_scc1 %s" % D)
        a("s_cbranch_vccz %s" % D)
        a("s_sleep 1")
        a("s_branch %s" % L)
        a.label(D)
        for k in range(2): a("v_pk_add_f32 %s, %s, %s" % (vr(PL + 4 * k, 2), vr(PL + 4 * k, 2), vr(PL + 4 * k + 2, 2)))
        a("s_nop 0")
        red8(a, [PL, PL + 1, PL + 4, PL + 5])
        n_ = 1792
        for k in range(2): a("v_mul_f32 v%d, %s, v%d" % (PL + 4 * k, hex(f32bits(1.0 / n_)), PL + 4 * k))
        for k in range(2): a("v_mul_f32 v%d, %s, v%d" % (ST + 2 * k, hex(f32bits(1.0 / n_)), PL + 4 * k + 1))
        for k in range(2): a("v_fma_f32 v%d, -v%d, v%d, v%d" % (ST + 2 * k, PL + 4 * k, PL + 4 * k, ST + 2 * k))
        for k in range(2): a("v_max_f32 v%d, 0, v%d" % (ST + 2 * k, ST + 2 * k))
        for k in range(2): a("v_add_f32 v%d, %s, v%d" % (ST + 2 * k, hex(f32bits(1e-5)), ST + 2 * k))
        for k in range(2): a("v_rsq_f32 v%d, v%d" % (ST + 2 * k, ST + 2 * k))
        a("s_nop 0")
        for k in range(2): a("v_mul_f32 v%d, -v%d, v%d" % (ST + 2 * k + 1, PL + 4 * k, ST + 2 * k))
        if 3 in G2:
            for c in range(2): a("v_cndmask_b32 v%d, v%d, v%d, s[68:69]" % (STH + c, ST + c, ST + 2 + c))
        for x, gi in enumerate(G2):
            Z = ZK + 16 * x
            for k, (_, st) in enumerate(items(gi)):
                for e in range(4):
                    z = vr(Z + 8 * k + 2 * e, 2)
                    a("v_pk_fma_f32 %s, %s, %s, %s op_sel:[0,0,1] op_sel_hi:[1,0,1]" % (z, z, vr(st, 2), vr(st, 2)))
            for e in range(4 * len(items(gi))): a("v_cvt_pk_bf16_f32 v%d, v%d, v%d" % (T + 8 * x + e, Z + 2 * e, Z + 2 * e + 1))
            store(a, gi, T + 8 * x)
    def common(a):
        K1_ = 2.0 * math.sqrt(2.0 / math.pi) * LOG2E
        R = T
        rm_addr(a, R, VLD, R + 1)
        a("v_and_b32 v%d, 7, v1" % (R + 2)); a("v_bfe_u32 v%d, v1, 2, 1" % (R + 3)); a("v_and_b32 v%d, 3, v1" % (R + 4))
        a("v_add_u32 v%d, 0x10000, v%d" % (VL2, VLD)); a("v_add_u32 v%d, 0x10000, v%d" % (VL2 + 1, VLD + 1))
        a("v_lshlrev_b32 v%d, 4, v%d" % (VUV, R + 2))
        a("v_lshl_add_u32 v%d, v%d, 12, v%d" % (VO, R, VUV))
        a("v_add_u32 v%d, %d, v%d" % (VUV, UVT, VUV))
        a("v_lshl_add_u32 v%d, v%d, 3, v%d" % (R + 5, R + 3, R))
        a("v_lshlrev_b32 v%d, 4, v%d" % (VOH, R + 4))
        a("v_add_u32 v%d, %d, v%d" % (VUH, UVT, VOH))
        a("v_lshl_add_u32 v%d, v%d, 12, v%d" % (VOH, R + 5, VOH))
        a("v_lshlrev_b32 v%d, 1, v%d" % (VLH, R + 4)); a("v_xor_b32 v%d, v%d, v%d" % (VLH, VLH, R + 1)); a("v_xor_b32 v%d, v%d, v%d" % (VLH, VLH, R + 3))
        a("v_lshlrev_b32 v%d, 4, v%d" % (VLH, VLH)); a("v_lshl_add_u32 v%d, v%d, 7, v%d" % (VLH, R + 5, VLH))
        a("v_add_u32 v%d, %d, v%d" % (VLH, 98304, VLH)); a("v_xor_b32 v%d, 16, v%d" % (VLH + 1, VLH))
        a("v_lshlrev_b32 v%d, 3, v%d" % (R + 6, R))
        a("v_lshl_add_u32 v%d, v%d, 11, v%d" % (VXP, R + 2, R + 6))
        a("v_add_u32 v%d, %d, v%d" % (R + 6, RST, R + 6))
        a("ds_read_b64 %s, v%d" % (vr(ST, 2), R + 6)); a("ds_read_b64 %s, v%d offset:64" % (vr(ST + 2, 2), R + 6))
        a("v_lshlrev_b32 v%d, 5, v%d" % (VPM, R + 2)); a("v_lshl_add_u32 v%d, v%d, 2, v%d" % (VPM, R + 1, VPM))
        a("v_lshlrev_b32 v%d, 3, v1" % VXS)
        a("v_cvt_f32_u32 v%d, v%d" % (MK + 1, R + 3)); a("v_sub_f32 v%d, 1.0, v%d" % (MK, MK + 1))
        a("s_lshl_b32 s32, s5, 10"); a("s_lshl_b32 s6, s3, 7"); a("s_add_u32 s32, s32, s6")
        a("s_mov_b32 s68, 0xf0f0f0f0"); a("s_mov_b32 s69, s68")
        a("s_mov_b32 s70, %s" % hex(f32bits(-K1_ * 0.044715))); a("s_mov_b32 s71, s70")
        a("v_mov_b32 v10, %s" % hex(f32bits(-K1_))); a("v_mov_b32 v11, v10")
        a("v_mov_b32 v12, 1.0"); a("v_mov_b32 v13, 1.0")
        for r in range(72, 76):
            a("s_cmp_ge_u32 s%d, %d" % (r, Z2))
            a("s_cselect_b32 s7, %d, 0" % Z2); a("s_cselect_b32 s33, %d, 0" % ZO)
            a("s_sub_u32 s%d, s%d, s7" % (r, r))
            s_lmap(a, r, r, 6)
            a("s_add_u32 s%d, s%d, s33" % (r, r))
        a("s_waitcnt lgkmcnt(0)")
        for c in range(2): a("v_cndmask_b32 v%d, v%d, v%d, s[68:69]" % (STH + c, ST + c, ST + 2 + c))
        g.stamp(a, 3)
        a("s_barrier")
        g.stamp(a, 4)
        LB = a.newlabel("k4_tb"); LE = a.newlabel("k4_te")
        a("s_cmp_lg_u32 s98, 0")
        a("s_cbranch_scc1 %s" % LB)
        variant(a, [0, 1], [2, 3])
        a("s_branch %s" % LE)
        a.label(LB)
        variant(a, [0, 3], [1, 2])
        a.label(LE)
    kn = g.emit(a, tilemap_16x16_r8c4, setup, cpro, lpro, epi, lepi, common, **ch)
    return g, lds

def k5(a, **ch):
    g = Gemm2("k5", 128, 2048, 32, 2, 2, 4096, LP, 224, CFG["S5"], [(8, [(0, "s72")]), (8, [(0, "s73")])])
    Z1 = g.CFREE; BS = Z1 + 16; VO = BS + 4; VLD = VO + 2; SA = VLD + 2; F = SA + 4; T = F + 32
    def setup(a):
        xw_srds2(a, g, P_WSP, 0, P_WS, WS_Z2, 2048 * LP, 0)
        a("s_lshl_b32 s6, s4, 19")
        a("s_add_u32 s32, s6, %s" % hex(WS_Z1)); srd(a, 20, P_WS, "s32", 128 * LP)
        a("s_add_u32 s32, s6, %s" % hex(WS_U)); srd(a, 24, P_WS, "s32", 128 * LP)
        a("s_lshl_b32 s6, s4, 8")
        srd(a, 28, P_BSP, "s6", 256)
        a("s_lshl_b32 s7, s5, 1")
        s_lmap(a, 72, 7, 6, False)
        a("s_add_u32 s7, s7, 1")
        s_lmap(a, 73, 7, 6, False)
        a("s_add_u32 s74, s72, 0x8000"); a("s_add_u32 s75, s73, 0x8000")
    def rm_loads(a):
        rm_addr(a, VO, VLD, 10)
        a("v_lshlrev_b32 v12, 1, v%d" % VO)
        a("v_and_b32 v11, 7, v1"); a("v_lshlrev_b32 v11, 4, v11")
        a("v_lshl_add_u32 v%d, v%d, 12, v11" % (VO, VO))
        for i in range(2): a("buffer_load_ushort v%d, v12, s[28:31], 0 offen offset:%d" % (BS + 2 * i, 16 * i))
        for k in range(4): a("buffer_load_dwordx4 %s, v%d, s[20:23], s%d offen sc1" % (vr(Z1 + 4 * k, 4), VO, 72 + k))
    def cpro(a):
        stage32_addr(a, g, SA, 10)
    g.cpost0 = rm_loads
    g.pf = None
    def lpro(a):
        ctouch(a, g, "k5", "end")
    g.dep = 12
    def pprep(a, r):
        a("v_lshrrev_b32 v%d, 5, v1" % r); a("v_lshlrev_b32 v%d, 7, v%d" % (r, r)); a("v_bfe_u32 v%d, v1, 1, 4" % (r + 1))
        a("v_lshl_add_u32 v%d, v%d, 2, v%d" % (r, r + 1, r))
        a("s_mul_i32 s6, s5, 74"); a("s_add_u32 s6, s6, 37"); a("s_lshr_b32 s6, s6, 8"); a("s_lshl_b32 s6, s6, 9"); a("s_add_u32 s6, s6, 4096")
        a("v_add_u32 v%d, s6, v%d" % (r + 1, r))
        a("s_mul_i32 s6, s5, 74"); a("s_lshr_b32 s6, s6, 8"); a("s_lshl_b32 s6, s6, 9"); a("s_add_u32 s6, s6, 4096")
        a("v_add_u32 v%d, s6, v%d" % (r, r))
    def pissue(a, r):
        for k in range(4): a("buffer_load_dword v%d, v%d, s[68:71], 0 offen offset:%d sc1" % (r + 2 + k, r + (k >> 1), 256 * (k & 1)))
    def pmask(a, r, d):
        a("v_max3_u32 v%d, v%d, v%d, v%d" % (r + 2, r + 2, r + 3, r + 4)); a("v_max_u32 v%d, v%d, v%d" % (r + 2, r + 2, r + 5))
        a("v_cmp_ne_u32 vcc, -1, v%d" % (r + 2))
        a("s_and_b32 s%d, vcc_lo, vcc_hi" % d)
    def pmust(a):
        a("s_lshl_b32 s65, s4, 1"); a("s_bitcmp1_b32 s67, s65"); a("s_cselect_b32 s6, s6, 0")
    g.fl = dict(prep=pprep, issue=pissue, mask=pmask, full=0xffffffff, must=pmust); g.psl = CFG["PS"]; g.pw = CFG["PW5"]
    g.dyn = CFG["DY"] & 4; g.R = CFG["R5"]
    flag_rc(g, 3, 4, 5)
    g.npre = min(g.npre, CFG["NPRE"])
    g.etile = rm_loads; g.etile_n = 6; g.etile_wait = False
    def epi(a):
        stage32(a, SA, [(g.acc(i, j), i * 32768 + j * 8192) for i in range(2) for j in range(2)])
        if CFG["EP"]: a("s_setprio 0")
    def common(a):
        a("s_waitcnt vmcnt(0)")
        for i in range(2): a("v_lshlrev_b32 v%d, 16, v%d" % (BS + 2 * i, BS + 2 * i))
        a("s_waitcnt lgkmcnt(0)")
        g.stamp(a, 3)
        a("s_barrier")
        g.stamp(a, 4)
        for k in range(4):
            for h in range(2): a("ds_read_b128 %s, v%d offset:%d" % (vr(F + 8 * k + 4 * h, 4), VLD + h, (k & 1) * 32768 + (k >> 1) * 2048))
        for k in range(4):
            t = T + 8 * (k & 1)
            for e in range(4): unpack2(a, t + 2 * e, Z1 + 4 * k + e)
            a("s_waitcnt lgkmcnt(%d)" % (6 - 2 * k))
            if DBG["stamp"]: a("s_waitcnt lgkmcnt(0)")
            for e in range(4):
                x = vr(F + 8 * k + 2 * e, 2)
                a("v_pk_add_f32 %s, %s, %s op_sel_hi:[1,0]" % (x, x, vr(BS + 2 * (k >> 1), 2)))
            for e in range(4):
                x = vr(F + 8 * k + 2 * e, 2)
                a("v_pk_mul_f32 %s, %s, %s" % (x, x, vr(t + 2 * e, 2)))
            for e in range(4):
                a("v_cvt_pk_bf16_f32 v%d, v%d, v%d" % (Z1 + 4 * k + e, F + 8 * k + 2 * e, F + 8 * k + 2 * e + 1))
            a("buffer_store_dwordx4 %s, v%d, s[24:27], s%d offen sc1" % (vr(Z1 + 4 * k, 4), VO, 72 + k))
    def extra(a, chained, nxt):
        if chained:
            a("s_waitcnt vmcnt(0)")
            a("s_barrier")
            g.flag_store(a)
        a("s_sub_u32 s4, s2, 224")
        a("v_lshlrev_b32 v2, 7, v0")
        a("v_add_u32 v3, 0x10000, v2")
        touch(a, P_WOUT, 114688, "s4", 2, 8, 4)
        a("buffer_load_dword v5, v3, s[8:11], 0 offen")
        a("s_lshl_b32 s100, s4, 2"); a("s_add_u32 s100, s100, %d" % (2048 * 4))
        a("s_waitcnt vmcnt(0)")
        a("s_branch %s" % nxt)
    g.extra = extra
    kn = g.emit(a, tilemap_16x14, setup, cpro, lpro, epi, None, common, **ch)
    return g, g.LDS_MAIN

ORDER = ["k1", "k2", "k3", "k4", "k5", "k6"]
def build(path, order=None):
    a = Asm()
    ks = {}
    def small(fn, name):
        m = len(a.lines)
        r = fn(a)
        if DBG["stamp"]:
            body = a.lines[m:]; del a.lines[m:]
            st = Stamper(name)
            armed = False
            for k, l in enumerate(body):
                t = l.strip()
                if t.startswith("s_load_dwordx4 s[60:63]"): armed = True
                if t == "s_endpgm" and not body[k - 1].endswith(":"):
                    a("s_mov_b64 exec, -1"); st.stamp_out(a)
                if t.endswith(":") and "_end" in t:
                    a("s_mov_b64 exec, -1"); st.stamp_out(a); a("s_endpgm")
                a.lines.append(l)
                if armed and t == "s_waitcnt lgkmcnt(0)":
                    st.stamp(a, 0); armed = False; a("v_mov_b32 v254, 0")
            r = (r[0], 256) + r[2:]
        return r
    if CFG["ST01"]:
        a.lines = [l + " sc1" if ("buffer_store_dwordx" in l and "sc1" not in l) else l for l in a.lines]
    phases = [("k2", k2),
              ("k3", lambda a, **ch: k_res(a, "k3", 1024, WS_O, P_WO, P_X, 0, 2, P_WS, WS_X1, True, CFG["S3"], WS_SO, **ch)),
              ("k4", k4), ("k5", k5),
              ("k6", lambda a, **ch: k_res(a, "k6", 1792, WS_U, P_WOUT, P_WS, WS_X1, 5, P_OUT, 0, False, CFG["S6"], WS_SW, **ch))]
    a.lines.append(".p2align 8")
    prev = p1(a)
    order = ["k1"]
    ks["k1"] = (KN, 256, 256, 512, 163840)
    for i, (nm, fn) in enumerate(phases):
        last = i == 4
        a.lines.append(".p2align 3")
        a.label("L_code_" + nm)
        prev, lds = fn(a, prev=prev, last=last, nxt=None if last else "L_phase_" + phases[i + 1][0])
        assert lds <= 163840
    a.label("L_code_end")
    a("s_endpgm")
    ref = open("cdna_kernels/%s.s.ref" % NAME).read().split("\n")
    head = [l for l in ref if l.startswith(";") and "@launch" not in l and "Override" not in l and "grid=ceil" not in l]
    head = head[:15]
    out = list(head)
    for k in order:
        kn, vg, grid, blk, lds = ks[k]
        out.append("; @launch grid=(%d,1,1) block=(%d,1,1) lds=%d" % (grid, blk, lds))
    out.append('.amdgcn_target "amdgcn-amd-amdhsa--gfx950"')
    out.append(".text")
    out += a.lines
    out.append('.section .rodata,"a"')
    for k, (kn, vg, grid, blk, lds) in ks.items():
        out.append(kernel_desc(kn, vg, 102))
    open(path, "w").write("\n".join(out) + "\n")

if __name__ == "__main__":
    build(sys.argv[1] if len(sys.argv) > 1 else "cdna_kernels/%s.s" % NAME)
```

```python
from gen3 import *
import gen3
from kernels import bf16_round, multi_swap_red, multi_dpp_red, stats_from_sums
import kernels as K1

WS_UV = 0x10000
WS_XCH = 0x80000
WS_H1 = 0x3000000
WS_Y = 0x3800000
KN = NAME + '_kernel'
LP = 4096
CFG = dict(S2=4, S3=4, S4=3, S5=4, S6=4, D=0, F=1, PF=1, ST=0, CT=1, SH=1, ET=1, HP=4, IK=0, IF=1, LPR=0, PG=10, H2S=100, H2W=44, H1W=16, NP=1, ZW=4, ACK=0, SPB=0x40000,
           FU=0b1111, OS=1, EP=1, UT=1, PT=2, TK=0, DY=31, R3=8, R4=8, R5=16, R6=14, PW3=0, PW4=0, PW5=0, PW6=0, PS=1, ST01=0, HA=4, MD=2, R2=8, PW2=0, CT0=1, T0=0, T0P=0, TW=6, TH=64, CE=0, R0=1, NB=2, UW=0, NT=35, XI=2, XM=8, PA=16, PB=8, W2=1, W1=1, TWS=0, SHK=1, NPRE=9)

def ctouch(a, g, start, end):
    if CFG["CT"]:
        a("v_and_b32 v2, 255, v0"); a("v_lshlrev_b32 v2, 7, v2")
        code_touch(a, "L_code_" + start, "L_code_" + end, 68, 2, 3, True)
        g.q.append(99)
    srd(a, 68, P_WS, WS_FL, FL_BYTES)

def line_poll(g, ph, nflag, sh, tag=False):
    def prep(a, r):
        a("v_lshrrev_b32 v%d, %d, v1" % (r, sh)); a("v_min_u32 v%d, %d, v%d" % (r, nflag - 1, r))
        a("s_lshl_b32 s6, s4, 7"); a("s_add_u32 s6, s6, %d" % (2048 * ph))
        a("v_lshl_add_u32 v%d, v%d, 2, s6" % (r, r))
    full = (1 << (nflag << sh)) - 1
    def mask(a, r, d):
        a(("v_cmp_eq_u32 vcc, v253, v%d" if tag else "v_cmp_ne_u32 vcc, -1, v%d") % (r + 2))
        a("s_and_b32 s%d, vcc_lo, %s" % (d, hex(full)))
    g.fl = dict(prep=prep, issue=lambda a, r: a("buffer_load_dword v%d, v%d, s[68:71], 0 offen sc1" % (r + 2, r)), mask=mask, full=full)
    g.psl = CFG["PS"]

def all_prep(a, lines):
    if lines:
        a("v_lshrrev_b32 v38, 2, v1"); a("v_lshlrev_b32 v38, 7, v38"); a("v_and_b32 v39, 3, v1"); a("v_lshl_add_u32 v38, v39, 4, v38")
    else:
        a("v_lshlrev_b32 v38, 4, v1"); a("v_add_u32 v38, %d, v38" % (2048 * 6))
def all_issue(a, off): a("buffer_load_dwordx4 v[44:47], v38, s[68:71], 0 offen offset:%d sc1" % off)
def all_check(a, off):
    def chk(a):
        a("v_max3_u32 v44, v44, v45, v46"); a("v_max_u32 v44, v44, v47")
        a("v_cmp_eq_u32 vcc, -1, v44")
    ok = a.newlabel("fok")
    chk(a)
    a("s_cbranch_vccz %s" % ok)
    a("s_mov_b32 s32, s66")
    spin(a, "fl", lambda a: all_issue(a, off), chk, 4)
    a("s_mov_b32 s66, s32")
    a.label(ok)

def flag_rc(g, ph, line, ent):
    def f(a):
        a("s_lshl_b32 s100, s%d, 7" % line); a("s_lshl_b32 s6, s%d, 2" % ent)
        a("s_add_u32 s100, s100, s6"); a("s_add_u32 s100, s100, %d" % (2048 * ph))
    g.flagoff = f


WS_MP1 = 0x20000
WS_MODR = 0x18000
XK_SB = 16 * 1024
WS_XK = 0x100000
WS_XR = WS_XK + 256 * XK_SB
XR_CB = 8192 + 8192 + 256
XK_INIT = XK_SB + (16 * XR_CB + 255) // 256 // 16 * 16 + 16
WS_SQ = 0x5000000
WS_SO = 0x5800000
WS_SW = 0x5C00000

def xk_init(a, sd, vm1, v16):
    a("s_mul_i32 s6, s2, %d" % XK_INIT); a("s_add_u32 s6, s6, %s" % hex(WS_XK))
    srd(a, sd, P_WS, "s6", XK_INIT)
    for k in range(3):
        a("s_mov_b32 s6, %d" % (8192 * k))
        a("buffer_store_dwordx4 %s, v%d, %s, s6 offen%s" % (vr(vm1, 4), v16, sr(sd, 4), ["", " sc1", " nt", " sc0 sc1"][CFG["IF"]]))

def sum8(a, b):
    a("v_add_f32 v%d, v%d, v%d" % (b, b, b + 1)); a("v_add_f32 v%d, v%d, v%d" % (b + 2, b + 2, b + 3))
    a("v_add_f32 v%d, v%d, v%d" % (b + 4, b + 4, b + 5)); a("v_add_f32 v%d, v%d, v%d" % (b + 6, b + 6, b + 7))
    a("v_add_f32 v%d, v%d, v%d" % (b, b, b + 2)); a("v_add_f32 v%d, v%d, v%d" % (b + 4, b + 4, b + 6))
    a("v_add_f32 v%d, v%d, v%d" % (b, b, b + 4))

class ModTile:
    def __init__(self, n, base, wsrd, csrd, sbase):
        self.n = n; self.C = base; self.E = base + n; self.W = (base + 2 * n + 3) // 4 * 4
        self.T = self.W + 4 * n; self.AC = self.T + 8; self.vo = self.AC + 8; self.end = self.vo + 2
        self.wsrd, self.csrd, self.sb = wsrd, csrd, sbase
    def issue(self, a, s_row0, s_colb):
        a("v_lshrrev_b32 v%d, 3, v0" % self.vo)
        a("v_add_u32 v%d, %s, v%d" % (self.vo, s_row0, self.vo))
        a("s_movk_i32 s6, 0x3000")
        a("v_mul_lo_u32 v%d, s6, v%d" % (self.vo + 1, self.vo))
        a("v_lshlrev_b32 v%d, 1, v%d" % (self.vo, self.vo))
        a("v_and_b32 v%d, 7, v0" % self.T)
        a("v_lshl_add_u32 v%d, v%d, 4, v%d" % (self.vo + 1, self.T, self.vo + 1))
        for i in range(self.n):
            a("buffer_load_ushort v%d, v%d, %s, 0 offen offset:%d" % (self.C + i, self.vo, sr(self.csrd, 4), 128 * i))
        for i in range(self.n):
            a("s_add_u32 s%d, %s, %d" % (self.sb + i, s_colb, i * 64 * 12288))
            a("buffer_load_dwordx4 %s, v%d, %s, s%d offen%s" % (vr(self.W + 4 * i, 4), self.vo + 1, sr(self.wsrd, 4), self.sb + i, " nt" if CFG["NT"] & 1 else ""))
        return 2 * self.n
    def compute(self, a, younger, lds):
        n, C, E = self.n, self.C, self.E
        a("s_mov_b32 s6, %s" % hex(f32bits(-LOG2E)))
        a("s_waitcnt vmcnt(%d)" % (n + younger))
        for i in range(n): a("v_lshlrev_b32 v%d, 16, v%d" % (C + i, C + i))
        for i in range(n): a("v_mul_f32 v%d, s6, v%d" % (E + i, C + i))
        for i in range(n): a("v_exp_f32 v%d, v%d" % (E + i, E + i))
        a("s_nop 0")
        for i in range(n): a("v_add_f32 v%d, 1.0, v%d" % (E + i, E + i))
        for i in range(n): a("v_rcp_f32 v%d, v%d" % (E + i, E + i))
        a("s_nop 0")
        for i in range(n): a("v_mul_f32 v%d, v%d, v%d" % (C + i, C + i, E + i))
        for i in range(n): a("v_cvt_pk_bf16_f32 v%d, v%d, v%d" % (C + i, C + i, C + i))
        for i in range(n): a("v_lshlrev_b32 v%d, 16, v%d" % (C + i, C + i))
        for i in range(n):
            a("s_waitcnt vmcnt(%d)" % (n - 1 - i + younger))
            for d in range(4): unpack2(a, self.T + 2 * d, self.W + 4 * i + d)
            for e in range(8):
                if i == 0: a("v_mul_f32 v%d, v%d, v%d" % (self.AC + e, C, self.T + e))
                else: a("v_fmac_f32 v%d, v%d, v%d" % (self.AC + e, C + i, self.T + e))
        xs = list(range(self.AC, self.AC + 8)); ts = list(range(self.T, self.T + 8))
        multi_dpp_red(a, xs, [8])
        multi_swap_red(a, "v_add_f32", 16, xs, ts)
        multi_swap_red(a, "v_add_f32", 32, xs, ts)
        a("s_lshl_b32 s6, s3, 8"); a("s_add_u32 s6, s6, %d" % lds)
        a("v_and_b32 v%d, 7, v0" % self.vo)
        a("v_lshl_add_u32 v%d, v%d, 5, s6" % (self.vo, self.vo))
        a("s_mov_b64 exec, 0xff")
        a("ds_write_b128 v%d, %s" % (self.vo, vr(self.AC, 4)))
        a("ds_write_b128 v%d, %s offset:16" % (self.vo, vr(self.AC + 4, 4)))
        a("s_mov_b64 exec, -1")
    def finish(self, a, lds, osrd, s_off, fl=""):
        a("v_lshlrev_b32 v%d, 2, v2" % self.vo)
        for w in range(8): a("ds_read_b32 v%d, v%d offset:%d" % (self.T + w, self.vo, lds + 256 * w))
        a("s_waitcnt lgkmcnt(0)")
        sum8(a, self.T)
        a("buffer_store_dword v%d, v%d, %s, %s offen%s" % (self.T, self.vo, sr(osrd, 4), s_off, fl))

VE = 253
F_AR, F_AC, F_1, F_A2 = 8 * 2048, 9 * 2048, 10 * 2048, 11 * 2048
WS_EP = WS_FL + 0x8000
WS_ST1T = 0x40000
def p1(a):
    kernel_head(a, KN)
    CH["end"] = a.newlabel("k1_end")
    del OOL[:]
    st = Stamper("k1")
    a("s_cmp_ge_u32 s2, 256")
    a("s_cbranch_scc1 %s" % CH["end"])
    load_kernargs(a)
    if CFG["CE"]:
        lp = a.newlabel("pc")
        a("s_getpc_b64 s[24:25]")
        a.label(lp)
        a("s_lshr_b32 s6, s2, 3"); a("s_lshl_b32 s6, s6, 11")
        a("s_sub_i32 s26, L_code_end-%s, s6" % lp); a("s_max_i32 s26, s26, 0"); a("s_min_i32 s26, s26, 2048")
        a("s_add_u32 s24, s24, s6"); a("s_addc_u32 s25, s25, 0"); a("s_mov_b32 s27, 0x00020000")
        a("v_lshlrev_b32 v39, 7, v0")
        a("buffer_load_dword v251, v39, s[24:27], 0 offen")
    a("v_lshrrev_b32 v1, 6, v0")
    a("v_and_b32 v2, 63, v0")
    a("v_readfirstlane_b32 s3, v1")
    tilemap_16x16_r8c4(a)
    a("v_lshlrev_b32 v3, 4, v2")
    a("s_lshl_b32 s7, s4, 4"); a("s_add_u32 s7, s7, s5"); a("s_lshl_b32 s7, s7, 3")
    a("s_add_u32 s32, s7, s3"); a("s_lshl_b32 s32, s32, 11")
    a("s_and_b32 s34, s4, 1"); a("s_lshl_b32 s34, s34, 4"); a("s_add_u32 s34, s34, s5"); a("s_lshl_b32 s34, s34, 7")
    a("s_lshr_b32 s35, s4, 1"); a("s_lshl_b32 s35, s35, 7")
    a("v_lshlrev_b32 v4, 4, v0")
    for e in range(4): a("v_mov_b32 v%d, -1" % (64 + e))
    for e in range(4): a("v_mov_b32 v%d, 0" % (68 + e))
    a("s_waitcnt lgkmcnt(0)")
    if DBG["stamp"]: a("v_mov_b32 v254, 0")
    st.stamp(a, 0)
    a("s_load_dword s33, %s, %s" % (sr(ptr(P_WS), 2), hex(WS_EP)))
    srd(a, 16, P_X, 0, 2048 * 2048)
    a("buffer_load_dwordx4 v[8:11], v3, s[16:19], s32 offen")
    a("buffer_load_dwordx4 v[12:15], v3, s[16:19], s32 offen offset:1024")
    for off, sz, v in ((WS_XCH, 1024, 64), (WS_XR, 1040, 64), (WS_FL, 64, 64), (WS_SUM2, 256, 68)):
        a("s_mul_i32 s6, s2, %d" % sz); a("s_add_u32 s6, s6, %s" % hex(off))
        srd(a, 28, P_WS, "s6", sz)
        a("buffer_store_dwordx4 %s, v4, s[28:31], 0 offen sc1" % vr(v, 4))
    srd(a, 8, P_WMOD, 0, 1024 * 6144 * 2)
    srd(a, 12, P_C, 0, 2048)
    mt = ModTile(2, 72, 8, 12, 20)
    mt.issue(a, "s35", "s34")
    y = 0
    XT = 112; SHV = 144
    a("v_lshrrev_b32 v5, 3, v0"); a("v_and_b32 v7, 7, v0")
    a("v_lshlrev_b32 v6, 4, v5")
    a("v_lshlrev_b32 v33, 12, v5"); a("v_lshl_add_u32 v33, v7, 4, v33")
    a("v_lshlrev_b32 v5, 11, v5"); a("v_lshl_add_u32 v5, v7, 4, v5")
    a("s_lshl_b32 s6, s4, 18"); a("s_lshl_b32 s32, s5, 7"); a("s_add_u32 s32, s32, s6")
    a("s_cmp_lt_u32 s3, 4"); a("s_cselect_b32 s6, %d, 0" % (128 * 2048 - 15 * 128))
    srd(a, 8, P_X, "s32", "s6")
    for i in range(4):
        a("s_mov_b32 s6, %d" % (32 * 2048 * i))
        a("buffer_load_dwordx4 %s, v5, s[8:11], s6 offen" % vr(XT + 4 * i, 4)); y += 1
    shadow_voff(a, 32, 2, 34)
    SHL = ((P_WQKV, WS_SQ, 24576, 3), (P_WO, WS_SO, 8192, 1), (P_WOUT, WS_SW, 14336, 2))
    k = 0
    for pp, sh, sz, n in SHL:
        a("s_cmp_eq_u32 s3, 4"); a("s_cselect_b32 s32, %d, 0" % sz)
        a("s_mul_i32 s6, s2, %d" % sz); srd(a, 24, pp, "s6", "s32")
        for i in range(n):
            a("s_movk_i32 s6, %d" % (8192 * i))
            a("buffer_load_dwordx4 %s, v32, s[24:27], s6 offen nt" % vr(SHV + 4 * k, 4)); y += 1; k += 1
    yt = 0
    if CFG["TW"] == 3:
        a("v_subrev_u32 v39, 320, v0"); a("v_lshlrev_b32 v39, 7, v39")
        touch(a, P_WQKV, 24576, "s2", 39, 24, 250); y += 1; yt += 1
        if CFG["CT0"]: code_touch(a, "L_code_k2", "L_code_k4", 24, 39, 251); y += 1; yt += 1
    rounds = [0]
    def wround(a):
        a("s_mov_b32 s6, %d" % (rounds[0] * 256 * 6144)); rounds[0] += 1
        a("buffer_load_dword v250, v40, s[96:99], s6 offen")
    if CFG["TW"] == 6:
        a("s_sub_u32 s6, s3, 5"); a("s_lshl_b32 s6, s6, 11")
        a("v_lshl_add_u32 v40, v2, 7, s6"); a("v_bfrev_b32 v41, 1")
        a("v_cmp_gt_u32 vcc, 16, v2")
        a("s_cmp_ge_u32 s3, 5"); a("s_cselect_b32 s32, %d, 0" % (769 * 6144))
        a("v_cndmask_b32 v40, v41, v40, vcc")
        a("s_mul_i32 s6, s2, 6144"); srd(a, 96, P_WQKV, "s6", "s32")
        if CFG["R0"]: wround(a); y += 1; yt += 1
    if CFG["TW"] == 5:
        a("v_subrev_u32 v39, 320, v0"); a("v_lshlrev_b32 v39, 7, v39")
        a("s_cmp_lt_u32 s2, %d" % CFG["TH"]); a("s_cselect_b32 s32, 24576, 0")
        a("s_mul_i32 s6, s2, 24576"); srd(a, 24, P_WQKV, "s6", "s32")
        a("buffer_load_dword v250, v39, s[24:27], 0 offen"); y += 1; yt += 1
    srd(a, 68, P_WS, WS_MP1, 131072)
    a("s_lshl_b32 s6, s7, 4"); a("s_add_u32 s6, s6, %s" % hex(WS_ST1T))
    srd(a, 72, P_WS, "s6", 128)
    a("s_waitcnt vmcnt(%d)" % (y + 8))
    U = 16
    for d in range(8): unpack2(a, U + 2 * d, 8 + d)
    a("v_pk_add_f32 v[64:65], %s, %s" % (vr(U, 2), vr(U + 2, 2)))
    a("v_pk_add_f32 v[66:67], %s, %s" % (vr(U + 4, 2), vr(U + 6, 2)))
    a("v_pk_add_f32 v[68:69], %s, %s" % (vr(U + 8, 2), vr(U + 10, 2)))
    a("v_pk_add_f32 v[70:71], %s, %s" % (vr(U + 12, 2), vr(U + 14, 2)))
    a("v_pk_add_f32 v[64:65], v[64:65], v[66:67]")
    a("v_pk_add_f32 v[68:69], v[68:69], v[70:71]")
    a("v_pk_add_f32 v[64:65], v[64:65], v[68:69]")
    a("v_add_f32 v64, v64, v65")
    multi_dpp_red(a, [64], [1, 2, 4, 8])
    multi_swap_red(a, "v_add_f32", 16, [64], [65])
    multi_swap_red(a, "v_add_f32", 32, [64], [65])
    a("s_mov_b32 s6, %s" % hex(f32bits(1.0 / 1024)))
    a("v_mul_f32 v64, s6, v64")
    for k in range(8):
        b = U + 2 * k
        a("v_pk_add_f32 %s, %s, v[64:65] op_sel_hi:[1,0] neg_lo:[0,1] neg_hi:[0,1]" % (vr(b, 2), vr(b, 2)))
    a("v_pk_mul_f32 v[66:67], %s, %s" % (vr(U, 2), vr(U, 2)))
    a("v_pk_mul_f32 v[68:69], %s, %s" % (vr(U + 2, 2), vr(U + 2, 2)))
    for k in range(2, 8):
        t = 66 + 2 * (k & 1)
        a("v_pk_fma_f32 %s, %s, %s, %s" % (vr(t, 2), vr(U + 2 * k, 2), vr(U + 2 * k, 2), vr(t, 2)))
    a("v_pk_add_f32 v[66:67], v[66:67], v[68:69]")
    a("v_add_f32 v66, v66, v67")
    multi_dpp_red(a, [66], [1, 2, 4, 8])
    multi_swap_red(a, "v_add_f32", 16, [66], [67])
    multi_swap_red(a, "v_add_f32", 32, [66], [67])
    a("v_mov_b32 v68, %s" % hex(f32bits(1e-5)))
    a("v_fma_f32 v66, v66, s6, v68")
    a("v_rsq_f32 v66, v66")
    a("s_lshl_b32 s6, s3, 3"); a("s_add_u32 s6, s6, 2048")
    a("v_mov_b32 v68, s6")
    a("v_mul_f32 v67, -v64, v66")
    a("ds_write_b64 v68, v[66:67]")
    mt.compute(a, y, 0)
    a("s_waitcnt lgkmcnt(0)")
    a("s_mul_i32 s33, s33, 0x9E3779B1"); a("s_add_u32 s33, s33, 0x7F4A7C15"); a("s_and_b32 s33, s33, -2")
    a("v_mov_b32 v%d, s33" % VE)
    srd(a, 24, P_WS, WS_FL, FL_BYTES)
    a("s_barrier")
    st.stamp(a, 1)
    ldr = a.newlabel("k1_ldr"); nf = a.newlabel("k1_nf")
    a("s_cmp_ge_u32 s3, 4")
    a("s_cbranch_scc1 %s" % ldr)
    a("s_cmp_lg_u32 s3, 0")
    a("s_cbranch_scc1 %s" % nf)
    a("v_lshlrev_b32 v34, 3, v2"); a("v_lshlrev_b32 v35, 2, v2")
    a("ds_read_b64 v[36:37], v34 offset:2048")
    for w in range(8): a("ds_read_b32 v%d, v35 offset:%d" % (mt.T + w, 256 * w))
    a("s_lshl_b32 s35, s35, 7"); a("s_lshl_b32 s34, s34, 2"); a("s_add_u32 s34, s34, s35")
    a("v_mov_b32 v38, v%d" % VE); a("v_mov_b32 v39, v%d" % VE)
    a("s_waitcnt lgkmcnt(8)")
    a("buffer_store_dwordx4 v[36:39], v3, s[72:75], 0 offen sc1")
    a("s_waitcnt lgkmcnt(0)")
    sum8(a, mt.T)
    a("v_mov_b32 v%d, v%d" % (mt.T + 1, VE))
    a("buffer_store_dwordx2 %s, v34, s[68:71], s34 offen sc1" % vr(mt.T, 2))
    a("s_lshl_b32 s6, s4, 7"); a("s_lshl_b32 s32, s5, 2"); a("s_add_u32 s32, s32, s6"); a("s_add_u32 s32, s32, %d" % F_AR)
    a("s_lshl_b32 s6, s5, 7"); a("s_lshl_b32 s33, s4, 2"); a("s_add_u32 s33, s33, s6"); a("s_add_u32 s33, s33, %d" % F_AC)
    a("v_mov_b32 v34, s32"); a("v_writelane_b32 v34, s33, 1")
    a("s_mov_b64 exec, 3")
    a("buffer_store_dword v%d, v34, s[24:27], 0 offen sc1" % VE)
    a("s_mov_b64 exec, -1")
    a.label(nf)
    a("s_lshl_b32 s6, s4, 7"); a("s_add_u32 s6, s6, %d" % F_AR)
    a("s_lshl_b32 s32, s5, 7"); a("s_add_u32 s32, s32, %d" % (F_AC - 64))
    a("v_and_b32 v34, 31, v2"); a("v_mov_b32 v35, s6"); a("v_mov_b32 v36, s32")
    a("v_cmp_gt_u32 vcc, 16, v34")
    a("s_lshl_b32 s33, s5, 9"); a("s_add_u32 s33, s33, %s" % hex(WS_MP1))
    a("v_cndmask_b32 v35, v36, v35, vcc")
    a("v_lshl_add_u32 v34, v34, 2, v35")
    srd(a, 16, P_WS, "s33", 131072)
    a("s_lshl_b32 s34, s4, 11"); a("s_add_u32 s34, s34, %s" % hex(WS_ST1T))
    srd(a, 12, P_WS, "s34", 2048)
    s_lmap(a, 32, 5, 6, False)
    a("s_lshl_b32 s6, s4, 19"); a("s_add_u32 s32, s32, s6")
    a("s_add_u32 s32, s32, %s" % hex(WS_H1))
    srd(a, 28, P_WS, "s32", 128 * LP)
    a("s_lshl_b32 s100, s4, 7"); a("s_lshl_b32 s6, s5, 2"); a("s_add_u32 s100, s100, s6"); a("s_add_u32 s100, s100, %d" % F_1)
    for p in range(8): a("s_mov_b32 s%d, %d" % (68 + p, p * 16384))
    a("v_lshlrev_b32 v8, 3, v2"); a("v_add_u32 v9, 8192, v8")
    a("v_lshlrev_b32 v3, 2, v2")
    a("s_lshl_b32 s6, s3, 9"); a("s_add_u32 s6, s6, 4096")
    a("v_add_u32 v4, s6, v3"); a("v_lshl_add_u32 v7, v7, 5, s6")
    ur = lambda d: 48 + 2 * d if d < 8 else 128 + 2 * (d - 8)
    a("s_waitcnt vmcnt(%d)" % (6 + yt))
    for d in range(16): unpack2(a, ur(d), XT + d)
    npl = a.newlabel("k1_np")
    a("s_cmp_lg_u32 s3, 1"); a("s_cbranch_scc1 %s" % npl)
    if CFG["PA"]: a("s_sleep %d" % CFG["PA"])
    spin(a, "k1_a", lambda a: a("buffer_load_dword v35, v34, s[24:27], 0 offen sc1"), lambda a: a("v_cmp_ne_u32 vcc, v35, v%d" % VE), CFG["PS"], 4)
    a.label(npl)
    a("s_barrier")
    st.stamp(a, 2)
    def d_issue(a):
        for w in range(2):
            for p in range(8): a("buffer_load_dwordx2 %s, v%d, s[16:19], s%d offen sc1" % (vr(72 + 16 * w + 2 * p, 2), 8 + w, 68 + p))
        for i in range(4): a("buffer_load_dwordx4 %s, v6, s[12:15], 0 offen offset:%d sc1" % (vr(16 + 4 * i, 4), 512 * i))
    def d_check(a):
        tags = [73 + 2 * p for p in range(16)] + [18 + 4 * i for i in range(4)]
        for k in range(0, 20, 2):
            a("s_waitcnt vmcnt(%d)" % (18 - k))
            for op, r in (("v_min3_u32", 10), ("v_max3_u32", 11)):
                a("%s v%d, v%d, v%d, v%d" % (op, r, VE if k == 0 else r, tags[k], tags[k + 1]))
        a("v_cmp_ne_u32 vcc, v10, v11")
    spin(a, "k1_d", d_issue, d_check, 0, None, False)
    SA = 144; CA = 152
    for w in range(2):
        b = 72 + 16 * w
        for st_ in (2, 4, 8):
            for q in range(0, 16, 2 * st_): a("v_add_f32 v%d, v%d, v%d" % (b + q, b + q, b + q + st_))
        bf16_round(a, b, b)
        if w: a("v_add_f32 v%d, 1.0, v%d" % (b, b)); bf16_round(a, b, b)
        a("ds_write_b32 v4, v%d offset:%d" % (b, 256 * w))
    a("ds_read_b128 %s, v7" % vr(SA, 4)); a("ds_read_b128 %s, v7 offset:16" % vr(SA + 4, 4))
    a("ds_read_b128 %s, v7 offset:256" % vr(CA, 4)); a("ds_read_b128 %s, v7 offset:272" % vr(CA + 4, 4))
    for d in range(16):
        t = vr(ur(d), 2); sx = vr(16 + 4 * (d >> 2), 2)
        a("v_pk_fma_f32 %s, %s, %s, %s op_sel:[0,0,1] op_sel_hi:[1,0,1]" % (t, t, sx, sx))
    a("s_waitcnt lgkmcnt(0)")
    st.stamp(a, 3)
    for i in range(4):
        for d in range(4 * i, 4 * i + 4):
            t = vr(ur(d), 2)
            a("v_pk_fma_f32 %s, %s, %s, %s" % (t, t, vr(CA + 2 * (d & 3), 2), vr(SA + 2 * (d & 3), 2)))
        for d in range(4 * i, 4 * i + 4): a("v_cvt_pk_bf16_f32 v%d, v%d, v%d" % (XT + d, ur(d), ur(d) + 1))
        a("s_mov_b32 s6, %d" % (32 * LP * i))
        a("buffer_store_dwordx4 %s, v33, s[28:31], s6 offen sc1" % vr(XT + 4 * i, 4))
    a("s_branch L_phase_k2")
    a.label(ldr)
    l4 = a.newlabel("k1_l4")
    a("s_cmp_eq_u32 s3, 4")
    a("s_cbranch_scc1 %s" % l4)
    if CFG["TW"] != 3:
        a("v_subrev_u32 v4, 320, v0"); a("v_lshlrev_b32 v4, 7, v4")
        if CFG["TWS"] and CFG["TW"] == 1: a("s_sleep %d" % CFG["TWS"])
        if CFG["TW"] == 1: touch(a, P_WQKV, 24576, "s2", 4, 8, 250)
        if CFG["CT0"]: code_touch(a, "L_code_k2", "L_code_k4", 8, 4, 251)
    if CFG["TW"] == 6:
        for r in range(CFG["NB"]):
            if r: a("s_waitcnt vmcnt(0)")
            wround(a)
    a("s_barrier")
    if CFG["TW"] == 6:
        while rounds[0] < 4:
            a("s_waitcnt vmcnt(%d)" % CFG["TH"] if CFG["TH"] < 2 else "s_waitcnt vmcnt(0)")
            wround(a)
    elif CFG["TW"] >= 4:
        a("v_subrev_u32 v4, 320, v0"); a("v_lshlrev_b32 v4, 7, v4")
        if CFG["TWS"]: a("s_sleep %d" % CFG["TWS"])
        touch(a, P_WQKV, 24576, "s2", 4, 8, 250)
    a("s_branch L_phase_k2")
    a.label(l4)
    k = 0
    a("s_waitcnt vmcnt(0)")
    for pp, sh, sz, n in SHL:
        shadow_srd(a, 8, sh, sz, "s2")
        for i in range(n):
            a("s_movk_i32 s6, %d" % (8192 * i))
            a("buffer_store_dwordx4 %s, v32, s[8:11], s6 offen sc1" % vr(SHV + 4 * k, 4)); k += 1
    a("s_lshl_b32 s6, s2, 2"); a("s_add_u32 s6, s6, %d" % F_A2)
    a("v_mov_b32 v34, 0")
    a("s_mov_b64 exec, 1")
    a("s_waitcnt vmcnt(0)")
    a("buffer_store_dword v%d, v34, s[24:27], s6 offen sc1" % VE)
    a("s_barrier")
    return st

def pspin(a, name, regs, issue, gap, slot=None):
    L = a.newlabel(name + "_l"); D = a.newlabel(name + "_d")
    n = len(regs)
    a("s_mov_b32 s66, %d" % CFG["SPB"])
    for k, r in enumerate(regs):
        issue(a, r)
        if k < n - 1: a("s_sleep %d" % gap)
    a.label(L)
    for k, r in enumerate(regs):
        a("s_waitcnt vmcnt(%d)" % (n - 1))
        a("v_cmp_eq_u32 vcc, -1, v%d" % r)
        a("s_sub_u32 s66, s66, 1")
        a("s_cbranch_scc1 %s" % D)
        a("s_cbranch_vccz %s" % D)
        issue(a, r)
    a("s_branch %s" % L)
    a.label(D)
    if slot and DBG["stamp"]:
        a("s_waitcnt lgkmcnt(0)")
        a("s_sub_u32 s66, 0x40000, s66")
        a("s_add_u32 s%d, s80, s66" % (80 + 2 * slot)); a("s_addc_u32 s%d, s81, 0" % (81 + 2 * slot))

def k2(a, **ch):
    g = Gemm2("k2", 128, 1024, 32, 2, 2, LP, 6144, 256, CFG["S2"],
              [(8, [(0, 0)]), (8, [(0, 2048)]), (8, [(0, 4096)])])
    lds = max(g.LDS_MAIN, 81920)
    g.xskip = True
    WF = g.CFREE
    TR = WF + 8
    RAW = WF + 12
    VIM = 2 * 24576; KVF = 65536; ZF = KVF + 8192
    g.pf = None
    def setup(a):
        xw_srds2(a, g, P_WS, WS_H1, P_WQKV, 0, 1024 * 6144, 128, WS_SQ * CFG["SH"])
        a("s_lshl_b32 s6, s5, 12")
        srd(a, 24, P_WPHI, "s6", 4096)
        a("s_mul_i32 s6, s5, %d" % (16 * XK_SB)); a("s_add_u32 s6, s6, %s" % hex(WS_XK))
        srd(a, 16, P_WS, "s6", 16 * XK_SB)
        a("s_mul_i32 s6, s5, %d" % XR_CB); a("s_add_u32 s6, s6, %s" % hex(WS_XR))
        srd(a, 20, P_WS, "s6", XR_CB)
    def cpro(a):
        s_lmap(a, 32, 5, 6, False)
        a("s_lshl_b32 s6, s4, 19"); a("s_add_u32 s32, s32, s6")
        a("s_add_u32 s32, s32, %s" % hex(WS_O)); srd(a, 28, P_WS, "s32", 128 * LP)
        a("v_bfe_u32 v10, v1, 2, 2")
        a("v_lshrrev_b32 v13, 5, v1")
        a("v_lshl_add_u32 v10, v13, 3, v10")
        a("v_bfe_u32 v11, v1, 4, 1"); a("v_lshlrev_b32 v11, 5, v11")
        a("v_and_b32 v12, 1, v1"); a("v_lshl_add_u32 v11, v12, 4, v11")
        a("v_bfe_u32 v12, v1, 1, 1"); a("v_lshl_add_u32 v11, v12, 3, v11")
        a("s_lshr_b32 s33, s3, 1")
        a("s_lshl_b32 s6, s35, 13"); a("s_add_u32 s6, s6, %d" % VIM)
        a("v_lshl_add_u32 v%d, v10, 6, v11" % TR); a("v_add_u32 v%d, s6, v%d" % (TR, TR))
        a("s_mul_i32 s6, s35, 24576"); a("s_lshl_b32 s7, s33, 6"); a("s_add_u32 s6, s6, s7")
        a("v_mul_u32_u24 v10, 192, v10"); a("v_add3_u32 v%d, v10, v11, s6" % (TR + 1))
        a("v_lshlrev_b32 v%d, 4, v1" % (TR + 2))
        a("s_lshl_b32 s6, s35, 1"); a("s_add_u32 s6, s6, s33")
        a("s_lshl_b32 s7, s6, 15"); a("s_lshl_b32 s32, s4, 10"); a("s_add_u32 s72, s7, s32")
        a("s_add_u32 s73, s72, %d" % XK_SB)
        a("s_lshl_b32 s6, s6, 7"); a("s_lshl_b32 s7, s4, 9"); a("s_add_u32 s74, s6, s7"); a("s_add_u32 s74, s74, 8192")
        a("v_and_b32 v10, 0x13, v1")
        a("v_bfe_u32 v11, v1, 2, 1"); a("v_lshl_add_u32 v10, v11, 3, v10")
        a("v_bfe_u32 v11, v1, 3, 1"); a("v_lshl_add_u32 v10, v11, 2, v10")
        a("v_lshlrev_b32 v%d, 2, v10" % (TR + 3))
        a("s_lshl_b32 s96, s4, 2"); a("s_add_u32 s96, s96, 16384")
        a("s_cmp_eq_u32 s3, 0"); a("s_cselect_b64 s[98:99], 1, 0")
        a("v_mov_b32 v14, 0")
    def lpro(a):
        ctouch(a, g, "k2", "k4")
    MW = RAW + 20; MC = 216; ME = 224; MT_ = 232; MA = 240
    def cpost0(a):
        a("v_and_b32 v10, 0x13, v1")
        a("v_bfe_u32 v11, v1, 2, 1"); a("v_lshl_add_u32 v10, v11, 3, v10")
        a("v_bfe_u32 v11, v1, 3, 1"); a("v_lshl_add_u32 v10, v11, 2, v10")
        a("v_lshlrev_b32 v10, 1, v10")
        a("v_lshrrev_b32 v11, 5, v1"); a("v_lshl_add_u32 v10, v11, 9, v10")
        a("s_lshl_b32 s32, s35, 11")
        for t in range(2):
            for e in range(8):
                a("buffer_load_ushort v%d, v10, s[24:27], s32 offen offset:%d" % (RAW + 8 * t + e, (16 * t + e) * 64))
        if CFG["MD"] == 1: mt_issue(a)
        if CFG["XI"] == 2 and not CFG["XM"]: xk_own(a)
    def xk_own(a):
        for e in range(4): a("v_mov_b32 v%d, -1" % (MA + e))
        for q in range(2):
            a("buffer_store_dwordx4 %s, v%d, s[16:19], s%d offen sc1" % (vr(MA, 4), TR + 2, 72 + q))
    def cmid(a):
        if CFG["MD"] == 2: mt_issue(a)
        xk_own(a)
        if CFG["W1"] == 2:
            a("s_lshl_b32 s32, s2, 13"); srd(a, 68, P_WO, "s32", 8192)
            a("v_lshlrev_b32 v10, 7, v0"); a("buffer_load_dword v250, v10, s[68:71], 0 offen")
    if CFG["XI"] == 2 and CFG["XM"]: g.cmid = (CFG["XM"], cmid)
    g.cpost0 = cpost0
    def mt_issue(a, sd=68):
        a("s_lshr_b32 s32, s2, 6"); a("s_lshl_b32 s32, s32, 2"); a("s_add_u32 s32, s32, s3"); a("s_lshl_b32 s32, s32, 6")
        a("s_lshl_b32 s66, s32, 1")
        srd(a, sd, P_C, "s66", 128)
        a("v_lshrrev_b32 v10, 3, v1"); a("v_lshlrev_b32 v11, 1, v10")
        for i in range(8): a("buffer_load_ushort v%d, v11, %s, 0 offen offset:%d" % (MC + i, sr(sd, 4), 16 * i))
        a("s_mul_i32 s32, s32, 12288"); a("s_and_b32 s66, s2, 63"); a("s_lshl_b32 s66, s66, 7")
        a("s_add_u32 s32, s32, s66"); a("s_add_u32 s32, s32, 4096")
        srd(a, sd, P_WMOD, "s32", 64 * 12288 - 4096 - 63 * 128)
        a("v_mul_u32_u24 v10, 0x3000, v10"); a("v_and_b32 v11, 7, v1"); a("v_lshl_add_u32 v10, v11, 4, v10")
        for i in range(8):
            a("s_mov_b32 s32, %d" % (8 * 12288 * i))
            a("buffer_load_dwordx4 %s, v10, %s, s32 offen%s" % (vr(MW + 4 * i, 4), sr(sd, 4), " nt" if CFG["NT"] & 2 else ""))
    if CFG["MD"] == 0: g.cpre0 = mt_issue
    def mt_compute(a):
        n, C, E = 8, MC, ME
        a("s_mov_b32 s6, %s" % hex(f32bits(-LOG2E)))
        for i in range(n): a("v_lshlrev_b32 v%d, 16, v%d" % (C + i, C + i))
        for i in range(n): a("v_mul_f32 v%d, s6, v%d" % (E + i, C + i))
        for i in range(n): a("v_exp_f32 v%d, v%d" % (E + i, E + i))
        for i in range(n): a("v_add_f32 v%d, 1.0, v%d" % (E + i, E + i))
        for i in range(n): a("v_rcp_f32 v%d, v%d" % (E + i, E + i))
        for i in range(n): a("v_mul_f32 v%d, v%d, v%d" % (C + i, C + i, E + i))
        for i in range(n): a("v_cvt_pk_bf16_f32 v%d, v%d, v%d" % (C + i, C + i, C + i))
        for i in range(n): a("v_lshlrev_b32 v%d, 16, v%d" % (C + i, C + i))
        for i in range(n):
            t = MT_ if i & 1 else ME
            for d in range(4): unpack2(a, t + 2 * d, MW + 4 * i + d)
            for e in range(8):
                if i == 0: a("v_mul_f32 v%d, v%d, v%d" % (MA + e, C, t + e))
                else: a("v_fmac_f32 v%d, v%d, v%d" % (MA + e, C + i, t + e))
        xs = list(range(MA, MA + 8)); ts = list(range(MT_, MT_ + 8))
        multi_dpp_red(a, xs, [8])
        multi_swap_red(a, "v_add_f32", 16, xs, ts)
        multi_swap_red(a, "v_add_f32", 32, xs, ts)
        for e in range(1, 8):
            a("s_mov_b32 s32, %s" % hex((0xff << (8 * e)) & 0xffffffff)); a("s_mov_b32 s33, %s" % hex((0xff << (8 * e)) >> 32))
            a("v_cndmask_b32 v%d, v%d, v%d, s[32:33]" % (MA, MA, MA + e))
        a("s_and_b32 s6, s2, 63"); a("s_lshl_b32 s6, s6, 8"); a("s_add_u32 s6, s6, %d" % WS_MODR)
        srd(a, 68, P_WS, "s6", 256)
        a("v_and_b32 v%d, 7, v1" % MT_); a("v_lshrrev_b32 v%d, 3, v1" % (MT_ + 1))
        a("v_lshlrev_b32 v%d, 2, v%d" % (MT_ + 1, MT_ + 1)); a("v_lshl_add_u32 v%d, v%d, 5, v%d" % (MT_, MT_, MT_ + 1))
        a("buffer_atomic_add_f32 v%d, v%d, s[68:71], 0 offen" % (MA, MT_))
    def lpre(a):
        sk = a.newlabel("k2_a2")
        a("s_cmp_lg_u32 s3, 4"); a("s_cbranch_scc1 %s" % sk)
        srd(a, 68, P_WS, WS_FL + F_A2, 1024)
        a("v_lshlrev_b32 v38, 4, v1")
        def chk(a):
            for e in range(4): a("v_xor_b32 v%d, v%d, v%d" % (44 + e, 44 + e, VE))
            a("v_or3_b32 v44, v44, v45, v46"); a("v_or_b32 v44, v44, v47")
            a("v_cmp_ne_u32 vcc, 0, v44")
        if CFG["PB"]: a("s_sleep %d" % CFG["PB"])
        spin(a, "k2_a", lambda a: all_issue(a, 0), chk, 8)
        a.label(sk)
    g.lpre = lpre; g.fprev = VE
    line_poll(g, 10, 16, 0, True); g.pw = CFG["PW2"]; g.dyn = CFG["DY"] & 16; g.R = CFG["R2"]; g.bst = False; g.lwait = False
    def hint(a):
        a("s_mov_b64 exec, s[98:99]")
        a("buffer_store_dword v14, v14, s[20:23], s96 offen sc1")
        a("s_mov_b64 exec, -1")
    def kvphase(a):
        KV = g.acc(1, 0); Z = g.acc(1, 1); FA = g.acc(2, 0); ON = RAW
        for half in range(2):
            for t in range(4):
                T = half * 4 + t
                for q in range(2):
                    a("ds_read_b64_tr_b16 %s, v%d offset:%d" % (vr(FA + 8 * t + 2 * q, 2), TR + 1, (16 * T + 4 * q) * 192))
                    a("ds_read_b64_tr_b16 %s, v%d offset:%d" % (vr(FA + 8 * t + 4 + 2 * q, 2), TR, (16 * T + 4 * q) * 64))
            if half == 0:
                for e in range(4): a("v_mov_b32 v%d, 0x3f803f80" % (ON + e))
            if half + 2 == CFG["HP"]: hint(a)
            if DBG["stamp"] and half == 0: a("s_waitcnt lgkmcnt(0)")
            for t in range(4):
                a("s_waitcnt lgkmcnt(%d)" % (12 - 4 * t))
                first = half == 0 and t == 0
                a("v_mfma_f32_32x32x16_bf16 %s, %s, %s, %s" % (vr(KV, 16), vr(FA + 8 * t, 4), vr(FA + 8 * t + 4, 4), "0" if first else vr(KV, 16)))
                a("v_mfma_f32_32x32x16_bf16 %s, %s, %s, %s" % (vr(Z, 16), vr(ON, 4), vr(FA + 8 * t, 4), "0" if first else vr(Z, 16)))
        if CFG["HP"] == 4: hint(a)
        a("s_nop 10")
        for q in range(2):
            for e in range(4): a("v_cvt_pk_bf16_f32 v%d, v%d, v%d" % (FA + 4 * q + e, KV + 8 * q + 2 * e, KV + 8 * q + 2 * e + 1))
            a("buffer_store_dwordx4 %s, v%d, s[16:19], s%d offen sc1" % (vr(FA + 4 * q, 4), TR + 2, 72 + q))
        a("s_mov_b32 exec_hi, 0")
        a("buffer_store_dword v%d, v%d, s[20:23], s74 offen sc1" % (Z, TR + 3))
        a("s_mov_b64 exec, -1")
        if CFG["ACK"] & 1: a("s_waitcnt vmcnt(0)")
        if CFG["HP"] == 5: hint(a)
    FLG = ZF + 512
    def flg_wait(a, v):
        L = a.newlabel("k2_fl"); D = a.newlabel("k2_fd")
        a("v_mov_b32 v%d, %d" % (v, FLG))
        a("s_mov_b32 s66, 0x1000000")
        a.label(L)
        a("ds_read_b32 v%d, v%d" % (v + 1, v))
        a("s_waitcnt lgkmcnt(0)")
        a("v_cmp_eq_u32 vcc, 0, v%d" % (v + 1))
        a("s_sub_u32 s66, s66, 1")
        a("s_cbranch_scc1 %s" % D)
        a("s_cbranch_vccz %s" % D)
        a("s_sleep 1")
        a("s_branch %s" % L)
        a.label(D)
    def unit(a, PL, AC, VA, z=None):
        def issue(a):
            if z: z[0](a)
            for p in range(16):
                a("buffer_load_dwordx4 %s, v%d, s[16:19], 0 offen offset:%d sc1" % (vr(PL + 4 * p, 4), VA + (p >> 2), (p & 3) * 1024))
            if z: z[1](a)
            for p in range(16):
                a("s_waitcnt vmcnt(%d)" % (15 - p))
                t = AC if p == 0 else AC + 8
                for d in range(4): unpack2(a, t + 2 * d, PL + 4 * p + d)
                if p:
                    for h in range(4): a("v_pk_add_f32 %s, %s, %s" % (vr(AC + 2 * h, 2), vr(AC + 2 * h, 2), vr(t + 2 * h, 2)))
        def check(a):
            if z: a("v_add_f32 v%d, v%d, v%d" % (AC + 8, AC, z[2])); a("v_cmp_u_f32 vcc, v%d, v%d" % (AC + 8, AC + 7))
            else: a("v_cmp_u_f32 vcc, v%d, v%d" % (AC, AC + 7))
            for e in range(4): a("v_cvt_pk_bf16_f32 v%d, v%d, v%d" % (AC + 8 + 4 + e, AC + 2 * e, AC + 2 * e + 1))
        spin(a, "k2_u", issue, check, 0, None, False)
        a("ds_write_b128 v%d, %s" % (VA + 4, vr(AC + 12, 4)))
    def unit_prep(a, VA):
        a("s_lshl_b32 s6, s3, 14")
        a("v_lshl_add_u32 v%d, v1, 4, s6" % VA)
        for k in range(1, 4): a("v_add_u32 v%d, %d, v%d" % (VA + k, 4096 * k, VA))
        a("s_lshl_b32 s6, s3, 10"); a("s_add_u32 s6, s6, %d" % KVF)
        a("v_lshl_add_u32 v%d, v1, 4, s6" % (VA + 4))
    def epi(a):
        P = g.FR
        a("s_waitcnt vmcnt(0)")
        for e in range(8):
            a("v_lshl_or_b32 v%d, v%d, 16, v%d" % (WF + e, RAW + 1 + 2 * e, RAW + 2 * e))
        if CFG["MD"] == 3: mt_issue(a, 24)
        a("s_mov_b32 s70, %s" % hex(f32bits(LOG2E))); a("s_mov_b32 s71, s70")
        a("v_and_b32 v4, 31, v1"); a("v_add_u32 v4, s34, v4")
        a("v_lshrrev_b32 v5, 5, v1"); a("v_lshlrev_b32 v5, 4, v5")
        a("s_mul_i32 s32, s35, 24576"); a("s_lshl_b32 s33, s35, 13"); a("s_add_u32 s33, s33, %d" % VIM)
        a("v_mul_u32_u24 v6, 192, v4"); a("v_add3_u32 v6, v6, v5, s32")
        a("v_lshl_add_u32 v7, v4, 6, v5"); a("v_add_u32 v7, s33, v7")
        for i in range(2):
            for j in range(2):
                for e in range(8):
                    A = g.acc(i, j)
                    a("v_cvt_pk_bf16_f32 v%d, v%d, v%d" % (P + (i * 2 + j) * 8 + e, A + 2 * e, A + 2 * e + 1))
        for i in (1, 0):
            for j in range(2):
                A = g.acc(i, j); pk = P + (i * 2 + j) * 8
                a("v_mfma_f32_32x32x16_bf16 %s, %s, %s, 0" % (vr(A, 16), vr(WF, 4), vr(pk, 4)))
                a("v_mfma_f32_32x32x16_bf16 %s, %s, %s, %s" % (vr(A, 16), vr(WF + 4, 4), vr(pk + 4, 4), vr(A, 16)))
        for j in range(2):
            A = g.acc(2, j)
            for e in range(8):
                a("v_cvt_pk_bf16_f32 v%d, v%d, v%d" % (P + 32 + e, A + 2 * e, A + 2 * e + 1))
            for t in range(2):
                a("ds_write_b128 v7, %s offset:%d" % (vr(P + 32 + 4 * t, 4), j * 32 * 64 + t * 32))
            if j == 0: a("s_nop 1")
        EN = g.acc(2, 0)
        for i in (1, 0):
            for j in range(2):
                A = g.acc(i, j); pk = P + (i * 2 + j) * 8
                a("v_max3_f32 v10, v%d, v%d, v%d" % (A, A + 1, A + 2))
                a("v_min3_f32 v12, v%d, v%d, v%d" % (A, A + 1, A + 2))
                for e in range(3, 15, 2):
                    a("v_max3_f32 v10, v10, v%d, v%d" % (A + e, A + e + 1))
                    a("v_min3_f32 v12, v12, v%d, v%d" % (A + e, A + e + 1))
                a("v_max_f32 v10, v10, v%d" % (A + 15))
                a("v_min_f32 v12, v12, v%d" % (A + 15))
                a("v_mov_b32 v11, v10"); a("v_mov_b32 v13, v12")
                a("s_nop 1")
                a("v_permlane32_swap_b32 v10, v11"); a("v_permlane32_swap_b32 v12, v13")
                a("v_max_f32 v10, v10, v11"); a("v_min_f32 v12, v12, v13")
                a("v_mul_f32 v10, s70, v10"); a("v_mul_f32 v12, s70, v12")
                for e in range(8):
                    a("v_pk_fma_f32 %s, %s, s[70:71], v[12:13] op_sel_hi:[1,1,0] neg_lo:[0,1,0] neg_hi:[0,1,0]" % (vr(EN + 2 * e, 2), vr(A + 2 * e, 2)))
                    a("v_pk_fma_f32 %s, %s, s[70:71], v[10:11] op_sel_hi:[1,1,0] neg_lo:[0,0,1] neg_hi:[0,0,1]" % (vr(A + 2 * e, 2), vr(A + 2 * e, 2)))
                for e in range(16):
                    a("v_exp_f32 v%d, v%d" % (A + e, A + e))
                    a("v_exp_f32 v%d, v%d" % (EN + e, EN + e))
                a("v_pk_add_f32 v[10:11], %s, %s" % (vr(A, 2), vr(A + 2, 2)))
                a("v_pk_add_f32 v[12:13], %s, %s" % (vr(EN, 2), vr(EN + 2, 2)))
                for e in range(2, 8):
                    a("v_pk_add_f32 v[10:11], v[10:11], %s" % vr(A + 2 * e, 2))
                    a("v_pk_add_f32 v[12:13], v[12:13], %s" % vr(EN + 2 * e, 2))
                a("v_add_f32 v10, v10, v11"); a("v_add_f32 v12, v12, v13")
                a("v_mov_b32 v11, v10"); a("v_mov_b32 v13, v12")
                a("s_nop 1")
                a("v_permlane32_swap_b32 v10, v11"); a("v_permlane32_swap_b32 v12, v13")
                a("v_add_f32 v10, v10, v11"); a("v_add_f32 v12, v12, v13")
                a("v_rcp_f32 v10, v10"); a("v_rcp_f32 v12, v12")
                a("s_nop 0")
                if i == 1 and j == 1 and CFG["HP"] == 0: hint(a)
                for e in range(8):
                    a("v_pk_mul_f32 %s, %s, v[10:11] op_sel_hi:[1,0]" % (vr(A + 2 * e, 2), vr(A + 2 * e, 2)))
                    a("v_pk_mul_f32 %s, %s, v[12:13] op_sel_hi:[1,0]" % (vr(EN + 2 * e, 2), vr(EN + 2 * e, 2)))
                for e in range(8):
                    a("v_cvt_pk_bf16_f32 v%d, v%d, v%d" % (pk + e, A + 2 * e, A + 2 * e + 1))
                for e in range(8):
                    a("v_cvt_pk_bf16_f32 v%d, v%d, v%d" % (A + e, EN + 2 * e, EN + 2 * e + 1))
                if i == 1:
                    for q in range(4):
                        src = vr(pk + 4 * q, 4) if q < 2 else vr(A + 4 * (q - 2), 4)
                        a("ds_write_b128 v6, %s offset:%d" % (src, j * 32 * 192 + q * 32))
                if i == 1 and j == 1:
                    if CFG["HP"] == 1: hint(a)
                    g.stamp(a, 3)
                    a("s_waitcnt lgkmcnt(0)")
                    a("s_barrier")
                    kvphase(a)
                    if CFG["MD"] == 4: mt_issue(a, 24)
                    g.stamp(a, 4)
        if CFG["MD"] >= 3: a("s_waitcnt vmcnt(0)")
        mt_compute(a)
        a("s_lshl_b32 s6, s35, 12"); a("s_add_u32 s6, s6, %d" % KVF)
        a("v_lshl_add_u32 v6, v1, 4, s6")
        a("s_lshl_b32 s6, s35, 7"); a("s_add_u32 s6, s6, %d" % ZF)
        a("v_add_u32 v7, s6, v5")
        if CFG["OS"] == 1:
            a("v_and_b32 v4, 15, v1"); a("v_add_u32 v4, s34, v4"); a("v_bfe_u32 v3, v1, 4, 1")
            a("v_lshl_add_u32 v3, v3, 5, v5"); a("v_lshl_add_u32 v4, v4, 12, v3")
        else:
            a("s_lshl_b32 s6, s3, 12")
            a("v_and_b32 v2, 31, v1"); a("v_lshl_add_u32 v2, v2, 6, v5"); a("v_add_u32 v2, s6, v2")
            a("v_lshl_add_u32 v3, v1, 4, s6")
            a("v_lshrrev_b32 v4, 2, v1"); a("v_add_u32 v4, s34, v4"); a("v_and_b32 v5, 3, v1")
            a("v_lshlrev_b32 v5, 4, v5"); a("v_lshl_add_u32 v4, v4, 12, v5")
        a("s_lshl_b32 s72, s35, 6")
        for k in range(1, 4): a("s_add_u32 s%d, s72, %d" % (72 + k, 16 * k * LP))
        assert g.acc(2, 1) == g.acc(1, 0) + 48
        unit_prep(a, MT_)
        g.stamp(a, 5)
        flg_wait(a, MA)
        if CFG["UW"]: a("s_sleep %d" % CFG["UW"])
        unit(a, g.acc(1, 0), MW, MT_)
        a("s_waitcnt lgkmcnt(0)")
        a("s_barrier")
        g.stamp(a, 6)
        KV = g.acc(1, 0); Z = g.acc(1, 1); NUM = [g.acc(2, 0), RAW + 20]; DEN = [g.acc(2, 1), RAW + 36]
        for T in range(4): a("ds_read_b128 %s, v7 offset:%d" % (vr(Z + 4 * T, 4), T * 32))
        for T in range(4): a("ds_read_b128 %s, v6 offset:%d" % (vr(KV + 4 * T, 4), T * 1024))
        def phq(j, T): return vr(P + j * 8 + 4 * T, 4) if T < 2 else vr(g.acc(0, j) + 4 * (T - 2), 4)
        a("s_waitcnt lgkmcnt(%d)" % (0 if DBG["stamp"] else 4))
        for j in range(2):
            for T in range(4):
                a("v_mfma_f32_32x32x16_bf16 %s, %s, %s, %s" % (vr(DEN[j], 16), vr(Z + 4 * T, 4), phq(j, T), "0" if T == 0 else vr(DEN[j], 16)))
        a("s_waitcnt lgkmcnt(0)")
        for j in range(2):
            for T in range(4):
                a("v_mfma_f32_32x32x16_bf16 %s, %s, %s, %s" % (vr(NUM[j], 16), vr(KV + 4 * T, 4), phq(j, T), "0" if T == 0 else vr(NUM[j], 16)))
            if j == 0:
                for jj in range(2): a("v_add_f32 v%d, %s, v%d" % (8 + 2 * jj, hex(f32bits(1e-6)), DEN[jj]))
                for jj in range(2): a("v_rcp_f32 v%d, v%d" % (8 + 2 * jj, 8 + 2 * jj))
        for j in range(2):
            if j == 1: a("s_nop 2")
            for e in range(8):
                a("v_pk_mul_f32 %s, %s, %s op_sel_hi:[1,0]" % (vr(NUM[j] + 2 * e, 2), vr(NUM[j] + 2 * e, 2), vr(8 + 2 * j, 2)))
            for e in range(8):
                a("v_cvt_pk_bf16_f32 v%d, v%d, v%d" % (DEN[j] + e, NUM[j] + 2 * e, NUM[j] + 2 * e + 1))
            if CFG["OS"] == 1:
                for e in range(4): a("v_permlane16_swap_b32 v%d, v%d" % (DEN[j] + e, DEN[j] + 4 + e))
            else:
                for h in range(2): a("ds_write_b128 v2, %s offset:%d" % (vr(DEN[j] + 4 * h, 4), 2048 * j + 32 * h))
                for h in range(2): a("ds_read_b128 %s, v3 offset:%d" % (vr(DEN[j] + 8 + 4 * h, 4), 2048 * j + 1024 * h))
                if j == 0: continue
            for jj in ([j] if CFG["OS"] == 1 else [0, 1]):
                for h in range(2):
                    if CFG["OS"] != 1: a("s_waitcnt lgkmcnt(%d)" % (0 if DBG["stamp"] else [5, 4, 1, 0][2 * jj + h]))
                    a("buffer_store_dwordx4 %s, v4, s[28:31], s%d offen sc1" % (vr(DEN[jj] + 4 * h + (0 if CFG["OS"] == 1 else 8), 4), 72 + 2 * jj + h))
    def etile(a):
        a("v_and_b32 v3, 255, v0"); a("v_lshlrev_b32 v2, 7, v3")
        if CFG["W1"] == 1: touch(a, P_WO, 8192, "s2", 2, 8, 60)
        if CFG["W2"] == 1: touch(a, P_WIN, 28672, "s2", 2, 12, 61)
    g.etile = etile; g.etile_n = (CFG["W1"] == 1) + (CFG["W2"] == 1); g.etile_wait = False
    flag_rc(g, 0, 4, 5)
    def lepi(a):
        PL = 144; ZL = 96; AC = 64
        unit_prep(a, 16)
        a("v_and_b32 v10, 15, v1")
        a("v_lshlrev_b32 v21, 2, v10"); a("v_add_u32 v21, 16384, v21")
        a("v_lshlrev_b32 v25, 3, v1"); a("v_add_u32 v25, 8192, v25"); a("v_add_u32 v23, 4096, v25")
        a("v_lshlrev_b32 v27, 2, v1"); a("v_add_u32 v27, %d, v27" % ZF)
        a("v_mov_b32 v28, 0"); a("v_mov_b32 v29, %d" % FLG)
        a("ds_write_b32 v29, v28")
        a("s_setprio %d" % CFG["LPR"])
        a("s_waitcnt vmcnt(0) lgkmcnt(0)")
        a("s_barrier")
        g.stamp(a, 3)
        lz = a.newlabel("k2_lz"); lg = a.newlabel("k2_lg"); nr2 = a.newlabel("k2_nr2"); lu = a.newlabel("k2_lu")
        a("s_cmp_lg_u32 s34, 0"); a("s_cbranch_scc1 %s" % lg)
        a("s_sleep %d" % CFG["H1W"])
        pspin(a, "k2_h", [36, 37, 38, 39][:CFG["NP"]], lambda a, r: a("buffer_load_dword v%d, v21, s[20:23], 0 offen sc1" % r), CFG["PG"])
        a("ds_write_b32 v29, v29")
        g.stamp(a, 4)
        a("s_branch %s" % lu)
        a.label(lg)
        flg_wait(a, 30)
        a("s_cmp_eq_u32 s34, 1"); a("s_cbranch_scc1 %s" % lz)
        a.label(lu)
        if CFG["UW"]: a("s_sleep %d" % CFG["UW"])
        unit(a, PL, AC, 16)
        a("s_branch %s" % nr2)
        a.label(lz)
        if CFG["UW"]: a("s_sleep %d" % CFG["UW"])
        def z_issue(a):
            for p in range(16):
                a("buffer_load_dwordx2 %s, v%d, s[20:23], 0 offen offset:%d sc1" % (vr(ZL + 2 * p, 2), 25 if p < 8 else 23, (p & 7) * 512))
        def z_sum(a):
            for p in range(1, 16):
                a("s_waitcnt vmcnt(%d)" % (31 - p))
                a("v_pk_add_f32 %s, %s, %s" % (vr(ZL, 2), vr(ZL, 2), vr(ZL + 2 * p, 2)))
            a("v_cvt_pk_bf16_f32 v30, v%d, v%d" % (ZL, ZL + 1))
            a("v_add_f32 v%d, v%d, v%d" % (ZL, ZL, ZL + 1))
        unit(a, PL, AC, 16, (z_issue, z_sum, ZL))
        a("ds_write_b32 v27, v30")
        a.label(nr2)
        a("s_waitcnt lgkmcnt(0)")
        g.stamp(a, 5)
        a("s_barrier")
    kn = g.emit(a, tilemap_16x16_r8c4, setup, cpro, lpro, epi, lepi, **ch)
    return g, lds

def rm_addr(a, vrow, vld, t):
    a("v_lshrrev_b32 v%d, 3, v1" % t)
    a("s_lshl_b32 s32, s3, 4")
    a("v_add_u32 v%d, s32, v%d" % (vrow, t))
    a("v_and_b32 v%d, 7, v1" % vld)
    a("v_lshlrev_b32 v%d, 1, v%d" % (vld, vld))
    a("v_xor_b32 v%d, v%d, v%d" % (vld, vld, t))
    a("v_lshlrev_b32 v%d, 4, v%d" % (vld, vld))
    a("v_lshl_add_u32 v%d, v%d, 8, v%d" % (vld, vrow, vld))
    a("v_xor_b32 v%d, 16, v%d" % (vld + 1, vld))

def stage32_addr(a, g, SA, t):
    a("v_and_b32 v%d, 31, v1" % t); a("v_add_u32 v%d, s34, v%d" % (t, t))
    a("v_lshrrev_b32 v%d, 5, v1" % SA); a("v_lshlrev_b32 v%d, 1, v%d" % (SA, SA))
    a("v_and_b32 v%d, 7, v1" % (SA + 1)); a("v_xor_b32 v%d, v%d, v%d" % (SA, SA, SA + 1))
    a("v_lshlrev_b32 v%d, 4, v%d" % (SA, SA)); a("v_lshl_add_u32 v%d, v%d, 8, v%d" % (SA, t, SA))
    if g.wgn == 2:
        a("s_lshl_b32 s6, s35, 7"); a("v_add_u32 v%d, s6, v%d" % (SA, SA))
    for k, x in enumerate((16, 64, 80)): a("v_xor_b32 v%d, %d, v%d" % (SA + 1 + k, x, SA))

def stage32(a, SA, tiles):
    a("s_nop 10")
    for A, off in tiles:
        for q in range(4):
            a("ds_write_b128 v%d, %s offset:%d" % (SA + q, vr(A + 4 * q, 4), off))

def compact8(a, dst, vals, vperm, sm):
    a("v_mov_b32 v%d, v%d" % (dst, vals[0]))
    for c in range(1, len(vals)):
        a("s_mov_b32 s%d, %s" % (sm, hex(0x01010101 << c))); a("s_mov_b32 s%d, s%d" % (sm + 1, sm))
        a("v_cndmask_b32 v%d, v%d, v%d, %s" % (dst, dst, vals[c], sr(sm, 2)))
    a("ds_bpermute_b32 v%d, v%d, v%d" % (dst, vperm, dst))

def k_res(a, name, K, xoff, wp, resp, resoff, gate_idx, outp, outoff, stats, S, shadow, **ch):
    g = Gemm2(name, 128, K, 32, 4, 1, LP, 2048, 256, S, [(8, [(0, 0)])])
    g.xskip = True
    RX = g.CFREE; GA = RX + 8; CB = GA + 8; VO2 = CB + 8; VO4 = VO2 + 1; VLD = VO2 + 2; VAT = VO2 + 4; VPM = VO2 + 5; VGT = VO2 + 6
    F = VO2 + 8; T = F + 16; SA = T + 16
    lds = g.LDS_MAIN + 1024 + 32768 + 2048
    def setup(a):
        xw_srds2(a, g, P_WS, xoff, wp, 0, K * 2048, 128, shadow * CFG["SH"])
        a("s_lshl_b32 s6, s4, 18"); a("s_lshl_b32 s7, s5, 7"); a("s_add_u32 s6, s6, s7")
        a("s_sub_u32 s7, %d, s6" % (2048 * 2048))
        if resoff:
            a("s_add_u32 s32, s6, %s" % hex(resoff)); srd(a, 16, resp, "s32", "s7")
        else:
            srd(a, 16, resp, "s6", "s7")
        if outoff:
            a("s_add_u32 s32, s6, %s" % hex(outoff)); srd(a, 20, outp, "s32", "s7")
        else:
            srd(a, 20, outp, "s6", "s7")
        if stats:
            s_lmap(a, 32, 5, 6, False)
            a("s_lshl_b32 s6, s4, 19"); a("s_add_u32 s32, s32, s6")
            a("s_add_u32 s32, s32, %s" % hex(WS_Y)); srd(a, 72, P_WS, "s32", 128 * LP)
            a("s_lshl_b32 s6, s4, 9"); a("s_add_u32 s6, s6, %s" % hex(WS_SUM2))
            srd(a, 28, P_WS, "s6", 8192 + 512)
        a("s_lshl_b32 s6, s5, 8"); a("s_add_u32 s6, s6, %d" % (WS_MODR + (gate_idx - 2) * 4096))
        srd(a, 24, P_WS, "s6", 8192 + 256)
        a("s_movk_i32 s96, 0x4000")
        a("s_mov_b32 s97, 0x8000")
        a("s_movk_i32 s98, 0x2000")
    g.pf = None
    def rm_loads(a):
        rm_addr(a, VO4, VLD, 10)
        a("v_and_b32 v11, 7, v1")
        a("v_lshlrev_b32 v12, 5, v11"); a("v_lshlrev_b32 v11, 4, v11")
        a("v_lshl_add_u32 v%d, v%d, 11, v11" % (VO2, VO4))
        a("v_lshl_add_u32 v%d, v%d, 12, v11" % (VO4, VO4))
        a("buffer_load_dwordx4 %s, v%d, s[16:19], 0 offen sc1" % (vr(RX, 4), VO2))
        a("buffer_load_dwordx4 %s, v%d, s[16:19], s96 offen sc1" % (vr(RX + 4, 4), VO2))
        a("v_add_u32 v%d, %d, v12" % (VGT, g.LDS_MAIN))
        if stats:
            a("v_and_b32 v11, 7, v1"); a("v_lshlrev_b32 v11, 5, v11"); a("v_lshl_add_u32 v%d, v10, 2, v11" % VPM)
            a("v_and_b32 v11, 15, v1"); a("v_bfe_u32 v10, v1, 4, 1")
            a("s_lshl_b32 s32, s3, 6")
            a("v_lshl_add_u32 v11, v11, 2, s32"); a("v_lshl_add_u32 v%d, v10, 13, v11" % VAT)
    def cpro(a):
        stage32_addr(a, g, SA, 10)
    def cpost0(a):
        rm_loads(a)
        if stats and CFG["W2"] == 2:
            a("s_mul_i32 s32, s2, 28672"); srd(a, 68, P_WIN, "s32", 28672)
            a("v_lshlrev_b32 v10, 7, v0"); a("buffer_load_dword v250, v10, s[68:71], 0 offen")
    g.cpost0 = cpost0
    def lpro(a):
        ctouch(a, g, "k3" if stats else "k6", "k5" if stats else "end")
        if stats: all_prep(a, True)
    if stats:
        line_poll(g, 0, 16, 0); flag_rc(g, 1, 4, 5); g.pw = CFG["PW3"]; g.dyn = CFG["DY"] & 1; g.R = CFG["R3"]
    else:
        line_poll(g, 3, 14, 1); g.pw = CFG["PW6"]; g.dyn = CFG["DY"] & 8; g.R = CFG["R6"]
    g.npre = min(g.npre, CFG["NPRE"])
    UVW = 98304 + 1024; TB = UVW + 32768
    def uv_map(a):
        a("s_lshr_b32 s6, s2, 3")
        a("s_cmp_ge_u32 s6, 14"); a("s_cselect_b32 s7, 14, 0"); a("s_cselect_b32 s32, 1, 0")
        a("s_sub_u32 s7, s6, s7")
        a("s_and_b32 s33, s2, 1"); a("s_lshl_b32 s33, s33, 1"); a("s_add_u32 s32, s32, s33")
        a("s_cmp_ge_u32 s7, 7"); a("s_cselect_b32 s33, 21, 0"); a("s_add_u32 s33, s33, s7")
        a("s_bfe_u32 s6, s2, 0x20001"); a("s_mul_i32 s6, s6, 7"); a("s_add_u32 s33, s33, s6")
        a("s_cmp_lt_u32 s7, 14"); a("s_cselect_b32 s99, -1, 0")
        a("s_lshl_b32 s32, s32, 2"); a("s_add_u32 s32, s32, s3"); a("s_sub_u32 s32, s32, 4"); a("s_lshl_b32 s32, s32, 6")
    def uv_issue(a):
        uv_map(a)
        a("s_lshl_b32 s6, s32, 2"); a("s_add_u32 s6, s6, %d" % (WS_MODR + 4096))
        srd(a, 68, P_WS, "s6", 4096 + 256)
        a("s_mul_i32 s6, s32, 7168"); a("s_lshl_b32 s7, s33, 7"); a("s_add_u32 s6, s6, s7")
        a("s_and_b32 s7, s99, %d" % (64 * 7168))
        srd(a, 8, P_WIN, "s6", "s7")
        a("v_lshrrev_b32 v2, 3, v1"); a("v_and_b32 v3, 7, v1")
        a("v_bfe_u32 v4, v1, 4, 1"); a("v_lshlrev_b32 v4, 2, v4"); a("v_xor_b32 v3, v3, v4")
        a("v_mul_u32_u24 v2, 7168, v2"); a("v_lshl_add_u32 v2, v3, 4, v2")
        a("s_lshl_b32 s7, s3, 13"); a("s_add_u32 s7, s7, %d" % (UVW - 4 * 8192))
        a("s_mov_b32 s6, 0")
        for i in range(8):
            a("s_add_u32 m0, s7, %d" % (i * 1024))
            if i: a("s_add_u32 s6, s6, %d" % (8 * 7168))
            else: a("s_nop 0")
            a("buffer_load_dwordx4 v2, s[8:11], s6 offen lds")
        a("v_lshlrev_b32 v2, 2, v1")
        a("s_movk_i32 s6, 0x1000")
        a("buffer_load_dword v%d, v2, s[68:71], s6 offen sc1" % UM)
        a("buffer_load_dword v%d, v2, s[68:71], 0 offen sc1" % (UM + 1))
    def ptouch(a):
        a("v_mul_u32_u24 v60, 7168, v1")
        a("s_xor_b32 s6, s32, 512"); a("s_mul_i32 s6, s6, 7168"); a("s_lshl_b32 s7, s33, 7"); a("s_add_u32 s6, s6, s7")
        a("s_and_b32 s7, s99, %d" % (64 * 7168))
        srd(a, 68, P_WIN, "s6", "s7")
        a("buffer_load_dword v72, v60, s[68:71], 0 offen")
    def post_free(a, younger):
        sk = a.newlabel("k2_pf")
        a("s_cmp_lt_u32 s3, 4"); a("s_cbranch_scc1 %s" % sk)
        uv_map(a)
        if CFG["PT"] == 2: ptouch(a)
        uv_compute(a, younger)
        if CFG["PT"] == 3: ptouch(a)
        a.label(sk)
    if stats: g.post_free = post_free
    UM = 200
    def uv_compute(a, younger):
        AD = 76; AF = 88; BF = 120; D = 152; nt = (CFG["PT"] == 2) + younger
        a("s_lshl_b32 s6, s3, 9"); a("s_add_u32 s6, s6, %d" % (TB - 2048))
        a("v_lshl_add_u32 v2, v1, 1, s6")
        a("v_mov_b32 v3, 0")
        a("ds_write_b16 v2, v3 offset:256")
        a("v_and_b32 v4, 31, v1"); a("v_lshrrev_b32 v5, 5, v1"); a("v_lshl_add_u32 v6, v5, 4, s6")
        a("v_min_u32 v7, 2, v4"); a("v_lshl_add_u32 v%d, v7, 7, v6" % AD)
        a("v_subrev_u32 v7, 4, v4"); a("v_min_u32 v7, 2, v7"); a("v_lshl_add_u32 v%d, v7, 7, v6" % (AD + 1))
        a("v_bfe_u32 v10, v1, 2, 2"); a("v_lshl_add_u32 v10, v5, 3, v10")
        a("v_bfe_u32 v11, v1, 4, 1"); a("v_lshlrev_b32 v11, 5, v11")
        a("v_and_b32 v13, 1, v1"); a("v_lshl_add_u32 v11, v13, 4, v11")
        a("v_bfe_u32 v13, v1, 1, 1"); a("v_lshl_add_u32 v11, v13, 3, v11")
        a("v_bfe_u32 v13, v1, 3, 1"); a("v_lshl_add_u32 v11, v13, 6, v11")
        a("s_lshl_b32 s7, s3, 13"); a("s_add_u32 s7, s7, %d" % (UVW - 4 * 8192))
        a("v_lshl_add_u32 v11, v10, 7, v11"); a("v_add_u32 v%d, s7, v11" % (AD + 2))
        a("v_xor_b32 v%d, 64, v%d" % (AD + 3, AD + 2))
        a("v_and_b32 v10, 0x33, v1")
        a("v_bfe_u32 v11, v1, 2, 1"); a("v_lshl_add_u32 v10, v11, 3, v10")
        a("v_bfe_u32 v11, v1, 3, 1"); a("v_lshl_add_u32 v10, v11, 2, v10")
        a("v_lshlrev_b32 v10, 2, v10")
        a("s_lshl_b32 s6, s33, 8"); a("s_add_u32 s6, s6, %s" % hex(WS_UV))
        a("s_and_b32 s7, s99, %d" % (16384 + 256))
        srd(a, 68, P_WS, "s6", "s7")
        a("s_movk_i32 s6, 0x4000")
        a("s_waitcnt vmcnt(%d)" % nt)
        for s_ in range(2):
            for h in range(2):
                for q in range(2):
                    a("ds_read_b64_tr_b16 %s, v%d offset:%d" % (vr(BF + 8 * s_ + 4 * h + 2 * q, 2), AD + 2 + h, (16 * s_ + 4 * q) * 128))
        for w in range(2):
            b = UM + w
            if w == 0:
                bf16_round(a, b, b)
                a("v_add_f32 v%d, 1.0, v%d" % (b, b))
            a("v_cvt_pk_bf16_f32 v%d, v%d, v%d" % (b, b, b))
            a("ds_write_b16 v2, v%d offset:%d" % (b, 128 * w))
        a("s_waitcnt lgkmcnt(2)")
        for s_ in range(4):
            for h in range(2): a("ds_read_b128 %s, v%d offset:%d" % (vr(AF + 8 * s_ + 4 * h, 4), AD + h, 32 * s_))
        a("s_waitcnt lgkmcnt(6)")
        for s_ in range(2, 4):
            for h in range(2):
                for q in range(2):
                    a("ds_read_b64_tr_b16 %s, v%d offset:%d" % (vr(BF + 8 * s_ + 4 * h + 2 * q, 2), AD + 2 + h, (16 * s_ + 4 * q) * 128))
        for k in range(8):
            a("s_waitcnt lgkmcnt(%d)" % (8 if k < 4 else 14 - 2 * k))
            a("v_mfma_f32_32x32x16_bf16 %s, %s, %s, %s" % (vr(D, 16), vr(AF + 4 * k, 4), vr(BF + 4 * k, 4), "0" if k == 0 else vr(D, 16)))
        a("s_nop 10"); a("s_nop 6")
        a("buffer_atomic_add_f32 v%d, v10, s[68:71], 0 offen" % D)
        a("buffer_atomic_add_f32 v%d, v10, s[68:71], s6 offen" % (D + 1))
        g.stamp(a, 5)
    if stats: g.ltouch = [(CFG["S3"] - 1, lambda a: all_issue(a, 0))]
    def etile(a):
        if stats: all_check(a, 0)
        a("v_lshlrev_b32 v9, 2, v1")
        a("buffer_load_dword v40, v9, s[24:27], 0 offen sc1")
        if stats: a("buffer_load_dword v41, v9, s[24:27], s98 offen sc1")
        rm_loads(a)
    g.etile = etile; g.etile_n = 4 if stats else 3; g.etile_wait = False
    def lepi(a):
        a("v_add_u32 v9, %d, v9" % g.LDS_MAIN)
        if stats: uv_issue(a)
        a("s_waitcnt vmcnt(%d)" % (12 if stats else 2))
        bf16_round(a, 40, 40)
        a("ds_write_b32 v9, v40")
        if stats:
            bf16_round(a, 41, 41); a("v_add_f32 v41, 1.0, v41"); bf16_round(a, 41, 41)
            a("ds_write_b32 v9, v41 offset:256")
        a("s_waitcnt vmcnt(%d)" % (10 if stats else 0))
        if not stats:
            a("s_load_dword s6, %s, %s" % (sr(ptr(P_WS), 2), hex(WS_EP)))
            srd(a, 68, P_WS, WS_EP, 4)
            a("s_lshl_b32 s7, s2, 3"); a("s_add_u32 s7, s7, s3"); a("v_mov_b32 v41, 0")
            a("s_waitcnt lgkmcnt(0)")
            a("s_add_u32 s6, s6, 1"); a("v_mov_b32 v40, s6")
            a("s_cmp_eq_u32 s7, 4"); a("s_cselect_b64 exec, 1, 0")
            a("buffer_store_dword v40, v41, s[68:71], 0 offen sc1")
            a("s_mov_b64 exec, -1")
    def epi(a):
        stage32(a, SA, [(g.acc(0, 0), 0), (g.acc(1, 0), 128)])
        if CFG["EP"]: a("s_setprio 0")
        a("s_waitcnt vmcnt(0)")
    def common(a):
        a("s_waitcnt lgkmcnt(0)")
        g.stamp(a, 3)
        a("s_barrier")
        g.stamp(a, 4)
        for h in range(2): a("ds_read_b128 %s, v%d offset:%d" % (vr(GA + 4 * h, 4), VGT, 16 * h))
        for i in range(2):
            for h in range(2): a("ds_read_b128 %s, v%d offset:%d" % (vr(F + 8 * i + 4 * h, 4), VLD + h, 2048 * i))
        if stats:
            for h in range(2): a("ds_read_b128 %s, v%d offset:%d" % (vr(CB + 4 * h, 4), VGT, 256 + 16 * h))
        for e in range(8): unpack2(a, T + 2 * e, RX + e)
        for i in range(2):
            a("s_waitcnt lgkmcnt(%d)" % (2 - 2 * i + (2 if stats else 0)))
            for e in range(4):
                x = vr(F + 8 * i + 2 * e, 2)
                a("v_pk_fma_f32 %s, %s, %s, %s" % (x, x, vr(GA + 2 * e, 2), vr(T + 8 * i + 2 * e, 2)))
            for e in range(4):
                a("v_cvt_pk_bf16_f32 v%d, v%d, v%d" % (RX + 4 * i + e, F + 8 * i + 2 * e, F + 8 * i + 2 * e + 1))
            a("buffer_store_dwordx4 %s, v%d, s[20:23], %s offen%s" % (vr(RX + 4 * i, 4), VO2, "s96" if i else "0", " sc1" if stats else (" nt" if CFG["NT"] & 16 else "")))
        if stats:
            for e in range(8): unpack2(a, F + 2 * e, RX + e)
            a("s_waitcnt lgkmcnt(0)")
            for i in range(2):
                for e in range(4):
                    a("v_pk_mul_f32 %s, %s, %s" % (vr(T + 8 * i + 2 * e, 2), vr(F + 8 * i + 2 * e, 2), vr(CB + 2 * e, 2)))
            for i in range(2):
                for e in range(4):
                    a("v_cvt_pk_bf16_f32 v%d, v%d, v%d" % (GA + 4 * i + e, T + 8 * i + 2 * e, T + 8 * i + 2 * e + 1))
                a("buffer_store_dwordx4 %s, v%d, s[72:75], %s offen sc1" % (vr(GA + 4 * i, 4), VO4, "s97" if i else "0"))
            for i in range(2):
                s_, q_ = vr(T + 4 * i, 2), vr(T + 4 * i + 2, 2)
                x = lambda e: vr(F + 8 * i + 2 * e, 2)
                a("v_pk_add_f32 %s, %s, %s" % (s_, x(0), x(1)))
                a("v_pk_mul_f32 %s, %s, %s" % (q_, x(0), x(0)))
                a("v_pk_fma_f32 %s, %s, %s, %s" % (q_, x(1), x(1), q_))
                for e in (2, 3):
                    a("v_pk_add_f32 %s, %s, %s" % (s_, s_, x(e)))
                    a("v_pk_fma_f32 %s, %s, %s, %s" % (q_, x(e), x(e), q_))
            for k in range(4): a("v_add_f32 v%d, v%d, v%d" % (T + 2 * k, T + 2 * k, T + 2 * k + 1))
            red8(a, [T, T + 2, T + 4, T + 6])
            compact8(a, T + 8, [T, T + 4, T + 2, T + 6], VPM, 66)
            a("s_mov_b32 exec_hi, 0")
            a("s_waitcnt lgkmcnt(0)")
            a("buffer_atomic_add_f32 v%d, v%d, s[28:31], 0 offen" % (T + 8, VAT))
    kn = g.emit(a, tilemap_16x16_r4c8, setup, cpro, lpro, epi, lepi, common, **ch)
    return g, lds

def k4(a, **ch):
    Z2 = 3584
    ZO = WS_Z2 - WS_Z1
    g = Gemm2("k4", 128, 1024, 16, 2, 2, LP, 7168, 256, CFG["S4"],
              [(8, [(0, "s72")]), (8, [(0, "s73")]), (8, [(0, "s74")]), (4, [(0, "s75")])])
    g.xskip = True
    UVT = g.LDS_MAIN
    RST = UVT + 2048
    lds = RST + 1024
    SA = g.CFREE
    def nib(v): return sum(x << (4 * i) for i, x in enumerate(v))
    def setup(a):
        xw_srds2(a, g, P_WS, WS_Y, P_WIN, 0, 1024 * 7168, 0)
        srd(a, 16, P_WS, WS_UV, 32768)
        srd(a, 20, P_WS, WS_SUM2, 16384)
        a("s_lshl_b32 s6, s4, 19")
        a("s_add_u32 s6, s6, %s" % hex(WS_Z1))
        srd(a, 24, P_WS, "s6", ZO + 128 * LP)
        a("s_lshl_b32 s6, s4, 14"); a("s_add_u32 s6, s6, %s" % hex(WS_XCH))
        srd(a, 28, P_WS, "s6", 16384)
        a("s_and_b32 s6, s5, 3"); a("s_lshl_b32 s7, s6, 2")
        a("s_lshr_b32 s32, s5, 2"); a("s_mul_i32 s32, s32, 896")
        for r, tab in ((72, [0, 4, 8, 10]), (73, [2, 0, 10, 12]), (74, [4, 2, 12, 8]), (75, [6, 6, 7, 7])):
            a("s_lshr_b32 s%d, %s, s7" % (r, hex(nib(tab))))
            a("s_and_b32 s%d, s%d, 15" % (r, r))
            a("s_lshl_b32 s%d, s%d, 6" % (r, r))
            a("s_add_u32 s%d, s%d, s32" % (r, r))
        a("s_add_u32 s72, s72, %d" % Z2)
        a("s_add_u32 s6, s6, 1"); a("s_and_b32 s33, s6, 2")
        a("s_cmp_eq_u32 s33, 0")
        a("s_cselect_b32 s6, %d, 0" % Z2); a("s_add_u32 s73, s73, s6")
        a("s_sub_u32 s6, %d, s6" % Z2); a("s_add_u32 s75, s75, s6")
        a("s_mov_b32 s98, s33")
    g.pf = None
    def cpro(a):
        a("v_and_b32 v10, 15, v1"); a("v_add_u32 v10, s34, v10")
        a("v_lshrrev_b32 v13, 4, v1"); a("v_and_b32 v14, 7, v1"); a("v_xor_b32 v13, v13, v14")
        a("s_lshl_b32 s6, s35, 2")
        a("v_xor_b32 v14, s6, v13"); a("v_bfe_u32 v15, v1, 3, 1"); a("v_xor_b32 v14, v14, v15")
        a("v_lshlrev_b32 v14, 4, v14"); a("v_lshl_add_u32 v%d, v10, 7, v14" % (SA + 2))
        a("v_add_u32 v%d, %d, v%d" % (SA + 2, 98304, SA + 2))
        a("s_lshl_b32 s6, s35, 7")
        a("v_lshl_add_u32 v13, v13, 4, s6"); a("v_lshl_add_u32 v%d, v10, 8, v13" % SA)
        a("v_xor_b32 v%d, 64, v%d" % (SA + 1, SA))
        a("v_add_u32 v%d, 0x10000, v%d" % (SA + 3, SA)); a("v_add_u32 v%d, 0x10000, v%d" % (SA + 4, SA + 1))
    def lpro(a):
        ctouch(a, g, "k4", "k6")
        all_prep(a, False)
        a("v_and_b32 v9, 255, v0")
        a("s_cmp_eq_u32 s34, 0")
        a("s_cselect_b32 s6, s72, s74"); a("s_cselect_b32 s32, s73, s75")
        a("v_mov_b32 v10, s6"); a("v_mov_b32 v11, s32")
        a("v_cmp_gt_u32 vcc, 32, v1")
        a("v_bfe_u32 v12, v9, 1, 4"); a("v_and_b32 v13, 1, v9")
        a("v_cndmask_b32 v10, v11, v10, vcc")
        a("v_lshlrev_b32 v10, 1, v10")
        a("v_lshl_add_u32 v10, v12, 4, v10")
        a("v_lshl_add_u32 v41, v13, 14, v10")
        a("v_and_b32 v42, 127, v9"); a("v_lshlrev_b32 v42, 2, v42")
        a("v_lshrrev_b32 v12, 5, v9"); a("v_lshlrev_b32 v12, 9, v12")
        a("v_and_b32 v11, 1, v9"); a("v_lshl_add_u32 v12, v11, 8, v12")
        a("v_bfe_u32 v11, v9, 1, 1"); a("v_lshl_add_u32 v12, v11, 7, v12")
        a("v_bfe_u32 v11, v9, 2, 3"); a("v_lshl_add_u32 v12, v11, 4, v12")
        a("v_add_u32 v43, %d, v12" % UVT)
        a("v_lshlrev_b32 v56, 1, v42"); a("v_add_u32 v56, %d, v56" % RST)
    def f3u(a):
        a("s_lshl_b32 s6, s2, 2"); a("s_add_u32 s6, s6, %d" % (2048 * 6))
        a("v_mov_b32 v40, 0")
        a("s_cmp_eq_u32 s3, 4"); a("s_cselect_b64 exec, 1, 0")
        a("buffer_store_dword v40, v40, s[68:71], s6 offen sc1")
        a("s_mov_b64 exec, -1")
    def hook_b(a):
        all_check(a, 0)
        a("s_lshl_b32 s6, s4, 9"); a("s_add_u32 s32, s6, 8192")
        a("buffer_load_dwordx4 v[48:51], v41, s[16:19], 0 offen sc1")
        a("buffer_load_dword v52, v42, s[20:23], s6 offen sc1")
        a("buffer_load_dword v53, v42, s[20:23], s32 offen sc1")
    g.ltouch = [(11, f3u), (CFG["HA"], lambda a: all_issue(a, 0)), (CFG["HA"] - 2, hook_b)]
    line_poll(g, 1, 16, 0); flag_rc(g, 2, 5, 4); g.pw = CFG["PW4"]; g.bst = False; g.dyn = CFG["DY"] & 2; g.R = CFG["R4"]
    g.npre = min(g.npre, CFG["NPRE"])
    def epi(a):
        a("s_nop 6")
        for i in range(7):
            for j in range(4):
                if i < 4: a("ds_write_b128 v%d, %s offset:%d" % (SA + (i & 1), vr(g.acc(i, j), 4), (i >> 1) * 32768 + j * 4096))
                elif i < 6: a("ds_write_b128 v%d, %s offset:%d" % (SA + 3 + (i & 1), vr(g.acc(i, j), 4), j * 4096))
                else: a("ds_write_b128 v%d, %s offset:%d" % (SA + 2, vr(g.acc(i, j), 4), j * 2048))
    def etile(a):
        a("v_and_b32 v2, 255, v0"); a("v_lshlrev_b32 v2, 7, v2")
        touch(a, P_WSP, 32768, "s2", 2, 8, 255)
        a("v_cmp_gt_u32 vcc, 112, v9")
        stats_from_sums(a, 52, 53, 54, 1024, 57)
        a("ds_write_b64 v56, v[54:55]")
        a("s_and_saveexec_b64 s[66:67], vcc")
        a("ds_write_b128 v43, v[48:51]")
        a("s_mov_b64 exec, s[66:67]")
        a("s_waitcnt lgkmcnt(0)")
    g.etile = etile; g.etile_n = 1; g.etile_wait = False
    lepi = None
    VLD = 2; VLH = 4; VUV = 6; VO = 7; VOH = 8; VXP = 9; VPM = 14; VXS = 15
    ST = 16; STH = 20; MK = 22; SM = 24; PL = 32; T = 48; UV = 64; ZK = 80; F = 112; PK = 176; VL2 = 222; VUH = 224
    def gelu(a, items, U):
        n = len(items)
        for k, (A, st) in enumerate(items):
            for e in range(4):
                a("v_pk_fma_f32 %s, %s, %s, %s op_sel:[0,1,0] op_sel_hi:[1,1,1]" % (vr(T + 8 * k + 2 * e, 2), vr(U + 2 * e, 2), vr(st, 2), vr(U + 8 + 2 * e, 2)))
        for k, (A, st) in enumerate(items):
            for e in range(4):
                x = vr(A + 2 * e, 2)
                a("v_pk_fma_f32 %s, %s, %s, %s op_sel_hi:[1,0,1]" % (x, x, vr(st, 2), vr(T + 8 * k + 2 * e, 2)))
        for k, (A, st) in enumerate(items):
            for e in range(4): a("v_pk_mul_f32 %s, %s, %s" % (vr(T + 8 * k + 2 * e, 2), vr(A + 2 * e, 2), vr(A + 2 * e, 2)))
        for e in range(4 * n):
            t = vr(T + 2 * e, 2); a("v_pk_fma_f32 %s, %s, s[70:71], v[10:11]" % (t, t))
        for k, (A, st) in enumerate(items):
            for e in range(4):
                t = vr(T + 8 * k + 2 * e, 2); a("v_pk_mul_f32 %s, %s, %s" % (t, t, vr(A + 2 * e, 2)))
        for e in range(8 * n): a("v_exp_f32 v%d, v%d" % (T + e, T + e))
        for e in range(4 * n): a("v_pk_add_f32 %s, %s, v[12:13]" % (vr(T + 2 * e, 2), vr(T + 2 * e, 2)))
        for e in range(8 * n): a("v_rcp_f32 v%d, v%d" % (T + e, T + e))
        for k, (A, st) in enumerate(items):
            for e in range(4):
                t = vr(T + 8 * k + 2 * e, 2); a("v_pk_mul_f32 %s, %s, %s" % (t, t, vr(A + 2 * e, 2)))
    def freg(gi): return F + 16 * gi
    def rd_group(a, gi):
        if gi < 3:
            for i in range(2):
                for h in range(2):
                    off = gi * 32768 + i * 2048
                    if gi < 2: a("ds_read_b128 %s, v%d offset:%d" % (vr(freg(gi) + 8 * i + 4 * h, 4), VLD + h, off))
                    else: a("ds_read_b128 %s, v%d offset:%d" % (vr(freg(gi) + 8 * i + 4 * h, 4), VL2 + h, off - 65536))
            return 4
        for h in range(2): a("ds_read_b128 %s, v%d" % (vr(freg(3) + 4 * h, 4), VLH + h))
        return 2
    def rd_uv(a, gi):
        for q in range(4): a("ds_read_b128 %s, v%d offset:%d" % (vr(UV + 4 * q, 4), VUV if gi < 3 else VUH, gi * 512 + q * 128))
    def items(gi): return [(freg(gi), ST), (freg(gi) + 8, ST + 2)] if gi < 3 else [(freg(3), STH)]
    def store(a, gi, src):
        if gi < 3:
            a("s_add_u32 s6, s%d, 0x8000" % (72 + gi))
            a("buffer_store_dwordx4 %s, v%d, s[24:27], s%d offen sc1" % (vr(src, 4), VO, 72 + gi))
            a("buffer_store_dwordx4 %s, v%d, s[24:27], s6 offen sc1" % (vr(src + 4, 4), VO))
        else:
            a("buffer_store_dwordx4 %s, v%d, s[24:27], s75 offen sc1" % (vr(src, 4), VOH))
    def poll(a):
        for k in range(4):
            a("buffer_load_dwordx2 %s, v%d, s[28:31], 0 offen offset:%d sc1" % (vr(PL + 2 * k, 2), VXP, (k & 1) * 1024 + (k >> 1) * 64))
    def variant(a, G2, G1):
        if CFG["EP"]: a("s_setprio 2")
        rd_uv(a, G2[0])
        rd_group(a, G2[0])
        n1 = rd_group(a, G2[1])
        a("s_waitcnt lgkmcnt(%d)" % n1)
        for x, gi in enumerate(G2):
            gelu(a, items(gi), UV)
            rd_uv(a, G2[1] if x == 0 else G1[0])
            if x == 1:
                for gj in G1: rd_group(a, gj)
            n = len(items(gi))
            for e in range(4 * n): a("v_cvt_pk_bf16_f32 v%d, v%d, v%d" % (PK + e, T + 2 * e, T + 2 * e + 1))
            Z = ZK + 16 * x
            for e in range(4 * n): unpack2(a, Z + 2 * e, PK + e)
            for k in range(n):
                if gi < 3: s_, q_ = vr(SM + 4 * k, 2), vr(SM + 4 * k + 2, 2)
                else: s_, q_ = vr(T, 2), vr(T + 2, 2)
                z = lambda e: vr(Z + 8 * k + 2 * e, 2)
                if x == 0 or gi == 3:
                    a("v_pk_add_f32 %s, %s, %s" % (s_, z(0), z(1)))
                    a("v_pk_mul_f32 %s, %s, %s" % (q_, z(0), z(0)))
                    a("v_pk_fma_f32 %s, %s, %s, %s" % (q_, z(1), z(1), q_))
                    r = (2, 3)
                else: r = range(4)
                for e in r:
                    a("v_pk_add_f32 %s, %s, %s" % (s_, s_, z(e)))
                    a("v_pk_fma_f32 %s, %s, %s, %s" % (q_, z(e), z(e), q_))
            if gi == 3:
                for k in range(2):
                    for c in range(2):
                        d = vr(SM + 4 * k + 2 * c, 2)
                        a("v_pk_fma_f32 %s, %s, %s, %s op_sel:[0,%d,0] op_sel_hi:[1,%d,1]" % (d, vr(T + 2 * c, 2), vr(MK, 2), d, k, k))
            if x == 0: a("s_waitcnt lgkmcnt(0)")
        for k in range(4): a("v_add_f32 v%d, v%d, v%d" % (SM + 2 * k, SM + 2 * k, SM + 2 * k + 1))
        red8(a, [SM, SM + 2, SM + 4, SM + 6])
        a("s_mov_b32 s66, 0x02020202"); a("s_mov_b32 s67, s66")
        a("v_cndmask_b32 v%d, v%d, v%d, s[66:67]" % (SM, SM, SM + 4))
        a("v_cndmask_b32 v%d, v%d, v%d, s[66:67]" % (SM + 1, SM + 2, SM + 6))
        a("ds_bpermute_b32 v%d, v%d, v%d" % (SM, VPM, SM))
        a("v_and_b32 v%d, -2, v%d" % (SM + 1, SM + 1))
        a("ds_bpermute_b32 v%d, v%d, v%d" % (SM + 1, VPM, SM + 1))
        a("s_mov_b64 exec, 0xffff")
        a("s_waitcnt lgkmcnt(0)")
        a("buffer_store_dwordx2 %s, v%d, s[28:31], s32 offen sc1" % (vr(SM, 2), VXS))
        a("s_mov_b64 exec, -1")
        if CFG["EP"]: a("s_setprio 0")
        g.stamp(a, 5)
        for x, gi in enumerate(G1):
            gelu(a, items(gi), UV)
            if x == 0: rd_uv(a, G1[1])
            n = len(items(gi))
            for e in range(4 * n): a("v_cvt_pk_bf16_f32 v%d, v%d, v%d" % (freg(gi) + e, T + 2 * e, T + 2 * e + 1))
            if x == 1: poll(a)
            store(a, gi, freg(gi))
            if x == 0: a("s_waitcnt lgkmcnt(0)")
        g.stamp(a, 6)
        L = a.newlabel("k4_poll"); D = a.newlabel("k4_pdone"); C = a.newlabel("k4_pchk")
        a("s_mov_b32 s66, 0x40000")
        a("s_waitcnt vmcnt(%d)" % len(items(G1[1])))
        a("s_branch %s" % C)
        a.label(L)
        poll(a)
        a("s_waitcnt vmcnt(0)")
        a.label(C)
        a("v_max_u32 v%d, v%d, v%d" % (T, PL + 1, PL + 3))
        a("v_max3_u32 v%d, v%d, v%d, v%d" % (T, T, PL + 5, PL + 7))
        a("v_cmp_eq_u32 vcc, -1, v%d" % T)
        a("s_sub_u32 s66, s66, 1")
        a("s_cbranch_scc1 %s" % D)
        a("s_cbranch_vccz %s" % D)
        a("s_sleep 1")
        a("s_branch %s" % L)
        a.label(D)
        for k in range(2): a("v_pk_add_f32 %s, %s, %s" % (vr(PL + 4 * k, 2), vr(PL + 4 * k, 2), vr(PL + 4 * k + 2, 2)))
        a("s_nop 0")
        red8(a, [PL, PL + 1, PL + 4, PL + 5])
        n_ = 1792
        for k in range(2): a("v_mul_f32 v%d, %s, v%d" % (PL + 4 * k, hex(f32bits(1.0 / n_)), PL + 4 * k))
        for k in range(2): a("v_mul_f32 v%d, %s, v%d" % (ST + 2 * k, hex(f32bits(1.0 / n_)), PL + 4 * k + 1))
        for k in range(2): a("v_fma_f32 v%d, -v%d, v%d, v%d" % (ST + 2 * k, PL + 4 * k, PL + 4 * k, ST + 2 * k))
        for k in range(2): a("v_max_f32 v%d, 0, v%d" % (ST + 2 * k, ST + 2 * k))
        for k in range(2): a("v_add_f32 v%d, %s, v%d" % (ST + 2 * k, hex(f32bits(1e-5)), ST + 2 * k))
        for k in range(2): a("v_rsq_f32 v%d, v%d" % (ST + 2 * k, ST + 2 * k))
        a("s_nop 0")
        for k in range(2): a("v_mul_f32 v%d, -v%d, v%d" % (ST + 2 * k + 1, PL + 4 * k, ST + 2 * k))
        if 3 in G2:
            for c in range(2): a("v_cndmask_b32 v%d, v%d, v%d, s[68:69]" % (STH + c, ST + c, ST + 2 + c))
        for x, gi in enumerate(G2):
            Z = ZK + 16 * x
            for k, (_, st) in enumerate(items(gi)):
                for e in range(4):
                    z = vr(Z + 8 * k + 2 * e, 2)
                    a("v_pk_fma_f32 %s, %s, %s, %s op_sel:[0,0,1] op_sel_hi:[1,0,1]" % (z, z, vr(st, 2), vr(st, 2)))
            for e in range(4 * len(items(gi))): a("v_cvt_pk_bf16_f32 v%d, v%d, v%d" % (T + 8 * x + e, Z + 2 * e, Z + 2 * e + 1))
            store(a, gi, T + 8 * x)
    def common(a):
        K1_ = 2.0 * math.sqrt(2.0 / math.pi) * LOG2E
        R = T
        rm_addr(a, R, VLD, R + 1)
        a("v_and_b32 v%d, 7, v1" % (R + 2)); a("v_bfe_u32 v%d, v1, 2, 1" % (R + 3)); a("v_and_b32 v%d, 3, v1" % (R + 4))
        a("v_add_u32 v%d, 0x10000, v%d" % (VL2, VLD)); a("v_add_u32 v%d, 0x10000, v%d" % (VL2 + 1, VLD + 1))
        a("v_lshlrev_b32 v%d, 4, v%d" % (VUV, R + 2))
        a("v_lshl_add_u32 v%d, v%d, 12, v%d" % (VO, R, VUV))
        a("v_add_u32 v%d, %d, v%d" % (VUV, UVT, VUV))
        a("v_lshl_add_u32 v%d, v%d, 3, v%d" % (R + 5, R + 3, R))
        a("v_lshlrev_b32 v%d, 4, v%d" % (VOH, R + 4))
        a("v_add_u32 v%d, %d, v%d" % (VUH, UVT, VOH))
        a("v_lshl_add_u32 v%d, v%d, 12, v%d" % (VOH, R + 5, VOH))
        a("v_lshlrev_b32 v%d, 1, v%d" % (VLH, R + 4)); a("v_xor_b32 v%d, v%d, v%d" % (VLH, VLH, R + 1)); a("v_xor_b32 v%d, v%d, v%d" % (VLH, VLH, R + 3))
        a("v_lshlrev_b32 v%d, 4, v%d" % (VLH, VLH)); a("v_lshl_add_u32 v%d, v%d, 7, v%d" % (VLH, R + 5, VLH))
        a("v_add_u32 v%d, %d, v%d" % (VLH, 98304, VLH)); a("v_xor_b32 v%d, 16, v%d" % (VLH + 1, VLH))
        a("v_lshlrev_b32 v%d, 3, v%d" % (R + 6, R))
        a("v_lshl_add_u32 v%d, v%d, 11, v%d" % (VXP, R + 2, R + 6))
        a("v_add_u32 v%d, %d, v%d" % (R + 6, RST, R + 6))
        a("ds_read_b64 %s, v%d" % (vr(ST, 2), R + 6)); a("ds_read_b64 %s, v%d offset:64" % (vr(ST + 2, 2), R + 6))
        a("v_lshlrev_b32 v%d, 5, v%d" % (VPM, R + 2)); a("v_lshl_add_u32 v%d, v%d, 2, v%d" % (VPM, R + 1, VPM))
        a("v_lshlrev_b32 v%d, 3, v1" % VXS)
        a("v_cvt_f32_u32 v%d, v%d" % (MK + 1, R + 3)); a("v_sub_f32 v%d, 1.0, v%d" % (MK, MK + 1))
        a("s_lshl_b32 s32, s5, 10"); a("s_lshl_b32 s6, s3, 7"); a("s_add_u32 s32, s32, s6")
        a("s_mov_b32 s68, 0xf0f0f0f0"); a("s_mov_b32 s69, s68")
        a("s_mov_b32 s70, %s" % hex(f32bits(-K1_ * 0.044715))); a("s_mov_b32 s71, s70")
        a("v_mov_b32 v10, %s" % hex(f32bits(-K1_))); a("v_mov_b32 v11, v10")
        a("v_mov_b32 v12, 1.0"); a("v_mov_b32 v13, 1.0")
        for r in range(72, 76):
            a("s_cmp_ge_u32 s%d, %d" % (r, Z2))
            a("s_cselect_b32 s7, %d, 0" % Z2); a("s_cselect_b32 s33, %d, 0" % ZO)
            a("s_sub_u32 s%d, s%d, s7" % (r, r))
            s_lmap(a, r, r, 6)
            a("s_add_u32 s%d, s%d, s33" % (r, r))
        a("s_waitcnt lgkmcnt(0)")
        for c in range(2): a("v_cndmask_b32 v%d, v%d, v%d, s[68:69]" % (STH + c, ST + c, ST + 2 + c))
        g.stamp(a, 3)
        a("s_barrier")
        g.stamp(a, 4)
        LB = a.newlabel("k4_tb"); LE = a.newlabel("k4_te")
        a("s_cmp_lg_u32 s98, 0")
        a("s_cbranch_scc1 %s" % LB)
        variant(a, [0, 1], [2, 3])
        a("s_branch %s" % LE)
        a.label(LB)
        variant(a, [0, 3], [1, 2])
        a.label(LE)
    kn = g.emit(a, tilemap_16x16_r8c4, setup, cpro, lpro, epi, lepi, common, **ch)
    return g, lds

def k5(a, **ch):
    g = Gemm2("k5", 128, 2048, 32, 2, 2, 4096, LP, 224, CFG["S5"], [(8, [(0, "s72")]), (8, [(0, "s73")])])
    Z1 = g.CFREE; BS = Z1 + 16; VO = BS + 4; VLD = VO + 2; SA = VLD + 2; F = SA + 4; T = F + 32
    def setup(a):
        xw_srds2(a, g, P_WSP, 0, P_WS, WS_Z2, 2048 * LP, 0)
        a("s_lshl_b32 s6, s4, 19")
        a("s_add_u32 s32, s6, %s" % hex(WS_Z1)); srd(a, 20, P_WS, "s32", 128 * LP)
        a("s_add_u32 s32, s6, %s" % hex(WS_U)); srd(a, 24, P_WS, "s32", 128 * LP)
        a("s_lshl_b32 s6, s4, 8")
        srd(a, 28, P_BSP, "s6", 256)
        a("s_lshl_b32 s7, s5, 1")
        s_lmap(a, 72, 7, 6, False)
        a("s_add_u32 s7, s7, 1")
        s_lmap(a, 73, 7, 6, False)
        a("s_add_u32 s74, s72, 0x8000"); a("s_add_u32 s75, s73, 0x8000")
    def rm_loads(a):
        rm_addr(a, VO, VLD, 10)
        a("v_lshlrev_b32 v12, 1, v%d" % VO)
        a("v_and_b32 v11, 7, v1"); a("v_lshlrev_b32 v11, 4, v11")
        a("v_lshl_add_u32 v%d, v%d, 12, v11" % (VO, VO))
        for i in range(2): a("buffer_load_ushort v%d, v12, s[28:31], 0 offen offset:%d" % (BS + 2 * i, 16 * i))
        for k in range(4): a("buffer_load_dwordx4 %s, v%d, s[20:23], s%d offen sc1" % (vr(Z1 + 4 * k, 4), VO, 72 + k))
    def cpro(a):
        stage32_addr(a, g, SA, 10)
    g.cpost0 = rm_loads
    g.pf = None
    def lpro(a):
        ctouch(a, g, "k5", "end")
    g.dep = 12
    def pprep(a, r):
        a("v_lshrrev_b32 v%d, 5, v1" % r); a("v_lshlrev_b32 v%d, 7, v%d" % (r, r)); a("v_bfe_u32 v%d, v1, 1, 4" % (r + 1))
        a("v_lshl_add_u32 v%d, v%d, 2, v%d" % (r, r + 1, r))
        a("s_mul_i32 s6, s5, 74"); a("s_add_u32 s6, s6, 37"); a("s_lshr_b32 s6, s6, 8"); a("s_lshl_b32 s6, s6, 9"); a("s_add_u32 s6, s6, 4096")
        a("v_add_u32 v%d, s6, v%d" % (r + 1, r))
        a("s_mul_i32 s6, s5, 74"); a("s_lshr_b32 s6, s6, 8"); a("s_lshl_b32 s6, s6, 9"); a("s_add_u32 s6, s6, 4096")
        a("v_add_u32 v%d, s6, v%d" % (r, r))
    def pissue(a, r):
        for k in range(4): a("buffer_load_dword v%d, v%d, s[68:71], 0 offen offset:%d sc1" % (r + 2 + k, r + (k >> 1), 256 * (k & 1)))
    def pmask(a, r, d):
        a("v_max3_u32 v%d, v%d, v%d, v%d" % (r + 2, r + 2, r + 3, r + 4)); a("v_max_u32 v%d, v%d, v%d" % (r + 2, r + 2, r + 5))
        a("v_cmp_ne_u32 vcc, -1, v%d" % (r + 2))
        a("s_and_b32 s%d, vcc_lo, vcc_hi" % d)
    def pmust(a):
        a("s_lshl_b32 s65, s4, 1"); a("s_bitcmp1_b32 s67, s65"); a("s_cselect_b32 s6, s6, 0")
    g.fl = dict(prep=pprep, issue=pissue, mask=pmask, full=0xffffffff, must=pmust); g.psl = CFG["PS"]; g.pw = CFG["PW5"]
    g.dyn = CFG["DY"] & 4; g.R = CFG["R5"]
    flag_rc(g, 3, 4, 5)
    g.npre = min(g.npre, CFG["NPRE"])
    g.etile = rm_loads; g.etile_n = 6; g.etile_wait = False
    def epi(a):
        stage32(a, SA, [(g.acc(i, j), i * 32768 + j * 8192) for i in range(2) for j in range(2)])
        if CFG["EP"]: a("s_setprio 0")
    def common(a):
        a("s_waitcnt vmcnt(0)")
        for i in range(2): a("v_lshlrev_b32 v%d, 16, v%d" % (BS + 2 * i, BS + 2 * i))
        a("s_waitcnt lgkmcnt(0)")
        g.stamp(a, 3)
        a("s_barrier")
        g.stamp(a, 4)
        for k in range(4):
            for h in range(2): a("ds_read_b128 %s, v%d offset:%d" % (vr(F + 8 * k + 4 * h, 4), VLD + h, (k & 1) * 32768 + (k >> 1) * 2048))
        for k in range(4):
            t = T + 8 * (k & 1)
            for e in range(4): unpack2(a, t + 2 * e, Z1 + 4 * k + e)
            a("s_waitcnt lgkmcnt(%d)" % (6 - 2 * k))
            if DBG["stamp"]: a("s_waitcnt lgkmcnt(0)")
            for e in range(4):
                x = vr(F + 8 * k + 2 * e, 2)
                a("v_pk_add_f32 %s, %s, %s op_sel_hi:[1,0]" % (x, x, vr(BS + 2 * (k >> 1), 2)))
            for e in range(4):
                x = vr(F + 8 * k + 2 * e, 2)
                a("v_pk_mul_f32 %s, %s, %s" % (x, x, vr(t + 2 * e, 2)))
            for e in range(4):
                a("v_cvt_pk_bf16_f32 v%d, v%d, v%d" % (Z1 + 4 * k + e, F + 8 * k + 2 * e, F + 8 * k + 2 * e + 1))
            a("buffer_store_dwordx4 %s, v%d, s[24:27], s%d offen sc1" % (vr(Z1 + 4 * k, 4), VO, 72 + k))
    def extra(a, chained, nxt):
        if chained:
            a("s_waitcnt vmcnt(0)")
            a("s_barrier")
            g.flag_store(a)
        a("s_sub_u32 s4, s2, 224")
        a("v_lshlrev_b32 v2, 7, v0")
        a("v_add_u32 v3, 0x10000, v2")
        touch(a, P_WOUT, 114688, "s4", 2, 8, 4)
        a("buffer_load_dword v5, v3, s[8:11], 0 offen")
        a("s_lshl_b32 s100, s4, 2"); a("s_add_u32 s100, s100, %d" % (2048 * 4))
        a("s_waitcnt vmcnt(0)")
        a("s_branch %s" % nxt)
    g.extra = extra
    kn = g.emit(a, tilemap_16x14, setup, cpro, lpro, epi, None, common, **ch)
    return g, g.LDS_MAIN

ORDER = ["k1", "k2", "k3", "k4", "k5", "k6"]
def build(path, order=None):
    a = Asm()
    ks = {}
    def small(fn, name):
        m = len(a.lines)
        r = fn(a)
        if DBG["stamp"]:
            body = a.lines[m:]; del a.lines[m:]
            st = Stamper(name)
            armed = False
            for k, l in enumerate(body):
                t = l.strip()
                if t.startswith("s_load_dwordx4 s[60:63]"): armed = True
                if t == "s_endpgm" and not body[k - 1].endswith(":"):
                    a("s_mov_b64 exec, -1"); st.stamp_out(a)
                if t.endswith(":") and "_end" in t:
                    a("s_mov_b64 exec, -1"); st.stamp_out(a); a("s_endpgm")
                a.lines.append(l)
                if armed and t == "s_waitcnt lgkmcnt(0)":
                    st.stamp(a, 0); armed = False; a("v_mov_b32 v254, 0")
            r = (r[0], 256) + r[2:]
        return r
    if CFG["ST01"]:
        a.lines = [l + " sc1" if ("buffer_store_dwordx" in l and "sc1" not in l) else l for l in a.lines]
    phases = [("k2", k2),
              ("k3", lambda a, **ch: k_res(a, "k3", 1024, WS_O, P_WO, P_X, 0, 2, P_WS, WS_X1, True, CFG["S3"], WS_SO, **ch)),
              ("k4", k4), ("k5", k5),
              ("k6", lambda a, **ch: k_res(a, "k6", 1792, WS_U, P_WOUT, P_WS, WS_X1, 5, P_OUT, 0, False, CFG["S6"], WS_SW, **ch))]
    a.lines.append(".p2align 8")
    prev = p1(a)
    order = ["k1"]
    ks["k1"] = (KN, 256, 256, 512, 163840)
    for i, (nm, fn) in enumerate(phases):
        last = i == 4
        a.lines.append(".p2align 3")
        a.label("L_code_" + nm)
        prev, lds = fn(a, prev=prev, last=last, nxt=None if last else "L_phase_" + phases[i + 1][0])
        assert lds <= 163840
    a.label("L_code_end")
    a("s_endpgm")
    ref = open("cdna_kernels/%s.s.ref" % NAME).read().split("\n")
    head = [l for l in ref if l.startswith(";") and "@launch" not in l and "Override" not in l and "grid=ceil" not in l]
    head = head[:15]
    out = list(head)
    for k in order:
        kn, vg, grid, blk, lds = ks[k]
        out.append("; @launch grid=(%d,1,1) block=(%d,1,1) lds=%d" % (grid, blk, lds))
    out.append('.amdgcn_target "amdgcn-amd-amdhsa--gfx950"')
    out.append(".text")
    out += a.lines
    out.append('.section .rodata,"a"')
    for k, (kn, vg, grid, blk, lds) in ks.items():
        out.append(kernel_desc(kn, vg, 102))
    open(path, "w").write("\n".join(out) + "\n")

if __name__ == "__main__":
    build(sys.argv[1] if len(sys.argv) > 1 else "cdna_kernels/%s.s" % NAME)
```

```python
from gen import *

STAMP_OFF = 0x4000000
KIDX = dict(k0=6, k1=0, k2=1, k3=2, k4=3, k5=4, k6=5)

class Stamper:
    def __init__(self, name): self.name = name; self.post_free = None; self.lwait = False

class Gemm2:
    def __init__(self, name, BM, K, mf, wgm, wgn, ldx, ldw, ntiles, S, groups):
        self.name, self.BM, self.K, self.mf = name, BM, K, mf
        self.wgm, self.wgn, self.ldx, self.ldw, self.ntiles, self.S = wgm, wgn, ldx, ldw, ntiles, S
        self.groups = groups
        self.xskip = False
        self.etile_wait = True
        self.cpost0 = None
        self.cmid = None
        self.ltouch = []
        self.nk = K // 64
        self.XI = BM * 128
        self.goff = []
        o = self.XI
        for nch, _ in groups:
            self.goff.append(o); o += 64 * nch * 16
        self.STG = o
        assert self.STG % 4096 == 0
        self.P = self.STG // 4096
        self.LDS_MAIN = S * self.STG
        self.WM = BM // wgm
        self.NT = self.WM // mf
        self.NS = 4 if mf == 32 else 2
        self.accn = 16 if mf == 32 else 4
        full = [g for g, (n, _) in enumerate(groups) if n == 8]
        half = [g for g, (n, _) in enumerate(groups) if n == 4]
        self.wt = []
        if mf == 32:
            if wgn == 2:
                self.nwa = 1
                for g in full: self.wt.append((0, self.goff[g], 128))
            else:
                self.nwa = 2
                for g in full:
                    for h in range(2): self.wt.append((h, self.goff[g], 128))
            assert not half
        else:
            assert wgn == 2
            self.nwa = 2 + len(half)
            for g in full:
                for o in range(2): self.wt.append((o, self.goff[g], 128))
            for g in half: self.wt.append((2, self.goff[g], 64))
        self.MT = len(self.wt)
        self.VX = 2
        self.VW = self.VX + self.NS
        assert self.VW + self.nwa <= 9
        self.FR = 16
        self.nfr = (self.NT + self.MT) * 4
        self.ACC = self.FR + 2 * self.nfr
        self.nacc = self.NT * self.MT * self.accn
        self.CFREE = self.ACC + self.nacc
        self.prio = 2
        self.pf = None
        self.etile = None
        self.cpro0 = None
        self.extra = None
        self.PFD = 255
        self.etile_n = 0
        self.dep = 8
        self.npre = S - 1
        self.poll = None
        self.flagoff = None
        self.pw = 0
        self.lwait = True
        self.cpre0 = None
        self.lpre = None
        self.fprev = None
        self.dyn = False
        self.R = 8
        self.fl = None
        self.post_free = None
        self.trickle = None
        self.psl = 1
        self.bst = True

    def acc(self, i, j): return self.ACC + (i * self.NT + j) * self.accn
    def xfrag(self, s, j): return self.FR + s * self.nfr + j * 4
    def wfrag(self, s, i): return self.FR + s * self.nfr + (self.NT + i) * 4

    def reads(self, sub, fs):
        xs, ws = [], []
        for j in range(self.NT):
            xs.append("ds_read_b128 %s, v%d offset:%d" % (vr(self.xfrag(fs, j), 4), self.VX + sub, j * self.mf * 128))
        kr = 16 if self.mf == 32 else 32
        for i, (ar, imm, pitch) in enumerate(self.wt):
            for q in range(2):
                ws.append("ds_read_b64_tr_b16 %s, v%d offset:%d" % (vr(self.wfrag(fs, i) + 2 * q, 2), self.VW + ar,
                                                                    imm + (kr * sub + 4 * q) * pitch))
        return ws[0:2] + xs + ws[2:]

    def mfmas(self, fs):
        op = "v_mfma_f32_32x32x16_bf16" if self.mf == 32 else "v_mfma_f32_16x16x32_bf16"
        out = []
        for i in range(self.MT):
            for j in range(self.NT):
                A = self.acc(i, j)
                out.append("%s %s, %s, %s, %s" % (op, vr(A, self.accn), vr(self.wfrag(fs, i), 4),
                                                  vr(self.xfrag(fs, j), 4), vr(A, self.accn)))
        return out

    def compute_addr(self, a):
        mf = self.mf
        if self.wgn == 1:
            a("s_mul_i32 s34, s3, %d" % self.WM); a("s_mov_b32 s35, 0")
        else:
            a("s_lshr_b32 s34, s3, 1"); a("s_mul_i32 s34, s34, %d" % self.WM)
            a("s_and_b32 s35, s3, 1")
        sh = 5 if mf == 32 else 4
        X = self.VX
        a("v_and_b32 v10, %d, v1" % (mf - 1))
        a("v_bfe_u32 v11, v1, 1, 3")
        a("v_lshrrev_b32 v12, %d, v1" % sh)
        a("v_xor_b32 v11, v11, v12")
        a("v_add_u32 v10, s34, v10")
        a("v_lshlrev_b32 v10, 7, v10")
        a("v_lshl_add_u32 v%d, v11, 4, v10" % X)
        for s in range(1, self.NS):
            a("v_xor_b32 v%d, %d, v%d" % (X + s, s * (32 if mf == 32 else 64), X))
        W = self.VW
        a("v_bfe_u32 v10, v1, 2, 2")
        a("v_lshl_add_u32 v10, v12, 3, v10")
        if mf == 32:
            a("v_bfe_u32 v11, v1, 4, 1"); a("v_lshlrev_b32 v11, 5, v11")
            a("v_and_b32 v13, 1, v1"); a("v_lshl_add_u32 v11, v13, 4, v11")
            a("v_bfe_u32 v13, v1, 1, 1"); a("v_lshl_add_u32 v11, v13, 3, v11")
            a("v_bfe_u32 v13, v1, 3, 1"); a("v_lshl_add_u32 v11, v13, 6, v11")
            a("v_lshl_add_u32 v%d, v10, 7, v11" % W)
            if self.wgn == 2:
                a("s_lshl_b32 s6, s35, 6")
                a("v_xor_b32 v%d, s6, v%d" % (W, W))
            else:
                a("v_xor_b32 v%d, 64, v%d" % (W + 1, W))
        else:
            a("v_and_b32 v11, 3, v1"); a("v_lshlrev_b32 v11, 3, v11")
            a("v_bfe_u32 v13, v1, 4, 1")
            if self.nwa == 3:
                a("v_xor_b32 v14, s35, v13"); a("v_lshl_add_u32 v14, v14, 5, v11")
                a("v_lshl_add_u32 v%d, v10, 6, v14" % (W + 2))
            a("v_xor_b32 v13, s35, v13"); a("v_lshl_add_u32 v11, v13, 6, v11")
            a("v_bfe_u32 v13, v1, 3, 1"); a("v_lshl_add_u32 v11, v13, 5, v11")
            a("v_lshl_add_u32 v%d, v10, 7, v11" % W)
            a("v_xor_b32 v%d, 32, v%d" % (W + 1, W))

    def interleave(self, a, mf, rd, first_after=None, tail=()):
        if DBG["nomfma"]: mf = ["s_nop 0"] * len(mf)
        if DBG["noread"]: rd = []
        rd = list(rd) + list(tail)
        n = len(mf)
        per = 2 if self.mf == 32 else 1
        per = max(per, -(-len(rd) // max(1, n - 1)))
        ri = 0
        for t, m in enumerate(mf):
            a(m)
            if t == 0 and first_after:
                for x in first_after: a(x)
            for _ in range(per):
                if ri < len(rd):
                    a(rd[ri]); ri += 1
        while ri < len(rd):
            a(rd[ri]); ri += 1

    def slot_next(self, a):
        a("s_add_u32 s64, s64, %d" % self.STG)
        a("s_cmp_eq_u32 s64, %d" % (self.S * self.STG))
        a("s_cselect_b32 s65, %s, s67" % (hex((-(self.S - 1) * self.STG) & 0xffffffff)))
        a("s_cselect_b32 s64, 0, s64")

    def zero_acc(self, a):
        for r in range(self.nacc):
            a("v_mov_b32 v%d, 0" % (self.ACC + r))

    def compute_main(self, a):
        a("s_mov_b32 s64, 0")
        a("s_mov_b32 s67, %d" % self.STG)
        a("s_mov_b32 s6, %d" % self.nk)
        a("s_barrier")
        self.stamp(a, 1)
        for x in self.reads(0, 0): a(x)
        if self.cpost0: self.cpost0(a)
        if self.cmid: a("s_mov_b32 s97, %d" % self.cmid[0])
        L = a.newlabel(self.name + "_cl")
        a.lines.append(".p2align 4")
        a.label(L)
        self.slot_next(a)
        for sub in range(self.NS):
            fs = sub & 1
            a("s_waitcnt lgkmcnt(0)")
            if sub < self.NS - 1:
                tail = ["v_add_u32 v%d, s65, v%d" % (self.VX + sub + 1, self.VX + sub + 1)]
                if sub == 0:
                    tail.append("v_add_u32 v%d, s65, v%d" % (self.VX, self.VX))
                    if self.pf and self.pf["D"]:
                        tail += ["buffer_load_dword v%d, v15, s[68:71], s96 offen" % self.PFD, "s_add_u32 s96, s96, s97"]
                if sub == self.NS - 2:
                    tail += ["v_add_u32 v%d, s65, v%d" % (self.VW + w, self.VW + w) for w in range(self.nwa)]
                self.interleave(a, self.mfmas(fs), self.reads(sub + 1, fs ^ 1), tail=tail)
            else:
                self.interleave(a, self.mfmas(fs), self.reads(0, fs ^ 1), first_after=["s_sub_u32 s6, s6, 1", "s_barrier"])
        a("s_cmp_lg_u32 s6, %s" % ("s97" if self.cmid else "0"))
        a("s_cbranch_scc1 %s" % L)
        if self.cmid:
            X = a.newlabel(self.name + "_cx")
            a("s_cmp_eq_u32 s6, 0")
            a("s_cbranch_scc1 %s" % X)
            self.cmid[1](a)
            a("s_mov_b32 s97, 0")
            a("s_branch %s" % L)
            a.label(X)
        a("s_waitcnt lgkmcnt(0)")

    def loader_setup(self, a):
        self.pieces = []
        a("s_sub_u32 s34, s3, 4")
        a("v_and_b32 v1, 63, v0")
        a("v_lshrrev_b32 v2, 3, v1")
        a("v_and_b32 v3, 7, v1")
        a("s_lshl_b32 s6, s34, 3")
        a("v_add_u32 v2, s6, v2")
        r = 16
        a("v_bfe_u32 v4, v2, 1, 3")
        a("v_xor_b32 v4, v4, v3")
        a("s_mov_b32 s6, %d" % self.ldx)
        a("v_mul_lo_u32 v5, s6, v2")
        for i in range(self.BM // 32):
            if i == 0: a("v_lshl_add_u32 v%d, v4, 4, v5" % r)
            else: a("v_add_u32 v%d, %d, v%d" % (r, 32 * self.ldx, r - 1))
            self.pieces.append((r, 8, 7)); r += 1
        if self.mf == 32:
            a("v_bfe_u32 v4, v2, 1, 1"); a("v_lshlrev_b32 v4, 2, v4")
        else:
            a("v_bfe_u32 v4, v2, 1, 1"); a("v_lshlrev_b32 v4, 1, v4")
            a("v_bfe_u32 v6, v2, 3, 1"); a("v_lshl_add_u32 v4, v6, 2, v4")
        a("v_xor_b32 v4, v4, v3")
        a("s_mov_b32 s6, %d" % self.ldw)
        a("v_mul_lo_u32 v5, s6, v2")
        a("v_lshl_add_u32 v5, v4, 4, v5")
        def chunkmap(dst, base, ch, cm):
            a("v_add_u32 v%d, %s, v%d" % (dst, cm[0][1], base))
            for fc, bo in cm[1:]:
                adj = bo - 16 * fc
                a("v_add_u32 v7, %d, v%d" % (adj & 0xffffffff, base))
                a("v_cmp_le_u32 vcc, %d, v%d" % (fc, ch))
                a("s_nop 1")
                a("v_cndmask_b32 v%d, v%d, v7, vcc" % (dst, dst))
        for nch, cm in self.groups:
            if nch == 8:
                chunkmap(r, 5, 4, cm)
                a("v_add_u32 v%d, %d, v%d" % (r + 1, 32 * self.ldw, r))
                self.pieces.append((r, 12, 33)); self.pieces.append((r + 1, 12, 33)); r += 2
            else:
                a("v_lshrrev_b32 v2, 2, v1"); a("s_lshl_b32 s35, s34, 4"); a("v_add_u32 v2, s35, v2")
                a("v_and_b32 v3, 3, v1")
                a("v_bfe_u32 v6, v2, 3, 1"); a("v_lshlrev_b32 v6, 1, v6"); a("v_xor_b32 v6, v6, v3")
                a("v_mul_lo_u32 v8, s6, v2"); a("v_lshl_add_u32 v8, v6, 4, v8")
                chunkmap(r, 8, 6, cm)
                self.pieces.append((r, 12, 33)); r += 1
        assert len(self.pieces) == self.P
        self.LFREE = r
        a("s_lshl_b32 s64, s34, 10")
        a("s_add_u32 s65, s64, %d" % (self.S * self.STG))
        a("s_mov_b32 s7, 0")
        a("s_mov_b32 s33, 0")

    def xlike_voffs(self, a, r, pitch, n, extra=()):
        a("v_lshrrev_b32 v2, 3, v1"); a("v_and_b32 v3, 7, v1")
        a("s_lshl_b32 s6, s34, 3"); a("v_add_u32 v2, s6, v2")
        a("v_bfe_u32 v4, v2, 1, 3"); a("v_xor_b32 v4, v4, v3")
        a("s_mov_b32 s6, %d" % pitch); a("v_mul_lo_u32 v5, s6, v2")
        a("v_lshl_add_u32 v%d, v4, 4, v5" % r)
        for i in range(1, n): a("v_add_u32 v%d, %d, v%d" % (r + i, 32 * pitch * i, r))
        for x, off in enumerate(extra):
            for i in range(n): a("v_add_u32 v%d, %d, v%d" % (r + n * (x + 1) + i, off, r + i))

    def dma(self, a, i, vo, srd_, so="0"):
        a("s_add_u32 m0, s64, %d" % (i * 4096))
        a("s_nop 0")
        a("buffer_load_dwordx4 v%d, %s, %s offen lds" % (vo, sr(srd_, 4), so))

    def issue_stage(self, a, first=False):
        if not (DBG["noload"] and not first):
            for i, (vo, srd_, so) in enumerate(self.pieces):
                a("s_add_u32 m0, s64, %d" % (i * 4096))
                a("s_nop 0")
                a("buffer_load_dwordx4 v%d, %s, s%d offen %slds" % (vo, sr(srd_, 4), so, "sc1 " if srd_ == self.dep else ""))
        if self.dyn:
            l1 = a.newlabel(self.name + "_lt"); b1 = a.newlabel(self.name + "_ltb")
            l2 = a.newlabel(self.name + "_pp"); b2 = a.newlabel(self.name + "_ppb")
            a("s_cmp_eq_u32 s99, 0"); a("s_cbranch_scc1 %s" % l1)
            a.label(b1)
            self.select(a, 7, 33)
            a("s_bcnt1_i32_b32 s6, s99"); a("s_cmp_eq_u32 s6, %d" % (self.S - 2)); a("s_cbranch_scc1 %s" % l2)
            a.label(b2)
            OOL.append((l1, b1, lambda a: self.late(a, b1))); OOL.append((l2, b2, lambda a: self.prepoll(a, b2)))
        else:
            a("s_add_u32 s7, s7, 128")
            if self.xskip:
                a("s_and_b32 s6, s7, 0x380"); a("s_cmp_eq_u32 s6, 0x180"); a("s_cselect_b32 s6, 128, 0"); a("s_add_u32 s7, s7, s6")
            a("s_add_u32 s33, s33, %d" % (64 * self.ldw))
        a("s_add_u32 s64, s64, %d" % self.STG)
        a("s_cmp_eq_u32 s64, s65")
        a("s_cselect_b32 s6, %d, 0" % (self.S * self.STG))
        a("s_sub_u32 s64, s64, s6")

    def select(self, a, sx, sw):
        a("s_ff1_i32_b32 s6, s99")
        a("s_bitset0_b32 s99, s6")
        a("s_mul_i32 s%d, s6, %d" % (sw, 64 * self.ldw))
        if self.xskip: s_lmap(a, sx, 6, sx, False)
        else: a("s_lshl_b32 s%d, s6, 7" % sx)

    def prepoll(self, a, back):
        a("s_cmp_eq_u32 s101, 0"); a("s_cbranch_scc1 %s" % back)
        self.fl["issue"](a, 30)

    def late(self, a, back):
        a("s_mov_b32 s99, s101"); a("s_mov_b32 s101, 0")
        a("s_cmp_eq_u32 s99, 0"); a("s_cbranch_scc1 %s" % back)
        a("s_waitcnt vmcnt(%d)" % ((self.S - 1) * self.P))
        L = a.newlabel(self.name + "_ls")
        a("s_mov_b32 s35, %d" % SPB)
        a.label(L)
        self.fl["mask"](a, 30, 6)
        a("s_cmp_eq_u32 s6, %s" % hex(self.fl["full"])); a("s_cbranch_scc1 %s" % back)
        a("s_sub_u32 s35, s35, 1"); a("s_cbranch_scc1 %s" % back)
        a("s_sleep 2")
        self.fl["issue"](a, 30)
        a("s_waitcnt vmcnt(0)")
        a("s_branch %s" % L)

    def loader_first(self, a):
        for st in range(2):
            self.issue_stage(a, True)
        self.q = [0] * self.P + [1] * self.P

    def issue_pre(self, a, st, sel, so_=None):
        if so_ is None:
            so_ = 6
            a("s_mov_b32 s6, %d" % ((lmap(st) if self.xskip else st) * 128 if sel == 8 else st * 64 * self.ldw))
        for i, (vo, srd_, so) in enumerate(self.pieces):
            if srd_ != sel: continue
            a("s_add_u32 m0, s64, %d" % (st * self.STG + i * 4096))
            a("s_nop 0")
            a("buffer_load_dwordx4 v%d, %s, s%d offen %slds" % (vo, sr(srd_, 4), so_, "sc1 " if srd_ == self.dep else ""))
            self.q.append(st)

    def pre_done(self, a):
        n = self.npre
        if self.dyn: self.select(a, 7, 33)
        else:
            a("s_mov_b32 s7, %d" % ((lmap(n) if self.xskip else n) * 128))
            a("s_mov_b32 s33, %d" % (n * 64 * self.ldw))
        a("s_add_u32 s64, s64, %d" % (n * self.STG))

    def loader_main(self, a):
        S, P, nk = self.S, self.P, self.nk
        assert (S - 1) * P + self.etile_n <= 63
        q = self.q
        Pe = P + (1 if self.trickle else 0)
        issued = max(x for x in q if x < 99) + 1
        j = 0
        self.stamp(a, 1)
        def cnt(j): return len(q) - 1 - max(i for i, x in enumerate(q) if x <= j)
        while True:
            a("s_waitcnt vmcnt(%d)" % cnt(j))
            if j == 0: self.stamp(a, 2)
            a("s_barrier")
            n = 0
            while n < 2 and issued <= j + S - 1:
                self.issue_stage(a); q += [issued] * P; issued += 1; n += 1
                if self.trickle:
                    self.trickle(a); q.append(99)
            j += 1
            if issued == j + S - 1 and all(cnt(t) >= (issued - 1 - t) * Pe for t in range(j, issued)): break
        cnt = nk - issued
        assert cnt >= 1
        a("s_mov_b32 s66, %d" % cnt)
        L = a.newlabel(self.name + "_ll")
        a.lines.append(".p2align 4")
        a.label(L)
        a("s_waitcnt vmcnt(%d)" % ((S - 2) * Pe))
        a("s_barrier")
        self.issue_stage(a)
        if self.trickle: self.trickle(a)
        for sg, fn in self.ltouch:
            lo = a.newlabel(self.name + "_t"); lb = a.newlabel(self.name + "_tb")
            assert 1 <= sg <= cnt
            a("s_cmp_eq_u32 s66, %d" % sg)
            a("s_cbranch_scc1 %s" % lo)
            a.label(lb)
            OOL.append((lo, lb, fn))
        a("s_sub_u32 s66, s66, 1")
        a("s_cmp_lg_u32 s66, 0")
        a("s_cbranch_scc1 %s" % L)
        j += cnt
        extra = 0; edone = False
        while j < nk:
            a("s_waitcnt vmcnt(%d)" % ((nk - 1 - j) * P + extra))
            a("s_barrier")
            if self.etile and not edone:
                self.etile(a); edone = True; extra = self.etile_n
            j += 1
        if extra and self.etile_wait: a("s_waitcnt vmcnt(0)")
        a("s_barrier")

    def pf_setup(self, a):
        pf = self.pf
        R, C, T, D = pf["R"], pf["C"], pf["T"], pf["D"]
        lr = R.bit_length() - 1
        nx = -(-self.BM // C)
        nr = 64 // R
        lnr = nr.bit_length() - 1
        a("s_lshr_b32 s6, s2, 3")
        a("s_lshr_b32 s7, s6, %d" % lr)
        a("s_and_b32 s6, s6, %d" % (R - 1))
        a("s_mul_i32 s7, s7, %d" % nx)
        a("v_add_u32 v10, s7, v1")
        a("s_mov_b32 s7, %d" % self.ldx)
        a("v_mul_lo_u32 v10, s7, v10")
        a("v_bfrev_b32 v12, 1")
        a("v_cmp_gt_u32 vcc, %d, v1" % nx)
        a("s_lshl_b32 s6, s6, %d" % lnr)
        a("v_and_b32 v11, %d, v1" % (nr - 1))
        a("v_cndmask_b32 v10, v12, v10, vcc")
        a("v_add_u32 v11, s6, v11")
        a("s_mov_b32 s7, %d" % self.ldw)
        a("v_mul_lo_u32 v11, s7, v11")
        a("v_add_u32 v13, %d, v11" % T[0])
        for t in range(1, len(T) + 1):
            if t * nr >= 64: break
            if t < len(T): a("v_add_u32 v14, %d, v11" % T[t])
            a("v_cmp_le_u32 vcc, %d, v1" % (t * nr))
            a("s_nop 1")
            a("v_cndmask_b32 v13, v13, v%d, vcc" % (14 if t < len(T) else 12))
        a("s_movk_i32 s97, 128")
        a("s_cmp_eq_u32 s3, 0")
        a("s_cselect_b64 s[68:69], s[8:9], s[12:13]")
        a("s_cselect_b64 s[70:71], s[10:11], s[14:15]")
        a("s_cselect_b32 s97, s97, %d" % (64 * self.ldw))
        a("s_cselect_b64 vcc, -1, 0")
        a("s_cmp_ge_u32 s3, 2")
        a("s_cselect_b32 s70, 0, s70")
        a("v_cndmask_b32 v15, v13, v10, vcc")
        a("s_mul_i32 s96, s97, %d" % pf["first"])
        for d in range(pf["first"], D):
            self.pf_issue(a)

    def pf_issue(self, a):
        a("buffer_load_dword v%d, v15, s[68:71], s96 offen" % self.PFD)
        a("s_add_u32 s96, s96, s97")

    def stamp(self, a, i):
        if DBG["stamp"]:
            a("s_memtime s[%d:%d]" % (80 + 2 * i, 81 + 2 * i))
            if i == 0:
                a("s_memrealtime s[76:77]")
                for j in range(1, 8): a("s_mov_b64 s[%d:%d], 0" % (80 + 2 * j, 81 + 2 * j))

    def stamp_save(self, a):
        if DBG["stamp"]:
            self.stamp(a, 7)
            a("s_memrealtime s[78:79]")
            a("s_waitcnt lgkmcnt(0)")
            for i in range(10):
                a("v_writelane_b32 v254, s%d, %d" % (76 + 2 * i, 10 * (KIDX[self.name] % 6) + i))

    def stamp_out(self, a):
        if DBG["stamp"]:
            a("s_waitcnt vmcnt(0)")
            self.stamp_save(a)
            a("s_lshl_b32 s6, s2, 3"); a("s_add_u32 s6, s6, s3"); a("s_lshl_b32 s6, s6, 8")
            a("s_add_u32 s6, s6, %s" % hex(STAMP_OFF + KIDX[self.name] * 0x80000))
            srd(a, 8, P_WS, "s6", 256)
            a("v_and_b32 v1, 63, v0"); a("v_lshlrev_b32 v1, 2, v1")
            a("buffer_store_dword v254, v1, s[8:11], 0 offen")

    def flag_store(self, a):
        srd(a, 68, P_WS, WS_FL, FL_BYTES)
        a("v_mov_b32 v10, 0")
        a("s_cmp_eq_u32 s3, 0"); a("s_cselect_b64 exec, 1, 0")
        a("buffer_store_dword v%d, v10, s[68:71], s100 offen sc1" % (self.fprev or 10))
        a("s_mov_b64 exec, -1")

    def emit(self, a, tilemap, setup, cpro, lpro, epi, lepi=None, common=None, prev=None, last=True, nxt=None):
        kn = self.name + "_kernel"
        ldr = a.newlabel(self.name + "_ldr")
        xl = a.newlabel(self.name + "_x")
        self.q = []
        if prev is None: self.dyn = False
        if prev is None:
            kernel_head(a, kn)
            CH["end"] = a.newlabel(self.name + "_end")
            del OOL[:]
            a("s_cmp_ge_u32 s2, 256")
            a("s_cbranch_scc1 %s" % CH["end"])
            load_kernargs(a)
            a("v_lshrrev_b32 v1, 6, v0")
            tilemap(a)
            a("v_readfirstlane_b32 s3, v1")
            a("s_waitcnt lgkmcnt(0)")
            if DBG["stamp"]: a("v_mov_b32 v254, 0")
        else:
            a.label("L_phase_" + self.name)
            a("s_mov_b64 exec, -1")
            prev.stamp_save(a)
            tilemap(a)
        end = CH["end"]
        self.stamp(a, 0)
        if self.extra:
            a("s_cmp_ge_u32 s2, %d" % self.ntiles)
            a("s_cbranch_scc1 %s" % xl)
        setup(a)
        a("s_cmp_ge_u32 s3, 4")
        a("s_cbranch_scc1 %s" % ldr)
        if self.prio: a("s_setprio %d" % self.prio)
        a("v_and_b32 v1, 63, v0")
        self.compute_addr(a)
        if prev is None:
            cpro(a)
            self.zero_acc(a)
        else:
            cpro(a)
            self.fl["prep"](a, 240)
            self.zero_acc(a)
            a("s_waitcnt vmcnt(0)")
            a("s_barrier")
            self.flag_store(a)
            if self.bst: self.stamp(a, 5)
            np_ = a.newlabel(self.name + "_np")
            a("s_cmp_lg_u32 s3, 1")
            a("s_cbranch_scc1 %s" % np_)
            if self.pw: a("s_sleep %d" % self.pw)
            L = a.newlabel(self.name + "_dl"); D = a.newlabel(self.name + "_dd")
            a("s_mov_b32 s66, %d" % SPB)
            a.label(L)
            self.fl["issue"](a, 240)
            a("s_waitcnt vmcnt(0)")
            self.fl["mask"](a, 240, 67)
            a("s_sub_u32 s66, s66, 1"); a("s_cselect_b32 s67, %s, s67" % hex(self.fl["full"]))
            a("s_bcnt1_i32_b32 s6, s67")
            if self.fl.get("must"): self.fl["must"](a)
            a("s_cmp_ge_u32 s6, %d" % (self.R if self.dyn else bin(self.fl["full"]).count("1")))
            a("s_cbranch_scc1 %s" % D)
            if self.psl: a("s_sleep %d" % self.psl)
            a("s_branch %s" % L)
            a.label(D)
            if self.dyn:
                a("v_mov_b32 v240, s67"); a("v_mov_b32 v241, %d" % MASKW)
                a("ds_write_b32 v241, v240")
                a("s_waitcnt lgkmcnt(0)")
            a.label(np_)
            a("s_barrier")
            if self.bst: self.stamp(a, 6)
        if self.flagoff: self.flagoff(a)
        if self.cpre0: self.cpre0(a)
        self.compute_main(a)
        self.stamp(a, 2)
        epi(a)
        cl = a.newlabel(self.name + "_com")
        a("s_branch %s" % cl)
        a.label(ldr)
        self.loader_setup(a)
        if prev is None:
            self.loader_first(a)
        else:
            a("s_setprio 0")
            if prev.lwait: a("s_waitcnt vmcnt(0)")
            if self.lpre: self.lpre(a)
            a("s_barrier")
            for st in range(self.npre): self.issue_pre(a, st, 20 - self.dep)
            late = getattr(prev, 'post_late', False)
            if prev.post_free and not late: prev.post_free(a, len(self.q))
            if self.dyn:
                n = self.npre
                self.fl["prep"](a, 30)
                for r in range(32, 36): a("v_mov_b32 v%d, -1" % r)
                a("v_mov_b32 v36, %d" % MASKW)
                a("s_barrier")
                a("ds_read_b32 v36, v36")
                a("s_waitcnt lgkmcnt(0)")
                a("v_readfirstlane_b32 s99, v36")
                fast = a.newlabel(self.name + "_fast"); done = a.newlabel(self.name + "_pdone"); slow = a.newlabel(self.name + "_slow")
                a("s_andn2_b32 s101, %s, s99" % hex(self.fl["full"]))
                a("s_and_b32 s6, s101, %d" % ((1 << n) - 1))
                a("s_cbranch_scc1 %s" % slow)
                for st in range(n): self.issue_pre(a, st, self.dep)
                a("s_andn2_b32 s99, s99, %d" % ((1 << n) - 1))
                a.label(done)
                def slowf(a):
                    q = self.q; self.q = []
                    X, W = [7, 32, 35], [33, 66, 67]
                    for st in range(n): self.select(a, X[st], W[st])
                    for sel in (20 - self.dep, self.dep):
                        for st in range(n): self.issue_pre(a, st, sel, (X if sel == 8 else W)[st])
                    self.q = q
                OOL.append((slow, done, slowf))
            else:
                a("s_barrier")
                for st in range(self.npre): self.issue_pre(a, st, self.dep)
            self.pre_done(a)
            if prev.post_free and late:
                prev.post_free(a, len(self.q)); self.q += [99] * 3
        if self.flagoff: self.flagoff(a)
        lpro(a)
        self.loader_main(a)
        if lepi: lepi(a)
        a.label(cl)
        if common: common(a)
        if self.extra:
            OOL.append((xl, None, lambda a: self.extra(a, prev is not None, nxt if not last else end)))
        if last:
            a("s_mov_b64 exec, -1")
            if self.post_free: self.post_free(a, 0)
            if self.flagoff:
                a("s_waitcnt vmcnt(0)")
                a("s_barrier")
                self.flag_store(a)
            self.stamp_out(a)
            a.label(end)
            a("s_endpgm")
            for lo, lb, fn in OOL:
                a.label(lo)
                fn(a)
                if lb: a("s_branch %s" % lb)
        return kn


OOL = []
CH = {}
WS_FL = 0xC0000
FL_BYTES = 0x6000
SPB = 0x40000
MASKW = 163832

def spin(a, name, issue, check, sleep=1, slot=None, wait=True):
    L = a.newlabel(name + "_l"); D = a.newlabel(name + "_d")
    a("s_mov_b32 s66, %d" % SPB)
    a.label(L)
    issue(a)
    if wait: a("s_waitcnt vmcnt(0)")
    check(a)
    a("s_sub_u32 s66, s66, 1")
    a("s_cbranch_scc1 %s" % D)
    a("s_cbranch_vccz %s" % D)
    if sleep: a("s_sleep %d" % sleep)
    a("s_branch %s" % L)
    a.label(D)
    if slot and DBG["stamp"]:
        a("s_waitcnt lgkmcnt(0)")
        a("s_sub_u32 s66, 0x40000, s66")
        a("s_add_u32 s%d, s80, s66" % (80 + 2 * slot)); a("s_addc_u32 s%d, s81, 0" % (81 + 2 * slot))


def xw_srds2(a, g, xp, xoff, wp, woff, wtotal, colbytes, shadow=0):
    ldx = g.ldx
    a("s_mul_i32 s6, s4, %d" % (g.BM * ldx))
    if xoff: a("s_add_u32 s6, s6, %s" % hex(xoff))
    srd(a, 8, xp, "s6", g.BM * ldx)
    a("s_mul_i32 s6, s5, %d" % colbytes)
    a("s_sub_u32 s7, %s, s6" % hex(wtotal))
    if woff: a("s_add_u32 s6, s6, %s" % hex(woff))
    if shadow:
        a("s_and_b32 s14, s5, 7"); a("s_cmp_eq_u32 s14, 3")
        a("s_cselect_b64 s[12:13], %s, %s" % (sr(ptr(P_WS), 2), sr(ptr(wp), 2)))
        a("s_cselect_b32 s14, %s, 0" % hex(shadow + 128))
        a("s_add_u32 s6, s6, s14")
        a("s_add_u32 s12, s12, s6"); a("s_addc_u32 s13, s13, 0")
        a("s_mov_b32 s14, s7"); a("s_mov_b32 s15, 0x00020000")
    else:
        srd(a, 12, wp, "s6", "s7")

def shadow_voff(a, vd, vt, tmp):
    a("v_lshrrev_b32 v%d, 3, v%d" % (vd, vt)); a("v_and_b32 v%d, 7, v%d" % (tmp, vt))
    a("v_lshlrev_b32 v%d, 10, v%d" % (vd, vd)); a("v_lshl_add_u32 v%d, v%d, 4, v%d" % (vd, tmp, vd))
    a("v_add_u32 v%d, 384, v%d" % (vd, vd))

def shadow_srd(a, sd, shadow, slice_bytes, wg):
    a("s_mul_i32 s6, %s, %d" % (wg, slice_bytes))
    a("s_add_u32 s6, s6, %s" % hex(shadow + 128))
    srd(a, sd, P_WS, "s6", slice_bytes)


def touch(a, p, slice_bytes, wg, vtid, sd, vd, off=0):
    a("s_mul_i32 s6, %s, %d" % (wg, slice_bytes))
    if off: a("s_add_u32 s6, s6, %d" % off)
    srd(a, sd, p, "s6", slice_bytes)
    a("buffer_load_dword v%d, v%d, %s, 0 offen" % (vd, vtid, sr(sd, 4)))

Stamper.stamp = Gemm2.stamp
Stamper.stamp_out = Gemm2.stamp_out
Stamper.stamp_save = Gemm2.stamp_save


def lmap(j):
    return j + (j + 4) // 7

def s_lmap(a, dst, src, tmp, bytes_in=True):
    if bytes_in:
        a("s_lshr_b32 s%d, s%d, 7" % (tmp, src)); a("s_add_u32 s%d, s%d, 4" % (tmp, tmp))
    else:
        a("s_add_u32 s%d, s%d, 4" % (tmp, src))
    a("s_mul_i32 s%d, s%d, 37" % (tmp, tmp)); a("s_lshr_b32 s%d, s%d, 8" % (tmp, tmp))
    if bytes_in:
        a("s_lshl_b32 s%d, s%d, 7" % (tmp, tmp)); a("s_add_u32 s%d, s%d, s%d" % (dst, src, tmp))
    else:
        a("s_add_u32 s%d, s%d, s%d" % (dst, src, tmp)); a("s_lshl_b32 s%d, s%d, 7" % (dst, dst))

def red8(a, xs):
    for m in ("quad_perm:[1,0,3,2]", "quad_perm:[2,3,0,1]", "row_half_mirror"):
        if len(xs) < 3: a("s_nop 1")
        for x in xs:
            a("v_add_f32_dpp v%d, v%d, v%d %s row_mask:0xf bank_mask:0xf" % (x, x, x, m))


def code_touch(a, start, end, sd, voff, vd, back=False):
    lp = a.newlabel("pc")
    a("s_getpc_b64 %s" % sr(sd, 2))
    a.label(lp)
    if back:
        a("s_sub_u32 s%d, s%d, %s-%s" % (sd, sd, lp, start))
        a("s_subb_u32 s%d, s%d, 0" % (sd + 1, sd + 1))
    else:
        a("s_add_u32 s%d, s%d, %s-%s" % (sd, sd, start, lp))
        a("s_addc_u32 s%d, s%d, 0" % (sd + 1, sd + 1))
    a("s_mov_b32 s%d, %s-%s" % (sd + 2, end, start))
    a("s_mov_b32 s%d, 0x00020000" % (sd + 3))
    a("buffer_load_dword v%d, v%d, %s, 0 offen" % (vd, voff, sr(sd, 4)))
```

```python
from gen3 import *
import gen3
from kernels import bf16_round, multi_swap_red, multi_dpp_red, stats_from_sums
import kernels as K1

WS_UV = 0x10000
WS_XCH = 0x80000
WS_H1 = 0x3000000
WS_Y = 0x3800000
KN = NAME + '_kernel'
LP = 4096
CFG = dict(S2=4, S3=4, S4=3, S5=4, S6=4, D=0, F=1, PF=1, ST=0, CT=1, SH=1, ET=1, HP=4, IK=0, IF=1, LPR=0, PG=10, H2S=100, H2W=44, H1W=16, NP=1, ZW=4, ACK=0, SPB=0x40000,
           FU=0b1111, OS=1, EP=1, UT=1, PT=2, TK=0, DY=31, R3=8, R4=8, R5=16, R6=14, PW3=0, PW4=0, PW5=0, PW6=0, PS=1, ST01=0, HA=4, MD=3, R2=8, PW2=0, CT0=1, T0=0, T0P=0, TW=6, TH=64, CE=0, R0=1, NB=2, UW=0, SP=0, UL=0, B4=0, NL=0, NT=51, XI=2, XM=8, PA=16, PB=8, W2=1, W1=1, TWS=0, SHK=1, NPRE=9)

def ctouch(a, g, start, end):
    if CFG["CT"]:
        a("v_and_b32 v2, 255, v0"); a("v_lshlrev_b32 v2, 7, v2")
        code_touch(a, "L_code_" + start, "L_code_" + end, 68, 2, 3, True)
        g.q.append(99)
    srd(a, 68, P_WS, WS_FL, FL_BYTES)

def paced(a, p, slice_bytes, lanes):
    a("s_mul_i32 s32, s2, %d" % slice_bytes); srd(a, 68, p, "s32", slice_bytes)
    a("s_mul_i32 s32, s3, %d" % (lanes * 128))
    a("v_cmp_gt_u32 vcc, %d, v1" % lanes)
    a("v_lshl_add_u32 v15, v1, 7, s32"); a("v_bfrev_b32 v10, 1")
    a("s_mov_b32 s96, 0"); a("s_movk_i32 s97, %d" % (lanes * 512))
    a("v_cndmask_b32 v15, v10, v15, vcc")

def line_poll(g, ph, nflag, sh, tag=False):
    def prep(a, r):
        a("v_lshrrev_b32 v%d, %d, v1" % (r, sh)); a("v_min_u32 v%d, %d, v%d" % (r, nflag - 1, r))
        a("s_lshl_b32 s6, s4, 7"); a("s_add_u32 s6, s6, %d" % (2048 * ph))
        a("v_lshl_add_u32 v%d, v%d, 2, s6" % (r, r))
    full = (1 << (nflag << sh)) - 1
    def mask(a, r, d):
        a(("v_cmp_eq_u32 vcc, v253, v%d" if tag else "v_cmp_ne_u32 vcc, -1, v%d") % (r + 2))
        a("s_and_b32 s%d, vcc_lo, %s" % (d, hex(full)))
    g.fl = dict(prep=prep, issue=lambda a, r: a("buffer_load_dword v%d, v%d, s[68:71], 0 offen sc1" % (r + 2, r)), mask=mask, full=full)
    g.psl = CFG["PS"]

def all_prep(a, lines):
    if lines:
        a("v_lshrrev_b32 v38, 2, v1"); a("v_lshlrev_b32 v38, 7, v38"); a("v_and_b32 v39, 3, v1"); a("v_lshl_add_u32 v38, v39, 4, v38")
    else:
        a("v_lshlrev_b32 v38, 4, v1"); a("v_add_u32 v38, %d, v38" % (2048 * 6))
def all_issue(a, off): a("buffer_load_dwordx4 v[44:47], v38, s[68:71], 0 offen offset:%d sc1" % off)
def all_check(a, off):
    def chk(a):
        a("v_max3_u32 v44, v44, v45, v46"); a("v_max_u32 v44, v44, v47")
        a("v_cmp_eq_u32 vcc, -1, v44")
    ok = a.newlabel("fok")
    chk(a)
    a("s_cbranch_vccz %s" % ok)
    a("s_mov_b32 s32, s66")
    spin(a, "fl", lambda a: all_issue(a, off), chk, 4)
    a("s_mov_b32 s66, s32")
    a.label(ok)

def flag_rc(g, ph, line, ent):
    def f(a):
        a("s_lshl_b32 s100, s%d, 7" % line); a("s_lshl_b32 s6, s%d, 2" % ent)
        a("s_add_u32 s100, s100, s6"); a("s_add_u32 s100, s100, %d" % (2048 * ph))
    g.flagoff = f


WS_MP1 = 0x20000
WS_MODR = 0x18000
XK_SB = 16 * 1024
WS_XK = 0x100000
WS_XR = WS_XK + 256 * XK_SB
XR_CB = 8192 + 8192 + 256
XK_INIT = XK_SB + (16 * XR_CB + 255) // 256 // 16 * 16 + 16
WS_SQ = 0x5000000
WS_SO = 0x5800000
WS_SW = 0x5C00000

def xk_init(a, sd, vm1, v16):
    a("s_mul_i32 s6, s2, %d" % XK_INIT); a("s_add_u32 s6, s6, %s" % hex(WS_XK))
    srd(a, sd, P_WS, "s6", XK_INIT)
    for k in range(3):
        a("s_mov_b32 s6, %d" % (8192 * k))
        a("buffer_store_dwordx4 %s, v%d, %s, s6 offen%s" % (vr(vm1, 4), v16, sr(sd, 4), ["", " sc1", " nt", " sc0 sc1"][CFG["IF"]]))

def sum8(a, b):
    a("v_add_f32 v%d, v%d, v%d" % (b, b, b + 1)); a("v_add_f32 v%d, v%d, v%d" % (b + 2, b + 2, b + 3))
    a("v_add_f32 v%d, v%d, v%d" % (b + 4, b + 4, b + 5)); a("v_add_f32 v%d, v%d, v%d" % (b + 6, b + 6, b + 7))
    a("v_add_f32 v%d, v%d, v%d" % (b, b, b + 2)); a("v_add_f32 v%d, v%d, v%d" % (b + 4, b + 4, b + 6))
    a("v_add_f32 v%d, v%d, v%d" % (b, b, b + 4))

class ModTile:
    def __init__(self, n, base, wsrd, csrd, sbase):
        self.n = n; self.C = base; self.E = base + n; self.W = (base + 2 * n + 3) // 4 * 4
        self.T = self.W + 4 * n; self.AC = self.T + 8; self.vo = self.AC + 8; self.end = self.vo + 2
        self.wsrd, self.csrd, self.sb = wsrd, csrd, sbase
    def issue(self, a, s_row0, s_colb):
        a("v_lshrrev_b32 v%d, 3, v0" % self.vo)
        a("v_add_u32 v%d, %s, v%d" % (self.vo, s_row0, self.vo))
        a("s_movk_i32 s6, 0x3000")
        a("v_mul_lo_u32 v%d, s6, v%d" % (self.vo + 1, self.vo))
        a("v_lshlrev_b32 v%d, 1, v%d" % (self.vo, self.vo))
        a("v_and_b32 v%d, 7, v0" % self.T)
        a("v_lshl_add_u32 v%d, v%d, 4, v%d" % (self.vo + 1, self.T, self.vo + 1))
        for i in range(self.n):
            a("buffer_load_ushort v%d, v%d, %s, 0 offen offset:%d" % (self.C + i, self.vo, sr(self.csrd, 4), 128 * i))
        for i in range(self.n):
            a("s_add_u32 s%d, %s, %d" % (self.sb + i, s_colb, i * 64 * 12288))
            a("buffer_load_dwordx4 %s, v%d, %s, s%d offen%s" % (vr(self.W + 4 * i, 4), self.vo + 1, sr(self.wsrd, 4), self.sb + i, " nt" if CFG["NT"] & 1 else ""))
        return 2 * self.n
    def compute(self, a, younger, lds):
        n, C, E = self.n, self.C, self.E
        a("s_mov_b32 s6, %s" % hex(f32bits(-LOG2E)))
        a("s_waitcnt vmcnt(%d)" % (n + younger))
        for i in range(n): a("v_lshlrev_b32 v%d, 16, v%d" % (C + i, C + i))
        for i in range(n): a("v_mul_f32 v%d, s6, v%d" % (E + i, C + i))
        for i in range(n): a("v_exp_f32 v%d, v%d" % (E + i, E + i))
        a("s_nop 0")
        for i in range(n): a("v_add_f32 v%d, 1.0, v%d" % (E + i, E + i))
        for i in range(n): a("v_rcp_f32 v%d, v%d" % (E + i, E + i))
        a("s_nop 0")
        for i in range(n): a("v_mul_f32 v%d, v%d, v%d" % (C + i, C + i, E + i))
        for i in range(n): a("v_cvt_pk_bf16_f32 v%d, v%d, v%d" % (C + i, C + i, C + i))
        for i in range(n): a("v_lshlrev_b32 v%d, 16, v%d" % (C + i, C + i))
        for i in range(n):
            a("s_waitcnt vmcnt(%d)" % (n - 1 - i + younger))
            for d in range(4): unpack2(a, self.T + 2 * d, self.W + 4 * i + d)
            for e in range(8):
                if i == 0: a("v_mul_f32 v%d, v%d, v%d" % (self.AC + e, C, self.T + e))
                else: a("v_fmac_f32 v%d, v%d, v%d" % (self.AC + e, C + i, self.T + e))
        xs = list(range(self.AC, self.AC + 8)); ts = list(range(self.T, self.T + 8))
        multi_dpp_red(a, xs, [8])
        multi_swap_red(a, "v_add_f32", 16, xs, ts)
        multi_swap_red(a, "v_add_f32", 32, xs, ts)
        a("s_lshl_b32 s6, s3, 8"); a("s_add_u32 s6, s6, %d" % lds)
        a("v_and_b32 v%d, 7, v0" % self.vo)
        a("v_lshl_add_u32 v%d, v%d, 5, s6" % (self.vo, self.vo))
        a("s_mov_b64 exec, 0xff")
        a("ds_write_b128 v%d, %s" % (self.vo, vr(self.AC, 4)))
        a("ds_write_b128 v%d, %s offset:16" % (self.vo, vr(self.AC + 4, 4)))
        a("s_mov_b64 exec, -1")
    def finish(self, a, lds, osrd, s_off, fl=""):
        a("v_lshlrev_b32 v%d, 2, v2" % self.vo)
        for w in range(8): a("ds_read_b32 v%d, v%d offset:%d" % (self.T + w, self.vo, lds + 256 * w))
        a("s_waitcnt lgkmcnt(0)")
        sum8(a, self.T)
        a("buffer_store_dword v%d, v%d, %s, %s offen%s" % (self.T, self.vo, sr(osrd, 4), s_off, fl))

VE = 253
F_AR, F_AC, F_1, F_A2 = 8 * 2048, 9 * 2048, 10 * 2048, 11 * 2048
WS_EP = WS_FL + 0x8000
WS_ST1T = 0x40000
def p1(a):
    kernel_head(a, KN)
    CH["end"] = a.newlabel("k1_end")
    del OOL[:]
    st = Stamper("k1")
    a("s_cmp_ge_u32 s2, 256")
    a("s_cbranch_scc1 %s" % CH["end"])
    load_kernargs(a)
    if CFG["CE"]:
        lp = a.newlabel("pc")
        a("s_getpc_b64 s[24:25]")
        a.label(lp)
        a("s_lshr_b32 s6, s2, 3"); a("s_lshl_b32 s6, s6, 11")
        a("s_sub_i32 s26, L_code_end-%s, s6" % lp); a("s_max_i32 s26, s26, 0"); a("s_min_i32 s26, s26, 2048")
        a("s_add_u32 s24, s24, s6"); a("s_addc_u32 s25, s25, 0"); a("s_mov_b32 s27, 0x00020000")
        a("v_lshlrev_b32 v39, 7, v0")
        a("buffer_load_dword v251, v39, s[24:27], 0 offen")
    a("v_lshrrev_b32 v1, 6, v0")
    a("v_and_b32 v2, 63, v0")
    a("v_readfirstlane_b32 s3, v1")
    tilemap_16x16_r8c4(a)
    a("v_lshlrev_b32 v3, 4, v2")
    a("s_lshl_b32 s7, s4, 4"); a("s_add_u32 s7, s7, s5"); a("s_lshl_b32 s7, s7, 3")
    a("s_add_u32 s32, s7, s3"); a("s_lshl_b32 s32, s32, 11")
    a("s_and_b32 s34, s4, 1"); a("s_lshl_b32 s34, s34, 4"); a("s_add_u32 s34, s34, s5"); a("s_lshl_b32 s34, s34, 7")
    a("s_lshr_b32 s35, s4, 1"); a("s_lshl_b32 s35, s35, 7")
    a("v_lshlrev_b32 v4, 4, v0")
    for e in range(4): a("v_mov_b32 v%d, -1" % (64 + e))
    for e in range(4): a("v_mov_b32 v%d, 0" % (68 + e))
    a("s_waitcnt lgkmcnt(0)")
    if DBG["stamp"]: a("v_mov_b32 v254, 0")
    st.stamp(a, 0)
    a("s_load_dword s33, %s, %s" % (sr(ptr(P_WS), 2), hex(WS_EP)))
    srd(a, 16, P_X, 0, 2048 * 2048)
    a("buffer_load_dwordx4 v[8:11], v3, s[16:19], s32 offen")
    a("buffer_load_dwordx4 v[12:15], v3, s[16:19], s32 offen offset:1024")
    for off, sz, v in ((WS_XCH, 1024, 64), (WS_XR, 1040, 64), (WS_FL, 64, 64), (WS_SUM2, 256, 68)):
        a("s_mul_i32 s6, s2, %d" % sz); a("s_add_u32 s6, s6, %s" % hex(off))
        srd(a, 28, P_WS, "s6", sz)
        a("buffer_store_dwordx4 %s, v4, s[28:31], 0 offen sc1" % vr(v, 4))
    srd(a, 8, P_WMOD, 0, 1024 * 6144 * 2)
    srd(a, 12, P_C, 0, 2048)
    mt = ModTile(2, 72, 8, 12, 20)
    mt.issue(a, "s35", "s34")
    y = 0
    XT = 112; SHV = 144
    a("v_lshrrev_b32 v5, 3, v0"); a("v_and_b32 v7, 7, v0")
    a("v_lshlrev_b32 v6, 4, v5")
    a("v_lshlrev_b32 v33, 12, v5"); a("v_lshl_add_u32 v33, v7, 4, v33")
    a("v_lshlrev_b32 v5, 11, v5"); a("v_lshl_add_u32 v5, v7, 4, v5")
    a("s_lshl_b32 s6, s4, 18"); a("s_lshl_b32 s32, s5, 7"); a("s_add_u32 s32, s32, s6")
    a("s_cmp_lt_u32 s3, 4"); a("s_cselect_b32 s6, %d, 0" % (128 * 2048 - 15 * 128))
    srd(a, 8, P_X, "s32", "s6")
    for i in range(4):
        a("s_mov_b32 s6, %d" % (32 * 2048 * i))
        a("buffer_load_dwordx4 %s, v5, s[8:11], s6 offen" % vr(XT + 4 * i, 4)); y += 1
    shadow_voff(a, 32, 2, 34)
    SHL = ((P_WQKV, WS_SQ, 24576, 3), (P_WO, WS_SO, 8192, 1), (P_WOUT, WS_SW, 14336, 2))
    k = 0
    for pp, sh, sz, n in SHL:
        a("s_cmp_eq_u32 s3, 4"); a("s_cselect_b32 s32, %d, 0" % sz)
        a("s_mul_i32 s6, s2, %d" % sz); srd(a, 24, pp, "s6", "s32")
        for i in range(n):
            a("s_movk_i32 s6, %d" % (8192 * i))
            a("buffer_load_dwordx4 %s, v32, s[24:27], s6 offen nt" % vr(SHV + 4 * k, 4)); y += 1; k += 1
    yt = 0
    if CFG["TW"] == 3:
        a("v_subrev_u32 v39, 320, v0"); a("v_lshlrev_b32 v39, 7, v39")
        touch(a, P_WQKV, 24576, "s2", 39, 24, 250); y += 1; yt += 1
        if CFG["CT0"]: code_touch(a, "L_code_k2", "L_code_k4", 24, 39, 251); y += 1; yt += 1
    rounds = [0]
    def wround(a):
        a("s_mov_b32 s6, %d" % (rounds[0] * 256 * 6144)); rounds[0] += 1
        a("buffer_load_dword v250, v40, s[96:99], s6 offen")
    if CFG["TW"] == 6:
        a("s_sub_u32 s6, s3, 5"); a("s_lshl_b32 s6, s6, 11")
        a("v_lshl_add_u32 v40, v2, 7, s6"); a("v_bfrev_b32 v41, 1")
        a("v_cmp_gt_u32 vcc, 16, v2")
        a("s_cmp_ge_u32 s3, 5"); a("s_cselect_b32 s32, %d, 0" % (769 * 6144))
        a("v_cndmask_b32 v40, v41, v40, vcc")
        a("s_mul_i32 s6, s2, 6144"); srd(a, 96, P_WQKV, "s6", "s32")
        if CFG["R0"]: wround(a); y += 1; yt += 1
    if CFG["TW"] == 5:
        a("v_subrev_u32 v39, 320, v0"); a("v_lshlrev_b32 v39, 7, v39")
        a("s_cmp_lt_u32 s2, %d" % CFG["TH"]); a("s_cselect_b32 s32, 24576, 0")
        a("s_mul_i32 s6, s2, 24576"); srd(a, 24, P_WQKV, "s6", "s32")
        a("buffer_load_dword v250, v39, s[24:27], 0 offen"); y += 1; yt += 1
    srd(a, 68, P_WS, WS_MP1, 131072)
    a("s_lshl_b32 s6, s7, 4"); a("s_add_u32 s6, s6, %s" % hex(WS_ST1T))
    srd(a, 72, P_WS, "s6", 128)
    a("s_waitcnt vmcnt(%d)" % (y + 8))
    U = 16
    for d in range(8): unpack2(a, U + 2 * d, 8 + d)
    a("v_pk_add_f32 v[64:65], %s, %s" % (vr(U, 2), vr(U + 2, 2)))
    a("v_pk_add_f32 v[66:67], %s, %s" % (vr(U + 4, 2), vr(U + 6, 2)))
    a("v_pk_add_f32 v[68:69], %s, %s" % (vr(U + 8, 2), vr(U + 10, 2)))
    a("v_pk_add_f32 v[70:71], %s, %s" % (vr(U + 12, 2), vr(U + 14, 2)))
    a("v_pk_add_f32 v[64:65], v[64:65], v[66:67]")
    a("v_pk_add_f32 v[68:69], v[68:69], v[70:71]")
    a("v_pk_add_f32 v[64:65], v[64:65], v[68:69]")
    a("v_add_f32 v64, v64, v65")
    multi_dpp_red(a, [64], [1, 2, 4, 8])
    multi_swap_red(a, "v_add_f32", 16, [64], [65])
    multi_swap_red(a, "v_add_f32", 32, [64], [65])
    a("s_mov_b32 s6, %s" % hex(f32bits(1.0 / 1024)))
    a("v_mul_f32 v64, s6, v64")
    for k in range(8):
        b = U + 2 * k
        a("v_pk_add_f32 %s, %s, v[64:65] op_sel_hi:[1,0] neg_lo:[0,1] neg_hi:[0,1]" % (vr(b, 2), vr(b, 2)))
    a("v_pk_mul_f32 v[66:67], %s, %s" % (vr(U, 2), vr(U, 2)))
    a("v_pk_mul_f32 v[68:69], %s, %s" % (vr(U + 2, 2), vr(U + 2, 2)))
    for k in range(2, 8):
        t = 66 + 2 * (k & 1)
        a("v_pk_fma_f32 %s, %s, %s, %s" % (vr(t, 2), vr(U + 2 * k, 2), vr(U + 2 * k, 2), vr(t, 2)))
    a("v_pk_add_f32 v[66:67], v[66:67], v[68:69]")
    a("v_add_f32 v66, v66, v67")
    multi_dpp_red(a, [66], [1, 2, 4, 8])
    multi_swap_red(a, "v_add_f32", 16, [66], [67])
    multi_swap_red(a, "v_add_f32", 32, [66], [67])
    a("v_mov_b32 v68, %s" % hex(f32bits(1e-5)))
    a("v_fma_f32 v66, v66, s6, v68")
    a("v_rsq_f32 v66, v66")
    a("s_lshl_b32 s6, s3, 3"); a("s_add_u32 s6, s6, 2048")
    a("v_mov_b32 v68, s6")
    a("v_mul_f32 v67, -v64, v66")
    a("ds_write_b64 v68, v[66:67]")
    mt.compute(a, y, 0)
    a("s_waitcnt lgkmcnt(0)")
    a("s_mul_i32 s33, s33, 0x9E3779B1"); a("s_add_u32 s33, s33, 0x7F4A7C15"); a("s_and_b32 s33, s33, -2")
    a("v_mov_b32 v%d, s33" % VE)
    srd(a, 24, P_WS, WS_FL, FL_BYTES)
    a("s_barrier")
    st.stamp(a, 1)
    ldr = a.newlabel("k1_ldr"); nf = a.newlabel("k1_nf")
    a("s_cmp_ge_u32 s3, 4")
    a("s_cbranch_scc1 %s" % ldr)
    a("s_cmp_lg_u32 s3, 0")
    a("s_cbranch_scc1 %s" % nf)
    a("v_lshlrev_b32 v34, 3, v2"); a("v_lshlrev_b32 v35, 2, v2")
    a("ds_read_b64 v[36:37], v34 offset:2048")
    for w in range(8): a("ds_read_b32 v%d, v35 offset:%d" % (mt.T + w, 256 * w))
    a("s_lshl_b32 s35, s35, 7"); a("s_lshl_b32 s34, s34, 2"); a("s_add_u32 s34, s34, s35")
    a("v_mov_b32 v38, v%d" % VE); a("v_mov_b32 v39, v%d" % VE)
    a("s_waitcnt lgkmcnt(8)")
    a("buffer_store_dwordx4 v[36:39], v3, s[72:75], 0 offen sc1")
    a("s_waitcnt lgkmcnt(0)")
    sum8(a, mt.T)
    a("v_mov_b32 v%d, v%d" % (mt.T + 1, VE))
    a("buffer_store_dwordx2 %s, v34, s[68:71], s34 offen sc1" % vr(mt.T, 2))
    a("s_lshl_b32 s6, s4, 7"); a("s_lshl_b32 s32, s5, 2"); a("s_add_u32 s32, s32, s6"); a("s_add_u32 s32, s32, %d" % F_AR)
    a("s_lshl_b32 s6, s5, 7"); a("s_lshl_b32 s33, s4, 2"); a("s_add_u32 s33, s33, s6"); a("s_add_u32 s33, s33, %d" % F_AC)
    a("v_mov_b32 v34, s32"); a("v_writelane_b32 v34, s33, 1")
    a("s_mov_b64 exec, 3")
    a("buffer_store_dword v%d, v34, s[24:27], 0 offen sc1" % VE)
    a("s_mov_b64 exec, -1")
    a.label(nf)
    a("s_lshl_b32 s6, s4, 7"); a("s_add_u32 s6, s6, %d" % F_AR)
    a("s_lshl_b32 s32, s5, 7"); a("s_add_u32 s32, s32, %d" % (F_AC - 64))
    a("v_and_b32 v34, 31, v2"); a("v_mov_b32 v35, s6"); a("v_mov_b32 v36, s32")
    a("v_cmp_gt_u32 vcc, 16, v34")
    a("s_lshl_b32 s33, s5, 9"); a("s_add_u32 s33, s33, %s" % hex(WS_MP1))
    a("v_cndmask_b32 v35, v36, v35, vcc")
    a("v_lshl_add_u32 v34, v34, 2, v35")
    srd(a, 16, P_WS, "s33", 131072)
    a("s_lshl_b32 s34, s4, 11"); a("s_add_u32 s34, s34, %s" % hex(WS_ST1T))
    srd(a, 12, P_WS, "s34", 2048)
    s_lmap(a, 32, 5, 6, False)
    a("s_lshl_b32 s6, s4, 19"); a("s_add_u32 s32, s32, s6")
    a("s_add_u32 s32, s32, %s" % hex(WS_H1))
    srd(a, 28, P_WS, "s32", 128 * LP)
    a("s_lshl_b32 s100, s4, 7"); a("s_lshl_b32 s6, s5, 2"); a("s_add_u32 s100, s100, s6"); a("s_add_u32 s100, s100, %d" % F_1)
    for p in range(8): a("s_mov_b32 s%d, %d" % (68 + p, p * 16384))
    a("v_lshlrev_b32 v8, 3, v2"); a("v_add_u32 v9, 8192, v8")
    a("v_lshlrev_b32 v3, 2, v2")
    a("s_lshl_b32 s6, s3, 9"); a("s_add_u32 s6, s6, 4096")
    a("v_add_u32 v4, s6, v3"); a("v_lshl_add_u32 v7, v7, 5, s6")
    ur = lambda d: 48 + 2 * d if d < 8 else 128 + 2 * (d - 8)
    a("s_waitcnt vmcnt(%d)" % (6 + yt))
    for d in range(16): unpack2(a, ur(d), XT + d)
    npl = a.newlabel("k1_np")
    a("s_cmp_lg_u32 s3, 1"); a("s_cbranch_scc1 %s" % npl)
    if CFG["PA"]: a("s_sleep %d" % CFG["PA"])
    spin(a, "k1_a", lambda a: a("buffer_load_dword v35, v34, s[24:27], 0 offen sc1"), lambda a: a("v_cmp_ne_u32 vcc, v35, v%d" % VE), CFG["PS"], 4)
    a.label(npl)
    a("s_barrier")
    st.stamp(a, 2)
    def d_issue(a):
        for w in range(2):
            for p in range(8): a("buffer_load_dwordx2 %s, v%d, s[16:19], s%d offen sc1" % (vr(72 + 16 * w + 2 * p, 2), 8 + w, 68 + p))
        for i in range(4): a("buffer_load_dwordx4 %s, v6, s[12:15], 0 offen offset:%d sc1" % (vr(16 + 4 * i, 4), 512 * i))
    def d_check(a):
        tags = [73 + 2 * p for p in range(16)] + [18 + 4 * i for i in range(4)]
        for k in range(0, 20, 2):
            a("s_waitcnt vmcnt(%d)" % (18 - k))
            for op, r in (("v_min3_u32", 10), ("v_max3_u32", 11)):
                a("%s v%d, v%d, v%d, v%d" % (op, r, VE if k == 0 else r, tags[k], tags[k + 1]))
        a("v_cmp_ne_u32 vcc, v10, v11")
    spin(a, "k1_d", d_issue, d_check, 0, None, False)
    SA = 144; CA = 152
    for w in range(2):
        b = 72 + 16 * w
        for st_ in (2, 4, 8):
            for q in range(0, 16, 2 * st_): a("v_add_f32 v%d, v%d, v%d" % (b + q, b + q, b + q + st_))
        bf16_round(a, b, b)
        if w: a("v_add_f32 v%d, 1.0, v%d" % (b, b)); bf16_round(a, b, b)
        a("ds_write_b32 v4, v%d offset:%d" % (b, 256 * w))
    a("ds_read_b128 %s, v7" % vr(SA, 4)); a("ds_read_b128 %s, v7 offset:16" % vr(SA + 4, 4))
    a("ds_read_b128 %s, v7 offset:256" % vr(CA, 4)); a("ds_read_b128 %s, v7 offset:272" % vr(CA + 4, 4))
    for d in range(16):
        t = vr(ur(d), 2); sx = vr(16 + 4 * (d >> 2), 2)
        a("v_pk_fma_f32 %s, %s, %s, %s op_sel:[0,0,1] op_sel_hi:[1,0,1]" % (t, t, sx, sx))
    a("s_waitcnt lgkmcnt(0)")
    st.stamp(a, 3)
    for i in range(4):
        for d in range(4 * i, 4 * i + 4):
            t = vr(ur(d), 2)
            a("v_pk_fma_f32 %s, %s, %s, %s" % (t, t, vr(CA + 2 * (d & 3), 2), vr(SA + 2 * (d & 3), 2)))
        for d in range(4 * i, 4 * i + 4): a("v_cvt_pk_bf16_f32 v%d, v%d, v%d" % (XT + d, ur(d), ur(d) + 1))
        a("s_mov_b32 s6, %d" % (32 * LP * i))
        a("buffer_store_dwordx4 %s, v33, s[28:31], s6 offen sc1" % vr(XT + 4 * i, 4))
    a("s_branch L_phase_k2")
    a.label(ldr)
    l4 = a.newlabel("k1_l4")
    a("s_cmp_eq_u32 s3, 4")
    a("s_cbranch_scc1 %s" % l4)
    if CFG["TW"] != 3:
        a("v_subrev_u32 v4, 320, v0"); a("v_lshlrev_b32 v4, 7, v4")
        if CFG["TWS"] and CFG["TW"] == 1: a("s_sleep %d" % CFG["TWS"])
        if CFG["TW"] == 1: touch(a, P_WQKV, 24576, "s2", 4, 8, 250)
        if CFG["CT0"]: code_touch(a, "L_code_k2", "L_code_k4", 8, 4, 251)
    if CFG["TW"] == 6:
        for r in range(CFG["NB"]):
            if r: a("s_waitcnt vmcnt(0)")
            wround(a)
    a("s_barrier")
    if CFG["TW"] == 6:
        while rounds[0] < 4 - CFG["NL"]:
            a("s_waitcnt vmcnt(%d)" % CFG["TH"] if CFG["TH"] < 2 else "s_waitcnt vmcnt(0)")
            wround(a)
    elif CFG["TW"] >= 4:
        a("v_subrev_u32 v4, 320, v0"); a("v_lshlrev_b32 v4, 7, v4")
        if CFG["TWS"]: a("s_sleep %d" % CFG["TWS"])
        touch(a, P_WQKV, 24576, "s2", 4, 8, 250)
    a("s_branch L_phase_k2")
    a.label(l4)
    k = 0
    a("s_waitcnt vmcnt(0)")
    for pp, sh, sz, n in SHL:
        shadow_srd(a, 8, sh, sz, "s2")
        for i in range(n):
            a("s_movk_i32 s6, %d" % (8192 * i))
            a("buffer_store_dwordx4 %s, v32, s[8:11], s6 offen sc1" % vr(SHV + 4 * k, 4)); k += 1
    a("s_lshl_b32 s6, s2, 2"); a("s_add_u32 s6, s6, %d" % F_A2)
    a("v_mov_b32 v34, 0")
    a("s_mov_b64 exec, 1")
    a("s_waitcnt vmcnt(0)")
    a("buffer_store_dword v%d, v34, s[24:27], s6 offen sc1" % VE)
    a("s_barrier")
    return st

def pspin(a, name, regs, issue, gap, slot=None):
    L = a.newlabel(name + "_l"); D = a.newlabel(name + "_d")
    n = len(regs)
    a("s_mov_b32 s66, %d" % CFG["SPB"])
    for k, r in enumerate(regs):
        issue(a, r)
        if k < n - 1: a("s_sleep %d" % gap)
    a.label(L)
    for k, r in enumerate(regs):
        a("s_waitcnt vmcnt(%d)" % (n - 1))
        a("v_cmp_eq_u32 vcc, -1, v%d" % r)
        a("s_sub_u32 s66, s66, 1")
        a("s_cbranch_scc1 %s" % D)
        a("s_cbranch_vccz %s" % D)
        issue(a, r)
    a("s_branch %s" % L)
    a.label(D)
    if slot and DBG["stamp"]:
        a("s_waitcnt lgkmcnt(0)")
        a("s_sub_u32 s66, 0x40000, s66")
        a("s_add_u32 s%d, s80, s66" % (80 + 2 * slot)); a("s_addc_u32 s%d, s81, 0" % (81 + 2 * slot))

def k2(a, **ch):
    g = Gemm2("k2", 128, 1024, 32, 2, 2, LP, 6144, 256, CFG["S2"],
              [(8, [(0, 0)]), (8, [(0, 2048)]), (8, [(0, 4096)])])
    lds = max(g.LDS_MAIN, 81920)
    g.xskip = True
    WF = g.CFREE
    TR = WF + 8
    RAW = WF + 12
    VIM = 2 * 24576; KVF = 65536; ZF = KVF + 8192
    g.pf = None
    def setup(a):
        xw_srds2(a, g, P_WS, WS_H1, P_WQKV, 0, 1024 * 6144, 128, WS_SQ * CFG["SH"])
        a("s_lshl_b32 s6, s5, 12")
        srd(a, 24, P_WPHI, "s6", 4096)
        a("s_mul_i32 s6, s5, %d" % (16 * XK_SB)); a("s_add_u32 s6, s6, %s" % hex(WS_XK))
        srd(a, 16, P_WS, "s6", 16 * XK_SB)
        a("s_mul_i32 s6, s5, %d" % XR_CB); a("s_add_u32 s6, s6, %s" % hex(WS_XR))
        srd(a, 20, P_WS, "s6", XR_CB)
    def cpro(a):
        s_lmap(a, 32, 5, 6, False)
        a("s_lshl_b32 s6, s4, 19"); a("s_add_u32 s32, s32, s6")
        a("s_add_u32 s32, s32, %s" % hex(WS_O)); srd(a, 28, P_WS, "s32", 128 * LP)
        a("v_bfe_u32 v10, v1, 2, 2")
        a("v_lshrrev_b32 v13, 5, v1")
        a("v_lshl_add_u32 v10, v13, 3, v10")
        a("v_bfe_u32 v11, v1, 4, 1"); a("v_lshlrev_b32 v11, 5, v11")
        a("v_and_b32 v12, 1, v1"); a("v_lshl_add_u32 v11, v12, 4, v11")
        a("v_bfe_u32 v12, v1, 1, 1"); a("v_lshl_add_u32 v11, v12, 3, v11")
        a("s_lshr_b32 s33, s3, 1")
        a("s_lshl_b32 s6, s35, 13"); a("s_add_u32 s6, s6, %d" % VIM)
        a("v_lshl_add_u32 v%d, v10, 6, v11" % TR); a("v_add_u32 v%d, s6, v%d" % (TR, TR))
        a("s_mul_i32 s6, s35, 24576"); a("s_lshl_b32 s7, s33, 6"); a("s_add_u32 s6, s6, s7")
        a("v_mul_u32_u24 v10, 192, v10"); a("v_add3_u32 v%d, v10, v11, s6" % (TR + 1))
        a("v_lshlrev_b32 v%d, 4, v1" % (TR + 2))
        a("s_lshl_b32 s6, s35, 1"); a("s_add_u32 s6, s6, s33")
        a("s_lshl_b32 s7, s6, 15"); a("s_lshl_b32 s32, s4, 10"); a("s_add_u32 s72, s7, s32")
        a("s_add_u32 s73, s72, %d" % XK_SB)
        a("s_lshl_b32 s6, s6, 7"); a("s_lshl_b32 s7, s4, 9"); a("s_add_u32 s74, s6, s7"); a("s_add_u32 s74, s74, 8192")
        a("v_and_b32 v10, 0x13, v1")
        a("v_bfe_u32 v11, v1, 2, 1"); a("v_lshl_add_u32 v10, v11, 3, v10")
        a("v_bfe_u32 v11, v1, 3, 1"); a("v_lshl_add_u32 v10, v11, 2, v10")
        a("v_lshlrev_b32 v%d, 2, v10" % (TR + 3))
        a("s_lshl_b32 s96, s4, 2"); a("s_add_u32 s96, s96, 16384")
        a("s_cmp_eq_u32 s3, 0"); a("s_cselect_b64 s[98:99], 1, 0")
        a("v_mov_b32 v14, 0")
    def lpro(a):
        if CFG["NL"]:
            a("s_cmp_ge_u32 s3, 5"); a("s_cselect_b32 s32, %d, 0" % (769 * 6144))
            a("s_mul_i32 s6, s2, 6144"); srd(a, 72, P_WQKV, "s6", "s32")
            for r in range(4 - CFG["NL"], 4):
                a("s_mov_b32 s6, %d" % (r * 256 * 6144))
                a("buffer_load_dword v250, v40, s[72:75], s6 offen"); g.q.append(99)
        ctouch(a, g, "k2", "k4")
    MW = RAW + 20; MC = 216; ME = 224; MT_ = 232; MA = 240
    def cpost0(a):
        a("v_and_b32 v10, 0x13, v1")
        a("v_bfe_u32 v11, v1, 2, 1"); a("v_lshl_add_u32 v10, v11, 3, v10")
        a("v_bfe_u32 v11, v1, 3, 1"); a("v_lshl_add_u32 v10, v11, 2, v10")
        a("v_lshlrev_b32 v10, 1, v10")
        a("v_lshrrev_b32 v11, 5, v1"); a("v_lshl_add_u32 v10, v11, 9, v10")
        a("s_lshl_b32 s32, s35, 11")
        for t in range(2):
            for e in range(8):
                a("buffer_load_ushort v%d, v10, s[24:27], s32 offen offset:%d" % (RAW + 8 * t + e, (16 * t + e) * 64))
        if CFG["MD"] == 1: mt_issue(a)
        if CFG["XI"] == 2 and not CFG["XM"]: xk_own(a)
    def xk_own(a):
        for e in range(4): a("v_mov_b32 v%d, -1" % (MA + e))
        for q in range(2):
            a("buffer_store_dwordx4 %s, v%d, s[16:19], s%d offen sc1" % (vr(MA, 4), TR + 2, 72 + q))
    def cmid(a):
        if CFG["MD"] == 2: mt_issue(a)
        xk_own(a)
        if CFG["W1"] == 2:
            a("s_lshl_b32 s32, s2, 13"); srd(a, 68, P_WO, "s32", 8192)
            a("v_lshlrev_b32 v10, 7, v0"); a("buffer_load_dword v250, v10, s[68:71], 0 offen")
    if CFG["XI"] == 2 and CFG["XM"]: g.cmid = (CFG["XM"], cmid)
    g.cpost0 = cpost0
    def mt_issue(a, sd=68):
        a("s_lshr_b32 s32, s2, 6"); a("s_lshl_b32 s32, s32, 2"); a("s_add_u32 s32, s32, s3"); a("s_lshl_b32 s32, s32, 6")
        a("s_lshl_b32 s66, s32, 1")
        srd(a, sd, P_C, "s66", 128)
        a("v_lshrrev_b32 v10, 3, v1"); a("v_lshlrev_b32 v11, 1, v10")
        for i in range(8): a("buffer_load_ushort v%d, v11, %s, 0 offen offset:%d" % (MC + i, sr(sd, 4), 16 * i))
        a("s_mul_i32 s32, s32, 12288"); a("s_and_b32 s66, s2, 63"); a("s_lshl_b32 s66, s66, 7")
        a("s_add_u32 s32, s32, s66"); a("s_add_u32 s32, s32, 4096")
        srd(a, sd, P_WMOD, "s32", 64 * 12288 - 4096 - 63 * 128)
        a("v_mul_u32_u24 v10, 0x3000, v10"); a("v_and_b32 v11, 7, v1"); a("v_lshl_add_u32 v10, v11, 4, v10")
        for i in range(8):
            a("s_mov_b32 s32, %d" % (8 * 12288 * i))
            a("buffer_load_dwordx4 %s, v10, %s, s32 offen%s" % (vr(MW + 4 * i, 4), sr(sd, 4), " nt" if CFG["NT"] & 2 else ""))
    if CFG["MD"] == 0: g.cpre0 = mt_issue
    def mt_compute(a):
        n, C, E = 8, MC, ME
        a("s_mov_b32 s6, %s" % hex(f32bits(-LOG2E)))
        for i in range(n): a("v_lshlrev_b32 v%d, 16, v%d" % (C + i, C + i))
        for i in range(n): a("v_mul_f32 v%d, s6, v%d" % (E + i, C + i))
        for i in range(n): a("v_exp_f32 v%d, v%d" % (E + i, E + i))
        for i in range(n): a("v_add_f32 v%d, 1.0, v%d" % (E + i, E + i))
        for i in range(n): a("v_rcp_f32 v%d, v%d" % (E + i, E + i))
        for i in range(n): a("v_mul_f32 v%d, v%d, v%d" % (C + i, C + i, E + i))
        for i in range(n): a("v_cvt_pk_bf16_f32 v%d, v%d, v%d" % (C + i, C + i, C + i))
        for i in range(n): a("v_lshlrev_b32 v%d, 16, v%d" % (C + i, C + i))
        for i in range(n):
            t = MT_ if i & 1 else ME
            for d in range(4): unpack2(a, t + 2 * d, MW + 4 * i + d)
            for e in range(8):
                if i == 0: a("v_mul_f32 v%d, v%d, v%d" % (MA + e, C, t + e))
                else: a("v_fmac_f32 v%d, v%d, v%d" % (MA + e, C + i, t + e))
        xs = list(range(MA, MA + 8)); ts = list(range(MT_, MT_ + 8))
        multi_dpp_red(a, xs, [8])
        multi_swap_red(a, "v_add_f32", 16, xs, ts)
        multi_swap_red(a, "v_add_f32", 32, xs, ts)
        for e in range(1, 8):
            a("s_mov_b32 s32, %s" % hex((0xff << (8 * e)) & 0xffffffff)); a("s_mov_b32 s33, %s" % hex((0xff << (8 * e)) >> 32))
            a("v_cndmask_b32 v%d, v%d, v%d, s[32:33]" % (MA, MA, MA + e))
        a("s_and_b32 s6, s2, 63"); a("s_lshl_b32 s6, s6, 8"); a("s_add_u32 s6, s6, %d" % WS_MODR)
        srd(a, 68, P_WS, "s6", 256)
        a("v_and_b32 v%d, 7, v1" % MT_); a("v_lshrrev_b32 v%d, 3, v1" % (MT_ + 1))
        a("v_lshlrev_b32 v%d, 2, v%d" % (MT_ + 1, MT_ + 1)); a("v_lshl_add_u32 v%d, v%d, 5, v%d" % (MT_, MT_, MT_ + 1))
        a("buffer_atomic_add_f32 v%d, v%d, s[68:71], 0 offen" % (MA, MT_))
    def lpre(a):
        sk = a.newlabel("k2_a2")
        a("s_cmp_lg_u32 s3, 4"); a("s_cbranch_scc1 %s" % sk)
        srd(a, 68, P_WS, WS_FL + F_A2, 1024)
        a("v_lshlrev_b32 v38, 4, v1")
        def chk(a):
            for e in range(4): a("v_xor_b32 v%d, v%d, v%d" % (44 + e, 44 + e, VE))
            a("v_or3_b32 v44, v44, v45, v46"); a("v_or_b32 v44, v44, v47")
            a("v_cmp_ne_u32 vcc, 0, v44")
        if CFG["PB"]: a("s_sleep %d" % CFG["PB"])
        spin(a, "k2_a", lambda a: all_issue(a, 0), chk, 8)
        a.label(sk)
    g.lpre = lpre; g.fprev = VE
    line_poll(g, 10, 16, 0, True); g.pw = CFG["PW2"]; g.dyn = CFG["DY"] & 16; g.R = CFG["R2"]; g.bst = False; g.lwait = False
    def hint(a):
        a("s_mov_b64 exec, s[98:99]")
        a("buffer_store_dword v14, v14, s[20:23], s96 offen sc1")
        a("s_mov_b64 exec, -1")
    def kvphase(a):
        KV = g.acc(1, 0); Z = g.acc(1, 1); FA = g.acc(2, 0); ON = RAW
        for half in range(2):
            for t in range(4):
                T = half * 4 + t
                for q in range(2):
                    a("ds_read_b64_tr_b16 %s, v%d offset:%d" % (vr(FA + 8 * t + 2 * q, 2), TR + 1, (16 * T + 4 * q) * 192))
                    a("ds_read_b64_tr_b16 %s, v%d offset:%d" % (vr(FA + 8 * t + 4 + 2 * q, 2), TR, (16 * T + 4 * q) * 64))
            if half == 0:
                for e in range(4): a("v_mov_b32 v%d, 0x3f803f80" % (ON + e))
            if half + 2 == CFG["HP"]: hint(a)
            if DBG["stamp"] and half == 0: a("s_waitcnt lgkmcnt(0)")
            for t in range(4):
                a("s_waitcnt lgkmcnt(%d)" % (12 - 4 * t))
                first = half == 0 and t == 0
                a("v_mfma_f32_32x32x16_bf16 %s, %s, %s, %s" % (vr(KV, 16), vr(FA + 8 * t, 4), vr(FA + 8 * t + 4, 4), "0" if first else vr(KV, 16)))
                a("v_mfma_f32_32x32x16_bf16 %s, %s, %s, %s" % (vr(Z, 16), vr(ON, 4), vr(FA + 8 * t, 4), "0" if first else vr(Z, 16)))
        if CFG["HP"] == 4: hint(a)
        a("s_nop 10")
        for q in range(2):
            for e in range(4): a("v_cvt_pk_bf16_f32 v%d, v%d, v%d" % (FA + 4 * q + e, KV + 8 * q + 2 * e, KV + 8 * q + 2 * e + 1))
            a("buffer_store_dwordx4 %s, v%d, s[16:19], s%d offen sc1" % (vr(FA + 4 * q, 4), TR + 2, 72 + q))
        a("s_mov_b32 exec_hi, 0")
        a("buffer_store_dword v%d, v%d, s[20:23], s74 offen sc1" % (Z, TR + 3))
        a("s_mov_b64 exec, -1")
        if CFG["ACK"] & 1: a("s_waitcnt vmcnt(0)")
        if CFG["HP"] == 5: hint(a)
    FLG = ZF + 512
    def flg_wait(a, v):
        L = a.newlabel("k2_fl"); D = a.newlabel("k2_fd")
        a("v_mov_b32 v%d, %d" % (v, FLG))
        a("s_mov_b32 s66, 0x1000000")
        a.label(L)
        a("ds_read_b32 v%d, v%d" % (v + 1, v))
        a("s_waitcnt lgkmcnt(0)")
        a("v_cmp_eq_u32 vcc, 0, v%d" % (v + 1))
        a("s_sub_u32 s66, s66, 1")
        a("s_cbranch_scc1 %s" % D)
        a("s_cbranch_vccz %s" % D)
        a("s_sleep 1")
        a("s_branch %s" % L)
        a.label(D)
    def unit(a, PL, AC, VA, z=None):
        def issue(a):
            if z: z[0](a)
            for p in range(16):
                a("buffer_load_dwordx4 %s, v%d, s[16:19], 0 offen offset:%d sc1" % (vr(PL + 4 * p, 4), VA + (p >> 2), (p & 3) * 1024))
            if z: z[1](a)
            for p in range(16):
                a("s_waitcnt vmcnt(%d)" % (15 - p))
                t = AC if p == 0 else AC + 8
                for d in range(4): unpack2(a, t + 2 * d, PL + 4 * p + d)
                if p:
                    for h in range(4): a("v_pk_add_f32 %s, %s, %s" % (vr(AC + 2 * h, 2), vr(AC + 2 * h, 2), vr(t + 2 * h, 2)))
        def check(a):
            if z: a("v_add_f32 v%d, v%d, v%d" % (AC + 8, AC, z[2])); a("v_cmp_u_f32 vcc, v%d, v%d" % (AC + 8, AC + 7))
            else: a("v_cmp_u_f32 vcc, v%d, v%d" % (AC, AC + 7))
            for e in range(4): a("v_cvt_pk_bf16_f32 v%d, v%d, v%d" % (AC + 8 + 4 + e, AC + 2 * e, AC + 2 * e + 1))
        spin(a, "k2_u", issue, check, 0, None, False)
        a("ds_write_b128 v%d, %s" % (VA + 4, vr(AC + 12, 4)))
    def unit_prep(a, VA):
        a("s_lshl_b32 s6, s3, 14")
        a("v_lshl_add_u32 v%d, v1, 4, s6" % VA)
        for k in range(1, 4): a("v_add_u32 v%d, %d, v%d" % (VA + k, 4096 * k, VA))
        a("s_lshl_b32 s6, s3, 10"); a("s_add_u32 s6, s6, %d" % KVF)
        a("v_lshl_add_u32 v%d, v1, 4, s6" % (VA + 4))
    def epi(a):
        P = g.FR
        a("s_waitcnt vmcnt(0)")
        for e in range(8):
            a("v_lshl_or_b32 v%d, v%d, 16, v%d" % (WF + e, RAW + 1 + 2 * e, RAW + 2 * e))
        if CFG["MD"] == 3: mt_issue(a, 24)
        a("s_mov_b32 s70, %s" % hex(f32bits(LOG2E))); a("s_mov_b32 s71, s70")
        a("v_and_b32 v4, 31, v1"); a("v_add_u32 v4, s34, v4")
        a("v_lshrrev_b32 v5, 5, v1"); a("v_lshlrev_b32 v5, 4, v5")
        a("s_mul_i32 s32, s35, 24576"); a("s_lshl_b32 s33, s35, 13"); a("s_add_u32 s33, s33, %d" % VIM)
        a("v_mul_u32_u24 v6, 192, v4"); a("v_add3_u32 v6, v6, v5, s32")
        a("v_lshl_add_u32 v7, v4, 6, v5"); a("v_add_u32 v7, s33, v7")
        for i in range(2):
            for j in range(2):
                for e in range(8):
                    A = g.acc(i, j)
                    a("v_cvt_pk_bf16_f32 v%d, v%d, v%d" % (P + (i * 2 + j) * 8 + e, A + 2 * e, A + 2 * e + 1))
        for i in (1, 0):
            for j in range(2):
                A = g.acc(i, j); pk = P + (i * 2 + j) * 8
                a("v_mfma_f32_32x32x16_bf16 %s, %s, %s, 0" % (vr(A, 16), vr(WF, 4), vr(pk, 4)))
                a("v_mfma_f32_32x32x16_bf16 %s, %s, %s, %s" % (vr(A, 16), vr(WF + 4, 4), vr(pk + 4, 4), vr(A, 16)))
        for j in range(2):
            A = g.acc(2, j)
            for e in range(8):
                a("v_cvt_pk_bf16_f32 v%d, v%d, v%d" % (P + 32 + e, A + 2 * e, A + 2 * e + 1))
            for t in range(2):
                a("ds_write_b128 v7, %s offset:%d" % (vr(P + 32 + 4 * t, 4), j * 32 * 64 + t * 32))
            if j == 0: a("s_nop 1")
        EN = g.acc(2, 0)
        for i in (1, 0):
            for j in range(2):
                A = g.acc(i, j); pk = P + (i * 2 + j) * 8
                a("v_max3_f32 v10, v%d, v%d, v%d" % (A, A + 1, A + 2))
                a("v_min3_f32 v12, v%d, v%d, v%d" % (A, A + 1, A + 2))
                for e in range(3, 15, 2):
                    a("v_max3_f32 v10, v10, v%d, v%d" % (A + e, A + e + 1))
                    a("v_min3_f32 v12, v12, v%d, v%d" % (A + e, A + e + 1))
                a("v_max_f32 v10, v10, v%d" % (A + 15))
                a("v_min_f32 v12, v12, v%d" % (A + 15))
                a("v_mov_b32 v11, v10"); a("v_mov_b32 v13, v12")
                a("s_nop 1")
                a("v_permlane32_swap_b32 v10, v11"); a("v_permlane32_swap_b32 v12, v13")
                a("v_max_f32 v10, v10, v11"); a("v_min_f32 v12, v12, v13")
                a("v_mul_f32 v10, s70, v10"); a("v_mul_f32 v12, s70, v12")
                for e in range(8):
                    a("v_pk_fma_f32 %s, %s, s[70:71], v[12:13] op_sel_hi:[1,1,0] neg_lo:[0,1,0] neg_hi:[0,1,0]" % (vr(EN + 2 * e, 2), vr(A + 2 * e, 2)))
                    a("v_pk_fma_f32 %s, %s, s[70:71], v[10:11] op_sel_hi:[1,1,0] neg_lo:[0,0,1] neg_hi:[0,0,1]" % (vr(A + 2 * e, 2), vr(A + 2 * e, 2)))
                for e in range(16):
                    a("v_exp_f32 v%d, v%d" % (A + e, A + e))
                    a("v_exp_f32 v%d, v%d" % (EN + e, EN + e))
                a("v_pk_add_f32 v[10:11], %s, %s" % (vr(A, 2), vr(A + 2, 2)))
                a("v_pk_add_f32 v[12:13], %s, %s" % (vr(EN, 2), vr(EN + 2, 2)))
                for e in range(2, 8):
                    a("v_pk_add_f32 v[10:11], v[10:11], %s" % vr(A + 2 * e, 2))
                    a("v_pk_add_f32 v[12:13], v[12:13], %s" % vr(EN + 2 * e, 2))
                a("v_add_f32 v10, v10, v11"); a("v_add_f32 v12, v12, v13")
                a("v_mov_b32 v11, v10"); a("v_mov_b32 v13, v12")
                a("s_nop 1")
                a("v_permlane32_swap_b32 v10, v11"); a("v_permlane32_swap_b32 v12, v13")
                a("v_add_f32 v10, v10, v11"); a("v_add_f32 v12, v12, v13")
                a("v_rcp_f32 v10, v10"); a("v_rcp_f32 v12, v12")
                a("s_nop 0")
                if i == 1 and j == 1 and CFG["HP"] == 0: hint(a)
                for e in range(8):
                    a("v_pk_mul_f32 %s, %s, v[10:11] op_sel_hi:[1,0]" % (vr(A + 2 * e, 2), vr(A + 2 * e, 2)))
                    a("v_pk_mul_f32 %s, %s, v[12:13] op_sel_hi:[1,0]" % (vr(EN + 2 * e, 2), vr(EN + 2 * e, 2)))
                for e in range(8):
                    a("v_cvt_pk_bf16_f32 v%d, v%d, v%d" % (pk + e, A + 2 * e, A + 2 * e + 1))
                for e in range(8):
                    a("v_cvt_pk_bf16_f32 v%d, v%d, v%d" % (A + e, EN + 2 * e, EN + 2 * e + 1))
                if i == 1:
                    for q in range(4):
                        src = vr(pk + 4 * q, 4) if q < 2 else vr(A + 4 * (q - 2), 4)
                        a("ds_write_b128 v6, %s offset:%d" % (src, j * 32 * 192 + q * 32))
                if i == 1 and j == 1:
                    if CFG["HP"] == 1: hint(a)
                    g.stamp(a, 3)
                    a("s_waitcnt lgkmcnt(0)")
                    a("s_barrier")
                    kvphase(a)
                    if CFG["MD"] == 4: mt_issue(a, 24)
                    g.stamp(a, 4)
        if CFG["MD"] >= 3: a("s_waitcnt vmcnt(0)")
        mt_compute(a)
        a("s_lshl_b32 s6, s35, 12"); a("s_add_u32 s6, s6, %d" % KVF)
        a("v_lshl_add_u32 v6, v1, 4, s6")
        a("s_lshl_b32 s6, s35, 7"); a("s_add_u32 s6, s6, %d" % ZF)
        a("v_add_u32 v7, s6, v5")
        if CFG["OS"] == 1:
            a("v_and_b32 v4, 15, v1"); a("v_add_u32 v4, s34, v4"); a("v_bfe_u32 v3, v1, 4, 1")
            a("v_lshl_add_u32 v3, v3, 5, v5"); a("v_lshl_add_u32 v4, v4, 12, v3")
        else:
            a("s_lshl_b32 s6, s3, 12")
            a("v_and_b32 v2, 31, v1"); a("v_lshl_add_u32 v2, v2, 6, v5"); a("v_add_u32 v2, s6, v2")
            a("v_lshl_add_u32 v3, v1, 4, s6")
            a("v_lshrrev_b32 v4, 2, v1"); a("v_add_u32 v4, s34, v4"); a("v_and_b32 v5, 3, v1")
            a("v_lshlrev_b32 v5, 4, v5"); a("v_lshl_add_u32 v4, v4, 12, v5")
        a("s_lshl_b32 s72, s35, 6")
        for k in range(1, 4): a("s_add_u32 s%d, s72, %d" % (72 + k, 16 * k * LP))
        assert g.acc(2, 1) == g.acc(1, 0) + 48
        unit_prep(a, MT_)
        g.stamp(a, 5)
        flg_wait(a, MA)
        if CFG["UW"]: a("s_sleep %d" % CFG["UW"])
        unit(a, g.acc(1, 0), MW, MT_)
        a("s_waitcnt lgkmcnt(0)")
        a("s_barrier")
        g.stamp(a, 6)
        KV = g.acc(1, 0); Z = g.acc(1, 1); NUM = [g.acc(2, 0), RAW + 20]; DEN = [g.acc(2, 1), RAW + 36]
        for T in range(4): a("ds_read_b128 %s, v7 offset:%d" % (vr(Z + 4 * T, 4), T * 32))
        for T in range(4): a("ds_read_b128 %s, v6 offset:%d" % (vr(KV + 4 * T, 4), T * 1024))
        def phq(j, T): return vr(P + j * 8 + 4 * T, 4) if T < 2 else vr(g.acc(0, j) + 4 * (T - 2), 4)
        a("s_waitcnt lgkmcnt(%d)" % (0 if DBG["stamp"] else 4))
        for j in range(2):
            for T in range(4):
                a("v_mfma_f32_32x32x16_bf16 %s, %s, %s, %s" % (vr(DEN[j], 16), vr(Z + 4 * T, 4), phq(j, T), "0" if T == 0 else vr(DEN[j], 16)))
        a("s_waitcnt lgkmcnt(0)")
        for j in range(2):
            for T in range(4):
                a("v_mfma_f32_32x32x16_bf16 %s, %s, %s, %s" % (vr(NUM[j], 16), vr(KV + 4 * T, 4), phq(j, T), "0" if T == 0 else vr(NUM[j], 16)))
            if j == 0:
                for jj in range(2): a("v_add_f32 v%d, %s, v%d" % (8 + 2 * jj, hex(f32bits(1e-6)), DEN[jj]))
                for jj in range(2): a("v_rcp_f32 v%d, v%d" % (8 + 2 * jj, 8 + 2 * jj))
        for j in range(2):
            if j == 1: a("s_nop 2")
            for e in range(8):
                a("v_pk_mul_f32 %s, %s, %s op_sel_hi:[1,0]" % (vr(NUM[j] + 2 * e, 2), vr(NUM[j] + 2 * e, 2), vr(8 + 2 * j, 2)))
            for e in range(8):
                a("v_cvt_pk_bf16_f32 v%d, v%d, v%d" % (DEN[j] + e, NUM[j] + 2 * e, NUM[j] + 2 * e + 1))
            if CFG["OS"] == 1:
                for e in range(4): a("v_permlane16_swap_b32 v%d, v%d" % (DEN[j] + e, DEN[j] + 4 + e))
            else:
                for h in range(2): a("ds_write_b128 v2, %s offset:%d" % (vr(DEN[j] + 4 * h, 4), 2048 * j + 32 * h))
                for h in range(2): a("ds_read_b128 %s, v3 offset:%d" % (vr(DEN[j] + 8 + 4 * h, 4), 2048 * j + 1024 * h))
                if j == 0: continue
            for jj in ([j] if CFG["OS"] == 1 else [0, 1]):
                for h in range(2):
                    if CFG["OS"] != 1: a("s_waitcnt lgkmcnt(%d)" % (0 if DBG["stamp"] else [5, 4, 1, 0][2 * jj + h]))
                    a("buffer_store_dwordx4 %s, v4, s[28:31], s%d offen sc1" % (vr(DEN[jj] + 4 * h + (0 if CFG["OS"] == 1 else 8), 4), 72 + 2 * jj + h))
    def etile(a):
        a("v_and_b32 v3, 255, v0"); a("v_lshlrev_b32 v2, 7, v3")
        if CFG["W1"] == 1: touch(a, P_WO, 8192, "s2", 2, 8, 60)
        if CFG["W2"] == 1: touch(a, P_WIN, 28672, "s2", 2, 12, 61)
    g.etile = etile; g.etile_n = (CFG["W1"] == 1) + (CFG["W2"] == 1); g.etile_wait = False
    flag_rc(g, 0, 4, 5)
    def lepi(a):
        PL = 144; ZL = 96; AC = 64
        unit_prep(a, 16)
        a("v_and_b32 v10, 15, v1")
        a("v_lshlrev_b32 v21, 2, v10"); a("v_add_u32 v21, 16384, v21")
        a("v_lshlrev_b32 v25, 3, v1"); a("v_add_u32 v25, 8192, v25"); a("v_add_u32 v23, 4096, v25")
        a("v_lshlrev_b32 v27, 2, v1"); a("v_add_u32 v27, %d, v27" % ZF)
        a("v_mov_b32 v28, 0"); a("v_mov_b32 v29, %d" % FLG)
        a("ds_write_b32 v29, v28")
        a("s_setprio %d" % CFG["LPR"])
        a("s_waitcnt vmcnt(0) lgkmcnt(0)")
        a("s_barrier")
        g.stamp(a, 3)
        lz = a.newlabel("k2_lz"); lg = a.newlabel("k2_lg"); nr2 = a.newlabel("k2_nr2"); lu = a.newlabel("k2_lu")
        a("s_cmp_lg_u32 s34, 0"); a("s_cbranch_scc1 %s" % lg)
        a("s_sleep %d" % CFG["H1W"])
        pspin(a, "k2_h", [36, 37, 38, 39][:CFG["NP"]], lambda a, r: a("buffer_load_dword v%d, v21, s[20:23], 0 offen sc1" % r), CFG["PG"])
        a("ds_write_b32 v29, v29")
        g.stamp(a, 4)
        a("s_branch %s" % lu)
        a.label(lg)
        flg_wait(a, 30)
        a("s_cmp_eq_u32 s34, 1"); a("s_cbranch_scc1 %s" % lz)
        a.label(lu)
        if CFG["UW"]: a("s_sleep %d" % CFG["UW"])
        unit(a, PL, AC, 16)
        a("s_branch %s" % nr2)
        a.label(lz)
        if CFG["UW"]: a("s_sleep %d" % CFG["UW"])
        def z_issue(a):
            for p in range(16):
                a("buffer_load_dwordx2 %s, v%d, s[20:23], 0 offen offset:%d sc1" % (vr(ZL + 2 * p, 2), 25 if p < 8 else 23, (p & 7) * 512))
        def z_sum(a):
            for p in range(1, 16):
                a("s_waitcnt vmcnt(%d)" % (31 - p))
                a("v_pk_add_f32 %s, %s, %s" % (vr(ZL, 2), vr(ZL, 2), vr(ZL + 2 * p, 2)))
            a("v_cvt_pk_bf16_f32 v30, v%d, v%d" % (ZL, ZL + 1))
            a("v_add_f32 v%d, v%d, v%d" % (ZL, ZL, ZL + 1))
        unit(a, PL, AC, 16, (z_issue, z_sum, ZL))
        a("ds_write_b32 v27, v30")
        a.label(nr2)
        a("s_waitcnt lgkmcnt(0)")
        g.stamp(a, 5)
        a("s_barrier")
    kn = g.emit(a, tilemap_16x16_r8c4, setup, cpro, lpro, epi, lepi, **ch)
    return g, lds

def rm_addr(a, vrow, vld, t):
    a("v_lshrrev_b32 v%d, 3, v1" % t)
    a("s_lshl_b32 s32, s3, 4")
    a("v_add_u32 v%d, s32, v%d" % (vrow, t))
    a("v_and_b32 v%d, 7, v1" % vld)
    a("v_lshlrev_b32 v%d, 1, v%d" % (vld, vld))
    a("v_xor_b32 v%d, v%d, v%d" % (vld, vld, t))
    a("v_lshlrev_b32 v%d, 4, v%d" % (vld, vld))
    a("v_lshl_add_u32 v%d, v%d, 8, v%d" % (vld, vrow, vld))
    a("v_xor_b32 v%d, 16, v%d" % (vld + 1, vld))

def stage32_addr(a, g, SA, t):
    a("v_and_b32 v%d, 31, v1" % t); a("v_add_u32 v%d, s34, v%d" % (t, t))
    a("v_lshrrev_b32 v%d, 5, v1" % SA); a("v_lshlrev_b32 v%d, 1, v%d" % (SA, SA))
    a("v_and_b32 v%d, 7, v1" % (SA + 1)); a("v_xor_b32 v%d, v%d, v%d" % (SA, SA, SA + 1))
    a("v_lshlrev_b32 v%d, 4, v%d" % (SA, SA)); a("v_lshl_add_u32 v%d, v%d, 8, v%d" % (SA, t, SA))
    if g.wgn == 2:
        a("s_lshl_b32 s6, s35, 7"); a("v_add_u32 v%d, s6, v%d" % (SA, SA))
    for k, x in enumerate((16, 64, 80)): a("v_xor_b32 v%d, %d, v%d" % (SA + 1 + k, x, SA))

def stage32(a, SA, tiles):
    a("s_nop 10")
    for A, off in tiles:
        for q in range(4):
            a("ds_write_b128 v%d, %s offset:%d" % (SA + q, vr(A + 4 * q, 4), off))

def compact8(a, dst, vals, vperm, sm):
    a("v_mov_b32 v%d, v%d" % (dst, vals[0]))
    for c in range(1, len(vals)):
        a("s_mov_b32 s%d, %s" % (sm, hex(0x01010101 << c))); a("s_mov_b32 s%d, s%d" % (sm + 1, sm))
        a("v_cndmask_b32 v%d, v%d, v%d, %s" % (dst, dst, vals[c], sr(sm, 2)))
    a("ds_bpermute_b32 v%d, v%d, v%d" % (dst, vperm, dst))

def k_res(a, name, K, xoff, wp, resp, resoff, gate_idx, outp, outoff, stats, S, shadow, **ch):
    g = Gemm2(name, 128, K, 32, 4, 1, LP, 2048, 256, S, [(8, [(0, 0)])])
    g.xskip = True
    RX = g.CFREE; GA = RX + 8; CB = GA + 8; VO2 = CB + 8; VO4 = VO2 + 1; VLD = VO2 + 2; VAT = VO2 + 4; VPM = VO2 + 5; VGT = VO2 + 6
    F = VO2 + 8; T = F + 16; SA = T + 16
    lds = g.LDS_MAIN + 1024 + 32768 + 2048
    def setup(a):
        xw_srds2(a, g, P_WS, xoff, wp, 0, K * 2048, 128, shadow * CFG["SH"])
        a("s_lshl_b32 s6, s4, 18"); a("s_lshl_b32 s7, s5, 7"); a("s_add_u32 s6, s6, s7")
        a("s_sub_u32 s7, %d, s6" % (2048 * 2048))
        if resoff:
            a("s_add_u32 s32, s6, %s" % hex(resoff)); srd(a, 16, resp, "s32", "s7")
        else:
            srd(a, 16, resp, "s6", "s7")
        if outoff:
            a("s_add_u32 s32, s6, %s" % hex(outoff)); srd(a, 20, outp, "s32", "s7")
        else:
            srd(a, 20, outp, "s6", "s7")
        if stats:
            s_lmap(a, 32, 5, 6, False)
            a("s_lshl_b32 s6, s4, 19"); a("s_add_u32 s32, s32, s6")
            a("s_add_u32 s32, s32, %s" % hex(WS_Y)); srd(a, 72, P_WS, "s32", 128 * LP)
            a("s_lshl_b32 s6, s4, 9"); a("s_add_u32 s6, s6, %s" % hex(WS_SUM2))
            srd(a, 28, P_WS, "s6", 8192 + 512)
        a("s_lshl_b32 s6, s5, 8"); a("s_add_u32 s6, s6, %d" % (WS_MODR + (gate_idx - 2) * 4096))
        srd(a, 24, P_WS, "s6", 8192 + 256)
        a("s_movk_i32 s96, 0x4000")
        a("s_mov_b32 s97, 0x8000")
        a("s_movk_i32 s98, 0x2000")
    g.pf = None
    def rm_loads(a):
        rm_addr(a, VO4, VLD, 10)
        a("v_and_b32 v11, 7, v1")
        a("v_lshlrev_b32 v12, 5, v11"); a("v_lshlrev_b32 v11, 4, v11")
        a("v_lshl_add_u32 v%d, v%d, 11, v11" % (VO2, VO4))
        a("v_lshl_add_u32 v%d, v%d, 12, v11" % (VO4, VO4))
        a("buffer_load_dwordx4 %s, v%d, s[16:19], 0 offen sc1" % (vr(RX, 4), VO2))
        a("buffer_load_dwordx4 %s, v%d, s[16:19], s96 offen sc1" % (vr(RX + 4, 4), VO2))
        a("v_add_u32 v%d, %d, v12" % (VGT, g.LDS_MAIN))
        if stats:
            a("v_and_b32 v11, 7, v1"); a("v_lshlrev_b32 v11, 5, v11"); a("v_lshl_add_u32 v%d, v10, 2, v11" % VPM)
            a("v_and_b32 v11, 15, v1"); a("v_bfe_u32 v10, v1, 4, 1")
            a("s_lshl_b32 s32, s3, 6")
            a("v_lshl_add_u32 v11, v11, 2, s32"); a("v_lshl_add_u32 v%d, v10, 13, v11" % VAT)
    def cpro(a):
        stage32_addr(a, g, SA, 10)
    def cpost0(a):
        rm_loads(a)
        if stats and CFG["W2"] == 2:
            a("s_mul_i32 s32, s2, 28672"); srd(a, 68, P_WIN, "s32", 28672)
            a("v_lshlrev_b32 v10, 7, v0"); a("buffer_load_dword v250, v10, s[68:71], 0 offen")
    g.cpost0 = cpost0
    def lpro(a):
        ctouch(a, g, "k3" if stats else "k6", "k5" if stats else "end")
        if stats: all_prep(a, True)
    if stats:
        line_poll(g, 0, 16, 0); flag_rc(g, 1, 4, 5); g.pw = CFG["PW3"]; g.dyn = CFG["DY"] & 1; g.R = CFG["R3"]
    else:
        line_poll(g, 3, 14, 1); g.pw = CFG["PW6"]; g.dyn = CFG["DY"] & 8; g.R = CFG["R6"]
    g.npre = min(g.npre, CFG["NPRE"])
    UVW = 98304 + 1024; TB = UVW + 32768
    def uv_map(a):
        a("s_lshr_b32 s6, s2, 3")
        a("s_cmp_ge_u32 s6, 14"); a("s_cselect_b32 s7, 14, 0"); a("s_cselect_b32 s32, 1, 0")
        a("s_sub_u32 s7, s6, s7")
        a("s_and_b32 s33, s2, 1"); a("s_lshl_b32 s33, s33, 1"); a("s_add_u32 s32, s32, s33")
        a("s_cmp_ge_u32 s7, 7"); a("s_cselect_b32 s33, 21, 0"); a("s_add_u32 s33, s33, s7")
        a("s_bfe_u32 s6, s2, 0x20001"); a("s_mul_i32 s6, s6, 7"); a("s_add_u32 s33, s33, s6")
        a("s_cmp_lt_u32 s7, 14"); a("s_cselect_b32 s99, -1, 0")
        a("s_lshl_b32 s32, s32, 2"); a("s_add_u32 s32, s32, s3"); a("s_sub_u32 s32, s32, 4"); a("s_lshl_b32 s32, s32, 6")
    def uv_issue(a):
        uv_map(a)
        a("s_lshl_b32 s6, s32, 2"); a("s_add_u32 s6, s6, %d" % (WS_MODR + 4096))
        srd(a, 68, P_WS, "s6", 4096 + 256)
        a("s_mul_i32 s6, s32, 7168"); a("s_lshl_b32 s7, s33, 7"); a("s_add_u32 s6, s6, s7")
        a("s_and_b32 s7, s99, %d" % (64 * 7168))
        srd(a, 8, P_WIN, "s6", "s7")
        a("v_lshrrev_b32 v2, 3, v1"); a("v_and_b32 v3, 7, v1")
        a("v_bfe_u32 v4, v1, 4, 1"); a("v_lshlrev_b32 v4, 2, v4"); a("v_xor_b32 v3, v3, v4")
        a("v_mul_u32_u24 v2, 7168, v2"); a("v_lshl_add_u32 v2, v3, 4, v2")
        a("s_lshl_b32 s7, s3, 13"); a("s_add_u32 s7, s7, %d" % (UVW - 4 * 8192))
        a("s_mov_b32 s6, 0")
        for i in range(8):
            a("s_add_u32 m0, s7, %d" % (i * 1024))
            if i: a("s_add_u32 s6, s6, %d" % (8 * 7168))
            else: a("s_nop 0")
            a("buffer_load_dwordx4 v2, s[8:11], s6 offen lds")
        a("v_lshlrev_b32 v2, 2, v1")
        a("s_movk_i32 s6, 0x1000")
        a("buffer_load_dword v%d, v2, s[68:71], s6 offen sc1" % UM)
        a("buffer_load_dword v%d, v2, s[68:71], 0 offen sc1" % (UM + 1))
    def ptouch(a):
        a("v_mul_u32_u24 v60, 7168, v1")
        a("s_xor_b32 s6, s32, 512"); a("s_mul_i32 s6, s6, 7168"); a("s_lshl_b32 s7, s33, 7"); a("s_add_u32 s6, s6, s7")
        a("s_and_b32 s7, s99, %d" % (64 * 7168))
        srd(a, 68, P_WIN, "s6", "s7")
        a("buffer_load_dword v72, v60, s[68:71], 0 offen")
    def post_free(a, younger):
        sk = a.newlabel("k2_pf")
        a("s_cmp_lt_u32 s3, 4"); a("s_cbranch_scc1 %s" % sk)
        m = len(a.lines)
        uv_map(a)
        if CFG["PT"] == 2: ptouch(a)
        uv_compute(a, younger)
        if CFG["PT"] == 3: ptouch(a)
        if CFG["UL"]:
            import re
            for k in range(m, len(a.lines)):
                for o, n in (("s99", "s67"), ("s33", "s97"), ("s7", "s96")):
                    a.lines[k] = re.sub(r"\b%s\b" % o, n, a.lines[k])
        a.label(sk)
    if stats: g.post_free = post_free; g.post_late = bool(CFG["UL"])
    UM = 200
    def uv_compute(a, younger):
        AD = 76; AF = 88; BF = 120; D = 152; nt = (CFG["PT"] == 2) + younger
        a("s_lshl_b32 s6, s3, 9"); a("s_add_u32 s6, s6, %d" % (TB - 2048))
        a("v_lshl_add_u32 v2, v1, 1, s6")
        a("v_mov_b32 v3, 0")
        a("ds_write_b16 v2, v3 offset:256")
        a("v_and_b32 v4, 31, v1"); a("v_lshrrev_b32 v5, 5, v1"); a("v_lshl_add_u32 v6, v5, 4, s6")
        a("v_min_u32 v7, 2, v4"); a("v_lshl_add_u32 v%d, v7, 7, v6" % AD)
        a("v_subrev_u32 v7, 4, v4"); a("v_min_u32 v7, 2, v7"); a("v_lshl_add_u32 v%d, v7, 7, v6" % (AD + 1))
        a("v_bfe_u32 v10, v1, 2, 2"); a("v_lshl_add_u32 v10, v5, 3, v10")
        a("v_bfe_u32 v11, v1, 4, 1"); a("v_lshlrev_b32 v11, 5, v11")
        a("v_and_b32 v13, 1, v1"); a("v_lshl_add_u32 v11, v13, 4, v11")
        a("v_bfe_u32 v13, v1, 1, 1"); a("v_lshl_add_u32 v11, v13, 3, v11")
        a("v_bfe_u32 v13, v1, 3, 1"); a("v_lshl_add_u32 v11, v13, 6, v11")
        a("s_lshl_b32 s7, s3, 13"); a("s_add_u32 s7, s7, %d" % (UVW - 4 * 8192))
        a("v_lshl_add_u32 v11, v10, 7, v11"); a("v_add_u32 v%d, s7, v11" % (AD + 2))
        a("v_xor_b32 v%d, 64, v%d" % (AD + 3, AD + 2))
        a("v_and_b32 v10, 0x33, v1")
        a("v_bfe_u32 v11, v1, 2, 1"); a("v_lshl_add_u32 v10, v11, 3, v10")
        a("v_bfe_u32 v11, v1, 3, 1"); a("v_lshl_add_u32 v10, v11, 2, v10")
        a("v_lshlrev_b32 v10, 2, v10")
        a("s_lshl_b32 s6, s33, 8"); a("s_add_u32 s6, s6, %s" % hex(WS_UV))
        a("s_and_b32 s7, s99, %d" % (16384 + 256))
        srd(a, 68, P_WS, "s6", "s7")
        a("s_movk_i32 s6, 0x4000")
        a("s_waitcnt vmcnt(%d)" % nt)
        for s_ in range(2):
            for h in range(2):
                for q in range(2):
                    a("ds_read_b64_tr_b16 %s, v%d offset:%d" % (vr(BF + 8 * s_ + 4 * h + 2 * q, 2), AD + 2 + h, (16 * s_ + 4 * q) * 128))
        for w in range(2):
            b = UM + w
            if w == 0:
                bf16_round(a, b, b)
                a("v_add_f32 v%d, 1.0, v%d" % (b, b))
            a("v_cvt_pk_bf16_f32 v%d, v%d, v%d" % (b, b, b))
            a("ds_write_b16 v2, v%d offset:%d" % (b, 128 * w))
        a("s_waitcnt lgkmcnt(2)")
        for s_ in range(4):
            for h in range(2): a("ds_read_b128 %s, v%d offset:%d" % (vr(AF + 8 * s_ + 4 * h, 4), AD + h, 32 * s_))
        a("s_waitcnt lgkmcnt(6)")
        for s_ in range(2, 4):
            for h in range(2):
                for q in range(2):
                    a("ds_read_b64_tr_b16 %s, v%d offset:%d" % (vr(BF + 8 * s_ + 4 * h + 2 * q, 2), AD + 2 + h, (16 * s_ + 4 * q) * 128))
        for k in range(8):
            a("s_waitcnt lgkmcnt(%d)" % (8 if k < 4 else 14 - 2 * k))
            a("v_mfma_f32_32x32x16_bf16 %s, %s, %s, %s" % (vr(D, 16), vr(AF + 4 * k, 4), vr(BF + 4 * k, 4), "0" if k == 0 else vr(D, 16)))
        a("s_nop 10"); a("s_nop 6")
        a("buffer_atomic_add_f32 v%d, v10, s[68:71], 0 offen" % D)
        a("buffer_atomic_add_f32 v%d, v10, s[68:71], s6 offen" % (D + 1))
        g.stamp(a, 5)
    if stats: g.ltouch = [(CFG["S3"] - 1, lambda a: all_issue(a, 0))]
    def etile(a):
        if stats: all_check(a, 0)
        a("v_lshlrev_b32 v9, 2, v1")
        a("buffer_load_dword v40, v9, s[24:27], 0 offen sc1")
        if stats: a("buffer_load_dword v41, v9, s[24:27], s98 offen sc1")
        rm_loads(a)
    g.etile = etile; g.etile_n = 4 if stats else 3; g.etile_wait = False
    def lepi(a):
        a("v_add_u32 v9, %d, v9" % g.LDS_MAIN)
        if stats: uv_issue(a)
        a("s_waitcnt vmcnt(%d)" % (12 if stats else 2))
        bf16_round(a, 40, 40)
        a("ds_write_b32 v9, v40")
        if stats:
            bf16_round(a, 41, 41); a("v_add_f32 v41, 1.0, v41"); bf16_round(a, 41, 41)
            a("ds_write_b32 v9, v41 offset:256")
        a("s_waitcnt vmcnt(%d)" % (10 if stats else 0))
        if not stats:
            a("s_load_dword s6, %s, %s" % (sr(ptr(P_WS), 2), hex(WS_EP)))
            srd(a, 68, P_WS, WS_EP, 4)
            a("s_lshl_b32 s7, s2, 3"); a("s_add_u32 s7, s7, s3"); a("v_mov_b32 v41, 0")
            a("s_waitcnt lgkmcnt(0)")
            a("s_add_u32 s6, s6, 1"); a("v_mov_b32 v40, s6")
            a("s_cmp_eq_u32 s7, 4"); a("s_cselect_b64 exec, 1, 0")
            a("buffer_store_dword v40, v41, s[68:71], 0 offen sc1")
            a("s_mov_b64 exec, -1")
    def epi(a):
        stage32(a, SA, [(g.acc(0, 0), 0), (g.acc(1, 0), 128)])
        if CFG["EP"]: a("s_setprio 0")
        a("s_waitcnt vmcnt(0)")
    def common(a):
        a("s_waitcnt lgkmcnt(0)")
        g.stamp(a, 3)
        a("s_barrier")
        g.stamp(a, 4)
        for h in range(2): a("ds_read_b128 %s, v%d offset:%d" % (vr(GA + 4 * h, 4), VGT, 16 * h))
        for i in range(2):
            for h in range(2): a("ds_read_b128 %s, v%d offset:%d" % (vr(F + 8 * i + 4 * h, 4), VLD + h, 2048 * i))
        if stats:
            for h in range(2): a("ds_read_b128 %s, v%d offset:%d" % (vr(CB + 4 * h, 4), VGT, 256 + 16 * h))
        for e in range(8): unpack2(a, T + 2 * e, RX + e)
        for i in range(2):
            a("s_waitcnt lgkmcnt(%d)" % (2 - 2 * i + (2 if stats else 0)))
            for e in range(4):
                x = vr(F + 8 * i + 2 * e, 2)
                a("v_pk_fma_f32 %s, %s, %s, %s" % (x, x, vr(GA + 2 * e, 2), vr(T + 8 * i + 2 * e, 2)))
            for e in range(4):
                a("v_cvt_pk_bf16_f32 v%d, v%d, v%d" % (RX + 4 * i + e, F + 8 * i + 2 * e, F + 8 * i + 2 * e + 1))
            a("buffer_store_dwordx4 %s, v%d, s[20:23], %s offen%s" % (vr(RX + 4 * i, 4), VO2, "s96" if i else "0", " sc1" if stats else (" nt" if CFG["NT"] & 16 else "")))
        if stats:
            for e in range(8): unpack2(a, F + 2 * e, RX + e)
            a("s_waitcnt lgkmcnt(0)")
            for i in range(2):
                for e in range(4):
                    a("v_pk_mul_f32 %s, %s, %s" % (vr(T + 8 * i + 2 * e, 2), vr(F + 8 * i + 2 * e, 2), vr(CB + 2 * e, 2)))
            for i in range(2):
                for e in range(4):
                    a("v_cvt_pk_bf16_f32 v%d, v%d, v%d" % (GA + 4 * i + e, T + 8 * i + 2 * e, T + 8 * i + 2 * e + 1))
                a("buffer_store_dwordx4 %s, v%d, s[72:75], %s offen sc1" % (vr(GA + 4 * i, 4), VO4, "s97" if i else "0"))
            for i in range(2):
                s_, q_ = vr(T + 4 * i, 2), vr(T + 4 * i + 2, 2)
                x = lambda e: vr(F + 8 * i + 2 * e, 2)
                a("v_pk_add_f32 %s, %s, %s" % (s_, x(0), x(1)))
                a("v_pk_mul_f32 %s, %s, %s" % (q_, x(0), x(0)))
                a("v_pk_fma_f32 %s, %s, %s, %s" % (q_, x(1), x(1), q_))
                for e in (2, 3):
                    a("v_pk_add_f32 %s, %s, %s" % (s_, s_, x(e)))
                    a("v_pk_fma_f32 %s, %s, %s, %s" % (q_, x(e), x(e), q_))
            for k in range(4): a("v_add_f32 v%d, v%d, v%d" % (T + 2 * k, T + 2 * k, T + 2 * k + 1))
            red8(a, [T, T + 2, T + 4, T + 6])
            compact8(a, T + 8, [T, T + 4, T + 2, T + 6], VPM, 66)
            a("s_mov_b32 exec_hi, 0")
            a("s_waitcnt lgkmcnt(0)")
            a("buffer_atomic_add_f32 v%d, v%d, s[28:31], 0 offen" % (T + 8, VAT))
    kn = g.emit(a, tilemap_16x16_r4c8, setup, cpro, lpro, epi, lepi, common, **ch)
    return g, lds

def k4(a, **ch):
    Z2 = 3584
    ZO = WS_Z2 - WS_Z1
    g = Gemm2("k4", 128, 1024, 16, 2, 2, LP, 7168, 256, CFG["S4"],
              [(8, [(0, "s72")]), (8, [(0, "s73")]), (8, [(0, "s74")]), (4, [(0, "s75")])])
    g.xskip = True
    UVT = g.LDS_MAIN
    RST = UVT + 2048
    lds = RST + 1024
    SA = g.CFREE
    def nib(v): return sum(x << (4 * i) for i, x in enumerate(v))
    def setup(a):
        xw_srds2(a, g, P_WS, WS_Y, P_WIN, 0, 1024 * 7168, 0)
        srd(a, 16, P_WS, WS_UV, 32768)
        srd(a, 20, P_WS, WS_SUM2, 16384)
        a("s_lshl_b32 s6, s4, 19")
        a("s_add_u32 s6, s6, %s" % hex(WS_Z1))
        srd(a, 24, P_WS, "s6", ZO + 128 * LP)
        a("s_lshl_b32 s6, s4, 14"); a("s_add_u32 s6, s6, %s" % hex(WS_XCH))
        srd(a, 28, P_WS, "s6", 16384)
        a("s_and_b32 s6, s5, 3"); a("s_lshl_b32 s7, s6, 2")
        a("s_lshr_b32 s32, s5, 2"); a("s_mul_i32 s32, s32, 896")
        for r, tab in ((72, [0, 4, 8, 10]), (73, [2, 0, 10, 12]), (74, [4, 2, 12, 8]), (75, [6, 6, 7, 7])):
            a("s_lshr_b32 s%d, %s, s7" % (r, hex(nib(tab))))
            a("s_and_b32 s%d, s%d, 15" % (r, r))
            a("s_lshl_b32 s%d, s%d, 6" % (r, r))
            a("s_add_u32 s%d, s%d, s32" % (r, r))
        a("s_add_u32 s72, s72, %d" % Z2)
        a("s_add_u32 s6, s6, 1"); a("s_and_b32 s33, s6, 2")
        a("s_cmp_eq_u32 s33, 0")
        a("s_cselect_b32 s6, %d, 0" % Z2); a("s_add_u32 s73, s73, s6")
        a("s_sub_u32 s6, %d, s6" % Z2); a("s_add_u32 s75, s75, s6")
        a("s_mov_b32 s98, s33")
    g.pf = None
    if CFG["SP"]:
        g.pf = {"D": 1}
        g.cpost0 = lambda a: paced(a, P_WSP, 32768, CFG["SP"])
    def cpro(a):
        a("v_and_b32 v10, 15, v1"); a("v_add_u32 v10, s34, v10")
        a("v_lshrrev_b32 v13, 4, v1"); a("v_and_b32 v14, 7, v1"); a("v_xor_b32 v13, v13, v14")
        a("s_lshl_b32 s6, s35, 2")
        a("v_xor_b32 v14, s6, v13"); a("v_bfe_u32 v15, v1, 3, 1"); a("v_xor_b32 v14, v14, v15")
        a("v_lshlrev_b32 v14, 4, v14"); a("v_lshl_add_u32 v%d, v10, 7, v14" % (SA + 2))
        a("v_add_u32 v%d, %d, v%d" % (SA + 2, 98304, SA + 2))
        a("s_lshl_b32 s6, s35, 7")
        a("v_lshl_add_u32 v13, v13, 4, s6"); a("v_lshl_add_u32 v%d, v10, 8, v13" % SA)
        a("v_xor_b32 v%d, 64, v%d" % (SA + 1, SA))
        a("v_add_u32 v%d, 0x10000, v%d" % (SA + 3, SA)); a("v_add_u32 v%d, 0x10000, v%d" % (SA + 4, SA + 1))
    def lpro(a):
        ctouch(a, g, "k4", "k6")
        all_prep(a, False)
        a("v_and_b32 v9, 255, v0")
        a("s_cmp_eq_u32 s34, 0")
        a("s_cselect_b32 s6, s72, s74"); a("s_cselect_b32 s32, s73, s75")
        a("v_mov_b32 v10, s6"); a("v_mov_b32 v11, s32")
        a("v_cmp_gt_u32 vcc, 32, v1")
        a("v_bfe_u32 v12, v9, 1, 4"); a("v_and_b32 v13, 1, v9")
        a("v_cndmask_b32 v10, v11, v10, vcc")
        a("v_lshlrev_b32 v10, 1, v10")
        a("v_lshl_add_u32 v10, v12, 4, v10")
        a("v_lshl_add_u32 v41, v13, 14, v10")
        a("v_and_b32 v42, 127, v9"); a("v_lshlrev_b32 v42, 2, v42")
        a("v_lshrrev_b32 v12, 5, v9"); a("v_lshlrev_b32 v12, 9, v12")
        a("v_and_b32 v11, 1, v9"); a("v_lshl_add_u32 v12, v11, 8, v12")
        a("v_bfe_u32 v11, v9, 1, 1"); a("v_lshl_add_u32 v12, v11, 7, v12")
        a("v_bfe_u32 v11, v9, 2, 3"); a("v_lshl_add_u32 v12, v11, 4, v12")
        a("v_add_u32 v43, %d, v12" % UVT)
        a("v_lshlrev_b32 v56, 1, v42"); a("v_add_u32 v56, %d, v56" % RST)
    def f3u(a):
        a("s_lshl_b32 s6, s2, 2"); a("s_add_u32 s6, s6, %d" % (2048 * 6))
        a("v_mov_b32 v40, 0")
        a("s_cmp_eq_u32 s3, 4"); a("s_cselect_b64 exec, 1, 0")
        a("buffer_store_dword v40, v40, s[68:71], s6 offen sc1")
        a("s_mov_b64 exec, -1")
    def hook_b(a):
        all_check(a, 0)
        a("s_lshl_b32 s6, s4, 9"); a("s_add_u32 s32, s6, 8192")
        a("buffer_load_dwordx4 v[48:51], v41, s[16:19], 0 offen sc1")
        a("buffer_load_dword v52, v42, s[20:23], s6 offen sc1")
        a("buffer_load_dword v53, v42, s[20:23], s32 offen sc1")
    g.ltouch = [(11, f3u), (CFG["HA"], lambda a: all_issue(a, 0)), (CFG["HA"] - 2, hook_b)]
    line_poll(g, 1, 16, 0); flag_rc(g, 2, 5, 4); g.pw = CFG["PW4"]; g.bst = bool(CFG['B4']); g.dyn = CFG["DY"] & 2; g.R = CFG["R4"]
    g.npre = min(g.npre, CFG["NPRE"])
    def epi(a):
        a("s_nop 6")
        for i in range(7):
            for j in range(4):
                if i < 4: a("ds_write_b128 v%d, %s offset:%d" % (SA + (i & 1), vr(g.acc(i, j), 4), (i >> 1) * 32768 + j * 4096))
                elif i < 6: a("ds_write_b128 v%d, %s offset:%d" % (SA + 3 + (i & 1), vr(g.acc(i, j), 4), j * 4096))
                else: a("ds_write_b128 v%d, %s offset:%d" % (SA + 2, vr(g.acc(i, j), 4), j * 2048))
    def etile(a):
        a("v_and_b32 v2, 255, v0"); a("v_lshlrev_b32 v2, 7, v2")
        if not CFG["SP"]: touch(a, P_WSP, 32768, "s2", 2, 8, 255)
        a("v_cmp_gt_u32 vcc, 112, v9")
        stats_from_sums(a, 52, 53, 54, 1024, 57)
        a("ds_write_b64 v56, v[54:55]")
        a("s_and_saveexec_b64 s[66:67], vcc")
        a("ds_write_b128 v43, v[48:51]")
        a("s_mov_b64 exec, s[66:67]")
        a("s_waitcnt lgkmcnt(0)")
    g.etile = etile; g.etile_n = 0 if CFG["SP"] else 1; g.etile_wait = False
    lepi = None
    VLD = 2; VLH = 4; VUV = 6; VO = 7; VOH = 8; VXP = 9; VPM = 14; VXS = 15
    ST = 16; STH = 20; MK = 22; SM = 24; PL = 32; T = 48; UV = 64; ZK = 80; F = 112; PK = 176; VL2 = 222; VUH = 224
    def gelu(a, items, U):
        n = len(items)
        for k, (A, st) in enumerate(items):
            for e in range(4):
                a("v_pk_fma_f32 %s, %s, %s, %s op_sel:[0,1,0] op_sel_hi:[1,1,1]" % (vr(T + 8 * k + 2 * e, 2), vr(U + 2 * e, 2), vr(st, 2), vr(U + 8 + 2 * e, 2)))
        for k, (A, st) in enumerate(items):
            for e in range(4):
                x = vr(A + 2 * e, 2)
                a("v_pk_fma_f32 %s, %s, %s, %s op_sel_hi:[1,0,1]" % (x, x, vr(st, 2), vr(T + 8 * k + 2 * e, 2)))
        for k, (A, st) in enumerate(items):
            for e in range(4): a("v_pk_mul_f32 %s, %s, %s" % (vr(T + 8 * k + 2 * e, 2), vr(A + 2 * e, 2), vr(A + 2 * e, 2)))
        for e in range(4 * n):
            t = vr(T + 2 * e, 2); a("v_pk_fma_f32 %s, %s, s[70:71], v[10:11]" % (t, t))
        for k, (A, st) in enumerate(items):
            for e in range(4):
                t = vr(T + 8 * k + 2 * e, 2); a("v_pk_mul_f32 %s, %s, %s" % (t, t, vr(A + 2 * e, 2)))
        for e in range(8 * n): a("v_exp_f32 v%d, v%d" % (T + e, T + e))
        for e in range(4 * n): a("v_pk_add_f32 %s, %s, v[12:13]" % (vr(T + 2 * e, 2), vr(T + 2 * e, 2)))
        for e in range(8 * n): a("v_rcp_f32 v%d, v%d" % (T + e, T + e))
        for k, (A, st) in enumerate(items):
            for e in range(4):
                t = vr(T + 8 * k + 2 * e, 2); a("v_pk_mul_f32 %s, %s, %s" % (t, t, vr(A + 2 * e, 2)))
    def freg(gi): return F + 16 * gi
    def rd_group(a, gi):
        if gi < 3:
            for i in range(2):
                for h in range(2):
                    off = gi * 32768 + i * 2048
                    if gi < 2: a("ds_read_b128 %s, v%d offset:%d" % (vr(freg(gi) + 8 * i + 4 * h, 4), VLD + h, off))
                    else: a("ds_read_b128 %s, v%d offset:%d" % (vr(freg(gi) + 8 * i + 4 * h, 4), VL2 + h, off - 65536))
            return 4
        for h in range(2): a("ds_read_b128 %s, v%d" % (vr(freg(3) + 4 * h, 4), VLH + h))
        return 2
    def rd_uv(a, gi):
        for q in range(4): a("ds_read_b128 %s, v%d offset:%d" % (vr(UV + 4 * q, 4), VUV if gi < 3 else VUH, gi * 512 + q * 128))
    def items(gi): return [(freg(gi), ST), (freg(gi) + 8, ST + 2)] if gi < 3 else [(freg(3), STH)]
    def store(a, gi, src):
        if gi < 3:
            a("s_add_u32 s6, s%d, 0x8000" % (72 + gi))
            a("buffer_store_dwordx4 %s, v%d, s[24:27], s%d offen sc1" % (vr(src, 4), VO, 72 + gi))
            a("buffer_store_dwordx4 %s, v%d, s[24:27], s6 offen sc1" % (vr(src + 4, 4), VO))
        else:
            a("buffer_store_dwordx4 %s, v%d, s[24:27], s75 offen sc1" % (vr(src, 4), VOH))
    def poll(a):
        for k in range(4):
            a("buffer_load_dwordx2 %s, v%d, s[28:31], 0 offen offset:%d sc1" % (vr(PL + 2 * k, 2), VXP, (k & 1) * 1024 + (k >> 1) * 64))
    def variant(a, G2, G1):
        if CFG["EP"]: a("s_setprio 2")
        rd_uv(a, G2[0])
        rd_group(a, G2[0])
        n1 = rd_group(a, G2[1])
        a("s_waitcnt lgkmcnt(%d)" % n1)
        for x, gi in enumerate(G2):
            gelu(a, items(gi), UV)
            rd_uv(a, G2[1] if x == 0 else G1[0])
            if x == 1:
                for gj in G1: rd_group(a, gj)
            n = len(items(gi))
            for e in range(4 * n): a("v_cvt_pk_bf16_f32 v%d, v%d, v%d" % (PK + e, T + 2 * e, T + 2 * e + 1))
            Z = ZK + 16 * x
            for e in range(4 * n): unpack2(a, Z + 2 * e, PK + e)
            for k in range(n):
                if gi < 3: s_, q_ = vr(SM + 4 * k, 2), vr(SM + 4 * k + 2, 2)
                else: s_, q_ = vr(T, 2), vr(T + 2, 2)
                z = lambda e: vr(Z + 8 * k + 2 * e, 2)
                if x == 0 or gi == 3:
                    a("v_pk_add_f32 %s, %s, %s" % (s_, z(0), z(1)))
                    a("v_pk_mul_f32 %s, %s, %s" % (q_, z(0), z(0)))
                    a("v_pk_fma_f32 %s, %s, %s, %s" % (q_, z(1), z(1), q_))
                    r = (2, 3)
                else: r = range(4)
                for e in r:
                    a("v_pk_add_f32 %s, %s, %s" % (s_, s_, z(e)))
                    a("v_pk_fma_f32 %s, %s, %s, %s" % (q_, z(e), z(e), q_))
            if gi == 3:
                for k in range(2):
                    for c in range(2):
                        d = vr(SM + 4 * k + 2 * c, 2)
                        a("v_pk_fma_f32 %s, %s, %s, %s op_sel:[0,%d,0] op_sel_hi:[1,%d,1]" % (d, vr(T + 2 * c, 2), vr(MK, 2), d, k, k))
            if x == 0: a("s_waitcnt lgkmcnt(0)")
        for k in range(4): a("v_add_f32 v%d, v%d, v%d" % (SM + 2 * k, SM + 2 * k, SM + 2 * k + 1))
        red8(a, [SM, SM + 2, SM + 4, SM + 6])
        a("s_mov_b32 s66, 0x02020202"); a("s_mov_b32 s67, s66")
        a("v_cndmask_b32 v%d, v%d, v%d, s[66:67]" % (SM, SM, SM + 4))
        a("v_cndmask_b32 v%d, v%d, v%d, s[66:67]" % (SM + 1, SM + 2, SM + 6))
        a("ds_bpermute_b32 v%d, v%d, v%d" % (SM, VPM, SM))
        a("v_and_b32 v%d, -2, v%d" % (SM + 1, SM + 1))
        a("ds_bpermute_b32 v%d, v%d, v%d" % (SM + 1, VPM, SM + 1))
        a("s_mov_b64 exec, 0xffff")
        a("s_waitcnt lgkmcnt(0)")
        a("buffer_store_dwordx2 %s, v%d, s[28:31], s32 offen sc1" % (vr(SM, 2), VXS))
        a("s_mov_b64 exec, -1")
        if CFG["EP"]: a("s_setprio 0")
        if not CFG['B4']: g.stamp(a, 5)
        for x, gi in enumerate(G1):
            gelu(a, items(gi), UV)
            if x == 0: rd_uv(a, G1[1])
            n = len(items(gi))
            for e in range(4 * n): a("v_cvt_pk_bf16_f32 v%d, v%d, v%d" % (freg(gi) + e, T + 2 * e, T + 2 * e + 1))
            if x == 1: poll(a)
            store(a, gi, freg(gi))
            if x == 0: a("s_waitcnt lgkmcnt(0)")
        if not CFG['B4']: g.stamp(a, 6)
        L = a.newlabel("k4_poll"); D = a.newlabel("k4_pdone"); C = a.newlabel("k4_pchk")
        a("s_mov_b32 s66, 0x40000")
        a("s_waitcnt vmcnt(%d)" % len(items(G1[1])))
        a("s_branch %s" % C)
        a.label(L)
        poll(a)
        a("s_waitcnt vmcnt(0)")
        a.label(C)
        a("v_max_u32 v%d, v%d, v%d" % (T, PL + 1, PL + 3))
        a("v_max3_u32 v%d, v%d, v%d, v%d" % (T, T, PL + 5, PL + 7))
        a("v_cmp_eq_u32 vcc, -1, v%d" % T)
        a("s_sub_u32 s66, s66, 1")
        a("s_cbranch_scc1 %s" % D)
        a("s_cbranch_vccz %s" % D)
        a("s_sleep 1")
        a("s_branch %s" % L)
        a.label(D)
        for k in range(2): a("v_pk_add_f32 %s, %s, %s" % (vr(PL + 4 * k, 2), vr(PL + 4 * k, 2), vr(PL + 4 * k + 2, 2)))
        a("s_nop 0")
        red8(a, [PL, PL + 1, PL + 4, PL + 5])
        n_ = 1792
        for k in range(2): a("v_mul_f32 v%d, %s, v%d" % (PL + 4 * k, hex(f32bits(1.0 / n_)), PL + 4 * k))
        for k in range(2): a("v_mul_f32 v%d, %s, v%d" % (ST + 2 * k, hex(f32bits(1.0 / n_)), PL + 4 * k + 1))
        for k in range(2): a("v_fma_f32 v%d, -v%d, v%d, v%d" % (ST + 2 * k, PL + 4 * k, PL + 4 * k, ST + 2 * k))
        for k in range(2): a("v_max_f32 v%d, 0, v%d" % (ST + 2 * k, ST + 2 * k))
        for k in range(2): a("v_add_f32 v%d, %s, v%d" % (ST + 2 * k, hex(f32bits(1e-5)), ST + 2 * k))
        for k in range(2): a("v_rsq_f32 v%d, v%d" % (ST + 2 * k, ST + 2 * k))
        a("s_nop 0")
        for k in range(2): a("v_mul_f32 v%d, -v%d, v%d" % (ST + 2 * k + 1, PL + 4 * k, ST + 2 * k))
        if 3 in G2:
            for c in range(2): a("v_cndmask_b32 v%d, v%d, v%d, s[68:69]" % (STH + c, ST + c, ST + 2 + c))
        for x, gi in enumerate(G2):
            Z = ZK + 16 * x
            for k, (_, st) in enumerate(items(gi)):
                for e in range(4):
                    z = vr(Z + 8 * k + 2 * e, 2)
                    a("v_pk_fma_f32 %s, %s, %s, %s op_sel:[0,0,1] op_sel_hi:[1,0,1]" % (z, z, vr(st, 2), vr(st, 2)))
            for e in range(4 * len(items(gi))): a("v_cvt_pk_bf16_f32 v%d, v%d, v%d" % (T + 8 * x + e, Z + 2 * e, Z + 2 * e + 1))
            store(a, gi, T + 8 * x)
    def common(a):
        K1_ = 2.0 * math.sqrt(2.0 / math.pi) * LOG2E
        R = T
        rm_addr(a, R, VLD, R + 1)
        a("v_and_b32 v%d, 7, v1" % (R + 2)); a("v_bfe_u32 v%d, v1, 2, 1" % (R + 3)); a("v_and_b32 v%d, 3, v1" % (R + 4))
        a("v_add_u32 v%d, 0x10000, v%d" % (VL2, VLD)); a("v_add_u32 v%d, 0x10000, v%d" % (VL2 + 1, VLD + 1))
        a("v_lshlrev_b32 v%d, 4, v%d" % (VUV, R + 2))
        a("v_lshl_add_u32 v%d, v%d, 12, v%d" % (VO, R, VUV))
        a("v_add_u32 v%d, %d, v%d" % (VUV, UVT, VUV))
        a("v_lshl_add_u32 v%d, v%d, 3, v%d" % (R + 5, R + 3, R))
        a("v_lshlrev_b32 v%d, 4, v%d" % (VOH, R + 4))
        a("v_add_u32 v%d, %d, v%d" % (VUH, UVT, VOH))
        a("v_lshl_add_u32 v%d, v%d, 12, v%d" % (VOH, R + 5, VOH))
        a("v_lshlrev_b32 v%d, 1, v%d" % (VLH, R + 4)); a("v_xor_b32 v%d, v%d, v%d" % (VLH, VLH, R + 1)); a("v_xor_b32 v%d, v%d, v%d" % (VLH, VLH, R + 3))
        a("v_lshlrev_b32 v%d, 4, v%d" % (VLH, VLH)); a("v_lshl_add_u32 v%d, v%d, 7, v%d" % (VLH, R + 5, VLH))
        a("v_add_u32 v%d, %d, v%d" % (VLH, 98304, VLH)); a("v_xor_b32 v%d, 16, v%d" % (VLH + 1, VLH))
        a("v_lshlrev_b32 v%d, 3, v%d" % (R + 6, R))
        a("v_lshl_add_u32 v%d, v%d, 11, v%d" % (VXP, R + 2, R + 6))
        a("v_add_u32 v%d, %d, v%d" % (R + 6, RST, R + 6))
        a("ds_read_b64 %s, v%d" % (vr(ST, 2), R + 6)); a("ds_read_b64 %s, v%d offset:64" % (vr(ST + 2, 2), R + 6))
        a("v_lshlrev_b32 v%d, 5, v%d" % (VPM, R + 2)); a("v_lshl_add_u32 v%d, v%d, 2, v%d" % (VPM, R + 1, VPM))
        a("v_lshlrev_b32 v%d, 3, v1" % VXS)
        a("v_cvt_f32_u32 v%d, v%d" % (MK + 1, R + 3)); a("v_sub_f32 v%d, 1.0, v%d" % (MK, MK + 1))
        a("s_lshl_b32 s32, s5, 10"); a("s_lshl_b32 s6, s3, 7"); a("s_add_u32 s32, s32, s6")
        a("s_mov_b32 s68, 0xf0f0f0f0"); a("s_mov_b32 s69, s68")
        a("s_mov_b32 s70, %s" % hex(f32bits(-K1_ * 0.044715))); a("s_mov_b32 s71, s70")
        a("v_mov_b32 v10, %s" % hex(f32bits(-K1_))); a("v_mov_b32 v11, v10")
        a("v_mov_b32 v12, 1.0"); a("v_mov_b32 v13, 1.0")
        for r in range(72, 76):
            a("s_cmp_ge_u32 s%d, %d" % (r, Z2))
            a("s_cselect_b32 s7, %d, 0" % Z2); a("s_cselect_b32 s33, %d, 0" % ZO)
            a("s_sub_u32 s%d, s%d, s7" % (r, r))
            s_lmap(a, r, r, 6)
            a("s_add_u32 s%d, s%d, s33" % (r, r))
        a("s_waitcnt lgkmcnt(0)")
        for c in range(2): a("v_cndmask_b32 v%d, v%d, v%d, s[68:69]" % (STH + c, ST + c, ST + 2 + c))
        g.stamp(a, 3)
        a("s_barrier")
        g.stamp(a, 4)
        LB = a.newlabel("k4_tb"); LE = a.newlabel("k4_te")
        a("s_cmp_lg_u32 s98, 0")
        a("s_cbranch_scc1 %s" % LB)
        variant(a, [0, 1], [2, 3])
        a("s_branch %s" % LE)
        a.label(LB)
        variant(a, [0, 3], [1, 2])
        a.label(LE)
    kn = g.emit(a, tilemap_16x16_r8c4, setup, cpro, lpro, epi, lepi, common, **ch)
    return g, lds

def k5(a, **ch):
    g = Gemm2("k5", 128, 2048, 32, 2, 2, 4096, LP, 224, CFG["S5"], [(8, [(0, "s72")]), (8, [(0, "s73")])])
    Z1 = g.CFREE; BS = Z1 + 16; VO = BS + 4; VLD = VO + 2; SA = VLD + 2; F = SA + 4; T = F + 32
    def setup(a):
        xw_srds2(a, g, P_WSP, 0, P_WS, WS_Z2, 2048 * LP, 0)
        a("s_lshl_b32 s6, s4, 19")
        a("s_add_u32 s32, s6, %s" % hex(WS_Z1)); srd(a, 20, P_WS, "s32", 128 * LP)
        a("s_add_u32 s32, s6, %s" % hex(WS_U)); srd(a, 24, P_WS, "s32", 128 * LP)
        a("s_lshl_b32 s6, s4, 8")
        srd(a, 28, P_BSP, "s6", 256)
        a("s_lshl_b32 s7, s5, 1")
        s_lmap(a, 72, 7, 6, False)
        a("s_add_u32 s7, s7, 1")
        s_lmap(a, 73, 7, 6, False)
        a("s_add_u32 s74, s72, 0x8000"); a("s_add_u32 s75, s73, 0x8000")
    def rm_loads(a):
        rm_addr(a, VO, VLD, 10)
        a("v_lshlrev_b32 v12, 1, v%d" % VO)
        a("v_and_b32 v11, 7, v1"); a("v_lshlrev_b32 v11, 4, v11")
        a("v_lshl_add_u32 v%d, v%d, 12, v11" % (VO, VO))
        for i in range(2): a("buffer_load_ushort v%d, v12, s[28:31], 0 offen offset:%d" % (BS + 2 * i, 16 * i))
        for k in range(4): a("buffer_load_dwordx4 %s, v%d, s[20:23], s%d offen sc1" % (vr(Z1 + 4 * k, 4), VO, 72 + k))
    def cpro(a):
        stage32_addr(a, g, SA, 10)
    g.cpost0 = rm_loads
    g.pf = None
    def lpro(a):
        ctouch(a, g, "k5", "end")
    g.dep = 12
    def pprep(a, r):
        a("v_lshrrev_b32 v%d, 5, v1" % r); a("v_lshlrev_b32 v%d, 7, v%d" % (r, r)); a("v_bfe_u32 v%d, v1, 1, 4" % (r + 1))
        a("v_lshl_add_u32 v%d, v%d, 2, v%d" % (r, r + 1, r))
        a("s_mul_i32 s6, s5, 74"); a("s_add_u32 s6, s6, 37"); a("s_lshr_b32 s6, s6, 8"); a("s_lshl_b32 s6, s6, 9"); a("s_add_u32 s6, s6, 4096")
        a("v_add_u32 v%d, s6, v%d" % (r + 1, r))
        a("s_mul_i32 s6, s5, 74"); a("s_lshr_b32 s6, s6, 8"); a("s_lshl_b32 s6, s6, 9"); a("s_add_u32 s6, s6, 4096")
        a("v_add_u32 v%d, s6, v%d" % (r, r))
    def pissue(a, r):
        for k in range(4): a("buffer_load_dword v%d, v%d, s[68:71], 0 offen offset:%d sc1" % (r + 2 + k, r + (k >> 1), 256 * (k & 1)))
    def pmask(a, r, d):
        a("v_max3_u32 v%d, v%d, v%d, v%d" % (r + 2, r + 2, r + 3, r + 4)); a("v_max_u32 v%d, v%d, v%d" % (r + 2, r + 2, r + 5))
        a("v_cmp_ne_u32 vcc, -1, v%d" % (r + 2))
        a("s_and_b32 s%d, vcc_lo, vcc_hi" % d)
    def pmust(a):
        a("s_lshl_b32 s65, s4, 1"); a("s_bitcmp1_b32 s67, s65"); a("s_cselect_b32 s6, s6, 0")
    g.fl = dict(prep=pprep, issue=pissue, mask=pmask, full=0xffffffff, must=pmust); g.psl = CFG["PS"]; g.pw = CFG["PW5"]
    g.dyn = CFG["DY"] & 4; g.R = CFG["R5"]
    flag_rc(g, 3, 4, 5)
    g.npre = min(g.npre, CFG["NPRE"])
    g.etile = rm_loads; g.etile_n = 6; g.etile_wait = False
    def epi(a):
        stage32(a, SA, [(g.acc(i, j), i * 32768 + j * 8192) for i in range(2) for j in range(2)])
        if CFG["EP"]: a("s_setprio 0")
    def common(a):
        a("s_waitcnt vmcnt(0)")
        for i in range(2): a("v_lshlrev_b32 v%d, 16, v%d" % (BS + 2 * i, BS + 2 * i))
        a("s_waitcnt lgkmcnt(0)")
        g.stamp(a, 3)
        a("s_barrier")
        g.stamp(a, 4)
        for k in range(4):
            for h in range(2): a("ds_read_b128 %s, v%d offset:%d" % (vr(F + 8 * k + 4 * h, 4), VLD + h, (k & 1) * 32768 + (k >> 1) * 2048))
        for k in range(4):
            t = T + 8 * (k & 1)
            for e in range(4): unpack2(a, t + 2 * e, Z1 + 4 * k + e)
            a("s_waitcnt lgkmcnt(%d)" % (6 - 2 * k))
            if DBG["stamp"]: a("s_waitcnt lgkmcnt(0)")
            for e in range(4):
                x = vr(F + 8 * k + 2 * e, 2)
                a("v_pk_add_f32 %s, %s, %s op_sel_hi:[1,0]" % (x, x, vr(BS + 2 * (k >> 1), 2)))
            for e in range(4):
                x = vr(F + 8 * k + 2 * e, 2)
                a("v_pk_mul_f32 %s, %s, %s" % (x, x, vr(t + 2 * e, 2)))
            for e in range(4):
                a("v_cvt_pk_bf16_f32 v%d, v%d, v%d" % (Z1 + 4 * k + e, F + 8 * k + 2 * e, F + 8 * k + 2 * e + 1))
            a("buffer_store_dwordx4 %s, v%d, s[24:27], s%d offen sc1" % (vr(Z1 + 4 * k, 4), VO, 72 + k))
    def extra(a, chained, nxt):
        if chained:
            a("s_waitcnt vmcnt(0)")
            a("s_barrier")
            g.flag_store(a)
        a("s_sub_u32 s4, s2, 224")
        a("v_lshlrev_b32 v2, 7, v0")
        a("v_add_u32 v3, 0x10000, v2")
        touch(a, P_WOUT, 114688, "s4", 2, 8, 4)
        a("buffer_load_dword v5, v3, s[8:11], 0 offen")
        a("s_lshl_b32 s100, s4, 2"); a("s_add_u32 s100, s100, %d" % (2048 * 4))
        a("s_waitcnt vmcnt(0)")
        a("s_branch %s" % nxt)
    g.extra = extra
    kn = g.emit(a, tilemap_16x14, setup, cpro, lpro, epi, None, common, **ch)
    return g, g.LDS_MAIN

ORDER = ["k1", "k2", "k3", "k4", "k5", "k6"]
def build(path, order=None):
    a = Asm()
    ks = {}
    def small(fn, name):
        m = len(a.lines)
        r = fn(a)
        if DBG["stamp"]:
            body = a.lines[m:]; del a.lines[m:]
            st = Stamper(name)
            armed = False
            for k, l in enumerate(body):
                t = l.strip()
                if t.startswith("s_load_dwordx4 s[60:63]"): armed = True
                if t == "s_endpgm" and not body[k - 1].endswith(":"):
                    a("s_mov_b64 exec, -1"); st.stamp_out(a)
                if t.endswith(":") and "_end" in t:
                    a("s_mov_b64 exec, -1"); st.stamp_out(a); a("s_endpgm")
                a.lines.append(l)
                if armed and t == "s_waitcnt lgkmcnt(0)":
                    st.stamp(a, 0); armed = False; a("v_mov_b32 v254, 0")
            r = (r[0], 256) + r[2:]
        return r
    if CFG["ST01"]:
        a.lines = [l + " sc1" if ("buffer_store_dwordx" in l and "sc1" not in l) else l for l in a.lines]
    phases = [("k2", k2),
              ("k3", lambda a, **ch: k_res(a, "k3", 1024, WS_O, P_WO, P_X, 0, 2, P_WS, WS_X1, True, CFG["S3"], WS_SO, **ch)),
              ("k4", k4), ("k5", k5),
              ("k6", lambda a, **ch: k_res(a, "k6", 1792, WS_U, P_WOUT, P_WS, WS_X1, 5, P_OUT, 0, False, CFG["S6"], WS_SW, **ch))]
    a.lines.append(".p2align 8")
    prev = p1(a)
    order = ["k1"]
    ks["k1"] = (KN, 256, 256, 512, 163840)
    for i, (nm, fn) in enumerate(phases):
        last = i == 4
        a.lines.append(".p2align 3")
        a.label("L_code_" + nm)
        prev, lds = fn(a, prev=prev, last=last, nxt=None if last else "L_phase_" + phases[i + 1][0])
        assert lds <= 163840
    a.label("L_code_end")
    a("s_endpgm")
    ref = open("cdna_kernels/%s.s.ref" % NAME).read().split("\n")
    head = [l for l in ref if l.startswith(";") and "@launch" not in l and "Override" not in l and "grid=ceil" not in l]
    head = head[:15]
    out = list(head)
    for k in order:
        kn, vg, grid, blk, lds = ks[k]
        out.append("; @launch grid=(%d,1,1) block=(%d,1,1) lds=%d" % (grid, blk, lds))
    out.append('.amdgcn_target "amdgcn-amd-amdhsa--gfx950"')
    out.append(".text")
    out += a.lines
    out.append('.section .rodata,"a"')
    for k, (kn, vg, grid, blk, lds) in ks.items():
        out.append(kernel_desc(kn, vg, 102))
    open(path, "w").write("\n".join(out) + "\n")

if __name__ == "__main__":
    build(sys.argv[1] if len(sys.argv) > 1 else "cdna_kernels/%s.s" % NAME)
```
